```python
import torch

def _softmax(x, axis=-1):
    return torch.softmax(x, dim=axis)
def _gelu(x):
    return torch.nn.functional.gelu(x, approximate="tanh")
def _silu(x):
    return torch.nn.functional.silu(x)
def _sigmoid(x):
    return torch.sigmoid(x)
def _layernorm(x, axis=-1, eps=1e-5):
    m = x.mean(dim=axis, keepdim=True)
    v = x.var(dim=axis, keepdim=True, unbiased=False)
    return (x - m) / torch.sqrt(v + eps)
def _scatter_add(tgt, idx, src, axis=0):
    return tgt.clone().index_add_(axis, idx, src)
def _segment_sum(src, seg, n):
    out = torch.zeros((n,) + src.shape[1:], dtype=src.dtype)
    return out.index_add_(0, seg, src)
def _pad(x, pw):
    flat = tuple(v for pair in reversed(pw) for v in pair)
    return torch.nn.functional.pad(x, flat)

kernel_name = 'interleave_layers__sliding_block__mixer_s_mlp__prompt'

def setup_inputs():

    _w = (lambda a: (lambda t: t.to(torch.bfloat16) if t.is_floating_point() else t)(torch.as_tensor(a)))
    def _A_setup():
        B, S, D = 1, 2048, 512
        return {
            "x": _w((lambda *s: torch.randn(*s, dtype=torch.bfloat16) * 0.05)(B, S, D)),
            "wqkv": _w((lambda *s: torch.randn(*s, dtype=torch.bfloat16) * 0.1)(D, 3 * D)),
            "wo": _w((lambda *s: torch.randn(*s, dtype=torch.bfloat16) * 0.1)(D, D)),
        }
    _A_in = _A_setup()

    def _B_setup():
        B, S, D, F = 1, 2048, 512, 1792
        return {
            "x":  _w((lambda *s: torch.randn(*s, dtype=torch.bfloat16) * 0.05)(B, S, D)),
            "w1": _w((lambda *s: torch.randn(*s, dtype=torch.bfloat16) * 3.2)(D, D) * (D ** -0.5)),
            "w2": _w((lambda *s: torch.randn(*s, dtype=torch.bfloat16) * 3.2)(D, D) * (D ** -0.5)),
            "w3": _w((lambda *s: torch.randn(*s, dtype=torch.bfloat16) * 3.2)(D, F) * (D ** -0.5)),
            "w4": _w((lambda *s: torch.randn(*s, dtype=torch.bfloat16) * 3.2)(F, D) * (F ** -0.5)),
        }
    _B_in = _B_setup()

    return {
        "A_x": _A_in["x"],
        "A_wqkv": _A_in["wqkv"],
        "A_wo": _A_in["wo"],
        "B_x": _B_in["x"],
        "B_w1": _B_in["w1"],
        "B_w2": _B_in["w2"],
        "B_w3": _B_in["w3"],
        "B_w4": _B_in["w4"],
    }

def reference(A_x, A_wqkv, A_wo, B_x, B_w1, B_w2, B_w3, B_w4):
    def _A_ref(x, wqkv, wo):
        B, S, D = x.shape
        H = 32; Dh = D // H; W = 256
        qkv = (lambda x, *d: x.permute(*d))((x @ wqkv).reshape(B, S, 3, H, Dh), 2, 0, 3, 1, 4)
        q, k, v = qkv[0], qkv[1], qkv[2]
        scores = torch.einsum("bhqd,bhkd->bhqk", q, k) * (Dh ** -0.5)
        idx = torch.arange(S)
        mask = (idx[:, None] - idx[None, :] >= 0) & (idx[:, None] - idx[None, :] < W)
        scores = torch.where(mask[None, None], scores, -1e9)
        p = _softmax(scores, axis=-1)
        o = torch.einsum("bhqk,bhkd->bhqd", p, v)
        return (lambda x, *d: x.permute(*d))(o, 0, 2, 1, 3).reshape(B, S, D) @ wo

    def _B_ref(x, w1, w2, w3, w4):
        B, S, D = x.shape
        h = _gelu(_layernorm(x, axis=-1) @ w1)
        c = D // 4
        g0 = _pad(h[:, :, 0*c:1*c], ((0, 0), (1, 0), (0, 0)))[:, :S, :]
        g1 = _pad(h[:, :, 1*c:2*c], ((0, 0), (0, 1), (0, 0)))[:, 1:, :]
        g2 = _pad(h[:, :, 2*c:3*c], ((0, 0), (2, 0), (0, 0)))[:, :S, :]
        g3 = _pad(h[:, :, 3*c:   ], ((0, 0), (0, 2), (0, 0)))[:, 2:, :]
        hs = torch.concatenate([g0, g1, g2, g3], axis=-1) @ w2
        x1 = x + hs
        h2 = _gelu(_layernorm(x1, axis=-1) @ w3) @ w4
        return x1 + h2

    x = A_x
    x = x + _A_ref(_layernorm(x, axis=-1), A_wqkv, A_wo)
    x = x + _B_ref(_layernorm(x, axis=-1), B_w1, B_w2, B_w3, B_w4)
    x = x + _A_ref(_layernorm(x, axis=-1), A_wqkv, A_wo)
    x = x + _B_ref(_layernorm(x, axis=-1), B_w1, B_w2, B_w3, B_w4)
    return x
```

```python
import re

TRANS = ("v_exp_f32", "v_log_f32", "v_rcp_f32", "v_rsq_f32", "v_sqrt_f32", "v_sin_f32", "v_cos_f32")
_reg = re.compile(r"^-?\|?([vas])(?:(\d+)|\[(\d+):(\d+)\])\|?$")

def regs_of(op):
    op = op.strip()
    if op in ("vcc", "vcc_lo", "vcc_hi"): return {"vcc"}
    if op in ("exec", "exec_lo", "exec_hi"): return {"exec"}
    if op == "m0": return {"m0"}
    m = _reg.match(op)
    if not m: return set()
    k = m.group(1)
    if m.group(2) is not None: return {k + m.group(2)}
    return {k + str(i) for i in range(int(m.group(3)), int(m.group(4)) + 1)}

class Ins:
    def __init__(self, text):
        self.text = text
        t = text.split(";")[0].strip()
        self.label = t[:-1] if t.endswith(":") else None
        self.op = None; self.dst = set(); self.src = set(); self.kind = "other"
        self.ws = 0; self.target = None; self.A = self.B = self.C = set(); self.passes = 0
        self.data = set(); self.wide = False; self.lds = False
        if self.label or not t or t.startswith("."): return
        p = t.split(None, 1); op = p[0]; self.op = op; self.ws = 1
        rest = p[1] if len(p) > 1 else ""
        ops = [o.strip() for o in rest.split(",")] if rest else []
        mods = ""
        cut = re.search(r"\s(op_sel|neg_lo|neg_hi|offset|offen|sc0|sc1|nt\b|lds\b|row_|quad_perm|clamp|mul:|div:|bound|cbsz|abid|blgp)", rest)
        if cut:
            mods = rest[cut.start():]; ops = [o.strip() for o in rest[:cut.start()].split(",")]
        R = [regs_of(o) for o in ops]
        allr = set().union(*R) if R else set()
        if op == "s_nop": self.ws = int(ops[0]) + 1; self.kind = "salu"
        elif op.startswith("v_mfma"):
            self.kind = "mfma"; self.dst = R[0]; self.A, self.B, self.C = R[1], R[2], R[3]
            self.src = R[1] | R[2] | R[3]; self.passes = 8 if "32x32" in op else 4
        elif op.startswith("v_"):
            self.kind = "valu"
            if "permlane" in op and "swap" in op: self.dst = allr; self.src = allr
            elif op.startswith("v_cmp"): self.dst = R[0]; self.src = set().union(*R[1:])
            elif "_co_" in op: self.dst = R[0] | R[1]; self.src = set().union(*R[2:])
            else:
                self.dst = R[0]; self.src = set().union(*R[1:]) if len(R) > 1 else set()
                if op.startswith(("v_fmac", "v_dot2c", "v_writelane", "v_mac")): self.src |= R[0]
                if op.startswith("v_cndmask") and len(R) == 3: self.src |= {"vcc"}
            self.dpp = "row_" in mods or "quad_perm" in mods
        elif op.startswith("ds_"):
            self.kind = "ds"
            if "read" in op or "bpermute" in op: self.dst = R[0]; self.src = set().union(*R[1:])
            else: self.src = allr
        elif op.startswith(("buffer_", "global_")):
            self.kind = "vmem"; self.lds = bool(re.search(r"\blds\b", mods)) or "_lds_" in op
            if "load" in op and not self.lds: self.dst = R[0]; self.src = set().union(*R[1:])
            else:
                self.src = allr
                if "store" in op:
                    self.data = R[0] if op.startswith("buffer") else R[1]
                    self.wide = op.endswith(("x3", "x4"))
        elif op.startswith("s_"):
            self.kind = "salu"
            if op.startswith(("s_branch", "s_cbranch")): self.target = ops[0]
            elif op.startswith(("s_cmp", "s_bitcmp", "s_waitcnt", "s_barrier", "s_endpgm", "s_sleep", "s_setprio")): self.src = allr
            else:
                self.dst = R[0] if R else set(); self.src = set().union(*R[1:]) if len(R) > 1 else set()
                if "saveexec" in op: self.dst |= {"exec"}

def need(p, c):
    n = 0
    vec = lambda s: {r for r in s if r[0] in "va" and r != "vcc"}
    sca = lambda s: {r for r in s if r[0] == "s" or r == "vcc"}
    if p.kind == "valu":
        d = vec(p.dst); sd = sca(p.dst)
        if c.kind == "mfma" and d & c.src: n = max(n, 2)
        if c.kind == "valu":
            if d & c.src:
                if "permlane" in c.op or c.dpp: n = max(n, 2)
                if c.op.startswith(("v_readlane", "v_readfirstlane")): n = max(n, 1)
                if p.op.startswith(TRANS): n = max(n, 1)
                if p.op.startswith("v_dot"): n = max(n, 3)
            if sd & c.src: n = max(n, 4 if c.op.startswith(("v_readlane", "v_writelane")) else 2)
        if c.kind == "vmem" and sd & c.src: n = max(n, 5)
        if "exec" in p.dst and c.kind in ("valu", "mfma"): n = max(n, 5)
    if p.kind == "mfma":
        big = p.passes == 8
        if c.kind == "mfma":
            if p.dst & (c.A | c.B): n = max(n, 12 if big else 8)
            if p.dst & c.C and not (p.dst == c.C and p.passes == c.passes): n = max(n, 10 if big else 6)
            if p.dst & c.dst and p.passes != c.passes: n = max(n, 12 if big else 8)
        if c.kind in ("valu", "ds", "vmem"):
            if p.dst & (c.src | c.dst): n = max(n, 12 if big else 8)
            if p.C & c.dst: n = max(n, 7 if big else 3)
    if p.kind == "vmem" and p.wide and p.data & c.dst: n = max(n, 2)
    if p.kind == "salu" and "m0" in p.dst and c.kind == "vmem" and c.lds: n = max(n, 1)
    return n

def fix_hazards(lines):
    I = [Ins(t) for t in lines]
    out = []
    def preds_build(L):
        lab = {x.label: i for i, x in enumerate(L) if x.label}
        br = {}
        for i, x in enumerate(L):
            if x.target in lab: br.setdefault(lab[x.target], []).append(i)
        return br
    nins = 0
    changed = True
    while changed:
        changed = False
        br = preds_build(I)
        add = {}
        for i, c in enumerate(I):
            if c.op is None or c.kind == "salu": continue
            worst = 0
            stack = [(i, 0)]; seen = {}
            while stack:
                k, dist = stack.pop()
                pp = []
                if k > 0 and not (I[k-1].op in ("s_branch", "s_endpgm")): pp.append(k - 1)
                if I[k].label: pp += br.get(k, [])
                for q in pp:
                    d = dist + (add.get(k, 0) if k != i else 0)
                    if seen.get(q, 99) <= d: continue
                    seen[q] = d
                    p = I[q]
                    if p.op is not None:
                        worst = max(worst, need(p, c) - d)
                    nd = d + p.ws
                    if nd < 12: stack.append((q, nd))
            if worst > 0: add[i] = worst
        if add:
            J = []
            for i, c in enumerate(I):
                if i in add:
                    J.append(Ins(f"s_nop {add[i]-1}")); nins += 1
                J.append(c)
            I = J; changed = True
    return [x.text for x in I], nins

class Asm:
    def __init__(self):
        self.L = []; self.vm = []; self.lg = []; self.nlab = 0
    def __call__(self, text):
        for t in text.split("\n"):
            t = t.strip()
            if t: self.L.append(t)
    def lab(self, base):
        self.nlab += 1; return f"{base}_{self.nlab}"
    def vmem(self, text, tag=None):
        self(text); self.vm.append(tag)
    def ds(self, text, tag=None):
        self(text); self.lg.append(tag)
    @staticmethod
    def _n(q, tags):
        idx = max((i for i, t in enumerate(q) if t in tags), default=-1)
        return None if idx < 0 else len(q) - 1 - idx
    def wait(self, vm=None, lg=None):
        parts = []
        for q, t, name, mx in ((self.vm, vm, "vmcnt", 63), (self.lg, lg, "lgkmcnt", 15)):
            if t is None: continue
            if t == "all": n = 0 if q else None
            else: n = self._n(q, t if isinstance(t, list) else [t])
            if n is None: continue
            n = min(n, mx)
            del q[:len(q) - n]
            parts.append(f"{name}({n})")
        if parts: self("s_waitcnt " + " ".join(parts))

def v(i, n=1): return f"v{i}" if n == 1 else f"v[{i}:{i+n-1}]"
def a(i, n=1): return f"a{i}" if n == 1 else f"a[{i}:{i+n-1}]"
def s(i, n=1): return f"s{i}" if n == 1 else f"s[{i}:{i+n-1}]"
def r(i, n=1): return v(i, n) if i < 256 else a(i - 256, n)
```

```python
import sys, math, struct
from asmlib import *

NAME = "interleave_layers__sliding_block__mixer_s_mlp__prompt"
OPT = dict(x.split("=") if "=" in x else (x, "1") for x in sys.argv[2:])
PROF = int(OPT.get("prof", 0)); STOP = int(OPT.get("stop", 99))
KB = 1024
FX, FO, FX2, FH_, FX1, FKV_, FH3 = 0, 16*KB, 32*KB, 48*KB, 64*KB, 80*KB, 112*KB
STX, STX2, STX1 = 168*KB, 169*KB, 170*KB
R = 172*KB; R2 = 2*R
ACT_OFF = 0x10000; PROF_OFF = 0x8000000
GB, GH, GA, GKV = 0, 2048, 4096, 5120
KVB = 110*KB; PART = 156*KB; CSQ = 158*KB; CS3 = 158*KB + 512
W3B = 36*KB
M32 = "v_mfma_f32_32x32x16_bf16"; M16 = "v_mfma_f32_16x16x32_bf16"
def f2u(x): return "0x%08x" % struct.unpack("<I", struct.pack("<f", x))[0]
LOG2E = 1.4426950408889634
C1 = -2*math.sqrt(2/math.pi)*LOG2E; C2 = C1*0.044715

ACT, FLG, WQ, WO, W1, W2, W3, W4, XO, DBG = 4, 8, 12, 16, 20, 24, 28, 32, 36, 40
(sW, sC, sHP, sNT, sTB32, sTB16, sLAY, sPURE, sPUREH, s4K, s8K, s12K, s32K, s2R, sOFF, sCNT,
 sT0, sT1, sOUT, _o1, sFB, sFA, sL1, sW1K, sFBo, sFHo, sFAo, sFKVo, sKVo, sKVf, sTBF, sNTL,
 sGC1, _g1, sGC2, _g2, sT2, sT3, sH3p, sH3s, sIT, sMT) = range(44, 86)
sPT = 90
SK = [0, s(s4K), s(s8K), s(s12K)]
(vL, vA16, vP16, vA32, vA3, vST, vDB, vDQ) = range(0, 8)
vRB = [8, 9, 10, 11]; vWq = 12; vL16 = 13
vPB32, vPB16, vPA, vPH, vPKV = 14, 15, 16, 17, 18
vT0, vT1, vT2 = 19, 20, 21
vPR2, vPR = 22, 23
RES = 24; XB = 40
A0 = 256

k = Asm()
nmark = [0]; marks = []
def mark(name):
    if not PROF: return
    k(f"s_memtime {s(sPT,2)}\ns_waitcnt lgkmcnt(0)\nv_writelane_b32 {v(vPR)}, {s(sPT)}, {nmark[0]}")
    k.lg.clear(); marks.append(name); nmark[0] += 1

def srd(d, nbytes):
    k(f"s_mov_b32 {s(d+2)}, {nbytes}\ns_mov_b32 {s(d+3)}, 0x20000")

def barrier():
    k.wait(lg="all"); k("s_barrier")

def poll(va, sval):
    L = k.lab("poll")
    k(f"s_mov_b32 {s(sCNT)}, 0x8000\n{L}:")
    k.vmem(f"buffer_load_dword {v(vT0)}, {v(va)}, {s(FLG,4)}, 0 offen sc1")
    k(f"s_sub_u32 {s(sCNT)}, {s(sCNT)}, 1\ns_cbranch_scc1 bail")
    k.wait(vm="all")
    k(f"v_cmp_gt_u32 vcc, {s(sval)}, {v(vT0)}\ns_cbranch_vccnz {L}")

def flag(saddr, sval, sc):
    k(f"v_mov_b32 {v(vT0)}, {s(sval)}\ns_mov_b64 exec, 1")
    k.vmem(f"buffer_store_dword {v(vT0)}, off, {s(FLG,4)}, {s(saddr)}{sc}")
    k("s_mov_b64 exec, -1")

def publish(stores, saddr, sval, spure):
    Ls, Le = k.lab("pub_sc"), k.lab("pub_end")
    k(f"s_cmp_eq_u32 {s(spure)}, 0\ns_cbranch_scc1 {Ls}")
    for sc in ("", " sc1"):
        if sc: k(f"{Ls}:")
        for t in stores:
            if t.startswith("buffer"): k.vmem(t + sc)
            else: k(t)
        k.wait(vm="all")
        flag(saddr, sval, sc)
        if not sc: k(f"s_branch {Le}")
    k(f"{Le}:")

def dmaB(w, groups, tag="dma"):
    prev = None
    for g, lds in groups:
        if prev and lds - prev[1] == 4096: k(f"s_add_u32 m0, m0, {s(s4K)}")
        else: k(f"s_add_u32 m0, {s(sW1K)}, {lds}")
        if prev and g - prev[0] == 1: k(f"s_add_u32 {s(sOFF)}, {s(sOFF)}, {s(s32K)}")
        else: k(f"s_mov_b32 {s(sOFF)}, {g*32768}")
        k.vmem(f"buffer_load_dwordx4 {v(vDB)}, {s(w,4)}, {s(sOFF)} offen lds", tag)
        prev = (g, lds)

def dmaQ():
    k(f"s_mul_i32 {s(sT0)}, {s(sW)}, 3072\ns_mov_b32 m0, {s(sT0)}\ns_mov_b32 {s(sOFF)}, 0")
    for G in range(8):
        if G: k(f"s_add_u32 m0, m0, {s(s12K)}\ns_add_u32 {s(sOFF)}, {s(sOFF)}, {64*3072}")
        for b in range(3):
            k.vmem(f"buffer_load_dwordx4 {v(vDQ)}, {s(WQ,4)}, {s(sOFF)} offen offset:{b*1024} lds", "dma")

def dma3(quads, vD):
    for p in range(7):
        k(f"v_add_u32 {v(vT0)}, {64*p}, {v(vL)}\nv_mul_u32_u24 {v(vT0)}, 4682, {v(vT0)}\n"
          f"v_lshrrev_b32 {v(vT0)}, 16, {v(vT0)}\nv_mul_u32_u24 {v(vT0)}, 3360, {v(vT0)}\n"
          f"v_add_u32 {v(vD+p)}, {v(vT0)}, {v(vL16)}")
    k(f"s_mul_i32 {s(sT0)}, {s(sW)}, 7168\ns_mul_i32 {s(sT1)}, {s(sW)}, {32*3584}\n"
      f"s_mul_i32 {s(sT2)}, {s(sHP)}, 224\ns_add_u32 {s(sT1)}, {s(sT1)}, {s(sT2)}")
    for q in quads:
        k(f"s_add_u32 m0, {s(sT0)}, {W3B + q*4*7168}\ns_add_u32 {s(sOFF)}, {s(sT1)}, {q*4*32*3584}")
        for p in range(7):
            if p == 4: k(f"s_add_u32 m0, m0, {s(s4K)}\ns_add_u32 {s(sOFF)}, {s(sOFF)}, {s(s4K)}")
            k.vmem(f"buffer_load_dwordx4 {v(vD+p)}, {s(W3,4)}, {s(sOFF)} offen offset:{(p%4)*1024} lds", "dma")

def rb_bases(vb, his):
    m = {0: vRB}
    for n, hi in enumerate(h for h in his if h):
        m[hi] = [vb + 4*n + f for f in range(4)]
        for f in range(4): k(f"v_add_u32 {v(m[hi][f])}, {hi*65536}, {v(vRB[f])}")
    return m

def rd_fragB(dst, lds, fb, bases, tag):
    hi = lds // 65536
    for j in range(2):
        k.ds(f"ds_read_b64_tr_b16 {r(dst+2*j,2)}, {v(bases[hi][fb])} offset:{lds%65536 + j*2048}", tag)

def fill(slots, dst, vb, cs=None, ones=None):
    bases = rb_bases(vb, sorted({a // 65536 for a in slots}))
    n = len(slots)*4
    for i in range(n + 6):
        if i < n: rd_fragB(dst + 4*i, slots[i//4], i % 4, bases, ("f", i))
        m = i - 6
        if cs is not None and m >= 0:
            k.wait(lg=("f", m))
            c = v(cs + 4*(m % 4), 4)
            k(f"{M16} {c}, {r(dst+4*m,4)}, {v(ones,4)}, {c if m >= 4 else 0}")

def pk(op, d, a_, b_, c_=None, bsel=None):
    n = 3 if c_ is not None else 2
    t = f"v_pk_{op}_f32 {d}, {a_}, {b_}" + (f", {c_}" if c_ is not None else "")
    if bsel is not None:
        lo = [0]*n; hi = [1]*n; lo[1] = bsel; hi[1] = bsel
        t += f" op_sel:[{','.join(map(str,lo))}] op_sel_hi:[{','.join(map(str,hi))}]"
    k(t)

def cvt(d, src, n):
    for i in range(n): k(f"v_cvt_pk_bf16_f32 {v(d+i)}, {v(src+2*i)}, {v(src+2*i+1)}")

def finish_stats(sq, out, two_level):
    a_, b_ = v(sq), v(sq+1)
    k(f"v_permlane32_swap_b32 {a_}, {b_}\nv_add_f32 {a_}, {a_}, {b_}\nv_mov_b32 {b_}, {a_}")
    if two_level: k(f"v_permlane16_swap_b32 {a_}, {b_}\nv_add_f32 {a_}, {a_}, {b_}\nv_mov_b32 {b_}, {a_}")
    k(f"v_permlane32_swap_b32 {a_}, {b_}\nv_mul_f32 {a_}, {f2u(1/512)}, {a_}\nv_mul_f32 {b_}, {f2u(1/512)}, {b_}\n"
      f"v_fma_f32 {b_}, -{a_}, {a_}, {b_}\nv_max_f32 {v(out+2)}, 0, {b_}\nv_add_f32 {b_}, {f2u(1e-5)}, {v(out+2)}\n"
      f"v_rsq_f32 {v(out)}, {b_}\nv_mul_f32 {v(out+1)}, -{a_}, {v(out)}")

def pub_tile(src, field, stf, tmp):
    cvt(tmp, src, 8)
    S, Q = tmp + 8, tmp + 10
    pk("add", v(S,2), v(src,2), v(src+2,2)); pk("mul", v(Q,2), v(src,2), v(src,2))
    for i in range(1, 8):
        if i > 1: pk("add", v(S,2), v(S,2), v(src+2*i,2))
        pk("fma", v(Q,2), v(src+2*i,2), v(src+2*i,2), v(Q,2))
    k(f"v_add_f32 {v(S)}, {v(S)}, {v(S+1)}\nv_add_f32 {v(S+1)}, {v(Q)}, {v(Q+1)}\n"
      f"v_permlane32_swap_b32 {v(S)}, {v(S+1)}\nv_add_f32 {v(S)}, {v(S)}, {v(S+1)}\nv_mov_b32 {v(S+1)}, {v(S)}\n"
      f"v_permlane16_swap_b32 {v(S)}, {v(S+1)}\nv_add_f32 {v(S)}, {v(S)}, {v(S+1)}")
    k(f"s_mov_b32 {s(sT0)}, {field}\ns_mov_b32 {s(sT1)}, {stf}\ns_add_u32 {s(sFB)}, {s(sFB)}, 1")
    publish([f"buffer_store_dwordx4 {v(tmp,4)}, {v(vP16)}, {s(ACT,4)}, {s(sT0)} offen",
             f"buffer_store_dwordx4 {v(tmp+4,4)}, {v(vP16)}, {s(ACT,4)}, {s(sT0)} offen offset:1024",
             f"buffer_store_dword {v(S)}, {v(vST)}, {s(ACT,4)}, {s(sT1)} offen"], sFBo, sFB, sPURE)

def gelu(y, n, tmp):
    P = range(0, n, 2)
    for i in P: pk("mul", v(tmp+i,2), v(y+i,2), v(y+i,2))
    for i in P: pk("fma", v(tmp+i,2), v(tmp+i,2), s(sGC2,2), v(vT1,2))
    for i in P: pk("mul", v(tmp+i,2), v(tmp+i,2), v(y+i,2))
    for i in range(n): k(f"v_exp_f32 {v(tmp+i)}, {v(tmp+i)}")
    for i in P: k(f"v_pk_add_f32 {v(tmp+i,2)}, {v(tmp+i,2)}, 1.0 op_sel_hi:[1,0]")
    for i in range(n): k(f"v_rcp_f32 {v(tmp+i)}, {v(tmp+i)}")
    for i in P: pk("mul", v(y+i,2), v(y+i,2), v(tmp+i,2))

def gelu_consts():
    k(f"v_mov_b32 {v(vT1)}, {f2u(C1)}\nv_mov_b32 {v(vT2)}, {f2u(C1)}")

def sum_partials(n16, stride, dst, tmp):
    k(f"v_min_u32 {v(vT0)}, {n16-1}, {v(vL)}\nv_lshlrev_b32 {v(vT0)}, 4, {v(vT0)}\nv_add_u32 {v(vT0)}, {PART}, {v(vT0)}")
    for i in range(4): k.ds(f"ds_read_b128 {v(tmp+4*i,4)}, {v(vT0)} offset:{i*stride}")
    k.wait(lg="all")
    for i in range(1, 4):
        for h in (0, 2): pk("add", v(tmp+h,2), v(tmp+h,2), v(tmp+4*i+h,2))
    k.ds(f"ds_write_b128 {v(vT0)}, {v(tmp,4)} offset:{dst-PART}")
    k.wait(lg="all")

def stop(n):
    if STOP == n: k("s_branch bail")

def prologue():
    k("s_cmp_ge_u32 s2, 0x100\ns_cbranch_scc1 bail")
    for d, off in ((FLG, 80), (XO, 0), (WQ, 8), (DBG, 72), (WO, 16), (W1, 32), (W2, 40), (W3, 48), (W4, 56), (sOUT, 64)):
        k(f"s_load_dwordx2 {s(d,2)}, s[0:1], {off}")
    k(f"""v_lshrrev_b32 v1, 6, v0
    v_and_b32 v0, 63, v0
    v_readfirstlane_b32 {s(sW)}, v1
    s_and_b32 {s(sC)}, s2, 7
    s_lshr_b32 s3, s2, 3
    s_lshr_b32 {s(sHP)}, s2, 4
    s_lshr_b32 {s(sNT)}, s2, 5
    s_and_b32 {s(sMT)}, s3, 1
    s_lshl_b32 {s(sT0)}, {s(sC)}, 3
    s_lshl_b32 {s(sT1)}, {s(sMT)}, 2
    s_add_u32 {s(sT0)}, {s(sT0)}, {s(sT1)}
    s_add_u32 {s(sTB32)}, {s(sT0)}, {s(sW)}
    s_add_u32 {s(sTBF)}, {s(sTB32)}, {s(sW)}
    s_sub_u32 {s(sTBF)}, {s(sTBF)}, 8
    s_min_u32 {s(sNTL)}, {s(sTB32)}, 8
    s_add_u32 {s(sNTL)}, {s(sNTL)}, 1
    s_and_b32 {s(sT1)}, s3, 3
    s_lshl_b32 {s(sT1)}, {s(sT1)}, 2
    s_add_u32 {s(sT1)}, {s(sT1)}, {s(sW)}
    s_lshl_b32 {s(sT0)}, {s(sC)}, 4
    s_add_u32 {s(sTB16)}, {s(sT0)}, {s(sT1)}
    s_mov_b32 {s(s4K)}, 4096
    s_mov_b32 {s(s8K)}, 8192
    s_mov_b32 {s(s12K)}, 12288
    s_mov_b32 {s(s32K)}, 32768
    s_mov_b32 {s(s2R)}, {R2}
    s_lshl_b32 {s(sW1K)}, {s(sW)}, 10
    v_lshlrev_b32 {v(vL16)}, 4, v0""")
    for d, n in ((FLG, 65536), (XO, 2097152), (WQ, 1572864), (DBG, 256), (WO, 524288), (W1, 524288), (W2, 524288),
                 (W3, 1835008), (W4, 1835008), (ACT, 128*R2)): srd(d, n)
    vXO = 56
    k(f"""v_and_b32 v57, 15, v0
    v_lshrrev_b32 v58, 4, v0
    s_lshl_b32 {s(sT0)}, {s(sTB16)}, 14
    s_lshl_b32 {s(sT1)}, {s(sNT)}, 7
    s_add_u32 {s(sT0)}, {s(sT0)}, {s(sT1)}
    v_lshlrev_b32 {v(vXO)}, 10, v57
    v_lshl_add_u32 {v(vXO)}, v58, 3, {v(vXO)}
    v_add_u32 {v(vXO)}, {s(sT0)}, {v(vXO)}
    v_lshrrev_b32 v59, 2, v0
    v_mul_u32_u24 v59, 3072, v59
    v_and_b32 v60, 3, v0
    v_lshl_add_u32 v59, v60, 4, v59
    s_mul_i32 {s(sT0)}, {s(sW)}, {16*3072}
    s_lshl_b32 {s(sT1)}, {s(sHP)}, 6
    s_add_u32 {s(sT0)}, {s(sT0)}, {s(sT1)}
    v_add_u32 {v(vDQ)}, {s(sT0)}, v59
    s_lshl_b32 {s(sT0)}, {s(sC)}, 13
    s_lshl_b32 {s(sT1)}, s3, 8
    s_add_u32 {s(sT2)}, {s(sT0)}, {s(sT1)}
    v_lshlrev_b32 v61, 2, v0
    v_mov_b32 v62, 0
    s_waitcnt lgkmcnt(0)
    s_add_u32 {s(ACT)}, {s(FLG)}, {ACT_OFF}
    s_addc_u32 {s(ACT+1)}, {s(FLG+1)}, 0""")
    mark("start")
    for f in range(4):
        k.vmem(f"buffer_load_dwordx2 {v(64+2*f,2)}, {v(vXO)}, {s(XO,4)}, 0 offen offset:{32*f}", "x")
    Lz = k.lab("nozero")
    k(f"""s_cmp_lg_u32 {s(sW)}, 0
    s_cbranch_scc1 {Lz}
    buffer_store_dword v62, v61, {s(FLG,4)}, {s(sT2)} offen sc1
    s_getreg_b32 {s(sT2)}, hwreg(HW_REG_XCC_ID, 0, 4)
    s_and_b32 {s(sT2)}, {s(sT2)}, 7
    s_lshl_b32 {s(sT2)}, {s(sT2)}, 3
    s_lshl_b64 {s(sT0,2)}, 1, {s(sT2)}
    v_mov_b32 v62, {s(sT0)}
    v_mov_b32 v63, {s(sT1)}
    s_lshl_b32 {s(sT2)}, {s(sC)}, 3
    s_mov_b64 exec, 1
    s_waitcnt vmcnt(0)
    buffer_atomic_add_x2 v[62:63], off, {s(DBG,4)}, {s(sT2)} sc1
    s_mov_b64 exec, -1
    {Lz}:""")
    dmaQ()
    k(f"""s_mul_i32 {s(sT0)}, {s(sTB16)}, {s(s2R)}
    v_add_u32 {v(vA16)}, {s(sT0)}, {v(vL16)}
    s_lshl_b32 {s(sT1)}, {s(sNT)}, 11
    v_add_u32 {v(vP16)}, {s(sT1)}, {v(vA16)}
    s_lshr_b32 {s(sT1)}, {s(sNT)}, 1
    s_lshl_b32 {s(sT1)}, {s(sT1)}, 8
    s_add_u32 {s(sT0)}, {s(sT0)}, {s(sT1)}
    s_and_b32 {s(sT1)}, {s(sNT)}, 1
    s_lshl_b32 {s(sT1)}, {s(sT1)}, 3
    s_add_u32 {s(sT0)}, {s(sT0)}, {s(sT1)}
    v_lshrrev_b32 v59, 5, v0
    v_lshlrev_b32 v60, 4, v57
    v_lshl_add_u32 v61, v59, 2, v60
    v_add_u32 {v(vST)}, {s(sT0)}, v61
    s_mul_i32 {s(sT0)}, {s(sTB32)}, {2*R2}
    v_add_u32 {v(vA3)}, {s(sT0)}, {v(vL16)}
    v_and_b32 v61, 1, v58
    v_mul_u32_u24 v62, {R2}, v61
    v_lshl_add_u32 v62, v59, 8, v62
    v_add3_u32 {v(vA32)}, v62, v60, {s(sT0)}
    s_lshr_b32 {s(sT1)}, {s(sHP)}, 3
    s_mul_i32 {s(sT1)}, {s(sT1)}, {s(s2R)}
    s_and_b32 {s(sT2)}, {s(sHP)}, 7
    s_lshl_b32 {s(sT2)}, {s(sT2)}, 12
    s_add_u32 {s(sT1)}, {s(sT1)}, {s(sT2)}
    s_add_u32 {s(sT1)}, {s(sT1)}, {FKV_}
    s_add_u32 {s(sKVo)}, {s(sT0)}, {s(sT1)}
    s_mul_i32 {s(sT0)}, {s(sTBF)}, {2*R2}
    s_add_u32 {s(sKVf)}, {s(sT0)}, {s(sT1)}""")
    k(f"""v_lshrrev_b32 v62, 2, v57
    v_and_b32 v63, 3, v0
    v_lshl_add_u32 v72, v59, 2, v62
    v_lshl_add_u32 v73, v61, 2, v63
    v_lshlrev_b32 v73, 3, v73
    v_lshl_add_u32 {v(vWq)}, v72, 6, v73
    v_lshl_add_u32 v72, v61, 2, v62
    v_lshlrev_b32 v73, 10, v59
    v_lshl_add_u32 v73, v72, 7, v73
    v_lshl_add_u32 v73, v63, 3, v73
    v_lshrrev_b32 v72, 1, v72
    v_lshl_add_u32 {v(vRB[0])}, v72, 5, v73
    v_xor_b32 {v(vRB[1])}, 32, {v(vRB[0])}
    v_xor_b32 {v(vRB[2])}, 64, {v(vRB[0])}
    v_xor_b32 {v(vRB[3])}, 0x60, {v(vRB[0])}
    v_lshrrev_b32 v72, 3, v0
    v_and_b32 v73, 7, v0
    v_lshlrev_b32 v74, 1, v58
    v_xor_b32 v74, v74, v73
    v_lshlrev_b32 v74, 4, v74
    v_lshl_add_u32 v74, v72, 10, v74
    s_lshl_b32 {s(sT0)}, {s(sW)}, 13
    s_lshl_b32 {s(sT1)}, {s(sNT)}, 7
    s_add_u32 {s(sT0)}, {s(sT0)}, {s(sT1)}
    v_add_u32 {v(vDB)}, {s(sT0)}, v74""")
    k(f"""s_lshl_b32 {s(sT3)}, {s(sC)}, 13
    s_and_b32 {s(sT0)}, {s(sTB16)}, 15
    s_lshl_b32 {s(sT1)}, {s(sT0)}, 7
    s_add_u32 {s(sT1)}, {s(sT1)}, {s(sT3)}
    v_lshl_add_u32 {v(vPB16)}, v73, 2, {s(sT1)}
    s_lshl_b32 {s(sT2)}, {s(sNT)}, 2
    s_add_u32 {s(sFBo)}, {s(sT1)}, {s(sT2)}
    s_add_u32 {s(sFHo)}, {s(sFBo)}, {GH}
    s_lshr_b32 {s(sT0)}, {s(sT0)}, 1
    s_lshl_b32 {s(sT0)}, {s(sT0)}, 7
    s_add_u32 {s(sT0)}, {s(sT0)}, {s(sT3)}
    s_add_u32 {s(sT0)}, {s(sT0)}, {GA}
    v_lshl_add_u32 {v(vPA)}, v57, 2, {s(sT0)}
    s_and_b32 {s(sT0)}, {s(sTB32)}, 7
    s_lshl_b32 {s(sT1)}, {s(sT0)}, 8
    s_add_u32 {s(sT1)}, {s(sT1)}, {s(sT3)}
    v_and_b32 v74, 1, v72
    v_lshlrev_b32 v74, 7, v74
    v_lshl_add_u32 v74, v73, 2, v74
    v_add_u32 {v(vPB32)}, {s(sT1)}, v74
    s_lshl_b32 {s(sT1)}, {s(sT0)}, 7
    s_lshl_b32 {s(sT2)}, {s(sHP)}, 2
    s_add_u32 {s(sT1)}, {s(sT1)}, {s(sT2)}
    s_add_u32 {s(sT1)}, {s(sT1)}, {s(sT3)}
    s_add_u32 {s(sFAo)}, {s(sT1)}, {GA}
    s_lshl_b32 {s(sT2)}, {s(sHP)}, 7
    s_add_u32 {s(sT2)}, {s(sT2)}, {GKV}
    s_lshl_b32 {s(sT0)}, {s(sT0)}, 2
    s_add_u32 {s(sT0)}, {s(sT0)}, {s(sT2)}
    s_add_u32 {s(sFKVo)}, {s(sT0)}, {s(sT3)}
    s_lshr_b32 {s(sT0)}, {s(sTBF)}, 3
    s_lshl_b32 {s(sT0)}, {s(sT0)}, 13
    s_add_u32 {s(sT2)}, {s(sT2)}, {s(sT0)}
    s_and_b32 {s(sT0)}, {s(sTBF)}, 7
    s_lshl_b32 {s(sT0)}, {s(sT0)}, 2
    s_add_u32 {s(sT2)}, {s(sT2)}, {s(sT0)}
    v_and_b32 v74, 1, v0
    v_lshl_add_u32 {v(vPKV)}, v74, 2, {s(sT2)}
    v_min_u32 v74, 2, v72
    s_sub_u32 {s(sT0)}, {s(sTB16)}, 1
    v_add_u32 v74, {s(sT0)}, v74
    v_max_i32 v74, 0, v74
    v_min_i32 v74, 0x7f, v74
    v_lshrrev_b32 v75, 4, v74
    v_and_b32 v74, 15, v74
    v_lshlrev_b32 v75, 13, v75
    v_lshl_add_u32 v75, v74, 7, v75
    v_lshl_add_u32 v75, v73, 2, v75
    v_add_u32 {v(vPH)}, {GH}, v75
    s_and_b32 {s(sT0)}, {s(sHP)}, 1
    s_mul_i32 {s(sT1)}, {s(sHP)}, 7
    s_add_u32 {s(sT2)}, {s(sT1)}, {s(sT0)}
    s_lshl_b32 {s(sT2)}, {s(sT2)}, 9
    s_add_u32 {s(sH3p)}, {s(sT2)}, {FH3}
    s_mul_i32 {s(sT0)}, {s(sT0)}, {4096-8}
    s_add_u32 {s(sH3s)}, {s(sH3p)}, 3072
    s_sub_u32 {s(sH3s)}, {s(sH3s)}, {s(sT0)}
    s_mov_b32 {s(sGC2)}, {f2u(C2)}
    s_mov_b32 {s(sGC2+1)}, {f2u(C2)}
    s_mov_b32 {s(sLAY)}, 0
    s_mov_b32 {s(sL1)}, 1
    s_mov_b32 {s(sFB)}, 0
    s_mov_b32 {s(sFA)}, 0""")
    k.wait(vm="x")
    for i in range(8):
        k(f"v_lshlrev_b32 {v(RES+2*i)}, 16, {v(64+i)}\nv_and_b32 {v(RES+2*i+1)}, 0xffff0000, {v(64+i)}")
    mark("xload")
    L = k.lab("init")
    k(f"""s_mov_b32 {s(XO)}, {s(sOUT)}
    s_mov_b32 {s(XO+1)}, {s(sOUT+1)}
    v_lshlrev_b32 v72, 3, v73
    s_lshl_b32 {s(sT2)}, 7, {s(sC)}
    s_lshr_b32 {s(sT2)}, {s(sT2)}, 1
    s_and_b32 {s(sT2)}, {s(sT2)}, 0xff
    s_mov_b32 {s(sCNT)}, 0x8000
    {L}:
    buffer_load_dwordx2 v[74:75], v72, {s(DBG,4)}, 0 offen sc1
    s_sub_u32 {s(sCNT)}, {s(sCNT)}, 1
    s_cbranch_scc1 bail
    s_waitcnt vmcnt(0)
    v_sad_u8 v76, v74, 0, 0
    v_sad_u8 v76, v75, 0, v76
    v_cmp_ne_u32 vcc, 32, v76
    s_and_b32 {s(sT0)}, vcc_lo, {s(sT2)}
    s_cbranch_scc1 {L}
    v_readlane_b32 {s(sT0)}, v74, {s(sC)}
    v_readlane_b32 {s(sT1)}, v75, {s(sC)}
    s_nop 3
    s_bcnt1_i32_b64 {s(sT0)}, {s(sT0,2)}
    s_cmp_eq_u32 {s(sT0)}, 1
    s_cselect_b32 {s(sPURE)}, 1, 0
    s_add_u32 {s(sT0)}, {s(sTB16)}, 1
    s_and_b32 {s(sT0)}, {s(sT0)}, 14
    s_cselect_b32 {s(sPUREH)}, {s(sPURE)}, 0""")
    k.vm.clear()
    mark("init")

def selector(d):
    k(f"v_lshrrev_b32 {v(vT0)}, 2, v0\nv_xor_b32 {v(vT0)}, {v(vT0)}, v0\nv_and_b32 {v(vT0)}, 4, {v(vT0)}\n"
      f"v_cmp_eq_u32 vcc, 0, {v(vT0)}\nv_mov_b32 {v(vT0)}, 0x3f803f80\nv_cndmask_b32 {v(d)}, 0, {v(vT0)}, vcc")
    for i in range(1, 4): k(f"v_mov_b32 {v(d+i)}, {v(d)}")

def qkv_att():
    AK, AV, AQ = 56, 72, 88
    FR = 104; CS = 128; STA = 160; RM = 168; PKD = 172
    vWq2, vCS, vV0, vV1, vKW = 188, 189, 190, 191, 192
    SEL = 196; QF = 200
    k(f"v_add_u32 {v(vWq2)}, 49152, {v(vWq)}")
    selector(SEL)
    Ls = k.lab("nocs")
    k(f"s_cmp_lg_u32 {s(sLAY)}, 0\ns_cbranch_scc1 {Ls}")
    k(f"s_mul_i32 {s(sT0)}, {s(sW)}, 3072\nv_add_u32 {v(vT1)}, {s(sT0)}, {v(vWq)}\nv_add_u32 {v(vT2)}, {s(sT0)}, {v(vWq2)}")
    for i in range(24 + 5):
        if i < 24:
            G, b = divmod(i, 3)
            for j in range(2):
                k.ds(f"ds_read_b64_tr_b16 {v(FR+4*(i%6)+2*j,2)}, {v(vT1 if G < 4 else vT2)} offset:{(G%4)*12288+b*1024+j*512}", ("c", i))
        m = i - 5
        if m >= 0:
            k.wait(lg=("c", m)); c = v(AK + 4*(m % 3), 4)
            k(f"{M16} {c}, {v(SEL,4)}, {v(FR+4*(m%6),4)}, {c if m >= 3 else 0}")
    k(f"s_mul_i32 {s(sT0)}, {s(sW)}, 384\ns_add_u32 {s(sT0)}, {s(sT0)}, {PART}\nv_and_b32 {v(vT1)}, 31, v0\n"
      f"v_lshl_add_u32 {v(vT1)}, {v(vT1)}, 2, {s(sT0)}")
    for b in range(3): k.ds(f"ds_write_b32 {v(vT1)}, {v(AK+4*b)} offset:{b*128}")
    barrier()
    sum_partials(24, 384, CSQ, CS)
    k(f"{Ls}:")
    barrier()
    k(f"""v_lshrrev_b32 {v(vT1)}, 5, v0
    v_lshlrev_b32 {v(vCS)}, 4, {v(vT1)}
    v_add_u32 {v(vCS)}, {CSQ}, {v(vCS)}
    v_lshlrev_b32 {v(vT1)}, 6, {v(vT1)}
    v_xor_b32 {v(vV0)}, {v(vT1)}, {v(vL16)}
    v_xor_b32 {v(vV1)}, 0x80, {v(vV0)}
    s_lshl_b32 {s(sT0)}, {s(sW)}, 12
    s_add_u32 {s(sT0)}, {s(sT0)}, {KVB + 8*4096}
    v_add_u32 {v(vKW)}, {s(sT0)}, {v(vL16)}
    v_add_u32 {v(vKW+1)}, {s(sT0)}, {v(vV0)}
    v_add_u32 {v(vKW+2)}, {s(sT0)}, {v(vV1)}
    s_mov_b32 {s(sT1)}, {STX}""")
    def rdq(dst, sp, b, tag):
        G = sp // 4
        for j in range(2):
            off = (G % 4)*12288 + (2*((sp//2) % 2) + j)*3072 + b*1024 + (sp % 2)*512
            k.ds(f"ds_read_b64_tr_b16 {v(dst+2*j,2)}, {v(vWq if G < 4 else vWq2)} offset:{off}", tag)
    for b in (1, 2):
        for q in range(4): k.ds(f"ds_read_b128 {v(CS+16*(b-1)+4*q,4)}, {v(vCS)} offset:{b*128+q*32}", "cs")
    k.wait(lg="all")
    for sp in range(2):
        for b in (1, 2): rdq(FR + 8*sp + 4*(b-1), sp, b, ("w", sp))
    mark("q.pre")
    poll(vPB32, sFB)
    mark("q.poll")
    for i in range(2): k.vmem(f"buffer_load_dwordx4 {v(STA+4*i,4)}, {v(vA32)}, {s(ACT,4)}, {s(sT1)} offen offset:{512*i} sc1", "st")
    for sp in range(32):
        k.vmem(f"buffer_load_dwordx4 {a(4*sp,4)}, {v(vA32)}, {s(ACT,4)}, {SK[sp//8]} offen offset:{(sp%8)*512} sc1", ("x", sp))
    k.wait(vm="st")
    pk("add", v(STA,2), v(STA,2), v(STA+2,2)); pk("add", v(STA+4,2), v(STA+4,2), v(STA+6,2)); pk("add", v(STA,2), v(STA,2), v(STA+4,2))
    finish_stats(STA, RM, False)
    for i in range(0, 32, 2): pk("mul", v(CS+i,2), v(CS+i,2), v(RM,2), bsel=1)
    for sp in range(32):
        if sp + 2 < 32:
            for b in (1, 2): rdq(FR + 8*((sp+2) % 3) + 4*(b-1), sp + 2, b, ("w", sp + 2))
        k.wait(vm=("x", sp), lg=("w", sp))
        for b, acc in ((1, AK), (2, AV)):
            k(f"{M32} {v(acc,16)}, {v(FR+8*(sp%3)+4*(b-1),4)}, {a(4*sp,4)}, {v(acc,16) if sp else 0}")
    mark("q.kv")
    for sp in range(5): rdq(FR + 4*sp, sp, 0, ("w", sp))
    for i in range(0, 32, 2): pk("fma", v(AK+i,2), v(AK+i,2), v(RM,2), v(CS+i,2), bsel=0)
    cvt(PKD, AK, 16)
    for i, va in enumerate((vL16, vL16, vV0, vV1)):
        k.vmem(f"buffer_store_dwordx4 {v(PKD+4*i,4)}, {v(va)}, {s(ACT,4)}, {s(sKVo)} offen offset:{i*1024} sc1")
    k.wait(lg="all")
    for i, va in enumerate((vKW, vKW, vKW+1, vKW+2)):
        k.ds(f"ds_write_b128 {v(va)}, {v(PKD+4*i,4)} offset:{i*1024}")
    for q in range(4): k.ds(f"ds_read_b128 {v(CS+4*q,4)}, {v(vCS)} offset:{q*32}", "cs")
    for sp in range(32):
        if sp + 5 < 32: rdq(FR + 4*((sp+5) % 6), sp + 5, 0, ("w", sp + 5))
        k.wait(lg=("w", sp))
        k(f"{M32} {v(AQ,16)}, {v(FR+4*(sp%6),4)}, {a(4*sp,4)}, {v(AQ,16) if sp else 0}")
        if sp == 24:
            k.wait(vm="all"); flag(sFKVo, sL1, " sc1")
    k(f"v_mul_f32 {v(RM)}, {f2u(0.25*LOG2E)}, {v(RM)}\nv_mul_f32 {v(RM+1)}, {f2u(0.25*LOG2E)}, {v(RM+1)}")
    barrier()
    for i in range(0, 16, 2): pk("mul", v(CS+i,2), v(CS+i,2), v(RM,2), bsel=1)
    for i in range(0, 16, 2): pk("fma", v(AQ+i,2), v(AQ+i,2), v(RM,2), v(CS+i,2), bsel=0)
    cvt(QF, AQ, 8)
    mark("q.q")
    stop(2)
    S0, S1, C0, C1_, MD, MO, O0, O1 = 56, 72, 88, 104, 120, 136, 152, 168
    KF, VF, P, LS, MX = 208, 216, 224, 232, 240
    vK, vVa, vVb = 184, 185, 186
    k(f"""v_and_b32 {v(vT1)}, 31, v0
    v_lshrrev_b32 {v(vT2)}, 5, v0
    v_lshlrev_b32 {v(vT2)}, 2, {v(vT2)}
    v_sub_u32 {v(vT1)}, {v(vT1)}, {v(vT2)}
    v_mov_b32 {v(vT2)}, {f2u(-1e30)}
    v_mov_b32 {v(MX)}, {v(vT2)}
    v_mov_b32 {v(MX+1)}, {v(vT2)}""")
    for i in range(16):
        k(f"v_cmp_gt_i32 vcc, {8*(i//4)+i%4}, {v(vT1)}\nv_mov_b32 {v(C0+i)}, 0\nv_mov_b32 {v(O0+i)}, 0\n"
          f"v_cndmask_b32 {v(MD+i)}, 0, {v(vT2)}, vcc\nv_mov_b32 {v(O1+i)}, 0\nv_sub_f32 {v(MO+i)}, {v(vT2)}, {v(MD+i)}")
    for i in range(8): k(f"v_mov_b32 {v(LS+i)}, 0")
    k(f"""v_bfe_u32 {v(vT0)}, v0, 4, 1
    v_bfe_u32 {v(vT1)}, v0, 1, 1
    v_lshl_add_u32 {v(vT0)}, {v(vT0)}, 1, {v(vT1)}
    v_lshrrev_b32 {v(vT1)}, 5, v0
    v_xor_b32 {v(vT1)}, {v(vT1)}, {v(vT0)}
    v_lshlrev_b32 {v(vT0)}, 9, {v(vT0)}
    v_lshl_add_u32 {v(vT0)}, {v(vT1)}, 6, {v(vT0)}
    v_bfe_u32 {v(vT1)}, v0, 2, 2
    v_lshl_add_u32 {v(vT0)}, {v(vT1)}, 4, {v(vT0)}
    v_and_b32 {v(vT1)}, 1, v0
    v_lshl_add_u32 {v(vT0)}, {v(vT1)}, 3, {v(vT0)}
    v_xor_b32 {v(vT1)}, 0x80, {v(vT0)}
    s_lshl_b32 {s(sT0)}, {s(sW)}, 12
    s_add_u32 {s(sT0)}, {s(sT0)}, {KVB + 8*4096 + 2048}
    v_add_u32 {v(vVa)}, {s(sT0)}, {v(vT0)}
    v_add_u32 {v(vVb)}, {s(sT0)}, {v(vT1)}
    v_mov_b32 {v(vK)}, {v(vKW)}""")
    Lf = k.lab("noforeign")
    k(f"s_cmp_lt_i32 {s(sTBF)}, 0\ns_cbranch_scc1 {Lf}")
    poll(vPKV, sL1)
    k(f"s_lshl_b32 {s(sT0)}, {s(sW)}, 13\ns_add_u32 m0, {s(sT0)}, {KVB}\ns_mov_b32 {s(sOFF)}, {s(sKVf)}")
    for t in range(2):
        if t: k(f"s_add_u32 m0, m0, {s(s4K)}\ns_add_u32 {s(sOFF)}, {s(sOFF)}, {2*R2}")
        for i in range(4): k.vmem(f"buffer_load_dwordx4 {v(vL16)}, {s(ACT,4)}, {s(sOFF)} offen offset:{i*1024} sc1 lds", "kv")
    k(f"{Lf}:")
    mark("a.poll")
    dmaB(WO, [(g, g*4096) for g in range(16)])
    dmaB(W1, [(g, 64*KB + g*4096) for g in range(11)])
    k.wait(vm="kv")
    barrier()
    mark("a.kv")
    def rdK(tag):
        for h in range(2): k.ds(f"ds_read_b128 {v(KF+4*h,4)}, {v(vK)} offset:{h*1024}", tag)
        k(f"v_subrev_u32 {v(vK)}, {s(s4K)}, {v(vK)}")
    def qk(h, c): k(f"{M32} {v((S0,S1)[h],16)}, {v(KF+4*h,4)}, {v(QF+4*h,4)}, {v(c,16)}")
    rdK("k"); k.wait(lg="all"); qk(0, MD); qk(1, MD); rdK("k")
    L1, L1s = k.lab("p1"), k.lab("p1s")
    k(f"s_mov_b32 {s(sIT)}, 0\n{L1}:\ns_cmp_lg_u32 {s(sIT)}, 7\ns_cbranch_scc1 {L1s}")
    for i in range(16): k(f"v_mov_b32 {v(C0+i)}, {v(MO+i)}")
    k(f"{L1s}:")
    for h, S in enumerate((S0, S1)):
        for i in range(0, 16, 2): k(f"v_max3_f32 {v(MX+h)}, {v(MX+h)}, {v(S+i)}, {v(S+i+1)}")
        k.wait(lg="all"); qk(h, C0)
    rdK("k")
    k(f"s_add_u32 {s(sIT)}, {s(sIT)}, 1\ns_cmp_lt_u32 {s(sIT)}, {s(sNTL)}\ns_cbranch_scc1 {L1}")
    k.wait(lg="all")
    k(f"v_mov_b32 {v(vK)}, {v(vKW)}")
    rdK("k")
    k(f"""v_permlane32_swap_b32 {v(MX)}, {v(MX+1)}
    v_max_f32 {v(MX)}, {v(MX)}, {v(MX+1)}
    v_sub_f32 {v(MX)}, 0, {v(MX)}
    v_mov_b32 {v(MX+1)}, {v(MX)}
    v_permlane32_swap_b32 {v(MX)}, {v(MX+1)}""")
    for h, (S, C) in enumerate(((S0, C0), (S1, C1_))):
        for i in range(0, 16, 2): pk("add", v(S+i,2), v(MD+i,2), v(MX,2), bsel=h)
        k.wait(lg="all"); qk(h, S)
    rdK("k")
    for h, C in enumerate((C0, C1_)):
        for i in range(16): k(f"v_mov_b32 {v(C+i)}, {v(MX+h)}")
    mark("a.p1")
    L2, L2s = k.lab("p2"), k.lab("p2s")
    k(f"s_mov_b32 {s(sIT)}, 0\n{L2}:\ns_cmp_lg_u32 {s(sIT)}, 7\ns_cbranch_scc1 {L2s}")
    for C in (C0, C1_):
        for i in range(0, 16, 2): pk("add", v(C+i,2), v(C+i,2), v(MO+i,2))
    k(f"{L2s}:")
    for u in range(2):
        for j, va in enumerate((vVa, vVb)): k.ds(f"ds_read_b64_tr_b16 {v(VF+4*u+2*j,2)}, {v(va)} offset:{u*256}")
    k(f"v_subrev_u32 {v(vVa)}, {s(s4K)}, {v(vVa)}\nv_subrev_u32 {v(vVb)}, {s(s4K)}, {v(vVb)}")
    for h, (S, C, O) in enumerate(((S0, C0, O0), (S1, C1_, O1))):
        for u in range(2):
            for i in range(8): k(f"v_exp_f32 {v(S+8*u+i)}, {v(S+8*u+i)}")
            cvt(P + 4*u, S + 8*u, 4)
            k.wait(lg="all")
            if u: qk(h, C)
            k(f"{M32} {v(O,16)}, {v(VF+4*u,4)}, {v(P+4*u,4)}, {v(O,16)}")
            k(f"{M16} {v(LS+4*h,4)}, {v(SEL,4)}, {v(P+4*u,4)}, {v(LS+4*h,4)}")
    rdK("k")
    k(f"s_add_u32 {s(sIT)}, {s(sIT)}, 1\ns_cmp_lt_u32 {s(sIT)}, {s(sNTL)}\ns_cbranch_scc1 {L2}")
    mark("a.p2")
    k(f"""v_lshrrev_b32 {v(vT1)}, 5, v0
    v_lshl_add_u32 {v(vT1)}, {v(vT1)}, 8, {v(vA32)}
    s_lshl_b32 {s(sT0)}, {s(sHP)}, 10
    s_add_u32 {s(sT0)}, {s(sT0)}, {FO}
    s_add_u32 {s(sFA)}, {s(sFA)}, 1
    v_rcp_f32 {v(MX)}, {v(LS)}
    v_rcp_f32 {v(MX+1)}, {v(LS+4)}""")
    for i in range(0, 8, 2):
        pk("mul", v(O0+i,2), v(O0+i,2), v(MX,2), bsel=0); pk("mul", v(O1+8+i,2), v(O1+8+i,2), v(MX,2), bsel=1)
    for q in range(2):
        cvt(P + 4*q, O0 + 4*q, 2); cvt(P + 4*q + 2, O1 + 8 + 4*q, 2)
    publish([f"buffer_store_dwordx4 {v(P+4*q,4)}, {v(vT1)}, {s(ACT,4)}, {s(sT0)} offen offset:{q*256}" for q in range(2)],
            sFAo, sFA, sPURE)
    mark("a.pub")

BX = 56
def gemmB(acc, va, cinit, mid=None):
    for st in range(16):
        k.vmem(f"buffer_load_dwordx4 {v(BX+4*st,4)}, {v(va[st//4])}, {s(ACT,4)}, {SK[st//4]} offen offset:{(st%4)*1024} sc1", ("x", st))
    if mid: mid()
    for st in range(16):
        k.wait(vm=("x", st))
        for fb in range(4):
            c = v(acc + 4*fb, 4)
            k(f"{M16} {c}, {a(16*st+4*fb,4)}, {v(BX+4*st,4)}, {c if (st or cinit) else 0}")

W2S = [128*KB + g*4096 for g in range(7)] + [g*4096 for g in range(9)]
W4S = [g*4096 for g in range(9)] + [148*KB, 152*KB]
def wo_w1_w2():
    VB, TMP, vAD, vD3 = 120, 128, 144, 148
    ACC, CS1, ONES, STA, RM, G0 = 160, 176, 192, 196, 200, 208
    barrier()
    dmaB(W1, [(g, 64*KB + g*4096) for g in range(11, 16)])
    dmaB(W2, [(g, W2S[g]) for g in range(7)])
    fill([g*4096 for g in range(16)], A0, VB)
    k(f"v_add_u32 {v(vAD)}, {FO}, {v(vA16)}")
    barrier()
    mark("wo.fill")
    poll(vPA, sFA)
    mark("wo.poll")
    def mid():
        dmaB(W2, [(g, W2S[g]) for g in range(7, 16)])
        dma3([0], vD3)
    gemmB(RES, [vAD]*4, True, mid)
    mark("wo.gemm")
    pub_tile(RES, FX2, STX2, TMP)
    mark("wo.pub")
    stop(4)
    barrier()
    for i in range(4): k(f"v_mov_b32 {v(ONES+i)}, 0x3f803f80")
    fill([64*KB + g*4096 for g in range(16)], A0, VB, CS1, ONES)
    k(f"v_add_u32 {v(vAD)}, {FX2}, {v(vA16)}\ns_mov_b32 {s(sT3)}, {STX2}")
    barrier()
    mark("w1.fill")
    poll(vPB16, sFB)
    mark("w1.poll")
    k.vmem(f"buffer_load_dwordx4 {v(STA,4)}, {v(vA16)}, {s(ACT,4)}, {s(sT3)} offen sc1", "st")
    def mid():
        dma3([1, 2], vD3)
        k.wait(vm="st")
        pk("add", v(STA,2), v(STA,2), v(STA+2,2))
        finish_stats(STA, RM, True)
        k(f"v_mov_b32 {v(STA)}, {v(RM+1)}\nv_mov_b32 {v(STA+1)}, {v(RM+1)}")
        for i in range(0, 16, 2): pk("fma", v(XB+i,2), v(RES+i,2), v(RM,2), v(STA,2), bsel=0)
        k(f"v_mul_f32 {v(STA)}, {v(RM)}, {v(RM)}\nv_fmaak_f32 {v(STA)}, {v(STA)}, {v(RM+2)}, {f2u(1e-5)}\nv_rsq_f32 {v(STA)}, {v(STA)}")
        pk("mul", v(RM,2), v(RM,2), v(STA,2), bsel=0)
        for i in range(0, 16, 2): pk("mul", v(CS1+i,2), v(CS1+i,2), v(RM,2), bsel=1)
        gelu_consts()
    gemmB(ACC, [vAD]*4, False, mid)
    mark("w1.gemm")
    for i in range(0, 16, 2): pk("fma", v(ACC+i,2), v(ACC+i,2), v(RM,2), v(CS1+i,2), bsel=0)
    gelu(ACC, 16, G0)
    cvt(TMP, ACC, 8)
    k(f"s_mov_b32 {s(sT0)}, {FH_}")
    publish([f"buffer_store_dwordx4 {v(TMP+4*i,4)}, {v(vP16)}, {s(ACT,4)}, {s(sT0)} offen offset:{1024*i}" for i in range(2)],
            sFHo, sL1, sPUREH)
    mark("w1.pub")
    stop(5)
    fill(W2S, A0, VB)
    k(f"s_lshl_b32 {s(sT0)}, {s(sTB16)}, 4\nv_and_b32 {v(vT1)}, 15, v0\nv_add_u32 {v(vT1)}, {s(sT0)}, {v(vT1)}\n"
      f"v_and_b32 {v(vT2)}, 0x300, {v(vL16)}\nv_add_u32 {v(vT2)}, {FH_}, {v(vT2)}\nv_mov_b32 {v(TMP+2)}, 0x80000000")
    for i, d in enumerate((-1, 1, -2, 2)):
        k(f"""v_add_u32 {v(vT0)}, {d}, {v(vT1)}
        v_cmp_gt_u32 vcc, 0x800, {v(vT0)}
        v_lshrrev_b32 {v(TMP)}, 4, {v(vT0)}
        v_and_b32 {v(vT0)}, 15, {v(vT0)}
        v_mad_u32_u24 {v(TMP)}, {v(TMP)}, {s(s2R)}, {v(vT2)}
        v_lshl_add_u32 {v(TMP)}, {v(vT0)}, 4, {v(TMP)}
        v_cndmask_b32 {v(vAD+i)}, {v(TMP+2)}, {v(TMP)}, vcc""")
    barrier()
    mark("w2.fill")
    poll(vPH, sL1)
    mark("w2.poll")
    def mid():
        dma3([3], vD3)
        dmaB(W4, [(g, W4S[g]) for g in range(11)])
    gemmB(XB, [vAD+i for i in range(4)], True, mid)
    mark("w2.gemm")
    pub_tile(XB, FX1, STX1, TMP)
    for i in range(0, 16, 2): pk("add", v(RES+i,2), v(RES+i,2), v(XB+i,2))
    mark("w2.pub")
    stop(6)

def w3_w4():
    ACC, FR, BX0, BX1 = 56, 112, 168, A0 + 176
    STA, RM, vW, vAD, VB = 232, 240, 140, 146, 148
    CS = 112
    barrier()
    fill(W4S, A0, VB)
    k(f"""v_lshrrev_b32 {v(vT0)}, 2, v0
    v_mul_u32_u24 {v(vT0)}, 224, {v(vT0)}
    v_and_b32 {v(vT1)}, 3, v0
    v_lshl_add_u32 {v(vT0)}, {v(vT1)}, 3, {v(vT0)}
    s_and_b32 {s(sT0)}, {s(sHP)}, 1
    s_lshl_b32 {s(sT1)}, {s(sT0)}, 5
    s_add_u32 {s(sT1)}, {s(sT1)}, {W3B}
    s_mul_i32 {s(sT0)}, {s(sT0)}, 192
    s_sub_u32 {s(sT0)}, {W3B + 192}, {s(sT0)}
    v_add_u32 {v(vW)}, {s(sT1)}, {v(vT0)}
    v_add_u32 {v(vW+1)}, {s(sT0)}, {v(vT0)}
    v_add_u32 {v(vW+2)}, {8*7168}, {v(vW)}
    v_add_u32 {v(vW+3)}, {8*7168}, {v(vW+1)}
    v_add_u32 {v(vAD)}, {FX1}, {v(vA3)}
    v_add_u32 {v(vAD+1)}, {FX1 + R2}, {v(vA3)}""")
    def rd3(dst, base, st, b, tag):
        for j in range(2):
            off = (st % 8)*7168 + j*3584 + (b*32 if b < 6 else 0)
            k.ds(f"ds_read_b64_tr_b16 {v(dst+2*j,2)}, {v(base + 2*(st//8) + (b == 6))} offset:{off}", tag)
    Ls = k.lab("nocs3")
    k.wait(lg="all")
    k(f"s_cmp_lg_u32 {s(sLAY)}, 0\ns_cbranch_scc1 {Ls}\ns_mul_i32 {s(sT0)}, {s(sW)}, 7168")
    for i in range(4): k(f"v_add_u32 {v(XB+i)}, {s(sT0)}, {v(vW+i)}\nv_mov_b32 {v(XB+4+i)}, 0x3f803f80")
    for i in range(28 + 5):
        if i < 28: rd3(FR + 4*(i % 6), XB, 4*(i//7), i % 7, ("c", i))
        m = i - 5
        if m >= 0:
            k.wait(lg=("c", m)); c = v(ACC + 4*(m % 7), 4)
            k(f"{M16} {c}, {v(XB+4,4)}, {v(FR+4*(m%6),4)}, {c if m >= 7 else 0}")
    k(f"s_mul_i32 {s(sT0)}, {s(sW)}, 448\ns_add_u32 {s(sT0)}, {s(sT0)}, {PART}\nv_and_b32 {v(vT1)}, 15, v0\n"
      f"v_lshl_add_u32 {v(vT1)}, {v(vT1)}, 2, {s(sT0)}")
    for b in range(7): k.ds(f"ds_write_b32 {v(vT1)}, {v(ACC+4*b)} offset:{b*64}")
    barrier()
    sum_partials(28, 448, CS3, FR)
    k(f"{Ls}:")
    barrier()
    D = 5
    for n in range(D): rd3(FR + 4*n, vW, 0, n, ("w", n))
    k(f"s_mov_b32 {s(sT3)}, {STX1 - FX1}")
    mark("w3.fill")
    poll(vPB32, sFB)
    mark("w3.poll")
    for t in range(2): k.vmem(f"buffer_load_dwordx4 {v(STA+4*t,4)}, {v(vAD+t)}, {s(ACT,4)}, {s(sT3)} offen sc1", "st")
    for st in range(16):
        for t, B in enumerate((BX0, BX1)):
            k.vmem(f"buffer_load_dwordx4 {r(B+4*st,4)}, {v(vAD+t)}, {s(ACT,4)}, {SK[st//4]} offen offset:{(st%4)*1024} sc1", ("x", st))
    dmaB(W4, [(11 + g, W4S[g]) for g in range(11)])
    k.wait(vm="st")
    for t in range(2):
        pk("add", v(STA+4*t,2), v(STA+4*t,2), v(STA+4*t+2,2))
        finish_stats(STA + 4*t, RM + 4*t, True)
    for n in range(112):
        st, b = divmod(n, 7)
        if n + D < 112: rd3(FR + 4*((n+D) % 6), vW, (n+D)//7, (n+D) % 7, ("w", n + D))
        k.wait(vm=("x", st), lg=("w", n))
        for t, B in enumerate((BX0, BX1)):
            c = v(ACC + 28*t + 4*b, 4)
            k(f"{M16} {c}, {v(FR+4*(n%6),4)}, {r(B+4*st,4)}, {c if st else 0}")
    mark("w3.gemm")
    k(f"v_and_b32 {v(vT0)}, 0x30, v0\nv_add_u32 {v(vT0)}, {CS3}, {v(vT0)}")
    for b in range(7): k.ds(f"ds_read_b128 {v(CS+4*b,4)}, {v(vT0)} offset:{b*64}")
    k.wait(vm="all")
    barrier()
    dmaB(W4, [(22 + g, W3B + g*4096) for g in range(28)])
    gelu_consts()
    G0, PKD = 168, 196
    stores = []
    for t in range(2):
        A = ACC + 28*t
        for i in range(0, 28, 2): pk("mul", v(G0+i,2), v(CS+i,2), v(RM+4*t,2), bsel=1)
        for i in range(0, 28, 2): pk("fma", v(A+i,2), v(A+i,2), v(RM+4*t,2), v(G0+i,2), bsel=0)
        gelu(A, 28, G0)
        cvt(PKD + 16*t, A, 14)
        va = vA3 if t == 0 else vAD
        for p in range(3): stores.append(f"buffer_store_dwordx4 {v(PKD+16*t+4*p,4)}, {v(va)}, {s(ACT,4)}, {s(sH3p)} offen offset:{p*1024}")
        stores.append(f"buffer_store_dwordx2 {v(PKD+16*t+12,2)}, {v(va)}, {s(ACT,4)}, {s(sH3s)} offen")
    k(f"v_add_u32 {v(vAD)}, {R2}, {v(vA3)}\ns_add_u32 {s(sFA)}, {s(sFA)}, 1")
    mark("w3.epi")
    publish(stores, sFAo, sFA, sPURE)
    mark("w3.pub")
    stop(7)
    RING, AR, BV, VB, vH = 56, 184, 216, 232, 240
    fill(W4S[:5], A0 + 176, VB); fill(W4S[5:6], BV, VB)
    bases = rb_bases(VB, [0, 1, 2])
    for i in range(4): k(f"v_add_u32 {v(vH+i)}, {FH3 + i*16384}, {v(vA16)}")
    barrier()
    dmaB(W4, [(50 + g, W4S[g]) for g in range(6)])
    src = {}
    for g in range(11): src[g] = ("r", A0 + 16*g)
    for g in range(5): src[11+g] = ("r", A0 + 176 + 16*g)
    src[16] = ("r", BV)
    for g in range(6, 11): src[11+g] = ("l", W4S[g])
    for g in range(28): src[22+g] = ("l", W3B + g*4096)
    for g in range(6): src[50+g] = ("l", W4S[g])
    regs = [g for g in range(56) if src[g][0] == "r"]
    low = [g for g in range(56) if src[g][0] == "l" and src[g][1] < 96*KB]
    high = [g for g in range(56) if src[g][0] == "l" and src[g][1] >= 96*KB]
    order = regs[:2]; ri = 2
    for i, g in enumerate(low):
        order.append(g)
        if i % 4 == 3: order.append(regs[ri]); ri += 1
    nlow = len(order)
    for i, g in enumerate(high):
        order.append(g)
        if i % 2 == 1: order.append(regs[ri]); ri += 1
    order += regs[ri:]
    assert sorted(order) == list(range(56))
    mark("w4.fill")
    poll(vPA, sFA)
    mark("w4.poll")
    def ldx(i):
        g = order[i]
        k.vmem(f"buffer_load_dwordx4 {v(RING+4*(i%32),4)}, {v(vH+g//16)}, {s(ACT,4)}, {SK[(g//4)%4]} offen offset:{(g%4)*1024} sc1", ("x", i))
    for i in range(32): ldx(i)
    k("s_barrier")
    lf = [(i, fb) for i in range(56) if src[order[i]][0] == "l" for fb in range(4)]
    pos = {x: n for n, x in enumerate(lf)}
    nxt = 0; used = 0
    for i in range(56):
        kind, loc = src[order[i]]
        if i == nlow:
            k("s_barrier"); dmaQ()
        for fb in range(4):
            while nxt < len(lf) and nxt - used < 7:
                rd_fragB(AR + 4*(nxt % 8), src[order[lf[nxt][0]]][1], lf[nxt][1], bases, ("w", nxt)); nxt += 1
            if kind == "l":
                n = pos[(i, fb)]; k.wait(vm=("x", i), lg=("w", n)); A = v(AR + 4*(n % 8), 4); used += 1
            else:
                k.wait(vm=("x", i)); A = r(loc + 4*fb, 4)
            c = v(RES + 4*fb, 4)
            k(f"{M16} {c}, {A}, {v(RING+4*(i%32),4)}, {c}")
        if i + 32 < 56: ldx(i + 32)
    k.vm.clear(); k.vm.append("dma")
    mark("w4.gemm")

def final():
    k(f"""v_and_b32 v57, 15, v0
    v_lshrrev_b32 v58, 4, v0
    s_lshl_b32 {s(sT0)}, {s(sTB16)}, 14
    s_lshl_b32 {s(sT1)}, {s(sNT)}, 7
    s_add_u32 {s(sT0)}, {s(sT0)}, {s(sT1)}
    v_lshlrev_b32 v56, 10, v57
    v_lshl_add_u32 v56, v58, 3, v56""")
    cvt(64, RES, 8)
    for f in range(4): k(f"buffer_store_dwordx2 {v(64+2*f,2)}, v56, {s(XO,4)}, {s(sT0)} offen offset:{32*f}")

def main():
    prologue()
    k("layer:")
    k.vm.append("dma")
    n0 = nmark[0]
    pub_tile(RES, FX, STX, 56)
    mark("x.pub")
    stop(1)
    qkv_att()
    stop(3)
    wo_w1_w2()
    w3_w4()
    k(f"s_cmp_lg_u32 {s(sLAY)}, 0\ns_cbranch_scc1 done")
    k(f"s_mov_b32 {s(sLAY)}, 1\ns_mov_b32 {s(sL1)}, 2\ns_mov_b32 {s(WQ+2)}, 0\ns_add_u32 {s(ACT)}, {s(ACT)}, {R}\ns_addc_u32 {s(ACT+1)}, {s(ACT+1)}, 0")
    if PROF: k(f"v_mov_b32 {v(vPR2)}, {v(vPR)}")
    k("s_branch layer\ndone:")
    final()
    k("s_waitcnt vmcnt(0)")
    if PROF:
        mark("end")
        k(f"""s_add_u32 {s(DBG)}, {s(FLG)}, {PROF_OFF}
        s_addc_u32 {s(DBG+1)}, {s(FLG+1)}, 0
        s_mov_b32 {s(DBG+2)}, 0x100000
        s_lshl_b32 {s(sT0)}, s2, 2
        s_add_u32 {s(sT0)}, {s(sT0)}, {s(sW)}
        s_lshl_b32 {s(sT0)}, {s(sT0)}, 9
        v_lshlrev_b32 v56, 2, v0
        buffer_store_dword {v(vPR2)}, v56, {s(DBG,4)}, {s(sT0)} offen
        buffer_store_dword {v(vPR)}, v56, {s(DBG,4)}, {s(sT0)} offen offset:256""")
    k("bail:\ns_endpgm")
    body, nn = fix_hazards(k.L)
    ref = open(f"cdna_kernels/{NAME}.s.ref").read().split("\n")
    hd = [l for l in ref[:ref.index(f"{NAME}_kernel:") + 1]]
    hd = ["; @launch grid=(256,1,1) block=(256,1,1) lds=163840" if l.startswith("; @launch") else l for l in hd]
    tl = ref[ref.index('.section .rodata,"a"'):]
    tl = [l.replace("next_free_vgpr 256", "next_free_vgpr 512") for l in tl]
    out = hd + [("" if t.endswith(":") else "    ") + t for t in body] + tl
    open(sys.argv[1], "w").write("\n".join(out))
    if PROF: open(sys.argv[1] + ".marks", "w").write(" ".join(marks))
    print("instructions", len(body), "nops", nn)

main()
```

```python
import sys, math, struct
from asmlib import *

NAME = "interleave_layers__sliding_block__mixer_s_mlp__prompt"
OPT = dict(x.split("=") if "=" in x else (x, "1") for x in sys.argv[2:])
PROF = int(OPT.get("prof", 0)); STOP = int(OPT.get("stop", 99))
KB = 1024
FX, FO, FX2, FH_, FX1, FKV_, FH3 = 0, 16*KB, 32*KB, 48*KB, 64*KB, 80*KB, 112*KB
STX, STX2, STX1 = 168*KB, 169*KB, 170*KB
R = 172*KB; R2 = 2*R
ACT_OFF = 0x10000; PROF_OFF = 0x8000000
GB, GH, GA, GKV = 0, 2048, 4096, 5120
KVB = 110*KB; PART = 156*KB; CSQ = 158*KB; CS3 = 158*KB + 512
W3B = 36*KB
M32 = "v_mfma_f32_32x32x16_bf16"; M16 = "v_mfma_f32_16x16x32_bf16"
def f2u(x): return "0x%08x" % struct.unpack("<I", struct.pack("<f", x))[0]
LOG2E = 1.4426950408889634
C1 = -2*math.sqrt(2/math.pi)*LOG2E; C2 = C1*0.044715

ACT, FLG, WQ, WO, W1, W2, W3, W4, XO, DBG = 4, 8, 12, 16, 20, 24, 28, 32, 36, 40
(sW, sC, sHP, sNT, sTB32, sTB16, sLAY, sPURE, sPUREH, s4K, s8K, s12K, s32K, s2R, sOFF, sCNT,
 sT0, sT1, sOUT, _o1, sFB, sFA, sL1, sW1K, sFBo, sFHo, sFAo, sFKVo, sKVo, sKVf, sTBF, sNTL,
 sGC1, _g1, sGC2, _g2, sT2, sT3, sH3p, sH3s, sIT, sMT) = range(44, 86)
sPT = 90
SK = [0, s(s4K), s(s8K), s(s12K)]
(vL, vA16, vP16, vA32, vA3, vST, vDB, vDQ) = range(0, 8)
vRB = [8, 9, 10, 11]; vWq = 12; vL16 = 13
vPB32, vPB16, vPA, vPH, vPKV = 14, 15, 16, 17, 18
vT0, vT1, vT2 = 19, 20, 21
vPR2, vPR = 22, 23
RES = 24; XB = 40
A0 = 256

k = Asm()
nmark = [0]; marks = []
TM = OPT.get("tm")
def mark(name):
    if TM and TM.split(":")[0] == name:
        L = k.lab("tm")
        if name not in ("first", "start", "xload", "init", "end"): k(f"s_cmp_lg_u32 {s(sLAY)}, {TM.split(':')[1]}\ns_cbranch_scc1 {L}")
        k(f"s_memrealtime s[92:93]\n{L}:\ns_waitcnt lgkmcnt(0)"); k.lg.clear()
    if not PROF or name == "first": return
    k(f"s_memtime {s(sPT,2)}\ns_waitcnt lgkmcnt(0)\nv_writelane_b32 {v(vPR)}, {s(sPT)}, {nmark[0]}")
    k.lg.clear(); marks.append(name); nmark[0] += 1

def srd(d, nbytes):
    k(f"s_mov_b32 {s(d+2)}, {nbytes}\ns_mov_b32 {s(d+3)}, 0x20000")

def barrier():
    k.wait(lg="all"); k("s_barrier")

def poll(va, sval):
    L = k.lab("poll")
    k(f"s_mov_b32 {s(sCNT)}, 0x8000\n{L}:")
    k.vmem(f"buffer_load_dword {v(vT0)}, {v(va)}, {s(FLG,4)}, 0 offen sc1")
    k(f"s_sub_u32 {s(sCNT)}, {s(sCNT)}, 1\ns_cbranch_scc1 bail")
    k.wait(vm="all")
    k(f"v_cmp_gt_u32 vcc, {s(sval)}, {v(vT0)}\ns_cbranch_vccnz {L}")

def flag(saddr, sval, sc):
    k(f"v_mov_b32 {v(vT0)}, {s(sval)}\ns_mov_b64 exec, 1")
    k.vmem(f"buffer_store_dword {v(vT0)}, off, {s(FLG,4)}, {s(saddr)}{sc}")
    k("s_mov_b64 exec, -1")

def publish(stores, saddr, sval, spure):
    Ls, Le = k.lab("pub_sc"), k.lab("pub_end")
    k(f"s_cmp_eq_u32 {s(spure)}, 0\ns_cbranch_scc1 {Ls}")
    for sc in ("", " sc1"):
        if sc: k(f"{Ls}:")
        for t in stores:
            if t.startswith("buffer"): k.vmem(t + sc)
            else: k(t)
        k.wait(vm="all")
        flag(saddr, sval, sc)
        if not sc: k(f"s_branch {Le}")
    k(f"{Le}:")

def dmaB(w, groups, tag="dma"):
    prev = None
    for g, lds in groups:
        if prev and lds - prev[1] == 4096: k(f"s_add_u32 m0, m0, {s(s4K)}")
        else: k(f"s_add_u32 m0, {s(sW1K)}, {lds}")
        if prev and g - prev[0] == 1: k(f"s_add_u32 {s(sOFF)}, {s(sOFF)}, {s(s32K)}")
        else: k(f"s_mov_b32 {s(sOFF)}, {g*32768}")
        k.vmem(f"buffer_load_dwordx4 {v(vDB)}, {s(w,4)}, {s(sOFF)} offen lds", tag)
        prev = (g, lds)

def dmaQ():
    k(f"s_mul_i32 {s(sT0)}, {s(sW)}, 3072\ns_mov_b32 m0, {s(sT0)}\ns_mov_b32 {s(sOFF)}, 0")
    for G in range(8):
        if G: k(f"s_add_u32 m0, m0, {s(s12K)}\ns_add_u32 {s(sOFF)}, {s(sOFF)}, {64*3072}")
        for b in range(3):
            k.vmem(f"buffer_load_dwordx4 {v(vDQ)}, {s(WQ,4)}, {s(sOFF)} offen offset:{b*1024} lds", "dma")

def dma3(quads, vD):
    for p in range(7):
        k(f"v_add_u32 {v(vT0)}, {64*p}, {v(vL)}\nv_mul_u32_u24 {v(vT0)}, 4682, {v(vT0)}\n"
          f"v_lshrrev_b32 {v(vT0)}, 16, {v(vT0)}\nv_mul_u32_u24 {v(vT0)}, 3360, {v(vT0)}\n"
          f"v_add_u32 {v(vD+p)}, {v(vT0)}, {v(vL16)}")
    k(f"s_mul_i32 {s(sT0)}, {s(sW)}, 7168\ns_mul_i32 {s(sT1)}, {s(sW)}, {32*3584}\n"
      f"s_mul_i32 {s(sT2)}, {s(sHP)}, 224\ns_add_u32 {s(sT1)}, {s(sT1)}, {s(sT2)}")
    for q in quads:
        k(f"s_add_u32 m0, {s(sT0)}, {W3B + q*4*7168}\ns_add_u32 {s(sOFF)}, {s(sT1)}, {q*4*32*3584}")
        for p in range(7):
            if p == 4: k(f"s_add_u32 m0, m0, {s(s4K)}\ns_add_u32 {s(sOFF)}, {s(sOFF)}, {s(s4K)}")
            k.vmem(f"buffer_load_dwordx4 {v(vD+p)}, {s(W3,4)}, {s(sOFF)} offen offset:{(p%4)*1024} lds", "dma")

def rb_bases(vb, his):
    m = {0: vRB}
    for n, hi in enumerate(h for h in his if h):
        m[hi] = [vb + 4*n + f for f in range(4)]
        for f in range(4): k(f"v_add_u32 {v(m[hi][f])}, {hi*65536}, {v(vRB[f])}")
    return m

def rd_fragB(dst, lds, fb, bases, tag):
    hi = lds // 65536
    for j in range(2):
        k.ds(f"ds_read_b64_tr_b16 {r(dst+2*j,2)}, {v(bases[hi][fb])} offset:{lds%65536 + j*2048}", tag)

def fill(slots, dst, vb, cs=None, ones=None):
    bases = rb_bases(vb, sorted({a // 65536 for a in slots}))
    n = len(slots)*4
    for i in range(n + 6):
        if i < n: rd_fragB(dst + 4*i, slots[i//4], i % 4, bases, ("f", i))
        m = i - 6
        if cs is not None and m >= 0:
            k.wait(lg=("f", m))
            c = v(cs + 4*(m % 4), 4)
            k(f"{M16} {c}, {r(dst+4*m,4)}, {v(ones,4)}, {c if m >= 4 else 0}")

def pk(op, d, a_, b_, c_=None, bsel=None):
    n = 3 if c_ is not None else 2
    t = f"v_pk_{op}_f32 {d}, {a_}, {b_}" + (f", {c_}" if c_ is not None else "")
    if bsel is not None:
        lo = [0]*n; hi = [1]*n; lo[1] = bsel; hi[1] = bsel
        t += f" op_sel:[{','.join(map(str,lo))}] op_sel_hi:[{','.join(map(str,hi))}]"
    k(t)

def cvt(d, src, n):
    for i in range(n): k(f"v_cvt_pk_bf16_f32 {v(d+i)}, {v(src+2*i)}, {v(src+2*i+1)}")

def finish_stats(sq, out, two_level):
    a_, b_ = v(sq), v(sq+1)
    k(f"v_permlane32_swap_b32 {a_}, {b_}\nv_add_f32 {a_}, {a_}, {b_}\nv_mov_b32 {b_}, {a_}")
    if two_level: k(f"v_permlane16_swap_b32 {a_}, {b_}\nv_add_f32 {a_}, {a_}, {b_}\nv_mov_b32 {b_}, {a_}")
    k(f"v_permlane32_swap_b32 {a_}, {b_}\nv_mul_f32 {a_}, {f2u(1/512)}, {a_}\nv_mul_f32 {b_}, {f2u(1/512)}, {b_}\n"
      f"v_fma_f32 {b_}, -{a_}, {a_}, {b_}\nv_max_f32 {v(out+2)}, 0, {b_}\nv_add_f32 {b_}, {f2u(1e-5)}, {v(out+2)}\n"
      f"v_rsq_f32 {v(out)}, {b_}\nv_mul_f32 {v(out+1)}, -{a_}, {v(out)}")

def pub_tile(src, field, stf, tmp):
    cvt(tmp, src, 8)
    S, Q = tmp + 8, tmp + 10
    pk("add", v(S,2), v(src,2), v(src+2,2)); pk("mul", v(Q,2), v(src,2), v(src,2))
    for i in range(1, 8):
        if i > 1: pk("add", v(S,2), v(S,2), v(src+2*i,2))
        pk("fma", v(Q,2), v(src+2*i,2), v(src+2*i,2), v(Q,2))
    k(f"v_add_f32 {v(S)}, {v(S)}, {v(S+1)}\nv_add_f32 {v(S+1)}, {v(Q)}, {v(Q+1)}\n"
      f"v_permlane32_swap_b32 {v(S)}, {v(S+1)}\nv_add_f32 {v(S)}, {v(S)}, {v(S+1)}\nv_mov_b32 {v(S+1)}, {v(S)}\n"
      f"v_permlane16_swap_b32 {v(S)}, {v(S+1)}\nv_add_f32 {v(S)}, {v(S)}, {v(S+1)}")
    k(f"s_mov_b32 {s(sT0)}, {field}\ns_mov_b32 {s(sT1)}, {stf}\ns_add_u32 {s(sFB)}, {s(sFB)}, 1")
    publish([f"buffer_store_dwordx4 {v(tmp,4)}, {v(vP16)}, {s(ACT,4)}, {s(sT0)} offen",
             f"buffer_store_dwordx4 {v(tmp+4,4)}, {v(vP16)}, {s(ACT,4)}, {s(sT0)} offen offset:1024",
             f"buffer_store_dword {v(S)}, {v(vST)}, {s(ACT,4)}, {s(sT1)} offen"], sFBo, sFB, sPURE)

def gelu(y, n, tmp):
    P = range(0, n, 2)
    for i in P: pk("mul", v(tmp+i,2), v(y+i,2), v(y+i,2))
    for i in P: pk("fma", v(tmp+i,2), v(tmp+i,2), s(sGC2,2), v(vT1,2))
    for i in P: pk("mul", v(tmp+i,2), v(tmp+i,2), v(y+i,2))
    for i in range(n): k(f"v_exp_f32 {v(tmp+i)}, {v(tmp+i)}")
    for i in P: k(f"v_pk_add_f32 {v(tmp+i,2)}, {v(tmp+i,2)}, 1.0 op_sel_hi:[1,0]")
    for i in range(n): k(f"v_rcp_f32 {v(tmp+i)}, {v(tmp+i)}")
    for i in P: pk("mul", v(y+i,2), v(y+i,2), v(tmp+i,2))

def gelu_consts():
    k(f"v_mov_b32 {v(vT1)}, {f2u(C1)}\nv_mov_b32 {v(vT2)}, {f2u(C1)}")

def sum_partials(n16, stride, dst, tmp):
    k(f"v_min_u32 {v(vT0)}, {n16-1}, {v(vL)}\nv_lshlrev_b32 {v(vT0)}, 4, {v(vT0)}\nv_add_u32 {v(vT0)}, {PART}, {v(vT0)}")
    for i in range(4): k.ds(f"ds_read_b128 {v(tmp+4*i,4)}, {v(vT0)} offset:{i*stride}")
    k.wait(lg="all")
    for i in range(1, 4):
        for h in (0, 2): pk("add", v(tmp+h,2), v(tmp+h,2), v(tmp+4*i+h,2))
    k.ds(f"ds_write_b128 {v(vT0)}, {v(tmp,4)} offset:{dst-PART}")
    k.wait(lg="all")

def stop(n):
    if STOP == n: k("s_branch bail")

def prologue():
    k("s_cmp_ge_u32 s2, 0x100\ns_cbranch_scc1 bail")
    mark("first")
    for d, off in ((FLG, 80), (XO, 0), (WQ, 8), (DBG, 72), (WO, 16), (W1, 32), (W2, 40), (W3, 48), (W4, 56), (sOUT, 64)):
        k(f"s_load_dwordx2 {s(d,2)}, s[0:1], {off}")
    k(f"""v_lshrrev_b32 v1, 6, v0
    v_and_b32 v0, 63, v0
    v_readfirstlane_b32 {s(sW)}, v1
    s_and_b32 {s(sC)}, s2, 7
    s_lshr_b32 s3, s2, 3
    s_lshr_b32 {s(sHP)}, s2, 4
    s_lshr_b32 {s(sNT)}, s2, 5
    s_and_b32 {s(sMT)}, s3, 1
    s_lshl_b32 {s(sT0)}, {s(sC)}, 3
    s_lshl_b32 {s(sT1)}, {s(sMT)}, 2
    s_add_u32 {s(sT0)}, {s(sT0)}, {s(sT1)}
    s_add_u32 {s(sTB32)}, {s(sT0)}, {s(sW)}
    s_add_u32 {s(sTBF)}, {s(sTB32)}, {s(sW)}
    s_sub_u32 {s(sTBF)}, {s(sTBF)}, 8
    s_min_u32 {s(sNTL)}, {s(sTB32)}, 8
    s_add_u32 {s(sNTL)}, {s(sNTL)}, 1
    s_and_b32 {s(sT1)}, s3, 3
    s_lshl_b32 {s(sT1)}, {s(sT1)}, 2
    s_add_u32 {s(sT1)}, {s(sT1)}, {s(sW)}
    s_lshl_b32 {s(sT0)}, {s(sC)}, 4
    s_add_u32 {s(sTB16)}, {s(sT0)}, {s(sT1)}
    s_mov_b32 {s(s4K)}, 4096
    s_mov_b32 {s(s8K)}, 8192
    s_mov_b32 {s(s12K)}, 12288
    s_mov_b32 {s(s32K)}, 32768
    s_mov_b32 {s(s2R)}, {R2}
    s_lshl_b32 {s(sW1K)}, {s(sW)}, 10
    v_lshlrev_b32 {v(vL16)}, 4, v0""")
    for d, n in ((FLG, 65536), (XO, 2097152), (WQ, 1572864), (DBG, 256), (WO, 524288), (W1, 524288), (W2, 524288),
                 (W3, 1835008), (W4, 1835008), (ACT, 128*R2)): srd(d, n)
    vXO = 56
    k(f"""v_and_b32 v57, 15, v0
    v_lshrrev_b32 v58, 4, v0
    s_lshl_b32 {s(sT0)}, {s(sTB16)}, 14
    s_lshl_b32 {s(sT1)}, {s(sNT)}, 7
    s_add_u32 {s(sT0)}, {s(sT0)}, {s(sT1)}
    v_lshlrev_b32 {v(vXO)}, 10, v57
    v_lshl_add_u32 {v(vXO)}, v58, 3, {v(vXO)}
    v_add_u32 {v(vXO)}, {s(sT0)}, {v(vXO)}
    v_lshrrev_b32 v59, 2, v0
    v_mul_u32_u24 v59, 3072, v59
    v_and_b32 v60, 3, v0
    v_lshl_add_u32 v59, v60, 4, v59
    s_mul_i32 {s(sT0)}, {s(sW)}, {16*3072}
    s_lshl_b32 {s(sT1)}, {s(sHP)}, 6
    s_add_u32 {s(sT0)}, {s(sT0)}, {s(sT1)}
    v_add_u32 {v(vDQ)}, {s(sT0)}, v59
    s_lshl_b32 {s(sT0)}, {s(sC)}, 13
    s_lshl_b32 {s(sT1)}, s3, 8
    s_add_u32 {s(sT2)}, {s(sT0)}, {s(sT1)}
    v_lshlrev_b32 v61, 2, v0
    v_mov_b32 v62, 0
    s_waitcnt lgkmcnt(0)
    s_add_u32 {s(ACT)}, {s(FLG)}, {ACT_OFF}
    s_addc_u32 {s(ACT+1)}, {s(FLG+1)}, 0""")
    mark("start")
    if PROF: k(f"s_memrealtime {s(sPT,2)}\ns_waitcnt lgkmcnt(0)\nv_writelane_b32 {v(vPR)}, {s(sPT)}, 62")
    for f in range(4):
        k.vmem(f"buffer_load_dwordx2 {v(64+2*f,2)}, {v(vXO)}, {s(XO,4)}, 0 offen offset:{32*f}", "x")
    Lz = k.lab("nozero")
    k(f"""s_cmp_lg_u32 {s(sW)}, 0
    s_cbranch_scc1 {Lz}
    buffer_store_dword v62, v61, {s(FLG,4)}, {s(sT2)} offen sc1
    s_getreg_b32 {s(sT2)}, hwreg(HW_REG_XCC_ID, 0, 4)
    s_and_b32 {s(sT2)}, {s(sT2)}, 7
    s_lshl_b32 {s(sT2)}, {s(sT2)}, 3
    s_lshl_b64 {s(sT0,2)}, 1, {s(sT2)}
    v_mov_b32 v62, {s(sT0)}
    v_mov_b32 v63, {s(sT1)}
    s_lshl_b32 {s(sT2)}, {s(sC)}, 3
    s_mov_b64 exec, 1
    s_waitcnt vmcnt(0)
    buffer_atomic_add_x2 v[62:63], off, {s(DBG,4)}, {s(sT2)} sc1
    s_mov_b64 exec, -1
    {Lz}:""")
    dmaQ()
    k(f"""s_mul_i32 {s(sT0)}, {s(sTB16)}, {s(s2R)}
    v_add_u32 {v(vA16)}, {s(sT0)}, {v(vL16)}
    s_lshl_b32 {s(sT1)}, {s(sNT)}, 11
    v_add_u32 {v(vP16)}, {s(sT1)}, {v(vA16)}
    s_lshr_b32 {s(sT1)}, {s(sNT)}, 1
    s_lshl_b32 {s(sT1)}, {s(sT1)}, 8
    s_add_u32 {s(sT0)}, {s(sT0)}, {s(sT1)}
    s_and_b32 {s(sT1)}, {s(sNT)}, 1
    s_lshl_b32 {s(sT1)}, {s(sT1)}, 3
    s_add_u32 {s(sT0)}, {s(sT0)}, {s(sT1)}
    v_lshrrev_b32 v59, 5, v0
    v_lshlrev_b32 v60, 4, v57
    v_lshl_add_u32 v61, v59, 2, v60
    v_add_u32 {v(vST)}, {s(sT0)}, v61
    s_mul_i32 {s(sT0)}, {s(sTB32)}, {2*R2}
    v_add_u32 {v(vA3)}, {s(sT0)}, {v(vL16)}
    v_and_b32 v61, 1, v58
    v_mul_u32_u24 v62, {R2}, v61
    v_lshl_add_u32 v62, v59, 8, v62
    v_add3_u32 {v(vA32)}, v62, v60, {s(sT0)}
    s_lshr_b32 {s(sT1)}, {s(sHP)}, 3
    s_mul_i32 {s(sT1)}, {s(sT1)}, {s(s2R)}
    s_and_b32 {s(sT2)}, {s(sHP)}, 7
    s_lshl_b32 {s(sT2)}, {s(sT2)}, 12
    s_add_u32 {s(sT1)}, {s(sT1)}, {s(sT2)}
    s_add_u32 {s(sT1)}, {s(sT1)}, {FKV_}
    s_add_u32 {s(sKVo)}, {s(sT0)}, {s(sT1)}
    s_mul_i32 {s(sT0)}, {s(sTBF)}, {2*R2}
    s_add_u32 {s(sKVf)}, {s(sT0)}, {s(sT1)}""")
    k(f"""v_lshrrev_b32 v62, 2, v57
    v_and_b32 v63, 3, v0
    v_lshl_add_u32 v72, v59, 2, v62
    v_lshl_add_u32 v73, v61, 2, v63
    v_lshlrev_b32 v73, 3, v73
    v_lshl_add_u32 {v(vWq)}, v72, 6, v73
    v_lshl_add_u32 v72, v61, 2, v62
    v_lshlrev_b32 v73, 10, v59
    v_lshl_add_u32 v73, v72, 7, v73
    v_lshl_add_u32 v73, v63, 3, v73
    v_lshrrev_b32 v72, 1, v72
    v_lshl_add_u32 {v(vRB[0])}, v72, 5, v73
    v_xor_b32 {v(vRB[1])}, 32, {v(vRB[0])}
    v_xor_b32 {v(vRB[2])}, 64, {v(vRB[0])}
    v_xor_b32 {v(vRB[3])}, 0x60, {v(vRB[0])}
    v_lshrrev_b32 v72, 3, v0
    v_and_b32 v73, 7, v0
    v_lshlrev_b32 v74, 1, v58
    v_xor_b32 v74, v74, v73
    v_lshlrev_b32 v74, 4, v74
    v_lshl_add_u32 v74, v72, 10, v74
    s_lshl_b32 {s(sT0)}, {s(sW)}, 13
    s_lshl_b32 {s(sT1)}, {s(sNT)}, 7
    s_add_u32 {s(sT0)}, {s(sT0)}, {s(sT1)}
    v_add_u32 {v(vDB)}, {s(sT0)}, v74""")
    k(f"""s_lshl_b32 {s(sT3)}, {s(sC)}, 13
    s_and_b32 {s(sT0)}, {s(sTB16)}, 15
    s_lshl_b32 {s(sT1)}, {s(sT0)}, 7
    s_add_u32 {s(sT1)}, {s(sT1)}, {s(sT3)}
    v_lshl_add_u32 {v(vPB16)}, v73, 2, {s(sT1)}
    s_lshl_b32 {s(sT2)}, {s(sNT)}, 2
    s_add_u32 {s(sFBo)}, {s(sT1)}, {s(sT2)}
    s_add_u32 {s(sFHo)}, {s(sFBo)}, {GH}
    s_lshr_b32 {s(sT0)}, {s(sT0)}, 1
    s_lshl_b32 {s(sT0)}, {s(sT0)}, 7
    s_add_u32 {s(sT0)}, {s(sT0)}, {s(sT3)}
    s_add_u32 {s(sT0)}, {s(sT0)}, {GA}
    v_lshl_add_u32 {v(vPA)}, v57, 2, {s(sT0)}
    s_and_b32 {s(sT0)}, {s(sTB32)}, 7
    s_lshl_b32 {s(sT1)}, {s(sT0)}, 8
    s_add_u32 {s(sT1)}, {s(sT1)}, {s(sT3)}
    v_and_b32 v74, 1, v72
    v_lshlrev_b32 v74, 7, v74
    v_lshl_add_u32 v74, v73, 2, v74
    v_add_u32 {v(vPB32)}, {s(sT1)}, v74
    s_lshl_b32 {s(sT1)}, {s(sT0)}, 7
    s_lshl_b32 {s(sT2)}, {s(sHP)}, 2
    s_add_u32 {s(sT1)}, {s(sT1)}, {s(sT2)}
    s_add_u32 {s(sT1)}, {s(sT1)}, {s(sT3)}
    s_add_u32 {s(sFAo)}, {s(sT1)}, {GA}
    s_lshl_b32 {s(sT2)}, {s(sHP)}, 7
    s_add_u32 {s(sT2)}, {s(sT2)}, {GKV}
    s_lshl_b32 {s(sT0)}, {s(sT0)}, 2
    s_add_u32 {s(sT0)}, {s(sT0)}, {s(sT2)}
    s_add_u32 {s(sFKVo)}, {s(sT0)}, {s(sT3)}
    s_lshr_b32 {s(sT0)}, {s(sTBF)}, 3
    s_lshl_b32 {s(sT0)}, {s(sT0)}, 13
    s_add_u32 {s(sT2)}, {s(sT2)}, {s(sT0)}
    s_and_b32 {s(sT0)}, {s(sTBF)}, 7
    s_lshl_b32 {s(sT0)}, {s(sT0)}, 2
    s_add_u32 {s(sT2)}, {s(sT2)}, {s(sT0)}
    v_and_b32 v74, 1, v0
    v_lshl_add_u32 {v(vPKV)}, v74, 2, {s(sT2)}
    v_min_u32 v74, 2, v72
    s_sub_u32 {s(sT0)}, {s(sTB16)}, 1
    v_add_u32 v74, {s(sT0)}, v74
    v_max_i32 v74, 0, v74
    v_min_i32 v74, 0x7f, v74
    v_lshrrev_b32 v75, 4, v74
    v_and_b32 v74, 15, v74
    v_lshlrev_b32 v75, 13, v75
    v_lshl_add_u32 v75, v74, 7, v75
    v_lshl_add_u32 v75, v73, 2, v75
    v_add_u32 {v(vPH)}, {GH}, v75
    s_and_b32 {s(sT0)}, {s(sHP)}, 1
    s_mul_i32 {s(sT1)}, {s(sHP)}, 7
    s_add_u32 {s(sT2)}, {s(sT1)}, {s(sT0)}
    s_lshl_b32 {s(sT2)}, {s(sT2)}, 9
    s_add_u32 {s(sH3p)}, {s(sT2)}, {FH3}
    s_mul_i32 {s(sT0)}, {s(sT0)}, {4096-8}
    s_add_u32 {s(sH3s)}, {s(sH3p)}, 3072
    s_sub_u32 {s(sH3s)}, {s(sH3s)}, {s(sT0)}
    s_mov_b32 {s(sGC2)}, {f2u(C2)}
    s_mov_b32 {s(sGC2+1)}, {f2u(C2)}
    s_mov_b32 {s(sLAY)}, 0
    s_mov_b32 {s(sL1)}, 1
    s_mov_b32 {s(sFB)}, 0
    s_mov_b32 {s(sFA)}, 0""")
    k.wait(vm="x")
    for i in range(8):
        k(f"v_lshlrev_b32 {v(RES+2*i)}, 16, {v(64+i)}\nv_and_b32 {v(RES+2*i+1)}, 0xffff0000, {v(64+i)}")
    mark("xload")
    L = k.lab("init")
    k(f"""s_mov_b32 {s(XO)}, {s(sOUT)}
    s_mov_b32 {s(XO+1)}, {s(sOUT+1)}
    v_lshlrev_b32 v72, 3, v73
    s_lshl_b32 {s(sT2)}, 7, {s(sC)}
    s_lshr_b32 {s(sT2)}, {s(sT2)}, 1
    s_and_b32 {s(sT2)}, {s(sT2)}, 0xff
    s_mov_b32 {s(sCNT)}, 0x8000
    {L}:
    buffer_load_dwordx2 v[74:75], v72, {s(DBG,4)}, 0 offen sc1
    s_sub_u32 {s(sCNT)}, {s(sCNT)}, 1
    s_cbranch_scc1 bail
    s_waitcnt vmcnt(0)
    v_sad_u8 v76, v74, 0, 0
    v_sad_u8 v76, v75, 0, v76
    v_cmp_ne_u32 vcc, 32, v76
    s_and_b32 {s(sT0)}, vcc_lo, {s(sT2)}
    s_cbranch_scc1 {L}
    v_readlane_b32 {s(sT0)}, v74, {s(sC)}
    v_readlane_b32 {s(sT1)}, v75, {s(sC)}
    s_nop 3
    s_bcnt1_i32_b64 {s(sT0)}, {s(sT0,2)}
    s_cmp_eq_u32 {s(sT0)}, 1
    s_cselect_b32 {s(sPURE)}, 1, 0
    s_add_u32 {s(sT0)}, {s(sTB16)}, 1
    s_and_b32 {s(sT0)}, {s(sT0)}, 14
    s_cselect_b32 {s(sPUREH)}, {s(sPURE)}, 0""")
    k.vm.clear()
    if OPT.get("diag"):
        k(f"s_cmp_lg_u32 {s(sPURE)}, 0\ns_cbranch_scc1 dg_e\ns_mov_b32 {s(sCNT)}, 40\ndg_l:\ns_sleep 100\ns_sub_u32 {s(sCNT)}, {s(sCNT)}, 1\ns_cbranch_scc0 dg_l\ndg_e:")
    mark("init")

def selector(d):
    k(f"v_lshrrev_b32 {v(vT0)}, 2, v0\nv_xor_b32 {v(vT0)}, {v(vT0)}, v0\nv_and_b32 {v(vT0)}, 4, {v(vT0)}\n"
      f"v_cmp_eq_u32 vcc, 0, {v(vT0)}\nv_mov_b32 {v(vT0)}, 0x3f803f80\nv_cndmask_b32 {v(d)}, 0, {v(vT0)}, vcc")
    for i in range(1, 4): k(f"v_mov_b32 {v(d+i)}, {v(d)}")

def qkv_att():
    AK, AV, AQ = 56, 72, 88
    FR = 104; CS = 128; STA = 160; RM = 168; PKD = 172
    vWq2, vCS, vV0, vV1, vKW = 188, 189, 190, 191, 192
    SEL = 196; QF = 200
    k(f"v_add_u32 {v(vWq2)}, 49152, {v(vWq)}")
    selector(SEL)
    Ls = k.lab("nocs")
    k(f"s_cmp_lg_u32 {s(sLAY)}, 0\ns_cbranch_scc1 {Ls}")
    k(f"s_mul_i32 {s(sT0)}, {s(sW)}, 3072\nv_add_u32 {v(vT1)}, {s(sT0)}, {v(vWq)}\nv_add_u32 {v(vT2)}, {s(sT0)}, {v(vWq2)}")
    for i in range(24 + 5):
        if i < 24:
            G, b = divmod(i, 3)
            for j in range(2):
                k.ds(f"ds_read_b64_tr_b16 {v(FR+4*(i%6)+2*j,2)}, {v(vT1 if G < 4 else vT2)} offset:{(G%4)*12288+b*1024+j*512}", ("c", i))
        m = i - 5
        if m >= 0:
            k.wait(lg=("c", m)); c = v(AK + 4*(m % 3), 4)
            k(f"{M16} {c}, {v(SEL,4)}, {v(FR+4*(m%6),4)}, {c if m >= 3 else 0}")
    k(f"s_mul_i32 {s(sT0)}, {s(sW)}, 384\ns_add_u32 {s(sT0)}, {s(sT0)}, {PART}\nv_and_b32 {v(vT1)}, 31, v0\n"
      f"v_lshl_add_u32 {v(vT1)}, {v(vT1)}, 2, {s(sT0)}")
    for b in range(3): k.ds(f"ds_write_b32 {v(vT1)}, {v(AK+4*b)} offset:{b*128}")
    barrier()
    sum_partials(24, 384, CSQ, CS)
    k(f"{Ls}:")
    barrier()
    k(f"""v_lshrrev_b32 {v(vT1)}, 5, v0
    v_lshlrev_b32 {v(vCS)}, 4, {v(vT1)}
    v_add_u32 {v(vCS)}, {CSQ}, {v(vCS)}
    v_lshlrev_b32 {v(vT1)}, 6, {v(vT1)}
    v_xor_b32 {v(vV0)}, {v(vT1)}, {v(vL16)}
    v_xor_b32 {v(vV1)}, 0x80, {v(vV0)}
    s_lshl_b32 {s(sT0)}, {s(sW)}, 12
    s_add_u32 {s(sT0)}, {s(sT0)}, {KVB + 8*4096}
    v_add_u32 {v(vKW)}, {s(sT0)}, {v(vL16)}
    v_add_u32 {v(vKW+1)}, {s(sT0)}, {v(vV0)}
    v_add_u32 {v(vKW+2)}, {s(sT0)}, {v(vV1)}
    s_mov_b32 {s(sT1)}, {STX}""")
    def rdq(dst, sp, b, tag):
        G = sp // 4
        for j in range(2):
            off = (G % 4)*12288 + (2*((sp//2) % 2) + j)*3072 + b*1024 + (sp % 2)*512
            k.ds(f"ds_read_b64_tr_b16 {v(dst+2*j,2)}, {v(vWq if G < 4 else vWq2)} offset:{off}", tag)
    for b in (1, 2):
        for q in range(4): k.ds(f"ds_read_b128 {v(CS+16*(b-1)+4*q,4)}, {v(vCS)} offset:{b*128+q*32}", "cs")
    k.wait(lg="all")
    for sp in range(2):
        for b in (1, 2): rdq(FR + 8*sp + 4*(b-1), sp, b, ("w", sp))
    mark("q.pre")
    poll(vPB32, sFB)
    mark("q.poll")
    for i in range(2): k.vmem(f"buffer_load_dwordx4 {v(STA+4*i,4)}, {v(vA32)}, {s(ACT,4)}, {s(sT1)} offen offset:{512*i} sc1", "st")
    for sp in range(32):
        k.vmem(f"buffer_load_dwordx4 {a(4*sp,4)}, {v(vA32)}, {s(ACT,4)}, {SK[sp//8]} offen offset:{(sp%8)*512} sc1", ("x", sp))
    k.wait(vm="st")
    pk("add", v(STA,2), v(STA,2), v(STA+2,2)); pk("add", v(STA+4,2), v(STA+4,2), v(STA+6,2)); pk("add", v(STA,2), v(STA,2), v(STA+4,2))
    finish_stats(STA, RM, False)
    for i in range(0, 32, 2): pk("mul", v(CS+i,2), v(CS+i,2), v(RM,2), bsel=1)
    for sp in range(32):
        if sp + 2 < 32:
            for b in (1, 2): rdq(FR + 8*((sp+2) % 3) + 4*(b-1), sp + 2, b, ("w", sp + 2))
        k.wait(vm=("x", sp), lg=("w", sp))
        for b, acc in ((1, AK), (2, AV)):
            k(f"{M32} {v(acc,16)}, {v(FR+8*(sp%3)+4*(b-1),4)}, {a(4*sp,4)}, {v(acc,16) if sp else 0}")
    mark("q.kv")
    for sp in range(5): rdq(FR + 4*sp, sp, 0, ("w", sp))
    for i in range(0, 32, 2): pk("fma", v(AK+i,2), v(AK+i,2), v(RM,2), v(CS+i,2), bsel=0)
    cvt(PKD, AK, 16)
    for i, va in enumerate((vL16, vL16, vV0, vV1)):
        k.vmem(f"buffer_store_dwordx4 {v(PKD+4*i,4)}, {v(va)}, {s(ACT,4)}, {s(sKVo)} offen offset:{i*1024} sc1")
    k.wait(lg="all")
    for i, va in enumerate((vKW, vKW, vKW+1, vKW+2)):
        k.ds(f"ds_write_b128 {v(va)}, {v(PKD+4*i,4)} offset:{i*1024}")
    for q in range(4): k.ds(f"ds_read_b128 {v(CS+4*q,4)}, {v(vCS)} offset:{q*32}", "cs")
    for sp in range(32):
        if sp + 5 < 32: rdq(FR + 4*((sp+5) % 6), sp + 5, 0, ("w", sp + 5))
        k.wait(lg=("w", sp))
        k(f"{M32} {v(AQ,16)}, {v(FR+4*(sp%6),4)}, {a(4*sp,4)}, {v(AQ,16) if sp else 0}")
        if sp == 24:
            k.wait(vm="all"); flag(sFKVo, sL1, " sc1")
    k(f"v_mul_f32 {v(RM)}, {f2u(0.25*LOG2E)}, {v(RM)}\nv_mul_f32 {v(RM+1)}, {f2u(0.25*LOG2E)}, {v(RM+1)}")
    barrier()
    for i in range(0, 16, 2): pk("mul", v(CS+i,2), v(CS+i,2), v(RM,2), bsel=1)
    for i in range(0, 16, 2): pk("fma", v(AQ+i,2), v(AQ+i,2), v(RM,2), v(CS+i,2), bsel=0)
    cvt(QF, AQ, 8)
    mark("q.q")
    stop(2)
    S0, S1, C0, C1_, MD, MO, O0, O1 = 56, 72, 88, 104, 120, 136, 152, 168
    KF, VF, P, LS, MX = 208, 216, 224, 232, 240
    vK, vVa, vVb = 184, 185, 186
    k(f"""v_and_b32 {v(vT1)}, 31, v0
    v_lshrrev_b32 {v(vT2)}, 5, v0
    v_lshlrev_b32 {v(vT2)}, 2, {v(vT2)}
    v_sub_u32 {v(vT1)}, {v(vT1)}, {v(vT2)}
    v_mov_b32 {v(vT2)}, {f2u(-1e30)}
    v_mov_b32 {v(MX)}, {v(vT2)}
    v_mov_b32 {v(MX+1)}, {v(vT2)}""")
    for i in range(16):
        k(f"v_cmp_gt_i32 vcc, {8*(i//4)+i%4}, {v(vT1)}\nv_mov_b32 {v(C0+i)}, 0\nv_mov_b32 {v(O0+i)}, 0\n"
          f"v_cndmask_b32 {v(MD+i)}, 0, {v(vT2)}, vcc\nv_mov_b32 {v(O1+i)}, 0\nv_sub_f32 {v(MO+i)}, {v(vT2)}, {v(MD+i)}")
    for i in range(8): k(f"v_mov_b32 {v(LS+i)}, 0")
    k(f"""v_bfe_u32 {v(vT0)}, v0, 4, 1
    v_bfe_u32 {v(vT1)}, v0, 1, 1
    v_lshl_add_u32 {v(vT0)}, {v(vT0)}, 1, {v(vT1)}
    v_lshrrev_b32 {v(vT1)}, 5, v0
    v_xor_b32 {v(vT1)}, {v(vT1)}, {v(vT0)}
    v_lshlrev_b32 {v(vT0)}, 9, {v(vT0)}
    v_lshl_add_u32 {v(vT0)}, {v(vT1)}, 6, {v(vT0)}
    v_bfe_u32 {v(vT1)}, v0, 2, 2
    v_lshl_add_u32 {v(vT0)}, {v(vT1)}, 4, {v(vT0)}
    v_and_b32 {v(vT1)}, 1, v0
    v_lshl_add_u32 {v(vT0)}, {v(vT1)}, 3, {v(vT0)}
    v_xor_b32 {v(vT1)}, 0x80, {v(vT0)}
    s_lshl_b32 {s(sT0)}, {s(sW)}, 12
    s_add_u32 {s(sT0)}, {s(sT0)}, {KVB + 8*4096 + 2048}
    v_add_u32 {v(vVa)}, {s(sT0)}, {v(vT0)}
    v_add_u32 {v(vVb)}, {s(sT0)}, {v(vT1)}
    v_mov_b32 {v(vK)}, {v(vKW)}""")
    Lf = k.lab("noforeign")
    k(f"s_cmp_lt_i32 {s(sTBF)}, 0\ns_cbranch_scc1 {Lf}")
    poll(vPKV, sL1)
    k(f"s_lshl_b32 {s(sT0)}, {s(sW)}, 13\ns_add_u32 m0, {s(sT0)}, {KVB}\ns_mov_b32 {s(sOFF)}, {s(sKVf)}")
    for t in range(2):
        if t: k(f"s_add_u32 m0, m0, {s(s4K)}\ns_add_u32 {s(sOFF)}, {s(sOFF)}, {2*R2}")
        for i in range(4): k.vmem(f"buffer_load_dwordx4 {v(vL16)}, {s(ACT,4)}, {s(sOFF)} offen offset:{i*1024} sc1 lds", "kv")
    k(f"{Lf}:")
    mark("a.poll")
    dmaB(WO, [(g, g*4096) for g in range(16)])
    dmaB(W1, [(g, 64*KB + g*4096) for g in range(11)])
    k.wait(vm="kv")
    barrier()
    mark("a.kv")
    def rdK(tag):
        for h in range(2): k.ds(f"ds_read_b128 {v(KF+4*h,4)}, {v(vK)} offset:{h*1024}", tag)
        k(f"v_subrev_u32 {v(vK)}, {s(s4K)}, {v(vK)}")
    def qk(h, c): k(f"{M32} {v((S0,S1)[h],16)}, {v(KF+4*h,4)}, {v(QF+4*h,4)}, {v(c,16)}")
    rdK("k"); k.wait(lg="all"); qk(0, MD); qk(1, MD); rdK("k")
    L1, L1s = k.lab("p1"), k.lab("p1s")
    k(f"s_mov_b32 {s(sIT)}, 0\n{L1}:\ns_cmp_lg_u32 {s(sIT)}, 7\ns_cbranch_scc1 {L1s}")
    for i in range(16): k(f"v_mov_b32 {v(C0+i)}, {v(MO+i)}")
    k(f"{L1s}:")
    for h, S in enumerate((S0, S1)):
        for i in range(0, 16, 2): k(f"v_max3_f32 {v(MX+h)}, {v(MX+h)}, {v(S+i)}, {v(S+i+1)}")
        k.wait(lg="all"); qk(h, C0)
    rdK("k")
    k(f"s_add_u32 {s(sIT)}, {s(sIT)}, 1\ns_cmp_lt_u32 {s(sIT)}, {s(sNTL)}\ns_cbranch_scc1 {L1}")
    k.wait(lg="all")
    k(f"v_mov_b32 {v(vK)}, {v(vKW)}")
    rdK("k")
    k(f"""v_permlane32_swap_b32 {v(MX)}, {v(MX+1)}
    v_max_f32 {v(MX)}, {v(MX)}, {v(MX+1)}
    v_sub_f32 {v(MX)}, 0, {v(MX)}
    v_mov_b32 {v(MX+1)}, {v(MX)}
    v_permlane32_swap_b32 {v(MX)}, {v(MX+1)}""")
    for h, (S, C) in enumerate(((S0, C0), (S1, C1_))):
        for i in range(0, 16, 2): pk("add", v(S+i,2), v(MD+i,2), v(MX,2), bsel=h)
        k.wait(lg="all"); qk(h, S)
    rdK("k")
    for h, C in enumerate((C0, C1_)):
        for i in range(16): k(f"v_mov_b32 {v(C+i)}, {v(MX+h)}")
    mark("a.p1")
    L2, L2s = k.lab("p2"), k.lab("p2s")
    k(f"s_mov_b32 {s(sIT)}, 0\n{L2}:\ns_cmp_lg_u32 {s(sIT)}, 7\ns_cbranch_scc1 {L2s}")
    for C in (C0, C1_):
        for i in range(0, 16, 2): pk("add", v(C+i,2), v(C+i,2), v(MO+i,2))
    k(f"{L2s}:")
    for u in range(2):
        for j, va in enumerate((vVa, vVb)): k.ds(f"ds_read_b64_tr_b16 {v(VF+4*u+2*j,2)}, {v(va)} offset:{u*256}")
    k(f"v_subrev_u32 {v(vVa)}, {s(s4K)}, {v(vVa)}\nv_subrev_u32 {v(vVb)}, {s(s4K)}, {v(vVb)}")
    for h, (S, C, O) in enumerate(((S0, C0, O0), (S1, C1_, O1))):
        for u in range(2):
            for i in range(8): k(f"v_exp_f32 {v(S+8*u+i)}, {v(S+8*u+i)}")
            cvt(P + 4*u, S + 8*u, 4)
            k.wait(lg="all")
            if u: qk(h, C)
            k(f"{M32} {v(O,16)}, {v(VF+4*u,4)}, {v(P+4*u,4)}, {v(O,16)}")
            k(f"{M16} {v(LS+4*h,4)}, {v(SEL,4)}, {v(P+4*u,4)}, {v(LS+4*h,4)}")
    rdK("k")
    k(f"s_add_u32 {s(sIT)}, {s(sIT)}, 1\ns_cmp_lt_u32 {s(sIT)}, {s(sNTL)}\ns_cbranch_scc1 {L2}")
    mark("a.p2")
    k(f"""v_lshrrev_b32 {v(vT1)}, 5, v0
    v_lshl_add_u32 {v(vT1)}, {v(vT1)}, 8, {v(vA32)}
    s_lshl_b32 {s(sT0)}, {s(sHP)}, 10
    s_add_u32 {s(sT0)}, {s(sT0)}, {FO}
    s_add_u32 {s(sFA)}, {s(sFA)}, 1
    v_rcp_f32 {v(MX)}, {v(LS)}
    v_rcp_f32 {v(MX+1)}, {v(LS+4)}""")
    for i in range(0, 8, 2):
        pk("mul", v(O0+i,2), v(O0+i,2), v(MX,2), bsel=0); pk("mul", v(O1+8+i,2), v(O1+8+i,2), v(MX,2), bsel=1)
    for q in range(2):
        cvt(P + 4*q, O0 + 4*q, 2); cvt(P + 4*q + 2, O1 + 8 + 4*q, 2)
    publish([f"buffer_store_dwordx4 {v(P+4*q,4)}, {v(vT1)}, {s(ACT,4)}, {s(sT0)} offen offset:{q*256}" for q in range(2)],
            sFAo, sFA, sPURE)
    mark("a.pub")

BX = 56
def gemmB(acc, va, cinit, mid=None):
    for st in range(16):
        k.vmem(f"buffer_load_dwordx4 {v(BX+4*st,4)}, {v(va[st//4])}, {s(ACT,4)}, {SK[st//4]} offen offset:{(st%4)*1024} sc1", ("x", st))
    if mid: mid()
    for st in range(16):
        k.wait(vm=("x", st))
        for fb in range(4):
            c = v(acc + 4*fb, 4)
            k(f"{M16} {c}, {a(16*st+4*fb,4)}, {v(BX+4*st,4)}, {c if (st or cinit) else 0}")

W2S = [128*KB + g*4096 for g in range(7)] + [g*4096 for g in range(9)]
W4S = [g*4096 for g in range(9)] + [148*KB, 152*KB]
def wo_w1_w2():
    VB, TMP, vAD, vD3 = 120, 128, 144, 148
    ACC, CS1, ONES, STA, RM, G0 = 160, 176, 192, 196, 200, 208
    barrier()
    dmaB(W1, [(g, 64*KB + g*4096) for g in range(11, 16)])
    dmaB(W2, [(g, W2S[g]) for g in range(7)])
    fill([g*4096 for g in range(16)], A0, VB)
    k(f"v_add_u32 {v(vAD)}, {FO}, {v(vA16)}")
    barrier()
    mark("wo.fill")
    poll(vPA, sFA)
    mark("wo.poll")
    def mid():
        dmaB(W2, [(g, W2S[g]) for g in range(7, 16)])
        dma3([0], vD3)
    gemmB(RES, [vAD]*4, True, mid)
    mark("wo.gemm")
    pub_tile(RES, FX2, STX2, TMP)
    mark("wo.pub")
    stop(4)
    barrier()
    for i in range(4): k(f"v_mov_b32 {v(ONES+i)}, 0x3f803f80")
    fill([64*KB + g*4096 for g in range(16)], A0, VB, CS1, ONES)
    k(f"v_add_u32 {v(vAD)}, {FX2}, {v(vA16)}\ns_mov_b32 {s(sT3)}, {STX2}")
    barrier()
    mark("w1.fill")
    poll(vPB16, sFB)
    mark("w1.poll")
    k.vmem(f"buffer_load_dwordx4 {v(STA,4)}, {v(vA16)}, {s(ACT,4)}, {s(sT3)} offen sc1", "st")
    def mid():
        dma3([1, 2], vD3)
        k.wait(vm="st")
        pk("add", v(STA,2), v(STA,2), v(STA+2,2))
        finish_stats(STA, RM, True)
        k(f"v_mov_b32 {v(STA)}, {v(RM+1)}\nv_mov_b32 {v(STA+1)}, {v(RM+1)}")
        for i in range(0, 16, 2): pk("fma", v(XB+i,2), v(RES+i,2), v(RM,2), v(STA,2), bsel=0)
        k(f"v_mul_f32 {v(STA)}, {v(RM)}, {v(RM)}\nv_fmaak_f32 {v(STA)}, {v(STA)}, {v(RM+2)}, {f2u(1e-5)}\nv_rsq_f32 {v(STA)}, {v(STA)}")
        pk("mul", v(RM,2), v(RM,2), v(STA,2), bsel=0)
        for i in range(0, 16, 2): pk("mul", v(CS1+i,2), v(CS1+i,2), v(RM,2), bsel=1)
        gelu_consts()
    gemmB(ACC, [vAD]*4, False, mid)
    mark("w1.gemm")
    for i in range(0, 16, 2): pk("fma", v(ACC+i,2), v(ACC+i,2), v(RM,2), v(CS1+i,2), bsel=0)
    gelu(ACC, 16, G0)
    cvt(TMP, ACC, 8)
    k(f"s_mov_b32 {s(sT0)}, {FH_}")
    publish([f"buffer_store_dwordx4 {v(TMP+4*i,4)}, {v(vP16)}, {s(ACT,4)}, {s(sT0)} offen offset:{1024*i}" for i in range(2)],
            sFHo, sL1, sPUREH)
    mark("w1.pub")
    stop(5)
    fill(W2S, A0, VB)
    k(f"s_lshl_b32 {s(sT0)}, {s(sTB16)}, 4\nv_and_b32 {v(vT1)}, 15, v0\nv_add_u32 {v(vT1)}, {s(sT0)}, {v(vT1)}\n"
      f"v_and_b32 {v(vT2)}, 0x300, {v(vL16)}\nv_add_u32 {v(vT2)}, {FH_}, {v(vT2)}\nv_mov_b32 {v(TMP+2)}, 0x80000000")
    for i, d in enumerate((-1, 1, -2, 2)):
        k(f"""v_add_u32 {v(vT0)}, {d}, {v(vT1)}
        v_cmp_gt_u32 vcc, 0x800, {v(vT0)}
        v_lshrrev_b32 {v(TMP)}, 4, {v(vT0)}
        v_and_b32 {v(vT0)}, 15, {v(vT0)}
        v_mad_u32_u24 {v(TMP)}, {v(TMP)}, {s(s2R)}, {v(vT2)}
        v_lshl_add_u32 {v(TMP)}, {v(vT0)}, 4, {v(TMP)}
        v_cndmask_b32 {v(vAD+i)}, {v(TMP+2)}, {v(TMP)}, vcc""")
    barrier()
    mark("w2.fill")
    poll(vPH, sL1)
    mark("w2.poll")
    def mid():
        dma3([3], vD3)
        dmaB(W4, [(g, W4S[g]) for g in range(11)])
    gemmB(XB, [vAD+i for i in range(4)], True, mid)
    mark("w2.gemm")
    pub_tile(XB, FX1, STX1, TMP)
    for i in range(0, 16, 2): pk("add", v(RES+i,2), v(RES+i,2), v(XB+i,2))
    mark("w2.pub")
    stop(6)

def w3_w4():
    ACC, FR, BX0, BX1 = 56, 112, 168, A0 + 176
    STA, RM, vW, vAD, VB = 232, 240, 140, 146, 148
    CS = 112
    barrier()
    fill(W4S, A0, VB)
    k(f"""v_lshrrev_b32 {v(vT0)}, 2, v0
    v_mul_u32_u24 {v(vT0)}, 224, {v(vT0)}
    v_and_b32 {v(vT1)}, 3, v0
    v_lshl_add_u32 {v(vT0)}, {v(vT1)}, 3, {v(vT0)}
    s_and_b32 {s(sT0)}, {s(sHP)}, 1
    s_lshl_b32 {s(sT1)}, {s(sT0)}, 5
    s_add_u32 {s(sT1)}, {s(sT1)}, {W3B}
    s_mul_i32 {s(sT0)}, {s(sT0)}, 192
    s_sub_u32 {s(sT0)}, {W3B + 192}, {s(sT0)}
    v_add_u32 {v(vW)}, {s(sT1)}, {v(vT0)}
    v_add_u32 {v(vW+1)}, {s(sT0)}, {v(vT0)}
    v_add_u32 {v(vW+2)}, {8*7168}, {v(vW)}
    v_add_u32 {v(vW+3)}, {8*7168}, {v(vW+1)}
    v_add_u32 {v(vAD)}, {FX1}, {v(vA3)}
    v_add_u32 {v(vAD+1)}, {FX1 + R2}, {v(vA3)}""")
    def rd3(dst, base, st, b, tag):
        for j in range(2):
            off = (st % 8)*7168 + j*3584 + (b*32 if b < 6 else 0)
            k.ds(f"ds_read_b64_tr_b16 {v(dst+2*j,2)}, {v(base + 2*(st//8) + (b == 6))} offset:{off}", tag)
    Ls = k.lab("nocs3")
    k.wait(lg="all")
    k(f"s_cmp_lg_u32 {s(sLAY)}, 0\ns_cbranch_scc1 {Ls}\ns_mul_i32 {s(sT0)}, {s(sW)}, 7168")
    for i in range(4): k(f"v_add_u32 {v(XB+i)}, {s(sT0)}, {v(vW+i)}\nv_mov_b32 {v(XB+4+i)}, 0x3f803f80")
    for i in range(28 + 5):
        if i < 28: rd3(FR + 4*(i % 6), XB, 4*(i//7), i % 7, ("c", i))
        m = i - 5
        if m >= 0:
            k.wait(lg=("c", m)); c = v(ACC + 4*(m % 7), 4)
            k(f"{M16} {c}, {v(XB+4,4)}, {v(FR+4*(m%6),4)}, {c if m >= 7 else 0}")
    k(f"s_mul_i32 {s(sT0)}, {s(sW)}, 448\ns_add_u32 {s(sT0)}, {s(sT0)}, {PART}\nv_and_b32 {v(vT1)}, 15, v0\n"
      f"v_lshl_add_u32 {v(vT1)}, {v(vT1)}, 2, {s(sT0)}")
    for b in range(7): k.ds(f"ds_write_b32 {v(vT1)}, {v(ACC+4*b)} offset:{b*64}")
    barrier()
    sum_partials(28, 448, CS3, FR)
    k(f"{Ls}:")
    barrier()
    D = 5
    for n in range(D): rd3(FR + 4*n, vW, 0, n, ("w", n))
    k(f"s_mov_b32 {s(sT3)}, {STX1 - FX1}")
    mark("w3.fill")
    poll(vPB32, sFB)
    mark("w3.poll")
    for t in range(2): k.vmem(f"buffer_load_dwordx4 {v(STA+4*t,4)}, {v(vAD+t)}, {s(ACT,4)}, {s(sT3)} offen sc1", "st")
    for st in range(16):
        for t, B in enumerate((BX0, BX1)):
            k.vmem(f"buffer_load_dwordx4 {r(B+4*st,4)}, {v(vAD+t)}, {s(ACT,4)}, {SK[st//4]} offen offset:{(st%4)*1024} sc1", ("x", st))
    dmaB(W4, [(11 + g, W4S[g]) for g in range(11)])
    k.wait(vm="st")
    for t in range(2):
        pk("add", v(STA+4*t,2), v(STA+4*t,2), v(STA+4*t+2,2))
        finish_stats(STA + 4*t, RM + 4*t, True)
    for n in range(112):
        st, b = divmod(n, 7)
        if n + D < 112: rd3(FR + 4*((n+D) % 6), vW, (n+D)//7, (n+D) % 7, ("w", n + D))
        k.wait(vm=("x", st), lg=("w", n))
        for t, B in enumerate((BX0, BX1)):
            c = v(ACC + 28*t + 4*b, 4)
            k(f"{M16} {c}, {v(FR+4*(n%6),4)}, {r(B+4*st,4)}, {c if st else 0}")
    mark("w3.gemm")
    k(f"v_and_b32 {v(vT0)}, 0x30, v0\nv_add_u32 {v(vT0)}, {CS3}, {v(vT0)}")
    for b in range(7): k.ds(f"ds_read_b128 {v(CS+4*b,4)}, {v(vT0)} offset:{b*64}")
    k.wait(vm="all")
    barrier()
    dmaB(W4, [(22 + g, W3B + g*4096) for g in range(28)])
    gelu_consts()
    G0, PKD = 168, 196
    stores = []
    for t in range(2):
        A = ACC + 28*t
        for i in range(0, 28, 2): pk("mul", v(G0+i,2), v(CS+i,2), v(RM+4*t,2), bsel=1)
        for i in range(0, 28, 2): pk("fma", v(A+i,2), v(A+i,2), v(RM+4*t,2), v(G0+i,2), bsel=0)
        gelu(A, 28, G0)
        cvt(PKD + 16*t, A, 14)
        va = vA3 if t == 0 else vAD
        for p in range(3): stores.append(f"buffer_store_dwordx4 {v(PKD+16*t+4*p,4)}, {v(va)}, {s(ACT,4)}, {s(sH3p)} offen offset:{p*1024}")
        stores.append(f"buffer_store_dwordx2 {v(PKD+16*t+12,2)}, {v(va)}, {s(ACT,4)}, {s(sH3s)} offen")
    k(f"v_add_u32 {v(vAD)}, {R2}, {v(vA3)}\ns_add_u32 {s(sFA)}, {s(sFA)}, 1")
    mark("w3.epi")
    publish(stores, sFAo, sFA, sPURE)
    mark("w3.pub")
    stop(7)
    RING, AR, BV, VB, vH = 56, 184, 216, 232, 240
    fill(W4S[:5], A0 + 176, VB); fill(W4S[5:6], BV, VB)
    bases = rb_bases(VB, [0, 1, 2])
    for i in range(4): k(f"v_add_u32 {v(vH+i)}, {FH3 + i*16384}, {v(vA16)}")
    barrier()
    dmaB(W4, [(50 + g, W4S[g]) for g in range(6)])
    src = {}
    for g in range(11): src[g] = ("r", A0 + 16*g)
    for g in range(5): src[11+g] = ("r", A0 + 176 + 16*g)
    src[16] = ("r", BV)
    for g in range(6, 11): src[11+g] = ("l", W4S[g])
    for g in range(28): src[22+g] = ("l", W3B + g*4096)
    for g in range(6): src[50+g] = ("l", W4S[g])
    regs = [g for g in range(56) if src[g][0] == "r"]
    low = [g for g in range(56) if src[g][0] == "l" and src[g][1] < 96*KB]
    high = [g for g in range(56) if src[g][0] == "l" and src[g][1] >= 96*KB]
    order = regs[:2]; ri = 2
    for i, g in enumerate(low):
        order.append(g)
        if i % 4 == 3: order.append(regs[ri]); ri += 1
    nlow = len(order)
    for i, g in enumerate(high):
        order.append(g)
        if i % 2 == 1: order.append(regs[ri]); ri += 1
    order += regs[ri:]
    assert sorted(order) == list(range(56))
    mark("w4.fill")
    poll(vPA, sFA)
    mark("w4.poll")
    def ldx(i):
        g = order[i]
        k.vmem(f"buffer_load_dwordx4 {v(RING+4*(i%32),4)}, {v(vH+g//16)}, {s(ACT,4)}, {SK[(g//4)%4]} offen offset:{(g%4)*1024} sc1", ("x", i))
    for i in range(32): ldx(i)
    k("s_barrier")
    lf = [(i, fb) for i in range(56) if src[order[i]][0] == "l" for fb in range(4)]
    pos = {x: n for n, x in enumerate(lf)}
    nxt = 0; used = 0
    for i in range(56):
        kind, loc = src[order[i]]
        if i == nlow:
            k("s_barrier"); dmaQ()
        for fb in range(4):
            while nxt < len(lf) and nxt - used < 7:
                rd_fragB(AR + 4*(nxt % 8), src[order[lf[nxt][0]]][1], lf[nxt][1], bases, ("w", nxt)); nxt += 1
            if kind == "l":
                n = pos[(i, fb)]; k.wait(vm=("x", i), lg=("w", n)); A = v(AR + 4*(n % 8), 4); used += 1
            else:
                k.wait(vm=("x", i)); A = r(loc + 4*fb, 4)
            c = v(RES + 4*fb, 4)
            k(f"{M16} {c}, {A}, {v(RING+4*(i%32),4)}, {c}")
        if i + 32 < 56: ldx(i + 32)
    k.vm.clear(); k.vm.append("dma")
    mark("w4.gemm")

def final():
    k(f"""v_and_b32 v57, 15, v0
    v_lshrrev_b32 v58, 4, v0
    s_lshl_b32 {s(sT0)}, {s(sTB16)}, 14
    s_lshl_b32 {s(sT1)}, {s(sNT)}, 7
    s_add_u32 {s(sT0)}, {s(sT0)}, {s(sT1)}
    v_lshlrev_b32 v56, 10, v57
    v_lshl_add_u32 v56, v58, 3, v56""")
    cvt(64, RES, 8)
    for f in range(4): k(f"buffer_store_dwordx2 {v(64+2*f,2)}, v56, {s(XO,4)}, {s(sT0)} offen offset:{32*f}")

def main():
    prologue()
    k("layer:")
    k.vm.append("dma")
    n0 = nmark[0]
    pub_tile(RES, FX, STX, 56)
    mark("x.pub")
    stop(1)
    qkv_att()
    stop(3)
    wo_w1_w2()
    w3_w4()
    k(f"s_cmp_lg_u32 {s(sLAY)}, 0\ns_cbranch_scc1 done")
    k(f"s_mov_b32 {s(sLAY)}, 1\ns_mov_b32 {s(sL1)}, 2\ns_mov_b32 {s(WQ+2)}, 0\ns_add_u32 {s(ACT)}, {s(ACT)}, {R}\ns_addc_u32 {s(ACT+1)}, {s(ACT+1)}, 0")
    if PROF: k(f"v_mov_b32 {v(vPR2)}, {v(vPR)}")
    k("s_branch layer\ndone:")
    final()
    k("s_waitcnt vmcnt(0)")
    if TM:
        mark("end")
        if OPT.get("wb"): k("buffer_wbl2 sc1\ns_waitcnt vmcnt(0)")
        k("tm_l:\ns_sleep 4\ns_memrealtime s[94:95]\ns_waitcnt lgkmcnt(0)\ns_sub_u32 s94, s94, s92\ns_cmp_lt_u32 s94, 15000\ns_cbranch_scc1 tm_l")
    if PROF:
        mark("end")
        k(f"s_memrealtime {s(sPT,2)}\ns_waitcnt lgkmcnt(0)\nv_writelane_b32 {v(vPR)}, {s(sPT)}, 63")
        k(f"""s_add_u32 {s(DBG)}, {s(FLG)}, {PROF_OFF}
        s_addc_u32 {s(DBG+1)}, {s(FLG+1)}, 0
        s_mov_b32 {s(DBG+2)}, 0x100000
        s_lshl_b32 {s(sT0)}, s2, 2
        s_add_u32 {s(sT0)}, {s(sT0)}, {s(sW)}
        s_lshl_b32 {s(sT0)}, {s(sT0)}, 9
        v_lshlrev_b32 v56, 2, v0
        buffer_store_dword {v(vPR2)}, v56, {s(DBG,4)}, {s(sT0)} offen
        buffer_store_dword {v(vPR)}, v56, {s(DBG,4)}, {s(sT0)} offen offset:256""")
    k("bail:\ns_endpgm")
    body, nn = fix_hazards(k.L)
    ref = open(f"cdna_kernels/{NAME}.s.ref").read().split("\n")
    hd = [l for l in ref[:ref.index(f"{NAME}_kernel:") + 1]]
    hd = ["; @launch grid=(256,1,1) block=(256,1,1) lds=163840" if l.startswith("; @launch") else l for l in hd]
    tl = ref[ref.index('.section .rodata,"a"'):]
    tl = [l.replace("next_free_vgpr 256", "next_free_vgpr 512") for l in tl]
    out = hd + [("" if t.endswith(":") else "    ") + t for t in body] + tl
    open(sys.argv[1], "w").write("\n".join(out))
    if PROF: open(sys.argv[1] + ".marks", "w").write(" ".join(marks))
    print("instructions", len(body), "nops", nn)

main()
```

```python
import sys, math, struct
from asmlib import *

NAME = "interleave_layers__sliding_block__mixer_s_mlp__prompt"
OPT = dict(x.split("=") if "=" in x else (x, "1") for x in sys.argv[2:])
PROF = int(OPT.get("prof", 0)); STOP = int(OPT.get("stop", 99))
KB = 1024
FX, FO, FX2, FH_, FX1, FKV_, FH3 = 0, 16*KB, 32*KB, 48*KB, 64*KB, 80*KB, 112*KB
STX, STX2, STX1 = 168*KB, 169*KB, 170*KB
R = 172*KB; R2 = 2*R
ACT_OFF = 0x30000; PROF_OFF = 0x8000000; E_OFF = 0x20000
GB, GH, GA, GKV = 0, 2048, 4096, 5120
KVB = 110*KB; PART = 156*KB; CSQ = 158*KB; CS3 = 158*KB + 512; CS1L = 159*KB
W3A, W3H = 0, 100*KB
W3Q = [W3A, W3A + 28*KB, W3H, W3H + 28*KB]
W4S = [56*KB + g*4096 for g in range(11)]
W4C = [g*4096 for g in range(14)] + [W3H + g*4096 for g in range(14)]
NEG = 0xf1800000
def P(name, d): return int(OPT.get(name, d))
M32 = "v_mfma_f32_32x32x16_bf16"; M16 = "v_mfma_f32_16x16x32_bf16"
def f2u(x): return "0x%08x" % struct.unpack("<I", struct.pack("<f", x))[0]
LOG2E = 1.4426950408889634
C1 = -2*math.sqrt(2/math.pi)*LOG2E; C2 = C1*0.044715

ACT, FLG, WQ, WO, W1, W2, W3, W4, XO, DBG = 4, 8, 12, 16, 20, 24, 28, 32, 36, 40
(sW, sC, sHP, sNT, sTB32, sTB16, sLAY, sPURE, sPUREH, s4K, s8K, s12K, s32K, s2R, sOFF, sCNT,
 sT0, sT1, sOUT, _o1, sV, _v1, sXP, _x1, sW1K, sFBo, sFHo, sFAo, sFKVo, sKVo, sKVf, sNTL,
 sT2, sT3, sH3p, sH3s, sIT, sMT, sG0, sQA, sQB, sM1, sM2, s3L, s3G, sEDG) = range(44, 90)
sPT = 90
SK = [0, s(s4K), s(s8K), s(s12K)]
(vL, vA16, vP16, vA32, vA3, vST, vDB, vDQ) = range(0, 8)
vRB = [8, 9, 10, 11]; vWq = 12; vL16 = 13
vPB32, vPB16, vPA, vPH, vPKV = 14, 15, 16, 17, 18
vT0, vT1, vT2 = 19, 20, 21
vPR2, vPR = 22, 23
RES = 24; XB = 40; vD3 = 248
A0 = 256

k = Asm()
nmark = [0]; marks = []
TM = OPT.get("tm")
def mark(name):
    if TM and TM.split(":")[0] == name:
        L = k.lab("tm")
        if name not in ("first", "start", "xload", "init", "end"): k(f"s_cmp_lg_u32 {s(sLAY)}, {TM.split(':')[1]}\ns_cbranch_scc1 {L}")
        k(f"s_memrealtime s[92:93]\n{L}:\ns_waitcnt lgkmcnt(0)"); k.lg.clear()
    if not PROF or name == "first": return
    k(f"s_memtime {s(sPT,2)}\ns_waitcnt lgkmcnt(0)\nv_writelane_b32 {v(vPR)}, {s(sPT)}, {nmark[0]}")
    k.lg.clear(); marks.append(name); nmark[0] += 1

def srd(d, nbytes):
    k(f"s_mov_b32 {s(d+2)}, {nbytes}\ns_mov_b32 {s(d+3)}, 0x20000")

def barrier():
    k.wait(lg="all"); k("s_barrier")

def poll(va):
    L = k.lab("poll")
    k(f"s_mov_b32 {s(sCNT)}, 0x8000\n{L}:")
    k.vmem(f"buffer_load_dwordx2 {v(vT1,2)}, {v(va)}, {s(FLG,4)}, 0 offen sc1")
    k(f"s_sub_u32 {s(sCNT)}, {s(sCNT)}, 1\ns_cbranch_scc1 bail")
    k.wait(vm="all")
    k(f"v_cmp_ne_u64 vcc, {s(sV,2)}, {v(vT1,2)}\ns_cbranch_vccnz {L}")

cold = []
def dual(stores, spure):
    La, Lb = k.lab("sc"), k.lab("scb")
    k(f"s_cmp_eq_u32 {s(spure)}, 0\ns_cbranch_scc1 {La}")
    for t in stores: k.vmem(t, "pub")
    k(f"{Lb}:")
    cold.extend([f"{La}:"] + [t + " sc1" for t in stores] + [f"s_branch {Lb}"])

def flag(saddr, spure):
    k(f"s_add_u32 {s(sV)}, {s(sV)}, 1\nv_mov_b32 {v(vT2)}, {s(sV+1)}\nv_mov_b32 {v(vT1)}, {s(sV)}\ns_mov_b64 exec, 1")
    t = f"buffer_store_dwordx2 {v(vT1,2)}, off, {s(FLG,4)}, {s(saddr)}"
    k.wait(vm="pub")
    if spure is None: k.vmem(t + " sc1")
    else: dual([t], spure)
    k("s_mov_b64 exec, -1")

bgq = []
def bg(n=1):
    for _ in range(min(n, len(bgq))): bgq.pop(0)()

def qB(w, groups):
    for n, (g, lds) in enumerate(groups):
        def f(n=n, g=g, lds=lds):
            p = groups[n-1] if n else None
            if p and lds - p[1] == 4096: k(f"s_add_u32 m0, m0, {s(s4K)}")
            else: k(f"s_add_u32 m0, {s(sW1K)}, {lds}")
            if p and g - p[0] == 1: k(f"s_add_u32 {s(sOFF)}, {s(sOFF)}, {s(s32K)}")
            else: k(f"s_mov_b32 {s(sOFF)}, {g*32768}")
            k.vmem(f"buffer_load_dwordx4 {v(vDB)}, {s(w,4)}, {s(sOFF)} offen lds", "dma")
        bgq.append(f)

def qQ(lo, hi):
    for n in range(lo, hi):
        def f0(n=n):
            k(f"s_xor_b32 m0, {s(sQB)}, {n*4096}\ns_xor_b32 {s(sOFF)}, {s(sG0)}, {n}\ns_mul_i32 {s(sOFF)}, {s(sOFF)}, {64*3072}")
            k.vmem(f"buffer_load_dwordx4 {v(vDQ)}, {s(WQ,4)}, {s(sOFF)} offen lds", "dma")
        def f1(n=n):
            k(f"s_xor_b32 m0, {s(sQA)}, {n*8192}\ns_bitset1_b32 {s(sOFF)}, 10")
            k.vmem(f"buffer_load_dwordx4 {v(vDQ)}, {s(WQ,4)}, {s(sOFF)} offen lds", "dma")
        def f2():
            k.vmem(f"buffer_load_dwordx4 {v(vDQ)}, {s(WQ,4)}, {s(sOFF)} offen offset:1024 lds", "dma")
        bgq.extend([f0, f1, f2])

def q3(quads):
    for q in quads:
        for p in range(7):
            def f(q=q, p=p):
                if p == 0: k(f"s_add_u32 m0, {s(s3L)}, {W3Q[q]}\ns_add_u32 {s(sOFF)}, {s(s3G)}, {q*4*32*3584}")
                if p == 4: k(f"s_add_u32 m0, m0, {s(s4K)}\ns_add_u32 {s(sOFF)}, {s(sOFF)}, {s(s4K)}")
                k.vmem(f"buffer_load_dwordx4 {v(vD3+p)}, {s(W3,4)}, {s(sOFF)} offen offset:{(p%4)*1024} lds", "dma")
            bgq.append(f)

class Rec:
    def __enter__(self):
        self.n = len(k.L); self.q = []; self.g = len(k.lg); return self.q
    def __exit__(self, *a):
        self.q.extend(k.L[self.n:]); del k.L[self.n:]; del k.lg[self.g:]
def emit(q, n=999):
    for _ in range(min(n, len(q))):
        t = q.pop(0)
        if callable(t): t()
        elif t.startswith("ds_"): k.ds(t, "fill")
        else: k(t)

def rb_bases(vb, his):
    m = {0: vRB}
    for n, hi in enumerate(h for h in his if h):
        m[hi] = [vb + 4*n + f for f in range(4)]
        for f in range(4): k(f"v_add_u32 {v(m[hi][f])}, {hi*65536}, {v(vRB[f])}")
    return m

def rd_fragB(dst, lds, fb, bases, tag):
    hi = lds // 65536
    for j in range(2):
        k.ds(f"ds_read_b64_tr_b16 {r(dst+2*j,2)}, {v(bases[hi][fb])} offset:{lds%65536 + j*2048}", tag)

def fill(slots, dst, bases):
    for i in range(len(slots)*4): rd_fragB(dst + 4*i, slots[i//4], i % 4, bases, "fill")

def mix(q, per, nbg):
    while q or nbg > 0:
        if nbg > 0: bg(); nbg -= 1
        emit(q, per)

def pk(op, d, a_, b_, c_=None, bsel=None, csel=None):
    n = 3 if c_ is not None else 2
    t = f"v_pk_{op}_f32 {d}, {a_}, {b_}" + (f", {c_}" if c_ is not None else "")
    if bsel is not None:
        lo = [0]*n; hi = [1]*n; lo[1] = bsel; hi[1] = bsel
        if csel is not None: lo[2] = csel; hi[2] = csel
        t += f" op_sel:[{','.join(map(str,lo))}] op_sel_hi:[{','.join(map(str,hi))}]"
    k(t)

def cvt(d, src, n):
    for i in range(n): k(f"v_cvt_pk_bf16_f32 {v(d+i)}, {v(src+2*i)}, {v(src+2*i+1)}")

def finish_stats(sq, out, two_level):
    a_, b_ = v(sq), v(sq+1)
    k(f"v_permlane32_swap_b32 {a_}, {b_}\nv_add_f32 {a_}, {a_}, {b_}\nv_mov_b32 {b_}, {a_}")
    if two_level: k(f"v_permlane16_swap_b32 {a_}, {b_}\nv_add_f32 {a_}, {a_}, {b_}\nv_mov_b32 {b_}, {a_}")
    k(f"v_permlane32_swap_b32 {a_}, {b_}\nv_mul_f32 {v(out+1)}, {f2u(-1/512)}, {a_}\nv_mul_f32 {b_}, {f2u(1/512)}, {b_}\n"
      f"v_fma_f32 {b_}, -{v(out+1)}, {v(out+1)}, {b_}\nv_max_f32 {v(out+2)}, 0, {b_}\nv_add_f32 {b_}, {f2u(1e-5)}, {v(out+2)}\n"
      f"v_rsq_f32 {v(out)}, {b_}")

def gelu_scale(rr, kk):
    k(f"v_rcp_f32 {v(kk+2)}, {v(rr)}\nv_mul_f32 {v(kk+1)}, {f2u(C1)}, {v(rr)}\nv_mul_f32 {v(kk)}, {v(rr)}, {v(rr)}\n"
      f"v_mul_f32 {v(kk)}, {f2u(0.044715)}, {v(kk)}\nv_mul_f32 {v(kk)}, {v(kk)}, {v(kk+1)}")

def pub_tile(src, field, stf, tmp):
    k(f"s_mov_b32 {s(sT0)}, {field}\ns_mov_b32 {s(sT1)}, {stf}")
    cvt(tmp, src, 8)
    dual([f"buffer_store_dwordx4 {v(tmp+4*i,4)}, {v(vP16)}, {s(ACT,4)}, {s(sT0)} offen offset:{1024*i}" for i in range(2)], sPURE)
    S, Q = tmp + 8, tmp + 10
    pk("add", v(S,2), v(src,2), v(src+2,2)); pk("mul", v(Q,2), v(src,2), v(src,2))
    for i in range(1, 8):
        if i > 1: pk("add", v(S,2), v(S,2), v(src+2*i,2))
        pk("fma", v(Q,2), v(src+2*i,2), v(src+2*i,2), v(Q,2))
    k(f"v_add_f32 {v(S)}, {v(S)}, {v(S+1)}\nv_add_f32 {v(S+1)}, {v(Q)}, {v(Q+1)}\n"
      f"v_permlane32_swap_b32 {v(S)}, {v(S+1)}\nv_add_f32 {v(S)}, {v(S)}, {v(S+1)}\nv_mov_b32 {v(S+1)}, {v(S)}\n"
      f"v_permlane16_swap_b32 {v(S)}, {v(S+1)}\nv_add_f32 {v(S)}, {v(S)}, {v(S+1)}")
    dual([f"buffer_store_dword {v(S)}, {v(vST)}, {s(ACT,4)}, {s(sT1)} offen"], sPURE)

def gelu(y, n, tmp, cs, rm, kk):
    Pr = range(0, n, 2)
    for i in Pr: pk("fma", v(y+i,2), v(cs+i,2), v(rm,2), v(y+i,2), bsel=1)
    for i in Pr: pk("mul", v(tmp+i,2), v(y+i,2), v(y+i,2))
    for i in Pr: pk("fma", v(tmp+i,2), v(tmp+i,2), v(kk,2), v(kk,2), bsel=0, csel=1)
    for i in Pr: pk("mul", v(tmp+i,2), v(tmp+i,2), v(y+i,2))
    for i in range(n): k(f"v_exp_f32 {v(tmp+i)}, {v(tmp+i)}")
    for i in Pr: pk("fma", v(tmp+i,2), v(tmp+i,2), v(kk+2,2), v(kk+2,2), bsel=0, csel=0)
    for i in range(n): k(f"v_rcp_f32 {v(tmp+i)}, {v(tmp+i)}")
    for i in Pr: pk("mul", v(y+i,2), v(y+i,2), v(tmp+i,2))

def sum_partials(n16, stride, dst, tmp):
    k(f"v_min_u32 {v(vT0)}, {n16-1}, {v(vL)}\nv_lshlrev_b32 {v(vT0)}, 4, {v(vT0)}\nv_add_u32 {v(vT0)}, {PART}, {v(vT0)}")
    for i in range(4): k.ds(f"ds_read_b128 {v(tmp+4*i,4)}, {v(vT0)} offset:{i*stride}")
    k.wait(lg="all")
    for i in range(1, 4):
        for h in (0, 2): pk("add", v(tmp+h,2), v(tmp+h,2), v(tmp+4*i+h,2))
    k.ds(f"ds_write_b128 {v(vT0)}, {v(tmp,4)} offset:{dst-PART}")
    k.wait(lg="all")

def stop(n):
    if STOP == n: k("s_branch bail")

def prologue():
    k("s_cmp_ge_u32 s2, 0x100\ns_cbranch_scc1 bail")
    mark("first")
    for d, off in ((FLG, 80), (XO, 0), (WQ, 8), (DBG, 72), (WO, 16), (W1, 32), (W2, 40), (W3, 48), (W4, 56), (sOUT, 64)):
        k(f"s_load_dwordx2 {s(d,2)}, s[0:1], {off}")
    k(f"""v_lshrrev_b32 v1, 6, v0
    v_and_b32 v0, 63, v0
    v_readfirstlane_b32 {s(sW)}, v1
    s_and_b32 {s(sC)}, s2, 7
    s_lshr_b32 s3, s2, 3
    s_lshr_b32 {s(sHP)}, s2, 4
    s_lshr_b32 {s(sNT)}, s2, 5
    s_and_b32 {s(sMT)}, s3, 1
    s_lshl_b32 {s(sT0)}, {s(sC)}, 3
    s_lshl_b32 {s(sT1)}, {s(sMT)}, 2
    s_add_u32 {s(sT0)}, {s(sT0)}, {s(sT1)}
    s_add_u32 {s(sTB32)}, {s(sT0)}, {s(sW)}
    s_add_u32 {s(sIT)}, {s(sTB32)}, {s(sW)}
    s_and_b32 {s(sT1)}, {s(sTB32)}, -2
    s_sub_u32 {s(sIT)}, {s(sIT)}, 8
    s_cselect_b32 {s(sIT)}, {s(sT1)}, {s(sIT)}
    s_min_u32 {s(sNTL)}, {s(sTB32)}, 8
    s_lshl_b32 {s(sNTL)}, {s(sNTL)}, 15
    s_and_b32 {s(sG0)}, s3, 3
    s_lshl_b32 {s(sG0)}, {s(sG0)}, 1
    s_and_b32 {s(sT1)}, s2, 1
    s_or_b32 {s(sG0)}, {s(sG0)}, {s(sT1)}
    s_and_b32 {s(sT1)}, s3, 3
    s_lshl_b32 {s(sT1)}, {s(sT1)}, 2
    s_add_u32 {s(sT1)}, {s(sT1)}, {s(sW)}
    s_lshl_b32 {s(sT0)}, {s(sC)}, 4
    s_add_u32 {s(sTB16)}, {s(sT0)}, {s(sT1)}
    s_mov_b32 {s(s4K)}, 4096
    s_mov_b32 {s(s8K)}, 8192
    s_mov_b32 {s(s12K)}, 12288
    s_mov_b32 {s(s32K)}, 32768
    s_mov_b32 {s(s2R)}, {R2}
    s_lshl_b32 {s(sW1K)}, {s(sW)}, 10
    s_lshl_b32 {s(sQB)}, {s(sG0)}, 12
    s_add_u32 {s(sQB)}, {s(sQB)}, {s(sW1K)}
    s_lshl_b32 {s(sQA)}, {s(sQB)}, 1
    s_bitset1_b32 {s(sQB)}, 16
    v_lshlrev_b32 {v(vL16)}, 4, v0""")
    for d, n in ((FLG, 0x10100), (XO, 2097152), (WQ, 1572864), (DBG, 256), (WO, 524288), (W1, 524288), (W2, 524288),
                 (W3, 1835008), (W4, 1835008), (ACT, 128*R2)): srd(d, n)
    vXO = 56
    k(f"""v_and_b32 v57, 15, v0
    v_lshrrev_b32 v58, 4, v0
    s_lshl_b32 {s(sT0)}, {s(sTB16)}, 14
    s_lshl_b32 {s(sT1)}, {s(sNT)}, 7
    s_add_u32 {s(sT0)}, {s(sT0)}, {s(sT1)}
    v_lshlrev_b32 {v(vXO)}, 10, v57
    v_lshl_add_u32 {v(vXO)}, v58, 3, {v(vXO)}
    v_add_u32 {v(vXO)}, {s(sT0)}, {v(vXO)}
    v_lshrrev_b32 v59, 2, v0
    v_mul_u32_u24 v59, 3072, v59
    v_and_b32 v60, 3, v0
    v_lshl_add_u32 v59, v60, 4, v59
    s_mul_i32 {s(sT0)}, {s(sW)}, {16*3072}
    s_lshl_b32 {s(sT1)}, {s(sHP)}, 6
    s_add_u32 {s(sT0)}, {s(sT0)}, {s(sT1)}
    v_add_u32 {v(vDQ)}, {s(sT0)}, v59
    s_waitcnt lgkmcnt(0)
    s_add_u32 {s(ACT)}, {s(FLG)}, {ACT_OFF}
    s_addc_u32 {s(ACT+1)}, {s(FLG+1)}, 0""")
    mark("start")
    if PROF: k(f"s_memrealtime {s(sPT,2)}\ns_waitcnt lgkmcnt(0)\nv_writelane_b32 {v(vPR)}, {s(sPT)}, 62")
    for f in range(4):
        k.vmem(f"buffer_load_dwordx2 {v(64+2*f,2)}, {v(vXO)}, {s(XO,4)}, 0 offen offset:{32*f}", "x")
    k(f"s_load_dwordx2 {s(sV,2)}, {s(FLG,2)}, {E_OFF}")
    qQ(0, 2); bg(6)
    if P("pf", 1):
        k(f"""s_lshl_b32 {s(sT0)}, s2, 2
        s_add_u32 {s(sT0)}, {s(sT0)}, {s(sW)}
        s_lshl_b32 {s(sT1)}, {s(sT0)}, 9
        s_mul_i32 {s(sT0)}, {s(sT0)}, 1792
        v_lshlrev_b32 v61, 6, v0
        s_mov_b64 exec, 0xff""")
        for n, w in enumerate((WO, W1, W2)): k.vmem(f"buffer_load_dword {v(100+n)}, v61, {s(w,4)}, {s(sT1)} offen")
        k("s_mov_b64 exec, 0xfffffff")
        for n, w in enumerate((W3, W4)): k.vmem(f"buffer_load_dword {v(103+n)}, v61, {s(w,4)}, {s(sT0)} offen")
        k("s_mov_b64 exec, -1")
    k(f"""s_mul_i32 {s(sT0)}, {s(sTB16)}, {s(s2R)}
    v_add_u32 {v(vA16)}, {s(sT0)}, {v(vL16)}
    s_lshl_b32 {s(sT1)}, {s(sNT)}, 11
    v_add_u32 {v(vP16)}, {s(sT1)}, {v(vA16)}
    s_lshr_b32 {s(sT1)}, {s(sNT)}, 1
    s_lshl_b32 {s(sT1)}, {s(sT1)}, 8
    s_add_u32 {s(sT0)}, {s(sT0)}, {s(sT1)}
    s_and_b32 {s(sT1)}, {s(sNT)}, 1
    s_lshl_b32 {s(sT1)}, {s(sT1)}, 3
    s_add_u32 {s(sT0)}, {s(sT0)}, {s(sT1)}
    v_lshrrev_b32 v59, 5, v0
    v_lshlrev_b32 v60, 4, v57
    v_lshl_add_u32 v61, v59, 2, v60
    v_add_u32 {v(vST)}, {s(sT0)}, v61
    s_mul_i32 {s(sT0)}, {s(sTB32)}, {2*R2}
    v_add_u32 {v(vA3)}, {s(sT0)}, {v(vL16)}
    v_and_b32 v61, 1, v58
    v_mul_u32_u24 v62, {R2}, v61
    v_lshl_add_u32 v62, v59, 8, v62
    v_add3_u32 {v(vA32)}, v62, v60, {s(sT0)}
    s_lshr_b32 {s(sT1)}, {s(sHP)}, 3
    s_mul_i32 {s(sT1)}, {s(sT1)}, {s(s2R)}
    s_and_b32 {s(sT2)}, {s(sHP)}, 7
    s_lshl_b32 {s(sT2)}, {s(sT2)}, 12
    s_add_u32 {s(sT1)}, {s(sT1)}, {s(sT2)}
    s_add_u32 {s(sT1)}, {s(sT1)}, {FKV_}
    s_add_u32 {s(sKVo)}, {s(sT0)}, {s(sT1)}
    s_mul_i32 {s(sT0)}, {s(sIT)}, {2*R2}
    s_add_u32 {s(sKVf)}, {s(sT0)}, {s(sT1)}""")
    k(f"""v_lshrrev_b32 v62, 2, v57
    v_and_b32 v63, 3, v0
    v_lshl_add_u32 v72, v59, 2, v62
    v_lshl_add_u32 v73, v61, 2, v63
    v_lshlrev_b32 v73, 3, v73
    v_lshl_add_u32 {v(vWq)}, v72, 6, v73
    v_lshl_add_u32 v72, v61, 2, v62
    v_lshlrev_b32 v73, 10, v59
    v_lshl_add_u32 v73, v72, 7, v73
    v_lshl_add_u32 v73, v63, 3, v73
    v_lshrrev_b32 v72, 1, v72
    v_lshl_add_u32 {v(vRB[0])}, v72, 5, v73
    v_xor_b32 {v(vRB[1])}, 32, {v(vRB[0])}
    v_xor_b32 {v(vRB[2])}, 64, {v(vRB[0])}
    v_xor_b32 {v(vRB[3])}, 0x60, {v(vRB[0])}
    v_lshrrev_b32 v72, 3, v0
    v_and_b32 v73, 7, v0
    v_lshlrev_b32 v74, 1, v58
    v_xor_b32 v74, v74, v73
    v_lshlrev_b32 v74, 4, v74
    v_lshl_add_u32 v74, v72, 10, v74
    s_lshl_b32 {s(sT0)}, {s(sW)}, 13
    s_lshl_b32 {s(sT1)}, {s(sNT)}, 7
    s_add_u32 {s(sT0)}, {s(sT0)}, {s(sT1)}
    v_add_u32 {v(vDB)}, {s(sT0)}, v74""")
    k(f"""s_lshl_b32 {s(sT3)}, {s(sC)}, 13
    s_and_b32 {s(sT0)}, {s(sTB16)}, 15
    s_lshl_b32 {s(sT1)}, {s(sT0)}, 7
    s_add_u32 {s(sT1)}, {s(sT1)}, {s(sT3)}
    v_lshl_add_u32 {v(vPB16)}, v73, 3, {s(sT1)}
    s_lshl_b32 {s(sT2)}, {s(sNT)}, 3
    s_add_u32 {s(sFBo)}, {s(sT1)}, {s(sT2)}
    s_add_u32 {s(sFHo)}, {s(sFBo)}, {GH}
    s_lshr_b32 {s(sT0)}, {s(sT0)}, 1
    s_lshl_b32 {s(sT0)}, {s(sT0)}, 7
    s_add_u32 {s(sT0)}, {s(sT0)}, {s(sT3)}
    s_add_u32 {s(sT0)}, {s(sT0)}, {GA}
    v_lshl_add_u32 {v(vPA)}, v57, 3, {s(sT0)}
    s_and_b32 {s(sT0)}, {s(sTB32)}, 7
    s_lshl_b32 {s(sT1)}, {s(sT0)}, 8
    s_add_u32 {s(sT1)}, {s(sT1)}, {s(sT3)}
    v_and_b32 v74, 1, v72
    v_lshlrev_b32 v74, 7, v74
    v_lshl_add_u32 v74, v73, 3, v74
    v_add_u32 {v(vPB32)}, {s(sT1)}, v74
    s_lshl_b32 {s(sT1)}, {s(sT0)}, 7
    s_lshl_b32 {s(sT2)}, {s(sHP)}, 3
    s_add_u32 {s(sT1)}, {s(sT1)}, {s(sT2)}
    s_add_u32 {s(sT1)}, {s(sT1)}, {s(sT3)}
    s_add_u32 {s(sFAo)}, {s(sT1)}, {GA}
    s_lshl_b32 {s(sT2)}, {s(sHP)}, 7
    s_add_u32 {s(sT2)}, {s(sT2)}, {GKV}
    s_lshl_b32 {s(sT0)}, {s(sT0)}, 3
    s_add_u32 {s(sT0)}, {s(sT0)}, {s(sT2)}
    s_add_u32 {s(sFKVo)}, {s(sT0)}, {s(sT3)}
    s_lshr_b32 {s(sT0)}, {s(sIT)}, 3
    s_lshl_b32 {s(sT0)}, {s(sT0)}, 13
    s_add_u32 {s(sT2)}, {s(sT2)}, {s(sT0)}
    s_and_b32 {s(sT0)}, {s(sIT)}, 7
    s_lshl_b32 {s(sT0)}, {s(sT0)}, 3
    s_add_u32 {s(sT2)}, {s(sT2)}, {s(sT0)}
    v_and_b32 v74, 1, v0
    v_lshl_add_u32 {v(vPKV)}, v74, 3, {s(sT2)}
    v_min_u32 v74, 2, v72
    s_sub_u32 {s(sT0)}, {s(sTB16)}, 1
    v_add_u32 v74, {s(sT0)}, v74
    v_max_i32 v74, 0, v74
    v_min_i32 v74, 0x7f, v74
    v_lshrrev_b32 v75, 4, v74
    v_and_b32 v74, 15, v74
    v_lshlrev_b32 v75, 13, v75
    v_lshl_add_u32 v75, v74, 7, v75
    v_lshl_add_u32 v75, v73, 3, v75
    v_add_u32 {v(vPH)}, {GH}, v75
    s_and_b32 {s(sT0)}, {s(sHP)}, 1
    s_mul_i32 {s(sT1)}, {s(sHP)}, 7
    s_add_u32 {s(sT2)}, {s(sT1)}, {s(sT0)}
    s_lshl_b32 {s(sT2)}, {s(sT2)}, 9
    s_add_u32 {s(sH3p)}, {s(sT2)}, {FH3}
    s_mul_i32 {s(sT0)}, {s(sT0)}, {4096-8}
    s_add_u32 {s(sH3s)}, {s(sH3p)}, 3072
    s_sub_u32 {s(sH3s)}, {s(sH3s)}, {s(sT0)}
    s_mov_b32 {s(sLAY)}, 0
    s_mov_b32 {s(sPURE)}, 0
    s_mov_b32 {s(sPUREH)}, 0
    s_getreg_b32 {s(sT2)}, hwreg(HW_REG_XCC_ID, 0, 4)
    s_and_b32 {s(sT2)}, {s(sT2)}, 7
    s_lshl_b32 {s(sT2)}, {s(sT2)}, 3
    s_lshl_b64 {s(sXP,2)}, 32, {s(sT2)}
    s_add_u32 {s(sT0)}, {s(sTB16)}, 1
    s_and_b32 {s(sT0)}, {s(sT0)}, 14
    s_cselect_b32 {s(sEDG)}, 1, 0
    s_mul_i32 {s(s3L)}, {s(sW)}, 7168
    s_mul_i32 {s(s3G)}, {s(sW)}, {32*3584}
    s_mul_i32 {s(sT2)}, {s(sHP)}, 224
    s_add_u32 {s(s3G)}, {s(s3G)}, {s(sT2)}""")
    for q in range(7):
        k(f"v_add_u32 v72, {64*q}, v0\nv_mul_u32_u24 v72, 4682, v72\nv_lshrrev_b32 v72, 16, v72\n"
          f"v_mul_u32_u24 v72, 3360, v72\nv_add_u32 {v(vD3+q)}, v72, {v(vL16)}")
    k(f"s_waitcnt lgkmcnt(0)\ns_xor_b32 {s(sV+1)}, {s(sV+1)}, 0x5bd1e995")
    k.wait(vm="x")
    for i in range(8):
        k(f"v_lshlrev_b32 {v(RES+2*i)}, 16, {v(64+i)}\nv_and_b32 {v(RES+2*i+1)}, 0xffff0000, {v(64+i)}")
    mark("xload")
    k(f"s_mov_b32 {s(XO)}, {s(sOUT)}\ns_mov_b32 {s(XO+1)}, {s(sOUT+1)}")

def selector(d):
    k(f"v_lshrrev_b32 {v(vT0)}, 2, v0\nv_xor_b32 {v(vT0)}, {v(vT0)}, v0\nv_and_b32 {v(vT0)}, 4, {v(vT0)}\n"
      f"v_cmp_eq_u32 vcc, 0, {v(vT0)}\nv_mov_b32 {v(vT0)}, 0x3f803f80\nv_cndmask_b32 {v(d)}, 0, {v(vT0)}, vcc")
    for i in range(1, 4): k(f"v_mov_b32 {v(d+i)}, {v(d)}")

def l0_only(fn):
    L = k.lab("l0")
    k(f"s_cmp_lg_u32 {s(sLAY)}, 0\ns_cbranch_scc1 {L}")
    fn()
    k(f"{L}:")

def x_pub():
    pub_tile(RES, FX, STX, 56)
    qQ(2, 8); bg(P("xa", 3))
    flag(sFBo, sPURE)
    def count():
        L = k.lab("cnt")
        k(f"""s_barrier
        s_cmp_lg_u32 {s(sW)}, 0
        s_cbranch_scc1 {L}
        s_lshr_b64 {s(sT0,2)}, {s(sXP,2)}, 5
        v_mov_b32 v56, {s(sT0)}
        v_mov_b32 v57, {s(sT1)}
        s_lshl_b32 {s(sT2)}, {s(sC)}, 5
        s_mov_b64 exec, 1
        buffer_atomic_add_x2 v[56:57], off, {s(DBG,4)}, {s(sT2)} sc1
        s_mov_b64 exec, -1
        {L}:""")
    l0_only(count)
    bg(99)
    k(f"s_cmp_eq_u32 {s(sLAY)}, 0\ns_cselect_b32 {s(WQ+2)}, {s(WQ+2)}, 0")

def qkv_att():
    AK, AV, AQ = 56, 72, 88
    FR = 104; CS = 128; STA = 160; RM = 168; PKD = 208
    vWq2, vCS, vV0, vV1, vKW = 240, 241, 242, 243, 244
    SEL = 196; QF = 200
    N0 = P("qn", 8)
    k(f"v_add_u32 {v(vWq2)}, 0x10000, {v(vWq)}")
    selector(SEL)
    k(f"""v_lshrrev_b32 {v(vT1)}, 5, v0
    v_lshlrev_b32 {v(vCS)}, 4, {v(vT1)}
    v_add_u32 {v(vCS)}, {CSQ}, {v(vCS)}
    v_lshlrev_b32 {v(vT1)}, 6, {v(vT1)}
    v_xor_b32 {v(vV0)}, {v(vT1)}, {v(vL16)}
    v_xor_b32 {v(vV1)}, 0x80, {v(vV0)}
    s_lshl_b32 {s(sT0)}, {s(sW)}, 12
    s_add_u32 {s(sT0)}, {s(sT0)}, {KVB + 8*4096}
    v_add_u32 {v(vKW)}, {s(sT0)}, {v(vL16)}
    v_add_u32 {v(vKW+1)}, {s(sT0)}, {v(vV0)}
    v_add_u32 {v(vKW+2)}, {s(sT0)}, {v(vV1)}
    s_mov_b32 {s(sT1)}, {STX}""")
    S0, S1, CM, MD, O0, O1 = 56, 72, 104, 40, 160, 176
    KF, VF, PP, LS, MX = 208, 216, 224, 232, 120
    vK, vVa, vVb, vDB2 = 192, 193, 194, 195
    k(f"""v_bfe_u32 {v(vT0)}, v0, 4, 1
    v_bfe_u32 {v(vK)}, v0, 1, 1
    v_lshl_add_u32 {v(vT0)}, {v(vT0)}, 1, {v(vK)}
    v_lshrrev_b32 {v(vK)}, 5, v0
    v_xor_b32 {v(vK)}, {v(vK)}, {v(vT0)}
    v_lshlrev_b32 {v(vT0)}, 9, {v(vT0)}
    v_lshl_add_u32 {v(vT0)}, {v(vK)}, 6, {v(vT0)}
    v_bfe_u32 {v(vK)}, v0, 2, 2
    v_lshl_add_u32 {v(vT0)}, {v(vK)}, 4, {v(vT0)}
    v_and_b32 {v(vK)}, 1, v0
    v_lshl_add_u32 {v(vT0)}, {v(vK)}, 3, {v(vT0)}
    v_lshl_add_u32 {v(vT0)}, {s(sW)}, 12, {v(vT0)}
    v_add_u32 {v(vVa)}, {KVB + 8*4096 + 2048}, {v(vT0)}
    v_xor_b32 {v(vVb)}, 0x80, {v(vVa)}
    v_lshlrev_b32 {v(vT0)}, v0, -2
    v_lshrrev_b32 {v(vK)}, 3, v0
    v_and_b32 {v(vK)}, 4, {v(vK)}
    v_lshrrev_b32 {v(vT0)}, {v(vK)}, {v(vT0)}
    v_subrev_u32 {v(vK)}, {s(s4K)}, {v(vKW)}
    v_add_u32 {v(vDB2)}, {8*32768}, {v(vDB)}""")
    for i in range(16): k(f"v_bfe_i32 {v(MD+i)}, {v(vT0)}, {8*(i//4)+i%4}, 1\nv_and_b32 {v(MD+i)}, {NEG}, {v(MD+i)}")
    def rdq(dst, sp, b, tag):
        G = sp // 4
        for j in range(2):
            w_ = 2*((sp//2) % 2) + j
            off = G*8192 + w_*2048 + (b-1)*1024 if b else G*4096 + w_*1024
            k.ds(f"ds_read_b64_tr_b16 {v(dst+2*j,2)}, {v(vWq if b else vWq2)} offset:{off + (sp % 2)*512}", tag)
    def ldx(sp):
        k.vmem(f"buffer_load_dwordx4 {a(4*sp,4)}, {v(vA32)}, {s(ACT,4)}, {SK[sp//8]} offen offset:{(sp%8)*512} sc1", ("x", sp))
    mark("q.pre")
    poll(vPB32)
    mark("q.poll")
    for i in range(2): k.vmem(f"buffer_load_dwordx4 {v(STA+4*i,4)}, {v(vA32)}, {s(ACT,4)}, {s(sT1)} offen offset:{512*i} sc1", "st")
    for sp in range(N0): ldx(sp)
    def colsum():
        k(f"v_add_u32 {v(vT2)}, {s(sW1K)}, {v(vWq2)}\nv_lshl_add_u32 {v(vT1)}, {s(sW)}, 11, {v(vWq)}")
        for i in range(24 + 5):
            if i < 24:
                G, b = divmod(i, 3)
                for j in range(2):
                    off = G*8192 + (b-1)*1024 if b else G*4096
                    k.ds(f"ds_read_b64_tr_b16 {v(FR+4*(i%6)+2*j,2)}, {v(vT1 if b else vT2)} offset:{off + j*512}", ("c", i))
            m = i - 5
            if m >= 0:
                k.wait(lg=("c", m)); c = v(AK + 4*(m % 3), 4)
                k(f"{M16} {c}, {v(SEL,4)}, {v(FR+4*(m%6),4)}, {c if m >= 3 else 0}")
        k(f"s_mul_i32 {s(sT0)}, {s(sW)}, 384\ns_add_u32 {s(sT0)}, {s(sT0)}, {PART}\nv_and_b32 {v(vT1)}, 31, v0\n"
          f"v_lshl_add_u32 {v(vT1)}, {v(vT1)}, 2, {s(sT0)}")
        for b in range(3): k.ds(f"ds_write_b32 {v(vT1)}, {v(AK+4*b)} offset:{b*128}")
        k.wait(lg="all")
    l0_only(colsum)
    k("s_barrier")
    l0_only(lambda: sum_partials(24, 384, CSQ, CS))
    for sp in range(2):
        for b in (1, 2): rdq(FR + 8*sp + 4*(b-1), sp, b, ("w", sp))
    for b in (1, 2):
        for q in range(4): k.ds(f"ds_read_b128 {v(CS+16*(b-1)+4*q,4)}, {v(vCS)} offset:{b*128+q*32}", "cs")
    with Rec() as fq:
        for i in (0, 1): k(f"v_add_f32 {v(STA+i)}, {v(STA+i)}, {v(STA+2+i)}\nv_add_f32 {v(STA+4+i)}, {v(STA+4+i)}, {v(STA+6+i)}")
        for i in (0, 1): k(f"v_add_f32 {v(STA+i)}, {v(STA+i)}, {v(STA+4+i)}")
        finish_stats(STA, RM, False)
        k(f"v_mul_f32 {v(RM+1)}, {v(RM)}, {v(RM+1)}")
        for i in range(32): k(f"v_mul_f32 {v(CS+i)}, {v(RM+1)}, {v(CS+i)}")
    for sp in range(32):
        k.wait(vm=("x", sp), lg=("w", sp))
        for b, acc in ((1, AK), (2, AV)):
            k(f"{M32} {v(acc,16)}, {v(FR+8*(sp%3)+4*(b-1),4)}, {a(4*sp,4)}, {v(acc,16) if sp else 0}")
            if b == 1 and sp + N0 < 32: ldx(sp + N0)
            if sp + 2 < 32: rdq(FR + 8*((sp+2) % 3) + 4*(b-1), sp + 2, b, ("w", sp + 2))
            elif sp == 30: rdq(FR + 16 + 4*(b-1), b - 1, 0, ("q", b - 1))
            else: rdq(FR + 4*(b-1), b + 1, 0, ("q", b + 1))
            if sp >= 2: emit(fq, 1)
    assert not fq
    k("s_barrier")
    mark("q.kv")
    qB(WO, [(g, g*4096) for g in range(16)])
    with Rec() as f1:
        for i in range(32): k(f"v_fma_f32 {v(AK+i)}, {v(AK+i)}, {v(RM)}, {v(CS+i)}")
        cvt(PKD, AK, 16)
    f1 = [x for t in range(4) for x in f1[8*t:8*t+8] + f1[32+4*t:36+4*t] + [t]]
    with Rec() as f2:
        for q in range(4): k.ds(f"ds_read_b128 {v(CS+4*q,4)}, {v(vCS)} offset:{q*32}")
        k(f"""v_mul_f32 {v(RM)}, {f2u(0.25*LOG2E)}, {v(RM)}
        v_mul_f32 {v(RM+1)}, {f2u(0.25*LOG2E)}, {v(RM+1)}""")
        for i in range(16): k(f"v_mul_f32 {v(CS+i)}, {v(RM+1)}, {v(CS+i)}")
    f2.insert(6, lambda: k.wait(lg="fill"))
    def slot(n): return FR + 4*((n + 4) % 6)
    nd = 0
    for sp in range(32):
        k.wait(lg=("q", sp))
        k(f"{M32} {v(AQ,16)}, {v(slot(sp),4)}, {a(4*sp,4)}, {v(AQ,16) if sp else 0}")
        if sp + 4 < 32: rdq(slot(sp + 4), sp + 4, 0, ("q", sp + 4))
        if f1 and sp >= 1:
            for _ in range(4):
                t = f1.pop(0)
                if isinstance(t, int):
                    k.vmem(f"buffer_store_dwordx4 {v(PKD+4*t,4)}, {v((vL16, vL16, vV0, vV1)[t])}, {s(ACT,4)}, {s(sKVo)} offen offset:{t*1024} sc1", "pub")
                    k.ds(f"ds_write_b128 {v((vKW, vKW, vKW+1, vKW+2)[t])}, {v(PKD+4*t,4)} offset:{t*1024}", "kw")
                else: k(t)
        elif sp >= 1:
            if sp % 2 == 0: bg()
            else: emit(f2, 3)
    emit(f2)
    bg(2)
    for i in range(0, 16, 2): pk("fma", v(AQ+i,2), v(AQ+i,2), v(RM,2), v(CS+i,2), bsel=0)
    cvt(QF, AQ, 8)
    mark("q.q")
    stop(2)
    def qk(h, c): k(f"{M32} {v((S0,S1)[h],16)}, {v(KF+4*h,4)}, {v(QF+4*h,4)}, {v(c,16)}")
    def pv(h, u, first=False):
        O = v((O0, O1)[h], 16)
        k(f"{M32} {O}, {v(VF+4*u,4)}, {v(PP+4*u,4)}, {0 if first else O}")
    def rs(h, u, first=False): k(f"{M16} {v(LS+4*h,4)}, {v(SEL,4)}, {v(PP+4*u,4)}, {0 if first else v(LS+4*h,4)}")
    def rdV(u):
        for j, va in enumerate((vVa, vVb)): k.ds(f"ds_read_b64_tr_b16 {v(VF+4*u+2*j,2)}, {v(va)} offset:{u*256}", ("v", u))
    def rdK(h): k.ds(f"ds_read_b128 {v(KF+4*h,4)}, {v(vK)} offset:{h*1024}", ("k", h))
    def dec(*rs_):
        for x in rs_: k(f"v_subrev_u32 {v(x)}, {s(s4K)}, {v(x)}")
    def blk(h, u, at):
        S = (S0, S1)[h] + 8*u
        for i in range(12):
            if i in at: at[i]()
            if i < 8: k(f"v_exp_f32 {v(S+i)}, {v(S+i)}")
            else: cvt(PP + 4*u + i - 8, S + 2*(i-8), 1)
    qk(0, MD); rdV(0); rdV(1); bg(); qk(1, MD); dec(vVa, vVb)
    for i in range(16): k(f"v_mov_b32 {v(CM+i)}, 0")
    if P("kvf", 0) == 0: flag(sFKVo, None)
    blk(0, 0, {2: bg, 6: bg})
    if P("kvf", 0) == 1: flag(sFKVo, None)
    blk(0, 1, {2: lambda: (k.wait(lg="all"), pv(0, 0, True)), 5: lambda: rs(0, 0, True), 7: bg})
    blk(1, 0, {2: lambda: pv(0, 1), 5: lambda: rs(0, 1), 7: bg})
    bg(99)
    k(f"v_lshlrev_b32 {v(vT0)}, 5, v0")
    k.vmem(f"buffer_load_dwordx2 {v(MX,2)}, {v(vT0)}, {s(DBG,4)}, 0 offen sc1")
    mark("a.diag")
    poll(vPKV)
    mark("a.poll")
    k(f"s_lshl_b32 {s(sT0)}, {s(sW)}, 13\ns_add_u32 m0, {s(sT0)}, {KVB}\ns_mov_b32 {s(sOFF)}, {s(sKVf)}")
    for t in range(2):
        for i in range(4):
            def f(t=t, i=i):
                if t and not i: k(f"s_add_u32 m0, m0, {s(s4K)}\ns_add_u32 {s(sOFF)}, {s(sOFF)}, {2*R2}")
                k.vmem(f"buffer_load_dwordx4 {v(vL16)}, {s(ACT,4)}, {s(sOFF)} offen offset:{i*1024} sc1 lds", "kv")
            bgq.append(f)
    bg(P("ka", 3))
    k(f"v_readlane_b32 {s(sT0)}, {v(MX)}, {s(sC)}\nv_readlane_b32 {s(sT1)}, {v(MX+1)}, {s(sC)}\ns_barrier")
    with Rec() as fq: fill([g*4096 for g in range(16)], A0, {0: vRB})
    mix(fq, 8, 8)
    k(f"""s_cmp_eq_u64 {s(sT0,2)}, {s(sXP,2)}
    s_cselect_b32 {s(sPURE)}, 1, 0
    s_and_b32 {s(sPUREH)}, {s(sPURE)}, {s(sEDG)}
    s_add_u32 {s(sT0)}, s2, {s(sW)}
    s_cmp_lt_u32 {s(sT0)}, {s(sLAY)}
    s_cbranch_scc1 epoch
    epoch_b:
    s_mov_b32 m0, {s(sW1K)}
    s_mov_b32 {s(sOFF)}, 0""")
    cold.extend(f"""epoch:
    s_mov_b32 {s(sCNT)}, 0x8000
    epoch_l:
    buffer_load_dwordx2 {v(MX,2)}, {v(vT0)}, {s(DBG,4)}, 0 offen sc1
    s_sub_u32 {s(sCNT)}, {s(sCNT)}, 1
    s_cbranch_scc1 bail
    s_waitcnt vmcnt(0)
    v_sad_u8 {v(MX)}, {v(MX)}, 0, 0
    v_sad_u8 {v(MX)}, {v(MX+1)}, 0, {v(MX)}
    v_cmp_ne_u32 vcc, 32, {v(MX)}
    s_and_b32 {s(sT0)}, vcc_lo, 0xff
    s_cbranch_scc1 epoch_l
    s_add_u32 {s(sT0)}, {s(sV)}, 7
    v_mov_b32 {v(MX)}, {s(sT0)}
    s_mov_b32 {s(sT0)}, {E_OFF - 0x10000}
    s_mov_b64 exec, 1
    buffer_store_dword {v(MX)}, off, {s(FLG,4)}, {s(sT0)} sc1
    s_mov_b64 exec, -1
    s_branch epoch_b""".split("\n"))
    k.wait(vm="all")
    barrier()
    mark("a.kv")
    rdK(0); rdK(1); dec(vK)
    blk(1, 1, {0: lambda: pv(1, 0, True), 3: lambda: rs(1, 0, True), 6: lambda: (k.wait(lg="all"), qk(0, CM))})
    def dma(n):
        k.vmem(f"buffer_load_dwordx4 {v(vDB2 if n == 1 else vDB)}, {s(W2 if n == 2 else W1,4)}, {s(sOFF)} offen lds", "dma")
        if n < 2: k(f"s_add_u32 m0, m0, {s(s32K)}")
        else: k(f"s_sub_u32 m0, m0, {65536 - 4096}\ns_add_u32 {s(sOFF)}, {s(sOFF)}, {s(s32K)}")
    def setcm():
        k(f"s_cmp_eq_u32 {s(sOFF)}, {6*32768}\ns_cbranch_scc1 att_cm\natt_cmb:")
    cold.extend(["att_cm:"] + [f"v_xor_b32 {v(CM+i)}, {NEG}, {v(MD+i)}" for i in range(16)] + ["s_branch att_cmb"])
    k(f"s_cmp_eq_u32 {s(sNTL)}, 0\ns_cbranch_scc1 att_e\natt_l:")
    blk(0, 0, {0: lambda: (qk(1, CM), rdV(0), rdK(0)), 3: lambda: pv(1, 1), 6: lambda: rs(1, 1), 8: lambda: dma(0)})
    blk(0, 1, {0: lambda: (rdV(1), rdK(1)), 1: lambda: (k.wait(lg=("k", 0)), pv(0, 0)), 4: lambda: rs(0, 0), 6: setcm, 8: lambda: dma(1)})
    blk(1, 0, {0: lambda: qk(0, CM), 3: lambda: (k.wait(lg="all"), pv(0, 1)), 6: lambda: rs(0, 1)})
    blk(1, 1, {0: lambda: dec(vK, vVa), 1: lambda: pv(1, 0), 4: lambda: rs(1, 0), 6: lambda: dec(vVb), 8: lambda: dma(2)})
    k(f"s_cmp_lt_u32 {s(sOFF)}, {s(sNTL)}\ns_cbranch_scc1 att_l\natt_e:")
    pv(1, 1); rs(1, 1)
    k(f"s_cmp_lt_u32 {s(sOFF)}, {8*32768}\ns_cbranch_scc1 att_r\natt_rb:")
    with Rec() as q:
        k("att_r:")
        for n in range(3): dma(n)
        k(f"s_cmp_lt_u32 {s(sOFF)}, {8*32768}\ns_cbranch_scc1 att_r\ns_branch att_rb")
    cold.extend(q)
    mark("a.loop")
    k(f"""v_lshrrev_b32 {v(vT0)}, 5, v0
    v_lshl_add_u32 {v(vT0)}, {v(vT0)}, 8, {v(vA32)}
    s_lshl_b32 {s(sT0)}, {s(sHP)}, 10
    s_add_u32 {s(sT0)}, {s(sT0)}, {FO}""")
    pk("mul", v(MX,2), v(O0,2), 0)
    for i in range(2, 8, 2): pk("fma", v(MX,2), v(O0+i,2), 0, v(MX,2))
    for i in range(0, 8, 2): pk("fma", v(MX,2), v(O1+8+i,2), 0, v(MX,2))
    lo, hi = (127 - 48) << 23, (127 + 80) << 23
    k(f"""v_add_f32 {v(MX)}, {v(MX)}, {v(LS)}
    v_add_f32 {v(MX+1)}, {v(MX+1)}, {v(LS+4)}
    v_subrev_u32 {v(MX)}, {lo}, {v(MX)}
    v_subrev_u32 {v(MX+1)}, {lo}, {v(MX+1)}
    v_max_u32 {v(MX)}, {v(MX)}, {v(MX+1)}
    v_cmp_lt_u32 vcc, {hi - lo if not P("fb", 0) else 0}, {v(MX)}
    s_cbranch_vccnz att_x
    att_xb:
    v_rcp_f32 {v(MX)}, {v(LS)}
    v_rcp_f32 {v(MX+1)}, {v(LS+4)}""")
    C0, C1_ = 88, 104
    with Rec() as q:
        k("att_x:")
        def rk():
            rdK(0); rdK(1); dec(vK); k.wait(lg="all")
        def loop(name, body, last):
            k(f"v_mov_b32 {v(vK)}, {v(vKW)}\ns_mov_b32 {s(sIT)}, 0\n{name}:")
            rk(); qk(0, C0); qk(1, C1_)
            body()
            k(f"s_cmp_lg_u32 {s(sIT)}, {7*32768}\ns_cbranch_scc1 {name}_n")
            last()
            k(f"{name}_n:\ns_add_u32 {s(sIT)}, {s(sIT)}, {s(s32K)}\ns_cmp_le_u32 {s(sIT)}, {s(sNTL)}\ns_cbranch_scc1 {name}")
        def setc(mask):
            for i in range(16):
                if mask == "o": k(f"v_xor_b32 {v(C0+i)}, {NEG}, {v(MD+i)}")
                m = {"o": v(C0+i), "d": v(MD+i), "": 0}[mask]
                k(f"v_add_f32 {v(C1_+i)}, {m}, {v(MX+3)}\nv_add_f32 {v(C0+i)}, {m}, {v(MX+2)}")
        k(f"v_mov_b32 {v(MX)}, {NEG}\nv_mov_b32 {v(MX+1)}, {NEG}\nv_mov_b32 {v(MX+2)}, 0\nv_mov_b32 {v(MX+3)}, 0")
        setc("d")
        def p1():
            for h, S in enumerate((S0, S1)):
                for i in range(0, 16, 2): k(f"v_max3_f32 {v(MX+h)}, {v(MX+h)}, {v(S+i)}, {v(S+i+1)}")
            setc("")
        loop("att_x1", p1, lambda: setc("o"))
        k(f"""v_permlane32_swap_b32 {v(MX)}, {v(MX+1)}
        v_max_f32 {v(MX)}, {v(MX)}, {v(MX+1)}
        v_sub_f32 {v(MX+2)}, 0, {v(MX)}
        v_mov_b32 {v(MX+3)}, {v(MX+2)}
        v_permlane32_swap_b32 {v(MX+2)}, {v(MX+3)}
        s_lshr_b32 {s(sIT)}, {s(sNTL)}, 3
        s_add_u32 {s(sIT)}, {s(sIT)}, {s(s4K)}
        v_add_u32 {v(vVa)}, {s(sIT)}, {v(vVa)}
        v_add_u32 {v(vVb)}, {s(sIT)}, {v(vVb)}""")
        setc("d")
        for i in range(32): k(f"v_mov_b32 {v(O0+i)}, 0")
        for i in range(8): k(f"v_mov_b32 {v(LS+i)}, 0")
        def p2():
            rdV(0); rdV(1); dec(vVa, vVb); k.wait(lg="all")
            for h in range(2):
                for u in range(2): blk(h, u, {}); pv(h, u); rs(h, u)
            setc("")
        loop("att_x2", p2, lambda: setc("o"))
        k("s_branch att_xb")
    cold.extend(q)
    for i in range(0, 8, 2):
        pk("mul", v(O0+i,2), v(O0+i,2), v(MX,2), bsel=0); pk("mul", v(O1+8+i,2), v(O1+8+i,2), v(MX,2), bsel=1)
    for q in range(2):
        cvt(PP + 4*q, O0 + 4*q, 2); cvt(PP + 4*q + 2, O1 + 8 + 4*q, 2)
    dual([f"buffer_store_dwordx4 {v(PP+4*q,4)}, {v(vT0)}, {s(ACT,4)}, {s(sT0)} offen offset:{q*256}" for q in range(2)], sPURE)

BX = 56
def gemmB(acc, va, cinit, nxt=None, bases=None, fq=None, nbg=1):
    N0 = P("bn", 8)
    def ld(st):
        k.vmem(f"buffer_load_dwordx4 {v(BX+4*st,4)}, {v(va[st//4])}, {s(ACT,4)}, {SK[st//4]} offen offset:{(st%4)*1024} sc1", ("x", st))
    for st in range(N0): ld(st)
    for st in range(16):
        k.wait(vm=("x", st))
        for fb in range(4):
            c = v(acc + 4*fb, 4); n = 4*st + fb
            k(f"{M16} {c}, {a(4*n,4)}, {v(BX+4*st,4)}, {c if (st or cinit) else 0}")
            if fb == 0:
                if st + N0 < 16: ld(st + N0)
                else: bg(nbg)
            if nxt and n: rd_fragB(A0 + 4*(n-1), nxt[(n-1)//4], (n-1) % 4, bases, "fill")
            if fq and fb: emit(fq, 1)
    if fq: emit(fq)
    if nxt: rd_fragB(A0 + 4*63, nxt[15], 3, bases, "fill")

def wo_w1_w2():
    VB, TMP, vAD = 120, 128, 144
    ACC, CS1, ONES, STA, RM, KK, G0 = 160, 176, 192, 196, 200, 204, 208
    k(f"v_add_u32 {v(vAD)}, {FO}, {v(vA16)}")
    bases = rb_bases(VB, [0, 1])
    flag(sFAo, sPURE)
    mark("a.pub")
    stop(3)
    k("s_barrier")
    qB(W2, [(g, 64*KB + g*4096) for g in range(8, 16)]); q3([3])
    bg(P("ow", 6))
    poll(vPA)
    mark("wo.poll")
    gemmB(RES, [vAD]*4, True, [g*4096 for g in range(16)], bases)
    mark("wo.gemm")
    assert len(bgq) <= 7
    pub_tile(RES, FX2, STX2, TMP)
    bg(99)
    k(f"v_add_u32 {v(vAD)}, {FX2}, {v(vA16)}\ns_mov_b32 {s(sT3)}, {STX2}\nv_and_b32 {v(vT0)}, 0x30, v0\nv_add_u32 {v(vT0)}, {CS1L}, {v(vT0)}")
    k.wait(lg="all")
    def cs(lo, hi):
        if not lo:
            for i in range(4): k(f"v_mov_b32 {v(ONES+i)}, 0x3f803f80")
        for m in range(lo, hi):
            c = v(CS1 + 4*(m % 4), 4)
            k(f"{M16} {c}, {a(4*m,4)}, {v(ONES,4)}, {c if m >= 4 else 0}")
        if lo:
            for i in range(4): k(f"ds_write_b128 {v(vT0)}, {v(CS1+4*i,4)} offset:{64*i}")
    l0_only(lambda: cs(0, 24))
    flag(sFBo, sPURE)
    mark("wo.pub")
    stop(4)
    k("s_barrier")
    q3([0, 1]); bg(P("x2w", 4))
    l0_only(lambda: cs(24, 64))
    for i in range(4): k.ds(f"ds_read_b128 {v(CS1+4*i,4)}, {v(vT0)} offset:{64*i}", "fill")
    poll(vPB16)
    mark("w1.poll")
    k.vmem(f"buffer_load_dwordx4 {v(STA,4)}, {v(vA16)}, {s(ACT,4)}, {s(sT3)} offen sc1", "st")
    with Rec() as fq:
        for i in (0, 1): k(f"v_add_f32 {v(STA+i)}, {v(STA+i)}, {v(STA+2+i)}")
        finish_stats(STA, RM, True)
        k(f"v_mul_f32 {v(STA)}, {v(RM)}, {v(RM)}\nv_fmaak_f32 {v(STA)}, {v(STA)}, {v(RM+2)}, {f2u(1e-5)}\nv_rsq_f32 {v(STA)}, {v(STA)}\n"
          f"v_mul_f32 {v(RM+2)}, {v(RM)}, {v(RM+1)}\nv_mul_f32 {v(STA)}, {v(RM)}, {v(STA)}")
        gelu_scale(STA, KK)
    gemmB(ACC, [vAD]*4, False, [64*KB + g*4096 for g in range(16)], bases, fq)
    mark("w1.gemm")
    k(f"s_mov_b32 {s(sT0)}, {FH_}")
    k.wait(lg="all")
    with Rec() as fq:
        gelu(ACC, 16, G0, CS1, RM, KK)
        cvt(TMP, ACC, 8)
    mix(fq, 24, 2)
    dual([f"buffer_store_dwordx4 {v(TMP+4*i,4)}, {v(vP16)}, {s(ACT,4)}, {s(sT0)} offen offset:{1024*i}" for i in range(2)], sPUREH)
    mark("w1.epi")
    k("s_barrier")
    qB(W4, [(g, W4S[g]) for g in range(11)]); q3([2])
    bg(P("ha", 4))
    for i in range(0, 16, 2): pk("fma", v(XB+i,2), v(RES+i,2), v(RM,2), v(RM+2,2), bsel=0, csel=0)
    T = G0
    k(f"s_lshl_b32 {s(sT0)}, {s(sTB16)}, 4\nv_and_b32 {v(T+3)}, 15, v0\nv_add_u32 {v(T+3)}, {s(sT0)}, {v(T+3)}\n"
      f"v_and_b32 {v(T+4)}, 0x300, {v(vL16)}\nv_add_u32 {v(T+4)}, {FH_}, {v(T+4)}\nv_mov_b32 {v(T+2)}, 0x80000000")
    for i, d in enumerate((-1, 1, -2, 2)):
        k(f"""v_add_u32 {v(vT0)}, {d}, {v(T+3)}
        v_cmp_gt_u32 vcc, 0x800, {v(vT0)}
        v_lshrrev_b32 {v(T)}, 4, {v(vT0)}
        v_and_b32 {v(vT0)}, 15, {v(vT0)}
        v_mad_u32_u24 {v(T)}, {v(T)}, {s(s2R)}, {v(T+4)}
        v_lshl_add_u32 {v(T)}, {v(vT0)}, 4, {v(T)}
        v_cndmask_b32 {v(vAD+i)}, {v(T+2)}, {v(T)}, vcc""")
    flag(sFHo, sPUREH)
    mark("w1.pub")
    stop(5)
    bg(P("hw", 6))
    poll(vPH)
    mark("w2.poll")
    gemmB(XB, [vAD+i for i in range(4)], True)
    mark("w2.gemm")
    assert len(bgq) <= 7
    pub_tile(XB, FX1, STX1, TMP)
    bg(99)
    for i in range(0, 16, 2): pk("add", v(RES+i,2), v(RES+i,2), v(XB+i,2))

def w3_w4():
    ACC, FR, BX0, BX1 = 56, 112, 168, A0 + 176
    STA, RM, vW, vAD, KK, VB = 156, 240, 140, 146, 148, 232
    CS = 112
    k(f"""v_lshrrev_b32 {v(vT0)}, 2, v0
    v_mul_u32_u24 {v(vT0)}, 224, {v(vT0)}
    v_and_b32 {v(vT1)}, 3, v0
    v_lshl_add_u32 {v(vT0)}, {v(vT1)}, 3, {v(vT0)}
    s_and_b32 {s(sT0)}, {s(sHP)}, 1
    s_lshl_b32 {s(sT1)}, {s(sT0)}, 5
    s_mul_i32 {s(sT0)}, {s(sT0)}, 192
    s_sub_u32 {s(sT0)}, 192, {s(sT0)}
    v_add_u32 {v(vW)}, {s(sT1)}, {v(vT0)}
    v_add_u32 {v(vW+1)}, {s(sT0)}, {v(vT0)}
    v_add_u32 {v(vW+2)}, {W3H}, {v(vW)}
    v_add_u32 {v(vW+3)}, {W3H}, {v(vW+1)}
    v_add_u32 {v(vAD)}, {FX1}, {v(vA3)}
    v_add_u32 {v(vAD+1)}, {FX1 + R2}, {v(vA3)}
    s_mov_b32 {s(sT3)}, {STX1 - FX1}""")
    bases = rb_bases(VB, [0, 1, 2])
    flag(sFBo, sPURE)
    mark("w2.pub")
    stop(6)
    k("s_barrier")
    fill(W4S, A0, bases)
    def rd3(dst, base, st, b, tag):
        for j in range(2):
            off = (st % 8)*7168 + j*3584 + (b*32 if b < 6 else 0)
            k.ds(f"ds_read_b64_tr_b16 {v(dst+2*j,2)}, {v(base + 2*(st//8) + (b == 6))} offset:{off}", tag)
    mark("w3.fill")
    poll(vPB32)
    mark("w3.poll")
    for t in range(2): k.vmem(f"buffer_load_dwordx4 {v(STA+4*t,4)}, {v(vAD+t)}, {s(ACT,4)}, {s(sT3)} offen sc1", "st")
    for st in range(16):
        for t, B in enumerate((BX0, BX1)):
            bgq.append(lambda st=st, t=t, B=B: k.vmem(f"buffer_load_dwordx4 {r(B+4*st,4)}, {v(vAD+t)}, {s(ACT,4)}, {SK[st//4]} offen offset:{(st%4)*1024} sc1", ("x", st)))
    bg(P("n3", 6))
    k.wait(lg="all")
    def colsum():
        for i in range(4): k(f"v_add_u32 {v(XB+i)}, {s(s3L)}, {v(vW+i)}\nv_mov_b32 {v(XB+4+i)}, 0x3f803f80")
        for i in range(28 + 5):
            if i < 28: rd3(FR + 4*(i % 6), XB, 4*(i//7), i % 7, ("c", i))
            m = i - 5
            if m >= 0:
                k.wait(lg=("c", m)); c = v(ACC + 4*(m % 7), 4)
                k(f"{M16} {c}, {v(XB+4,4)}, {v(FR+4*(m%6),4)}, {c if m >= 7 else 0}")
        k(f"s_mul_i32 {s(sT0)}, {s(sW)}, 448\ns_add_u32 {s(sT0)}, {s(sT0)}, {PART}\nv_and_b32 {v(vT1)}, 15, v0\n"
          f"v_lshl_add_u32 {v(vT1)}, {v(vT1)}, 2, {s(sT0)}")
        for b in range(7): k.ds(f"ds_write_b32 {v(vT1)}, {v(ACC+4*b)} offset:{b*64}")
        k.wait(lg="all")
    l0_only(colsum)
    k("s_barrier")
    l0_only(lambda: sum_partials(28, 448, CS3, FR))
    qB(W4, [(11 + g, W4S[g]) for g in range(11)])
    D = 5
    for n in range(D): rd3(FR + 4*n, vW, 0, n, ("w", n))
    with Rec() as fq:
        for t in range(2):
            for i in (0, 1): k(f"v_add_f32 {v(STA+4*t+i)}, {v(STA+4*t+i)}, {v(STA+4*t+2+i)}")
            finish_stats(STA + 4*t, RM + 4*t, True)
            gelu_scale(RM + 4*t, KK + 4*t)
        k(f"v_and_b32 {v(vT0)}, 0x30, v0\nv_add_u32 {v(vT0)}, {CS3}, {v(vT0)}")
    for n in range(112):
        st, b = divmod(n, 7)
        k.wait(vm=("x", st), lg=("w", min(n + 1, 111)) if n % 2 == 0 else None)
        for t, B in enumerate((BX0, BX1)):
            c = v(ACC + 28*t + 4*b, 4)
            k(f"{M16} {c}, {v(FR+4*(n%7),4)}, {r(B+4*st,4)}, {c if st else 0}")
            if t == 0 and n + D < 112: rd3(FR + 4*((n+D) % 7), vW, (n+D)//7, (n+D) % 7, ("w", n + D))
            if t == 1:
                if n % 2 and bgq: bg()
                elif n % 2: emit(fq, 2)
                else: emit(fq, 1)
    assert not fq and not bgq
    mark("w3.gemm")
    k(f"v_add_u32 {v(vAD)}, {R2}, {v(vA3)}")
    for b in range(7): k.ds(f"ds_read_b128 {v(CS+4*b,4)}, {v(vT0)} offset:{b*64}")
    k.wait(vm="all")
    barrier()
    qB(W4, [(22 + g, W4C[g]) for g in range(28)])
    G0, PKD = 168, 196
    for t in range(2):
        A = ACC + 28*t
        with Rec() as fq:
            gelu(A, 28, G0, CS, RM + 4*t, KK + 4*t)
            cvt(PKD + 16*t, A, 14)
        mix(fq, 12, P("e0", 12) if t == 0 else P("e1", 8))
        va = vA3 if t == 0 else vAD
        dual([f"buffer_store_dwordx4 {v(PKD+16*t+4*p,4)}, {v(va)}, {s(ACT,4)}, {s(sH3p)} offen offset:{p*1024}" for p in range(3)] +
             [f"buffer_store_dwordx2 {v(PKD+16*t+12,2)}, {v(va)}, {s(ACT,4)}, {s(sH3s)} offen"], sPURE)
    mark("w3.epi")
    NR = 12
    RING, AR, BV, vH = 136, 184, 40, 240
    with Rec() as fq:
        fill(W4S[:5], A0 + 176, bases); fill(W4S[5:], BV, bases)
    nf = P("h3f", 56)
    f0 = fq[:nf]; mix(f0, 12, P("h3a", 4))
    for i in range(4): k(f"v_add_u32 {v(vH+i)}, {FH3 + i*16384}, {v(vA16)}")
    flag(sFAo, sPURE)
    mark("w3.pub")
    stop(7)
    mix(fq[nf:], 8, len(bgq))
    barrier()
    qB(W4, [(50 + g, W4S[g]) for g in range(6)]); bg(99)
    src = {}
    for g in range(16): src[g] = ("r", A0 + 16*g)
    for g in range(6): src[16+g] = ("r", BV + 16*g)
    for g in range(28): src[22+g] = ("l", W4C[g])
    for g in range(6): src[50+g] = ("l", W4S[g])
    regs = [g for g in range(56) if src[g][0] == "r"]
    lds = sorted((g for g in range(56) if src[g][0] == "l"), key=lambda g: src[g][1] >= 96*KB)
    order = []
    for i in range(56):
        order.append(regs.pop(0) if regs and (i < 2 or i % 5 in (1, 3) or not lds) else lds.pop(0))
    nlow = max(i for i, g in enumerate(order) if src[g][0] == "l" and src[g][1] < 96*KB) + 1
    assert sorted(order) == list(range(56)) and nlow <= 56 - NR
    mark("w4.fill")
    poll(vPA)
    mark("w4.poll")
    def ldx(i):
        g = order[i]
        k.vmem(f"buffer_load_dwordx4 {v(RING+4*(i%NR),4)}, {v(vH+g//16)}, {s(ACT,4)}, {SK[(g//4)%4]} offen offset:{(g%4)*1024} sc1", ("x", i))
    N0 = P("n4", 9)
    for i in range(N0): ldx(i)
    k("s_barrier")
    lf = [(i, fb) for i in range(56) if src[order[i]][0] == "l" for fb in range(4)]
    pos = {x: n for n, x in enumerate(lf)}
    nxt = 0; used = 0
    for i in range(56):
        kind, loc = src[order[i]]
        if i == nlow + 2: k("s_barrier"); qQ(0, 2)
        for fb in range(4):
            if kind == "l":
                n = pos[(i, fb)]; A = v(AR + 4*(n % 8), 4)
                assert n + 1 - fb % 2 < nxt
                k.wait(vm=("x", i), lg=("w", n + 1) if fb % 2 == 0 else None)
            else:
                k.wait(vm=("x", i)); A = r(loc + 4*fb, 4)
            c = v(RES + 4*fb, 4)
            k(f"{M16} {c}, {A}, {v(RING+4*(i%NR),4)}, {c}")
            if fb == 0:
                if i + N0 < 56: ldx(i + N0)
                else: bg()
            if nxt < len(lf) and nxt - used < 7:
                rd_fragB(AR + 4*(nxt % 8), src[order[lf[nxt][0]]][1], lf[nxt][1], bases, ("w", nxt)); nxt += 1
            if kind == "l": used += 1
    assert not bgq
    k.vm.clear(); k.vm.append("dma")
    mark("w4.gemm")

def final():
    k(f"""v_and_b32 v57, 15, v0
    v_lshrrev_b32 v58, 4, v0
    s_lshl_b32 {s(sT0)}, {s(sTB16)}, 14
    s_lshl_b32 {s(sT1)}, {s(sNT)}, 7
    s_add_u32 {s(sT0)}, {s(sT0)}, {s(sT1)}
    v_lshlrev_b32 v56, 10, v57
    v_lshl_add_u32 v56, v58, 3, v56""")
    cvt(64, RES, 8)
    for f in range(4): k(f"buffer_store_dwordx2 {v(64+2*f,2)}, v56, {s(XO,4)}, {s(sT0)} offen offset:{32*f}")

def main():
    prologue()
    k("layer:")
    k.vm.append("dma")
    n0 = nmark[0]
    x_pub()
    mark("x.pub")
    stop(1)
    qkv_att()
    wo_w1_w2()
    w3_w4()
    k(f"s_cmp_lg_u32 {s(sLAY)}, 0\ns_cbranch_scc1 done")
    k(f"s_mov_b32 {s(sLAY)}, 1\ns_add_u32 {s(FLG)}, {s(FLG)}, 0x10000\ns_addc_u32 {s(FLG+1)}, {s(FLG+1)}, 0\ns_add_u32 {s(ACT)}, {s(ACT)}, {R}\ns_addc_u32 {s(ACT+1)}, {s(ACT+1)}, 0")
    if PROF: k(f"v_mov_b32 {v(vPR2)}, {v(vPR)}")
    k("s_branch layer\ndone:")
    final()
    k("s_waitcnt vmcnt(0)")
    if TM:
        mark("end")
        if OPT.get("wb"): k("buffer_wbl2 sc1\ns_waitcnt vmcnt(0)")
        k("tm_l:\ns_sleep 4\ns_memrealtime s[94:95]\ns_waitcnt lgkmcnt(0)\ns_sub_u32 s94, s94, s92\ns_cmp_lt_u32 s94, 15000\ns_cbranch_scc1 tm_l")
    if PROF:
        mark("end")
        k(f"s_memrealtime {s(sPT,2)}\ns_waitcnt lgkmcnt(0)\nv_writelane_b32 {v(vPR)}, {s(sPT)}, 63")
        k(f"""s_add_u32 {s(DBG)}, {s(FLG)}, {PROF_OFF - 0x10000}
        s_addc_u32 {s(DBG+1)}, {s(FLG+1)}, 0
        s_mov_b32 {s(DBG+2)}, 0x100000
        s_lshl_b32 {s(sT0)}, s2, 2
        s_add_u32 {s(sT0)}, {s(sT0)}, {s(sW)}
        s_lshl_b32 {s(sT0)}, {s(sT0)}, 9
        v_lshlrev_b32 v56, 2, v0
        buffer_store_dword {v(vPR2)}, v56, {s(DBG,4)}, {s(sT0)} offen
        buffer_store_dword {v(vPR)}, v56, {s(DBG,4)}, {s(sT0)} offen offset:256""")
    k("bail:\ns_endpgm")
    for t in cold: k(t)
    body, nn = fix_hazards(k.L)
    ref = open(f"cdna_kernels/{NAME}.s.ref").read().split("\n")
    hd = [l for l in ref[:ref.index(f"{NAME}_kernel:") + 1]]
    hd = ["; @launch grid=(256,1,1) block=(256,1,1) lds=163840" if l.startswith("; @launch") else l for l in hd]
    tl = ref[ref.index('.section .rodata,"a"'):]
    tl = [l.replace("next_free_vgpr 256", "next_free_vgpr 512") for l in tl]
    out = hd + [("" if t.endswith(":") else "    ") + t for t in body] + tl
    open(sys.argv[1], "w").write("\n".join(out))
    if PROF: open(sys.argv[1] + ".marks", "w").write(" ".join(marks))
    print("instructions", len(body), "nops", nn)

main()
```

```python
import sys, math, struct
from asmlib import *

NAME = "interleave_layers__sliding_block__mixer_s_mlp__prompt"
OPT = dict(x.split("=") if "=" in x else (x, "1") for x in sys.argv[2:])
PROF = int(OPT.get("prof", 0)); STOP = int(OPT.get("stop", 99))
KB = 1024
FX, FO, FX2, FH_, FX1, FKV_, FH3 = 0, 16*KB, 32*KB, 48*KB, 64*KB, 80*KB, 112*KB
STX, STX2, STX1 = 168*KB, 169*KB, 170*KB
R = 172*KB; R2 = 2*R
ACT_OFF = 0x30000; PROF_OFF = 0x8000000; E_OFF = 0x20000
GB, GH, GA, GKV = 0, 2048, 4096, 5120
KVB = 110*KB; PART = 156*KB; CSQ = 158*KB; CS3 = 158*KB + 512; CS1L = 159*KB
W3A, W3H = 0, 100*KB
W3Q = [W3A, W3A + 28*KB, W3H, W3H + 28*KB]
W4S = [56*KB + g*4096 for g in range(11)]
W4C = [g*4096 for g in range(14)] + [W3H + g*4096 for g in range(14)]
NEG = 0xf1800000
def P(name, d): return int(OPT.get(name, d))
M32 = "v_mfma_f32_32x32x16_bf16"; M16 = "v_mfma_f32_16x16x32_bf16"
def f2u(x): return "0x%08x" % struct.unpack("<I", struct.pack("<f", x))[0]
LOG2E = 1.4426950408889634
C1 = -2*math.sqrt(2/math.pi)*LOG2E; C2 = C1*0.044715

ACT, FLG, WQ, WO, W1, W2, W3, W4, XO, DBG = 4, 8, 12, 16, 20, 24, 28, 32, 36, 40
(sW, sC, sHP, sNT, sTB32, sTB16, sLAY, sPURE, sPUREH, s4K, s8K, s12K, s32K, s2R, sOFF, sCNT,
 sT0, sT1, sOUT, _o1, sV, _v1, sXP, _x1, sW1K, sFBo, sFHo, sFAo, sFKVo, sKVo, sKVf, sNTL,
 sT2, sT3, sH3p, sH3s, sIT, sMT, sG0, sQA, sQB, sM1, sM2, s3L, s3G, sEDG) = range(44, 90)
sPT = 90
SK = [0, s(s4K), s(s8K), s(s12K)]
(vL, vA16, vP16, vA32, vA3, vST, vDB, vDQ) = range(0, 8)
vRB = [8, 9, 10, 11]; vWq = 12; vL16 = 13
vPB32, vPB16, vPA, vPH, vPKV = 14, 15, 16, 17, 18
vT0, vT1, vT2 = 19, 20, 21
vPR2, vPR = 22, 23
RES = 24; XB = 40; vD3 = 248
A0 = 256

k = Asm()
nmark = [0]; marks = []
TM = OPT.get("tm")
def mark(name):
    if TM and TM.split(":")[0] == name:
        L = k.lab("tm")
        if name not in ("first", "start", "xload", "init", "end"): k(f"s_cmp_lg_u32 {s(sLAY)}, {TM.split(':')[1]}\ns_cbranch_scc1 {L}")
        k(f"s_memrealtime s[92:93]\n{L}:\ns_waitcnt lgkmcnt(0)"); k.lg.clear()
    if not PROF or name == "first": return
    k(f"s_memtime {s(sPT,2)}\ns_waitcnt lgkmcnt(0)\nv_writelane_b32 {v(vPR)}, {s(sPT)}, {nmark[0]}")
    k.lg.clear(); marks.append(name); nmark[0] += 1

def srd(d, nbytes):
    k(f"s_mov_b32 {s(d+2)}, {nbytes}\ns_mov_b32 {s(d+3)}, 0x20000")

def barrier():
    k.wait(lg="all"); k("s_barrier")

def poll(va):
    L = k.lab("poll")
    k(f"s_mov_b32 {s(sCNT)}, 0x8000\n{L}:")
    k.vmem(f"buffer_load_dwordx2 {v(vT1,2)}, {v(va)}, {s(FLG,4)}, 0 offen sc1")
    k(f"s_sub_u32 {s(sCNT)}, {s(sCNT)}, 1\ns_cbranch_scc1 bail")
    k.wait(vm="all")
    k(f"v_cmp_ne_u64 vcc, {s(sV,2)}, {v(vT1,2)}\ns_cbranch_vccnz {L}")

cold = []
def dual(stores, spure):
    La, Lb = k.lab("sc"), k.lab("scb")
    k(f"s_cmp_eq_u32 {s(spure)}, 0\ns_cbranch_scc1 {La}")
    for t in stores: k.vmem(t, "pub")
    k(f"{Lb}:")
    cold.extend([f"{La}:"] + [t + " sc1" for t in stores] + [f"s_branch {Lb}"])

def flag(saddr, spure):
    k(f"s_add_u32 {s(sV)}, {s(sV)}, 1\nv_mov_b32 {v(vT2)}, {s(sV+1)}\nv_mov_b32 {v(vT1)}, {s(sV)}\ns_mov_b64 exec, 1")
    t = f"buffer_store_dwordx2 {v(vT1,2)}, off, {s(FLG,4)}, {s(saddr)}"
    k.wait(vm="pub")
    if spure is None: k.vmem(t + " sc1")
    else: dual([t], spure)
    k("s_mov_b64 exec, -1")

bgq = []
def bg(n=1):
    for _ in range(min(n, len(bgq))): bgq.pop(0)()

def qB(w, groups):
    for n, (g, lds) in enumerate(groups):
        def f(n=n, g=g, lds=lds):
            p = groups[n-1] if n else None
            if p and lds - p[1] == 4096: k(f"s_add_u32 m0, m0, {s(s4K)}")
            else: k(f"s_add_u32 m0, {s(sW1K)}, {lds}")
            if p and g - p[0] == 1: k(f"s_add_u32 {s(sOFF)}, {s(sOFF)}, {s(s32K)}")
            else: k(f"s_mov_b32 {s(sOFF)}, {g*32768}")
            k.vmem(f"buffer_load_dwordx4 {v(vDB)}, {s(w,4)}, {s(sOFF)} offen lds", "dma")
        bgq.append(f)

def qQ(lo, hi):
    for n in range(lo, hi):
        def f0(n=n):
            k(f"s_xor_b32 m0, {s(sQB)}, {n*4096}\ns_xor_b32 {s(sOFF)}, {s(sG0)}, {n}\ns_mul_i32 {s(sOFF)}, {s(sOFF)}, {64*3072}")
            k.vmem(f"buffer_load_dwordx4 {v(vDQ)}, {s(WQ,4)}, {s(sOFF)} offen lds", "dma")
        def f1(n=n):
            k(f"s_xor_b32 m0, {s(sQA)}, {n*8192}\ns_bitset1_b32 {s(sOFF)}, 10")
            k.vmem(f"buffer_load_dwordx4 {v(vDQ)}, {s(WQ,4)}, {s(sOFF)} offen lds", "dma")
        def f2():
            k.vmem(f"buffer_load_dwordx4 {v(vDQ)}, {s(WQ,4)}, {s(sOFF)} offen offset:1024 lds", "dma")
        bgq.extend([f0, f1, f2])

def q3(quads):
    for q in quads:
        for p in range(7):
            def f(q=q, p=p):
                if p == 0: k(f"s_add_u32 m0, {s(s3L)}, {W3Q[q]}\ns_add_u32 {s(sOFF)}, {s(s3G)}, {q*4*32*3584}")
                if p == 4: k(f"s_add_u32 m0, m0, {s(s4K)}\ns_add_u32 {s(sOFF)}, {s(sOFF)}, {s(s4K)}")
                k.vmem(f"buffer_load_dwordx4 {v(vD3+p)}, {s(W3,4)}, {s(sOFF)} offen offset:{(p%4)*1024} lds", "dma")
            bgq.append(f)

class Rec:
    def __enter__(self):
        self.n = len(k.L); self.q = []; self.g = len(k.lg); return self.q
    def __exit__(self, *a):
        self.q.extend(k.L[self.n:]); del k.L[self.n:]; del k.lg[self.g:]
def emit(q, n=999):
    for _ in range(min(n, len(q))):
        t = q.pop(0)
        if callable(t): t()
        elif t.startswith("ds_"): k.ds(t, "fill")
        else: k(t)

def rb_bases(vb, his):
    m = {0: vRB}
    for n, hi in enumerate(h for h in his if h):
        m[hi] = [vb + 4*n + f for f in range(4)]
        for f in range(4): k(f"v_add_u32 {v(m[hi][f])}, {hi*65536}, {v(vRB[f])}")
    return m

def rd_fragB(dst, lds, fb, bases, tag):
    hi = lds // 65536
    for j in range(2):
        k.ds(f"ds_read_b64_tr_b16 {r(dst+2*j,2)}, {v(bases[hi][fb])} offset:{lds%65536 + j*2048}", tag)

def fill(slots, dst, bases):
    for i in range(len(slots)*4): rd_fragB(dst + 4*i, slots[i//4], i % 4, bases, "fill")

def mix(q, per, nbg):
    while q or nbg > 0:
        if nbg > 0: bg(); nbg -= 1
        emit(q, per)

def pk(op, d, a_, b_, c_=None, bsel=None, csel=None):
    n = 3 if c_ is not None else 2
    t = f"v_pk_{op}_f32 {d}, {a_}, {b_}" + (f", {c_}" if c_ is not None else "")
    if bsel is not None:
        lo = [0]*n; hi = [1]*n; lo[1] = bsel; hi[1] = bsel
        if csel is not None: lo[2] = csel; hi[2] = csel
        t += f" op_sel:[{','.join(map(str,lo))}] op_sel_hi:[{','.join(map(str,hi))}]"
    k(t)

def cvt(d, src, n):
    for i in range(n): k(f"v_cvt_pk_bf16_f32 {v(d+i)}, {v(src+2*i)}, {v(src+2*i+1)}")

def finish_stats(sq, out, two_level):
    a_, b_ = v(sq), v(sq+1)
    k(f"v_permlane32_swap_b32 {a_}, {b_}\nv_add_f32 {a_}, {a_}, {b_}\nv_mov_b32 {b_}, {a_}")
    if two_level: k(f"v_permlane16_swap_b32 {a_}, {b_}\nv_add_f32 {a_}, {a_}, {b_}\nv_mov_b32 {b_}, {a_}")
    k(f"v_permlane32_swap_b32 {a_}, {b_}\nv_mul_f32 {v(out+1)}, {f2u(-1/512)}, {a_}\nv_mul_f32 {b_}, {f2u(1/512)}, {b_}\n"
      f"v_fma_f32 {b_}, -{v(out+1)}, {v(out+1)}, {b_}\nv_max_f32 {v(out+2)}, 0, {b_}\nv_add_f32 {b_}, {f2u(1e-5)}, {v(out+2)}\n"
      f"v_rsq_f32 {v(out)}, {b_}")

def gelu_scale(rr, kk):
    k(f"v_rcp_f32 {v(kk+2)}, {v(rr)}\nv_mul_f32 {v(kk+1)}, {f2u(C1)}, {v(rr)}\nv_mul_f32 {v(kk)}, {v(rr)}, {v(rr)}\n"
      f"v_mul_f32 {v(kk)}, {f2u(0.044715)}, {v(kk)}\nv_mul_f32 {v(kk)}, {v(kk)}, {v(kk+1)}")

def pub_tile(src, field, stf, tmp):
    k(f"s_mov_b32 {s(sT0)}, {field}\ns_mov_b32 {s(sT1)}, {stf}")
    cvt(tmp, src, 8)
    dual([f"buffer_store_dwordx4 {v(tmp+4*i,4)}, {v(vP16)}, {s(ACT,4)}, {s(sT0)} offen offset:{1024*i}" for i in range(2)], sPURE)
    S, Q = tmp + 8, tmp + 10
    pk("add", v(S,2), v(src,2), v(src+2,2)); pk("mul", v(Q,2), v(src,2), v(src,2))
    for i in range(1, 8):
        if i > 1: pk("add", v(S,2), v(S,2), v(src+2*i,2))
        pk("fma", v(Q,2), v(src+2*i,2), v(src+2*i,2), v(Q,2))
    k(f"v_add_f32 {v(S)}, {v(S)}, {v(S+1)}\nv_add_f32 {v(S+1)}, {v(Q)}, {v(Q+1)}\n"
      f"v_permlane32_swap_b32 {v(S)}, {v(S+1)}\nv_add_f32 {v(S)}, {v(S)}, {v(S+1)}\nv_mov_b32 {v(S+1)}, {v(S)}\n"
      f"v_permlane16_swap_b32 {v(S)}, {v(S+1)}\nv_add_f32 {v(S)}, {v(S)}, {v(S+1)}")
    dual([f"buffer_store_dword {v(S)}, {v(vST)}, {s(ACT,4)}, {s(sT1)} offen"], sPURE)

def gelu(y, n, tmp, cs, rm, kk):
    Pr = range(0, n, 2)
    for i in Pr: pk("fma", v(y+i,2), v(cs+i,2), v(rm,2), v(y+i,2), bsel=1)
    for i in Pr: pk("mul", v(tmp+i,2), v(y+i,2), v(y+i,2))
    for i in Pr: pk("fma", v(tmp+i,2), v(tmp+i,2), v(kk,2), v(kk,2), bsel=0, csel=1)
    for i in Pr: pk("mul", v(tmp+i,2), v(tmp+i,2), v(y+i,2))
    for i in range(n): k(f"v_exp_f32 {v(tmp+i)}, {v(tmp+i)}")
    for i in Pr: pk("fma", v(tmp+i,2), v(tmp+i,2), v(kk+2,2), v(kk+2,2), bsel=0, csel=0)
    for i in range(n): k(f"v_rcp_f32 {v(tmp+i)}, {v(tmp+i)}")
    for i in Pr: pk("mul", v(y+i,2), v(y+i,2), v(tmp+i,2))

def sum_partials(n16, stride, dst, tmp):
    k(f"v_min_u32 {v(vT0)}, {n16-1}, {v(vL)}\nv_lshlrev_b32 {v(vT0)}, 4, {v(vT0)}\nv_add_u32 {v(vT0)}, {PART}, {v(vT0)}")
    for i in range(4): k.ds(f"ds_read_b128 {v(tmp+4*i,4)}, {v(vT0)} offset:{i*stride}")
    k.wait(lg="all")
    for i in range(1, 4):
        for h in (0, 2): pk("add", v(tmp+h,2), v(tmp+h,2), v(tmp+4*i+h,2))
    k.ds(f"ds_write_b128 {v(vT0)}, {v(tmp,4)} offset:{dst-PART}")
    k.wait(lg="all")

def stop(n):
    if STOP == n: k("s_branch bail")

def prologue():
    k("s_cmp_ge_u32 s2, 0x100\ns_cbranch_scc1 bail")
    mark("first")
    for d, off in ((FLG, 80), (XO, 0), (WQ, 8), (DBG, 72), (WO, 16), (W1, 32), (W2, 40), (W3, 48), (W4, 56), (sOUT, 64)):
        k(f"s_load_dwordx2 {s(d,2)}, s[0:1], {off}")
    k(f"""v_lshrrev_b32 v1, 6, v0
    v_and_b32 v0, 63, v0
    v_readfirstlane_b32 {s(sW)}, v1
    s_and_b32 {s(sC)}, s2, 7
    s_lshr_b32 s3, s2, 3
    s_lshr_b32 {s(sHP)}, s2, 4
    s_lshr_b32 {s(sNT)}, s2, 5
    s_and_b32 {s(sMT)}, s3, 1
    s_lshl_b32 {s(sT0)}, {s(sC)}, 3
    s_lshl_b32 {s(sT1)}, {s(sMT)}, 2
    s_add_u32 {s(sT0)}, {s(sT0)}, {s(sT1)}
    s_add_u32 {s(sTB32)}, {s(sT0)}, {s(sW)}
    s_add_u32 {s(sIT)}, {s(sTB32)}, {s(sW)}
    s_and_b32 {s(sT1)}, {s(sTB32)}, -2
    s_sub_u32 {s(sIT)}, {s(sIT)}, 8
    s_cselect_b32 {s(sIT)}, {s(sT1)}, {s(sIT)}
    s_min_u32 {s(sNTL)}, {s(sTB32)}, 8
    s_lshl_b32 {s(sNTL)}, {s(sNTL)}, 15
    s_and_b32 {s(sG0)}, s3, 3
    s_lshl_b32 {s(sG0)}, {s(sG0)}, 1
    s_and_b32 {s(sT1)}, s2, 1
    s_or_b32 {s(sG0)}, {s(sG0)}, {s(sT1)}
    s_and_b32 {s(sT1)}, s3, 3
    s_lshl_b32 {s(sT1)}, {s(sT1)}, 2
    s_add_u32 {s(sT1)}, {s(sT1)}, {s(sW)}
    s_lshl_b32 {s(sT0)}, {s(sC)}, 4
    s_add_u32 {s(sTB16)}, {s(sT0)}, {s(sT1)}
    s_mov_b32 {s(s4K)}, 4096
    s_mov_b32 {s(s8K)}, 8192
    s_mov_b32 {s(s12K)}, 12288
    s_mov_b32 {s(s32K)}, 32768
    s_mov_b32 {s(s2R)}, {R2}
    s_lshl_b32 {s(sW1K)}, {s(sW)}, 10
    s_lshl_b32 {s(sQB)}, {s(sG0)}, 12
    s_add_u32 {s(sQB)}, {s(sQB)}, {s(sW1K)}
    s_lshl_b32 {s(sQA)}, {s(sQB)}, 1
    s_bitset1_b32 {s(sQB)}, 16
    v_lshlrev_b32 {v(vL16)}, 4, v0""")
    for d, n in ((FLG, 0x10100), (XO, 2097152), (WQ, 1572864), (DBG, 256), (WO, 524288), (W1, 524288), (W2, 524288),
                 (W3, 1835008), (W4, 1835008), (ACT, 128*R2)): srd(d, n)
    vXO = 56
    k(f"""v_and_b32 v57, 15, v0
    v_lshrrev_b32 v58, 4, v0
    s_lshl_b32 {s(sT0)}, {s(sTB16)}, 14
    s_lshl_b32 {s(sT1)}, {s(sNT)}, 7
    s_add_u32 {s(sT0)}, {s(sT0)}, {s(sT1)}
    v_lshlrev_b32 {v(vXO)}, 10, v57
    v_lshl_add_u32 {v(vXO)}, v58, 3, {v(vXO)}
    v_add_u32 {v(vXO)}, {s(sT0)}, {v(vXO)}
    v_lshrrev_b32 v59, 2, v0
    v_mul_u32_u24 v59, 3072, v59
    v_and_b32 v60, 3, v0
    v_lshl_add_u32 v59, v60, 4, v59
    s_mul_i32 {s(sT0)}, {s(sW)}, {16*3072}
    s_lshl_b32 {s(sT1)}, {s(sHP)}, 6
    s_add_u32 {s(sT0)}, {s(sT0)}, {s(sT1)}
    v_add_u32 {v(vDQ)}, {s(sT0)}, v59
    s_waitcnt lgkmcnt(0)
    s_add_u32 {s(ACT)}, {s(FLG)}, {ACT_OFF}
    s_addc_u32 {s(ACT+1)}, {s(FLG+1)}, 0""")
    mark("start")
    if PROF: k(f"s_memrealtime {s(sPT,2)}\ns_waitcnt lgkmcnt(0)\nv_writelane_b32 {v(vPR)}, {s(sPT)}, 62")
    for f in range(4):
        k.vmem(f"buffer_load_dwordx2 {v(64+2*f,2)}, {v(vXO)}, {s(XO,4)}, 0 offen offset:{32*f}", "x")
    k(f"s_load_dwordx2 {s(sV,2)}, {s(FLG,2)}, {E_OFF}")
    qQ(0, 2); bg(6)
    if P("pf", 1):
        k(f"""s_lshl_b32 {s(sT0)}, s2, 2
        s_add_u32 {s(sT0)}, {s(sT0)}, {s(sW)}
        s_lshl_b32 {s(sT1)}, {s(sT0)}, 9
        s_mul_i32 {s(sT0)}, {s(sT0)}, 1792
        v_lshlrev_b32 v61, 6, v0
        s_mov_b64 exec, 0xff""")
        for n, w in enumerate((WO, W1, W2)): k.vmem(f"buffer_load_dword {v(100+n)}, v61, {s(w,4)}, {s(sT1)} offen")
        k("s_mov_b64 exec, 0xfffffff")
        for n, w in enumerate((W3, W4)): k.vmem(f"buffer_load_dword {v(103+n)}, v61, {s(w,4)}, {s(sT0)} offen")
        k("s_mov_b64 exec, -1")
    k(f"""s_mul_i32 {s(sT0)}, {s(sTB16)}, {s(s2R)}
    v_add_u32 {v(vA16)}, {s(sT0)}, {v(vL16)}
    s_lshl_b32 {s(sT1)}, {s(sNT)}, 11
    v_add_u32 {v(vP16)}, {s(sT1)}, {v(vA16)}
    s_lshr_b32 {s(sT1)}, {s(sNT)}, 1
    s_lshl_b32 {s(sT1)}, {s(sT1)}, 8
    s_add_u32 {s(sT0)}, {s(sT0)}, {s(sT1)}
    s_and_b32 {s(sT1)}, {s(sNT)}, 1
    s_lshl_b32 {s(sT1)}, {s(sT1)}, 3
    s_add_u32 {s(sT0)}, {s(sT0)}, {s(sT1)}
    v_lshrrev_b32 v59, 5, v0
    v_lshlrev_b32 v60, 4, v57
    v_lshl_add_u32 v61, v59, 2, v60
    v_add_u32 {v(vST)}, {s(sT0)}, v61
    s_mul_i32 {s(sT0)}, {s(sTB32)}, {2*R2}
    v_add_u32 {v(vA3)}, {s(sT0)}, {v(vL16)}
    v_and_b32 v61, 1, v58
    v_mul_u32_u24 v62, {R2}, v61
    v_lshl_add_u32 v62, v59, 8, v62
    v_add3_u32 {v(vA32)}, v62, v60, {s(sT0)}
    s_lshr_b32 {s(sT1)}, {s(sHP)}, 3
    s_mul_i32 {s(sT1)}, {s(sT1)}, {s(s2R)}
    s_and_b32 {s(sT2)}, {s(sHP)}, 7
    s_lshl_b32 {s(sT2)}, {s(sT2)}, 12
    s_add_u32 {s(sT1)}, {s(sT1)}, {s(sT2)}
    s_add_u32 {s(sT1)}, {s(sT1)}, {FKV_}
    s_add_u32 {s(sKVo)}, {s(sT0)}, {s(sT1)}
    s_mul_i32 {s(sT0)}, {s(sIT)}, {2*R2}
    s_add_u32 {s(sKVf)}, {s(sT0)}, {s(sT1)}""")
    k(f"""v_lshrrev_b32 v62, 2, v57
    v_and_b32 v63, 3, v0
    v_lshl_add_u32 v72, v59, 2, v62
    v_lshl_add_u32 v73, v61, 2, v63
    v_lshlrev_b32 v73, 3, v73
    v_lshl_add_u32 {v(vWq)}, v72, 6, v73
    v_lshl_add_u32 v72, v61, 2, v62
    v_lshlrev_b32 v73, 10, v59
    v_lshl_add_u32 v73, v72, 7, v73
    v_lshl_add_u32 v73, v63, 3, v73
    v_lshrrev_b32 v72, 1, v72
    v_lshl_add_u32 {v(vRB[0])}, v72, 5, v73
    v_xor_b32 {v(vRB[1])}, 32, {v(vRB[0])}
    v_xor_b32 {v(vRB[2])}, 64, {v(vRB[0])}
    v_xor_b32 {v(vRB[3])}, 0x60, {v(vRB[0])}
    v_lshrrev_b32 v72, 3, v0
    v_and_b32 v73, 7, v0
    v_lshlrev_b32 v74, 1, v58
    v_xor_b32 v74, v74, v73
    v_lshlrev_b32 v74, 4, v74
    v_lshl_add_u32 v74, v72, 10, v74
    s_lshl_b32 {s(sT0)}, {s(sW)}, 13
    s_lshl_b32 {s(sT1)}, {s(sNT)}, 7
    s_add_u32 {s(sT0)}, {s(sT0)}, {s(sT1)}
    v_add_u32 {v(vDB)}, {s(sT0)}, v74""")
    k(f"""s_lshl_b32 {s(sT3)}, {s(sC)}, 13
    s_and_b32 {s(sT0)}, {s(sTB16)}, 15
    s_lshl_b32 {s(sT1)}, {s(sT0)}, 7
    s_add_u32 {s(sT1)}, {s(sT1)}, {s(sT3)}
    v_lshl_add_u32 {v(vPB16)}, v73, 3, {s(sT1)}
    s_lshl_b32 {s(sT2)}, {s(sNT)}, 3
    s_add_u32 {s(sFBo)}, {s(sT1)}, {s(sT2)}
    s_add_u32 {s(sFHo)}, {s(sFBo)}, {GH}
    s_lshr_b32 {s(sT0)}, {s(sT0)}, 1
    s_lshl_b32 {s(sT0)}, {s(sT0)}, 7
    s_add_u32 {s(sT0)}, {s(sT0)}, {s(sT3)}
    s_add_u32 {s(sT0)}, {s(sT0)}, {GA}
    v_lshl_add_u32 {v(vPA)}, v57, 3, {s(sT0)}
    s_and_b32 {s(sT0)}, {s(sTB32)}, 7
    s_lshl_b32 {s(sT1)}, {s(sT0)}, 8
    s_add_u32 {s(sT1)}, {s(sT1)}, {s(sT3)}
    v_and_b32 v74, 1, v72
    v_lshlrev_b32 v74, 7, v74
    v_lshl_add_u32 v74, v73, 3, v74
    v_add_u32 {v(vPB32)}, {s(sT1)}, v74
    s_lshl_b32 {s(sT1)}, {s(sT0)}, 7
    s_lshl_b32 {s(sT2)}, {s(sHP)}, 3
    s_add_u32 {s(sT1)}, {s(sT1)}, {s(sT2)}
    s_add_u32 {s(sT1)}, {s(sT1)}, {s(sT3)}
    s_add_u32 {s(sFAo)}, {s(sT1)}, {GA}
    s_lshl_b32 {s(sT2)}, {s(sHP)}, 7
    s_add_u32 {s(sT2)}, {s(sT2)}, {GKV}
    s_lshl_b32 {s(sT0)}, {s(sT0)}, 3
    s_add_u32 {s(sT0)}, {s(sT0)}, {s(sT2)}
    s_add_u32 {s(sFKVo)}, {s(sT0)}, {s(sT3)}
    s_lshr_b32 {s(sT0)}, {s(sIT)}, 3
    s_lshl_b32 {s(sT0)}, {s(sT0)}, 13
    s_add_u32 {s(sT2)}, {s(sT2)}, {s(sT0)}
    s_and_b32 {s(sT0)}, {s(sIT)}, 7
    s_lshl_b32 {s(sT0)}, {s(sT0)}, 3
    s_add_u32 {s(sT2)}, {s(sT2)}, {s(sT0)}
    v_and_b32 v74, 1, v0
    v_lshl_add_u32 {v(vPKV)}, v74, 3, {s(sT2)}
    v_min_u32 v74, 2, v72
    s_sub_u32 {s(sT0)}, {s(sTB16)}, 1
    v_add_u32 v74, {s(sT0)}, v74
    v_max_i32 v74, 0, v74
    v_min_i32 v74, 0x7f, v74
    v_lshrrev_b32 v75, 4, v74
    v_and_b32 v74, 15, v74
    v_lshlrev_b32 v75, 13, v75
    v_lshl_add_u32 v75, v74, 7, v75
    v_lshl_add_u32 v75, v73, 3, v75
    v_add_u32 {v(vPH)}, {GH}, v75
    s_and_b32 {s(sT0)}, {s(sHP)}, 1
    s_mul_i32 {s(sT1)}, {s(sHP)}, 7
    s_add_u32 {s(sT2)}, {s(sT1)}, {s(sT0)}
    s_lshl_b32 {s(sT2)}, {s(sT2)}, 9
    s_add_u32 {s(sH3p)}, {s(sT2)}, {FH3}
    s_mul_i32 {s(sT0)}, {s(sT0)}, {4096-8}
    s_add_u32 {s(sH3s)}, {s(sH3p)}, 3072
    s_sub_u32 {s(sH3s)}, {s(sH3s)}, {s(sT0)}
    s_mov_b32 {s(sLAY)}, 0
    s_mov_b32 {s(sPURE)}, 0
    s_mov_b32 {s(sPUREH)}, 0
    s_getreg_b32 {s(sT2)}, hwreg(HW_REG_XCC_ID, 0, 4)
    s_and_b32 {s(sT2)}, {s(sT2)}, 7
    s_lshl_b32 {s(sT2)}, {s(sT2)}, 3
    s_lshl_b64 {s(sXP,2)}, 32, {s(sT2)}
    s_add_u32 {s(sT0)}, {s(sTB16)}, 1
    s_and_b32 {s(sT0)}, {s(sT0)}, 14
    s_cselect_b32 {s(sEDG)}, 1, 0
    s_mul_i32 {s(s3L)}, {s(sW)}, 7168
    s_mul_i32 {s(s3G)}, {s(sW)}, {32*3584}
    s_mul_i32 {s(sT2)}, {s(sHP)}, 224
    s_add_u32 {s(s3G)}, {s(s3G)}, {s(sT2)}""")
    for q in range(7):
        k(f"v_add_u32 v72, {64*q}, v0\nv_mul_u32_u24 v72, 4682, v72\nv_lshrrev_b32 v72, 16, v72\n"
          f"v_mul_u32_u24 v72, 3360, v72\nv_add_u32 {v(vD3+q)}, v72, {v(vL16)}")
    if P("expb", 0):
        k(f"s_lshl_b32 {s(sT0)}, {s(sNT)}, 7\nv_subrev_u32 {v(vDB)}, {s(sT0)}, {v(vDB)}\ns_lshl_b32 {s(sT0)}, {s(sHP)}, 6\nv_subrev_u32 {v(vDQ)}, {s(sT0)}, {v(vDQ)}\n"
          f"s_and_b32 {s(sT0)}, {s(sHP)}, 12\ns_mul_i32 {s(sT0)}, {s(sT0)}, 224\ns_sub_u32 {s(s3G)}, {s(s3G)}, {s(sT0)}")
    if P("expa", 0):
        for w in (WQ, WO, W1, W2, W3, W4): k(f"s_mov_b32 {s(w+2)}, 0")
    k(f"s_waitcnt lgkmcnt(0)\ns_xor_b32 {s(sV+1)}, {s(sV+1)}, 0x5bd1e995")
    k.wait(vm="x")
    for i in range(8):
        k(f"v_lshlrev_b32 {v(RES+2*i)}, 16, {v(64+i)}\nv_and_b32 {v(RES+2*i+1)}, 0xffff0000, {v(64+i)}")
    mark("xload")
    k(f"s_mov_b32 {s(XO)}, {s(sOUT)}\ns_mov_b32 {s(XO+1)}, {s(sOUT+1)}")

def selector(d):
    k(f"v_lshrrev_b32 {v(vT0)}, 2, v0\nv_xor_b32 {v(vT0)}, {v(vT0)}, v0\nv_and_b32 {v(vT0)}, 4, {v(vT0)}\n"
      f"v_cmp_eq_u32 vcc, 0, {v(vT0)}\nv_mov_b32 {v(vT0)}, 0x3f803f80\nv_cndmask_b32 {v(d)}, 0, {v(vT0)}, vcc")
    for i in range(1, 4): k(f"v_mov_b32 {v(d+i)}, {v(d)}")

def l0_only(fn):
    L = k.lab("l0")
    k(f"s_cmp_lg_u32 {s(sLAY)}, 0\ns_cbranch_scc1 {L}")
    fn()
    k(f"{L}:")

def x_pub():
    pub_tile(RES, FX, STX, 56)
    qQ(2, 8); bg(P("xa", 3))
    flag(sFBo, sPURE)
    def count():
        L = k.lab("cnt")
        k(f"""s_barrier
        s_cmp_lg_u32 {s(sW)}, 0
        s_cbranch_scc1 {L}
        s_lshr_b64 {s(sT0,2)}, {s(sXP,2)}, 5
        v_mov_b32 v56, {s(sT0)}
        v_mov_b32 v57, {s(sT1)}
        s_lshl_b32 {s(sT2)}, {s(sC)}, 5
        s_mov_b64 exec, 1
        buffer_atomic_add_x2 v[56:57], off, {s(DBG,4)}, {s(sT2)} sc1
        s_mov_b64 exec, -1
        {L}:""")
    l0_only(count)
    bg(99)
    k(f"s_cmp_eq_u32 {s(sLAY)}, 0\ns_cselect_b32 {s(WQ+2)}, {s(WQ+2)}, 0")

def qkv_att():
    AK, AV, AQ = 56, 72, 88
    FR = 104; CS = 128; STA = 160; RM = 168; PKD = 208
    vWq2, vCS, vV0, vV1, vKW = 240, 241, 242, 243, 244
    SEL = 196; QF = 200
    N0 = P("qn", 8)
    k(f"v_add_u32 {v(vWq2)}, 0x10000, {v(vWq)}")
    selector(SEL)
    k(f"""v_lshrrev_b32 {v(vT1)}, 5, v0
    v_lshlrev_b32 {v(vCS)}, 4, {v(vT1)}
    v_add_u32 {v(vCS)}, {CSQ}, {v(vCS)}
    v_lshlrev_b32 {v(vT1)}, 6, {v(vT1)}
    v_xor_b32 {v(vV0)}, {v(vT1)}, {v(vL16)}
    v_xor_b32 {v(vV1)}, 0x80, {v(vV0)}
    s_lshl_b32 {s(sT0)}, {s(sW)}, 12
    s_add_u32 {s(sT0)}, {s(sT0)}, {KVB + 8*4096}
    v_add_u32 {v(vKW)}, {s(sT0)}, {v(vL16)}
    v_add_u32 {v(vKW+1)}, {s(sT0)}, {v(vV0)}
    v_add_u32 {v(vKW+2)}, {s(sT0)}, {v(vV1)}
    s_mov_b32 {s(sT1)}, {STX}""")
    S0, S1, CM, MD, O0, O1 = 56, 72, 104, 40, 160, 176
    KF, VF, PP, LS, MX = 208, 216, 224, 232, 120
    vK, vVa, vVb, vDB2 = 192, 193, 194, 195
    k(f"""v_bfe_u32 {v(vT0)}, v0, 4, 1
    v_bfe_u32 {v(vK)}, v0, 1, 1
    v_lshl_add_u32 {v(vT0)}, {v(vT0)}, 1, {v(vK)}
    v_lshrrev_b32 {v(vK)}, 5, v0
    v_xor_b32 {v(vK)}, {v(vK)}, {v(vT0)}
    v_lshlrev_b32 {v(vT0)}, 9, {v(vT0)}
    v_lshl_add_u32 {v(vT0)}, {v(vK)}, 6, {v(vT0)}
    v_bfe_u32 {v(vK)}, v0, 2, 2
    v_lshl_add_u32 {v(vT0)}, {v(vK)}, 4, {v(vT0)}
    v_and_b32 {v(vK)}, 1, v0
    v_lshl_add_u32 {v(vT0)}, {v(vK)}, 3, {v(vT0)}
    v_lshl_add_u32 {v(vT0)}, {s(sW)}, 12, {v(vT0)}
    v_add_u32 {v(vVa)}, {KVB + 8*4096 + 2048}, {v(vT0)}
    v_xor_b32 {v(vVb)}, 0x80, {v(vVa)}
    v_lshlrev_b32 {v(vT0)}, v0, -2
    v_lshrrev_b32 {v(vK)}, 3, v0
    v_and_b32 {v(vK)}, 4, {v(vK)}
    v_lshrrev_b32 {v(vT0)}, {v(vK)}, {v(vT0)}
    v_subrev_u32 {v(vK)}, {s(s4K)}, {v(vKW)}
    v_add_u32 {v(vDB2)}, {8*32768}, {v(vDB)}""")
    for i in range(16): k(f"v_bfe_i32 {v(MD+i)}, {v(vT0)}, {8*(i//4)+i%4}, 1\nv_and_b32 {v(MD+i)}, {NEG}, {v(MD+i)}")
    def rdq(dst, sp, b, tag):
        G = sp // 4
        for j in range(2):
            w_ = 2*((sp//2) % 2) + j
            off = G*8192 + w_*2048 + (b-1)*1024 if b else G*4096 + w_*1024
            k.ds(f"ds_read_b64_tr_b16 {v(dst+2*j,2)}, {v(vWq if b else vWq2)} offset:{off + (sp % 2)*512}", tag)
    def ldx(sp):
        k.vmem(f"buffer_load_dwordx4 {a(4*sp,4)}, {v(vA32)}, {s(ACT,4)}, {SK[sp//8]} offen offset:{(sp%8)*512} sc1", ("x", sp))
    mark("q.pre")
    poll(vPB32)
    mark("q.poll")
    for i in range(2): k.vmem(f"buffer_load_dwordx4 {v(STA+4*i,4)}, {v(vA32)}, {s(ACT,4)}, {s(sT1)} offen offset:{512*i} sc1", "st")
    for sp in range(N0): ldx(sp)
    def colsum():
        k(f"v_add_u32 {v(vT2)}, {s(sW1K)}, {v(vWq2)}\nv_lshl_add_u32 {v(vT1)}, {s(sW)}, 11, {v(vWq)}")
        for i in range(24 + 5):
            if i < 24:
                G, b = divmod(i, 3)
                for j in range(2):
                    off = G*8192 + (b-1)*1024 if b else G*4096
                    k.ds(f"ds_read_b64_tr_b16 {v(FR+4*(i%6)+2*j,2)}, {v(vT1 if b else vT2)} offset:{off + j*512}", ("c", i))
            m = i - 5
            if m >= 0:
                k.wait(lg=("c", m)); c = v(AK + 4*(m % 3), 4)
                k(f"{M16} {c}, {v(SEL,4)}, {v(FR+4*(m%6),4)}, {c if m >= 3 else 0}")
        k(f"s_mul_i32 {s(sT0)}, {s(sW)}, 384\ns_add_u32 {s(sT0)}, {s(sT0)}, {PART}\nv_and_b32 {v(vT1)}, 31, v0\n"
          f"v_lshl_add_u32 {v(vT1)}, {v(vT1)}, 2, {s(sT0)}")
        for b in range(3): k.ds(f"ds_write_b32 {v(vT1)}, {v(AK+4*b)} offset:{b*128}")
        k.wait(lg="all")
    l0_only(colsum)
    k("s_barrier")
    l0_only(lambda: sum_partials(24, 384, CSQ, CS))
    for sp in range(2):
        for b in (1, 2): rdq(FR + 8*sp + 4*(b-1), sp, b, ("w", sp))
    for b in (1, 2):
        for q in range(4): k.ds(f"ds_read_b128 {v(CS+16*(b-1)+4*q,4)}, {v(vCS)} offset:{b*128+q*32}", "cs")
    with Rec() as fq:
        for i in (0, 1): k(f"v_add_f32 {v(STA+i)}, {v(STA+i)}, {v(STA+2+i)}\nv_add_f32 {v(STA+4+i)}, {v(STA+4+i)}, {v(STA+6+i)}")
        for i in (0, 1): k(f"v_add_f32 {v(STA+i)}, {v(STA+i)}, {v(STA+4+i)}")
        finish_stats(STA, RM, False)
        k(f"v_mul_f32 {v(RM+1)}, {v(RM)}, {v(RM+1)}")
        for i in range(32): k(f"v_mul_f32 {v(CS+i)}, {v(RM+1)}, {v(CS+i)}")
    for sp in range(32):
        k.wait(vm=("x", sp), lg=("w", sp))
        for b, acc in ((1, AK), (2, AV)):
            k(f"{M32} {v(acc,16)}, {v(FR+8*(sp%3)+4*(b-1),4)}, {a(4*sp,4)}, {v(acc,16) if sp else 0}")
            if b == 1 and sp + N0 < 32: ldx(sp + N0)
            if sp + 2 < 32: rdq(FR + 8*((sp+2) % 3) + 4*(b-1), sp + 2, b, ("w", sp + 2))
            elif sp == 30: rdq(FR + 16 + 4*(b-1), b - 1, 0, ("q", b - 1))
            else: rdq(FR + 4*(b-1), b + 1, 0, ("q", b + 1))
            if sp >= 2: emit(fq, 1)
    assert not fq
    k("s_barrier")
    mark("q.kv")
    qB(WO, [(g, g*4096) for g in range(16)])
    with Rec() as f1:
        for i in range(32): k(f"v_fma_f32 {v(AK+i)}, {v(AK+i)}, {v(RM)}, {v(CS+i)}")
        cvt(PKD, AK, 16)
    f1 = [x for t in range(4) for x in f1[8*t:8*t+8] + f1[32+4*t:36+4*t] + [t]]
    with Rec() as f2:
        for q in range(4): k.ds(f"ds_read_b128 {v(CS+4*q,4)}, {v(vCS)} offset:{q*32}")
        k(f"""v_mul_f32 {v(RM)}, {f2u(0.25*LOG2E)}, {v(RM)}
        v_mul_f32 {v(RM+1)}, {f2u(0.25*LOG2E)}, {v(RM+1)}""")
        for i in range(16): k(f"v_mul_f32 {v(CS+i)}, {v(RM+1)}, {v(CS+i)}")
    f2.insert(6, lambda: k.wait(lg="fill"))
    def slot(n): return FR + 4*((n + 4) % 6)
    nd = 0
    for sp in range(32):
        k.wait(lg=("q", sp))
        k(f"{M32} {v(AQ,16)}, {v(slot(sp),4)}, {a(4*sp,4)}, {v(AQ,16) if sp else 0}")
        if sp + 4 < 32: rdq(slot(sp + 4), sp + 4, 0, ("q", sp + 4))
        if f1 and sp >= 1:
            for _ in range(4):
                t = f1.pop(0)
                if isinstance(t, int):
                    k.vmem(f"buffer_store_dwordx4 {v(PKD+4*t,4)}, {v((vL16, vL16, vV0, vV1)[t])}, {s(ACT,4)}, {s(sKVo)} offen offset:{t*1024} sc1", "pub")
                    k.ds(f"ds_write_b128 {v((vKW, vKW, vKW+1, vKW+2)[t])}, {v(PKD+4*t,4)} offset:{t*1024}", "kw")
                else: k(t)
        elif sp >= 1:
            if sp % 2 == 0: bg()
            else: emit(f2, 3)
    emit(f2)
    bg(2)
    for i in range(0, 16, 2): pk("fma", v(AQ+i,2), v(AQ+i,2), v(RM,2), v(CS+i,2), bsel=0)
    cvt(QF, AQ, 8)
    mark("q.q")
    stop(2)
    def qk(h, c): k(f"{M32} {v((S0,S1)[h],16)}, {v(KF+4*h,4)}, {v(QF+4*h,4)}, {v(c,16)}")
    def pv(h, u, first=False):
        O = v((O0, O1)[h], 16)
        k(f"{M32} {O}, {v(VF+4*u,4)}, {v(PP+4*u,4)}, {0 if first else O}")
    def rs(h, u, first=False): k(f"{M16} {v(LS+4*h,4)}, {v(SEL,4)}, {v(PP+4*u,4)}, {0 if first else v(LS+4*h,4)}")
    def rdV(u):
        for j, va in enumerate((vVa, vVb)): k.ds(f"ds_read_b64_tr_b16 {v(VF+4*u+2*j,2)}, {v(va)} offset:{u*256}", ("v", u))
    def rdK(h): k.ds(f"ds_read_b128 {v(KF+4*h,4)}, {v(vK)} offset:{h*1024}", ("k", h))
    def dec(*rs_):
        for x in rs_: k(f"v_subrev_u32 {v(x)}, {s(s4K)}, {v(x)}")
    def blk(h, u, at):
        S = (S0, S1)[h] + 8*u
        for i in range(12):
            if i in at: at[i]()
            if i < 8: k(f"v_exp_f32 {v(S+i)}, {v(S+i)}")
            else: cvt(PP + 4*u + i - 8, S + 2*(i-8), 1)
    qk(0, MD); rdV(0); rdV(1); bg(); qk(1, MD); dec(vVa, vVb)
    for i in range(16): k(f"v_mov_b32 {v(CM+i)}, 0")
    if P("kvf", 0) == 0: flag(sFKVo, None)
    blk(0, 0, {2: bg, 6: bg})
    if P("kvf", 0) == 1: flag(sFKVo, None)
    blk(0, 1, {2: lambda: (k.wait(lg="all"), pv(0, 0, True)), 5: lambda: rs(0, 0, True), 7: bg})
    blk(1, 0, {2: lambda: pv(0, 1), 5: lambda: rs(0, 1), 7: bg})
    bg(99)
    k(f"v_lshlrev_b32 {v(vT0)}, 5, v0")
    k.vmem(f"buffer_load_dwordx2 {v(MX,2)}, {v(vT0)}, {s(DBG,4)}, 0 offen sc1")
    mark("a.diag")
    poll(vPKV)
    mark("a.poll")
    k(f"s_lshl_b32 {s(sT0)}, {s(sW)}, 13\ns_add_u32 m0, {s(sT0)}, {KVB}\ns_mov_b32 {s(sOFF)}, {s(sKVf)}")
    for t in range(2):
        for i in range(4):
            def f(t=t, i=i):
                if t and not i: k(f"s_add_u32 m0, m0, {s(s4K)}\ns_add_u32 {s(sOFF)}, {s(sOFF)}, {2*R2}")
                k.vmem(f"buffer_load_dwordx4 {v(vL16)}, {s(ACT,4)}, {s(sOFF)} offen offset:{i*1024} sc1 lds", "kv")
            bgq.append(f)
    bg(P("ka", 3))
    k(f"v_readlane_b32 {s(sT0)}, {v(MX)}, {s(sC)}\nv_readlane_b32 {s(sT1)}, {v(MX+1)}, {s(sC)}\ns_barrier")
    with Rec() as fq: fill([g*4096 for g in range(16)], A0, {0: vRB})
    mix(fq, 8, 8)
    k(f"""s_cmp_eq_u64 {s(sT0,2)}, {s(sXP,2)}
    s_cselect_b32 {s(sPURE)}, 1, 0
    s_and_b32 {s(sPUREH)}, {s(sPURE)}, {s(sEDG)}
    s_add_u32 {s(sT0)}, s2, {s(sW)}
    s_cmp_lt_u32 {s(sT0)}, {s(sLAY)}
    s_cbranch_scc1 epoch
    epoch_b:
    s_mov_b32 m0, {s(sW1K)}
    s_mov_b32 {s(sOFF)}, 0""")
    cold.extend(f"""epoch:
    s_mov_b32 {s(sCNT)}, 0x8000
    epoch_l:
    buffer_load_dwordx2 {v(MX,2)}, {v(vT0)}, {s(DBG,4)}, 0 offen sc1
    s_sub_u32 {s(sCNT)}, {s(sCNT)}, 1
    s_cbranch_scc1 bail
    s_waitcnt vmcnt(0)
    v_sad_u8 {v(MX)}, {v(MX)}, 0, 0
    v_sad_u8 {v(MX)}, {v(MX+1)}, 0, {v(MX)}
    v_cmp_ne_u32 vcc, 32, {v(MX)}
    s_and_b32 {s(sT0)}, vcc_lo, 0xff
    s_cbranch_scc1 epoch_l
    s_add_u32 {s(sT0)}, {s(sV)}, 7
    v_mov_b32 {v(MX)}, {s(sT0)}
    s_mov_b32 {s(sT0)}, {E_OFF - 0x10000}
    s_mov_b64 exec, 1
    buffer_store_dword {v(MX)}, off, {s(FLG,4)}, {s(sT0)} sc1
    s_mov_b64 exec, -1
    s_branch epoch_b""".split("\n"))
    k.wait(vm="all")
    barrier()
    mark("a.kv")
    rdK(0); rdK(1); dec(vK)
    blk(1, 1, {0: lambda: pv(1, 0, True), 3: lambda: rs(1, 0, True), 6: lambda: (k.wait(lg="all"), qk(0, CM))})
    def dma(n):
        k.vmem(f"buffer_load_dwordx4 {v(vDB2 if n == 1 else vDB)}, {s(W2 if n == 2 else W1,4)}, {s(sOFF)} offen lds", "dma")
        if n < 2: k(f"s_add_u32 m0, m0, {s(s32K)}")
        else: k(f"s_sub_u32 m0, m0, {65536 - 4096}\ns_add_u32 {s(sOFF)}, {s(sOFF)}, {s(s32K)}")
    def setcm():
        k(f"s_cmp_eq_u32 {s(sOFF)}, {6*32768}\ns_cbranch_scc1 att_cm\natt_cmb:")
    cold.extend(["att_cm:"] + [f"v_xor_b32 {v(CM+i)}, {NEG}, {v(MD+i)}" for i in range(16)] + ["s_branch att_cmb"])
    k(f"s_cmp_eq_u32 {s(sNTL)}, 0\ns_cbranch_scc1 att_e\natt_l:")
    blk(0, 0, {0: lambda: (qk(1, CM), rdV(0), rdK(0)), 3: lambda: pv(1, 1), 6: lambda: rs(1, 1), 8: lambda: dma(0)})
    blk(0, 1, {0: lambda: (rdV(1), rdK(1)), 1: lambda: (k.wait(lg=("k", 0)), pv(0, 0)), 4: lambda: rs(0, 0), 6: setcm, 8: lambda: dma(1)})
    blk(1, 0, {0: lambda: qk(0, CM), 3: lambda: (k.wait(lg="all"), pv(0, 1)), 6: lambda: rs(0, 1)})
    blk(1, 1, {0: lambda: dec(vK, vVa), 1: lambda: pv(1, 0), 4: lambda: rs(1, 0), 6: lambda: dec(vVb), 8: lambda: dma(2)})
    k(f"s_cmp_lt_u32 {s(sOFF)}, {s(sNTL)}\ns_cbranch_scc1 att_l\natt_e:")
    pv(1, 1); rs(1, 1)
    k(f"s_cmp_lt_u32 {s(sOFF)}, {8*32768}\ns_cbranch_scc1 att_r\natt_rb:")
    with Rec() as q:
        k("att_r:")
        for n in range(3): dma(n)
        k(f"s_cmp_lt_u32 {s(sOFF)}, {8*32768}\ns_cbranch_scc1 att_r\ns_branch att_rb")
    cold.extend(q)
    mark("a.loop")
    k(f"""v_lshrrev_b32 {v(vT0)}, 5, v0
    v_lshl_add_u32 {v(vT0)}, {v(vT0)}, 8, {v(vA32)}
    s_lshl_b32 {s(sT0)}, {s(sHP)}, 10
    s_add_u32 {s(sT0)}, {s(sT0)}, {FO}""")
    pk("mul", v(MX,2), v(O0,2), 0)
    for i in range(2, 8, 2): pk("fma", v(MX,2), v(O0+i,2), 0, v(MX,2))
    for i in range(0, 8, 2): pk("fma", v(MX,2), v(O1+8+i,2), 0, v(MX,2))
    lo, hi = (127 - 48) << 23, (127 + 80) << 23
    k(f"""v_add_f32 {v(MX)}, {v(MX)}, {v(LS)}
    v_add_f32 {v(MX+1)}, {v(MX+1)}, {v(LS+4)}
    v_subrev_u32 {v(MX)}, {lo}, {v(MX)}
    v_subrev_u32 {v(MX+1)}, {lo}, {v(MX+1)}
    v_max_u32 {v(MX)}, {v(MX)}, {v(MX+1)}
    v_cmp_lt_u32 vcc, {hi - lo if not P("fb", 0) else 0}, {v(MX)}
    s_cbranch_vccnz att_x
    att_xb:
    v_rcp_f32 {v(MX)}, {v(LS)}
    v_rcp_f32 {v(MX+1)}, {v(LS+4)}""")
    C0, C1_ = 88, 104
    with Rec() as q:
        k("att_x:")
        def rk():
            rdK(0); rdK(1); dec(vK); k.wait(lg="all")
        def loop(name, body, last):
            k(f"v_mov_b32 {v(vK)}, {v(vKW)}\ns_mov_b32 {s(sIT)}, 0\n{name}:")
            rk(); qk(0, C0); qk(1, C1_)
            body()
            k(f"s_cmp_lg_u32 {s(sIT)}, {7*32768}\ns_cbranch_scc1 {name}_n")
            last()
            k(f"{name}_n:\ns_add_u32 {s(sIT)}, {s(sIT)}, {s(s32K)}\ns_cmp_le_u32 {s(sIT)}, {s(sNTL)}\ns_cbranch_scc1 {name}")
        def setc(mask):
            for i in range(16):
                if mask == "o": k(f"v_xor_b32 {v(C0+i)}, {NEG}, {v(MD+i)}")
                m = {"o": v(C0+i), "d": v(MD+i), "": 0}[mask]
                k(f"v_add_f32 {v(C1_+i)}, {m}, {v(MX+3)}\nv_add_f32 {v(C0+i)}, {m}, {v(MX+2)}")
        k(f"v_mov_b32 {v(MX)}, {NEG}\nv_mov_b32 {v(MX+1)}, {NEG}\nv_mov_b32 {v(MX+2)}, 0\nv_mov_b32 {v(MX+3)}, 0")
        setc("d")
        def p1():
            for h, S in enumerate((S0, S1)):
                for i in range(0, 16, 2): k(f"v_max3_f32 {v(MX+h)}, {v(MX+h)}, {v(S+i)}, {v(S+i+1)}")
            setc("")
        loop("att_x1", p1, lambda: setc("o"))
        k(f"""v_permlane32_swap_b32 {v(MX)}, {v(MX+1)}
        v_max_f32 {v(MX)}, {v(MX)}, {v(MX+1)}
        v_sub_f32 {v(MX+2)}, 0, {v(MX)}
        v_mov_b32 {v(MX+3)}, {v(MX+2)}
        v_permlane32_swap_b32 {v(MX+2)}, {v(MX+3)}
        s_lshr_b32 {s(sIT)}, {s(sNTL)}, 3
        s_add_u32 {s(sIT)}, {s(sIT)}, {s(s4K)}
        v_add_u32 {v(vVa)}, {s(sIT)}, {v(vVa)}
        v_add_u32 {v(vVb)}, {s(sIT)}, {v(vVb)}""")
        setc("d")
        for i in range(32): k(f"v_mov_b32 {v(O0+i)}, 0")
        for i in range(8): k(f"v_mov_b32 {v(LS+i)}, 0")
        def p2():
            rdV(0); rdV(1); dec(vVa, vVb); k.wait(lg="all")
            for h in range(2):
                for u in range(2): blk(h, u, {}); pv(h, u); rs(h, u)
            setc("")
        loop("att_x2", p2, lambda: setc("o"))
        k("s_branch att_xb")
    cold.extend(q)
    for i in range(0, 8, 2):
        pk("mul", v(O0+i,2), v(O0+i,2), v(MX,2), bsel=0); pk("mul", v(O1+8+i,2), v(O1+8+i,2), v(MX,2), bsel=1)
    for q in range(2):
        cvt(PP + 4*q, O0 + 4*q, 2); cvt(PP + 4*q + 2, O1 + 8 + 4*q, 2)
    dual([f"buffer_store_dwordx4 {v(PP+4*q,4)}, {v(vT0)}, {s(ACT,4)}, {s(sT0)} offen offset:{q*256}" for q in range(2)], sPURE)

BX = 56
def gemmB(acc, va, cinit, nxt=None, bases=None, fq=None, nbg=1):
    N0 = P("bn", 8)
    def ld(st):
        k.vmem(f"buffer_load_dwordx4 {v(BX+4*st,4)}, {v(va[st//4])}, {s(ACT,4)}, {SK[st//4]} offen offset:{(st%4)*1024} sc1", ("x", st))
    for st in range(N0): ld(st)
    for st in range(16):
        k.wait(vm=("x", st))
        for fb in range(4):
            c = v(acc + 4*fb, 4); n = 4*st + fb
            k(f"{M16} {c}, {a(4*n,4)}, {v(BX+4*st,4)}, {c if (st or cinit) else 0}")
            if fb == 0:
                if st + N0 < 16: ld(st + N0)
                elif st >= 8: bg(nbg)
            if nxt and n: rd_fragB(A0 + 4*(n-1), nxt[(n-1)//4], (n-1) % 4, bases, "fill")
            if fq and fb: emit(fq, 1)
    if fq: emit(fq)
    if nxt: rd_fragB(A0 + 4*63, nxt[15], 3, bases, "fill")

def wo_w1_w2():
    VB, TMP, vAD = 120, 128, 144
    ACC, CS1, ONES, STA, RM, KK, G0 = 160, 176, 192, 196, 200, 204, 208
    k(f"v_add_u32 {v(vAD)}, {FO}, {v(vA16)}")
    bases = rb_bases(VB, [0, 1])
    flag(sFAo, sPURE)
    mark("a.pub")
    stop(3)
    k("s_barrier")
    qB(W2, [(g, 64*KB + g*4096) for g in range(8, 16)]); q3([3])
    bg(P("ow", 6))
    poll(vPA)
    mark("wo.poll")
    gemmB(RES, [vAD]*4, True, [g*4096 for g in range(16)], bases)
    mark("wo.gemm")
    assert len(bgq) <= 7
    pub_tile(RES, FX2, STX2, TMP)
    bg(99)
    k(f"v_add_u32 {v(vAD)}, {FX2}, {v(vA16)}\ns_mov_b32 {s(sT3)}, {STX2}\nv_and_b32 {v(vT0)}, 0x30, v0\nv_add_u32 {v(vT0)}, {CS1L}, {v(vT0)}")
    k.wait(lg="all")
    def cs(lo, hi):
        if not lo:
            for i in range(4): k(f"v_mov_b32 {v(ONES+i)}, 0x3f803f80")
        for m in range(lo, hi):
            c = v(CS1 + 4*(m % 4), 4)
            k(f"{M16} {c}, {a(4*m,4)}, {v(ONES,4)}, {c if m >= 4 else 0}")
        if lo:
            for i in range(4): k(f"ds_write_b128 {v(vT0)}, {v(CS1+4*i,4)} offset:{64*i}")
    l0_only(lambda: cs(0, 24))
    flag(sFBo, sPURE)
    mark("wo.pub")
    stop(4)
    k("s_barrier")
    q3([0, 1]); bg(P("x2w", 4))
    l0_only(lambda: cs(24, 64))
    for i in range(4): k.ds(f"ds_read_b128 {v(CS1+4*i,4)}, {v(vT0)} offset:{64*i}", "fill")
    poll(vPB16)
    mark("w1.poll")
    k.vmem(f"buffer_load_dwordx4 {v(STA,4)}, {v(vA16)}, {s(ACT,4)}, {s(sT3)} offen sc1", "st")
    with Rec() as fq:
        for i in (0, 1): k(f"v_add_f32 {v(STA+i)}, {v(STA+i)}, {v(STA+2+i)}")
        finish_stats(STA, RM, True)
        k(f"v_mul_f32 {v(STA)}, {v(RM)}, {v(RM)}\nv_fmaak_f32 {v(STA)}, {v(STA)}, {v(RM+2)}, {f2u(1e-5)}\nv_rsq_f32 {v(STA)}, {v(STA)}\n"
          f"v_mul_f32 {v(RM+2)}, {v(RM)}, {v(RM+1)}\nv_mul_f32 {v(STA)}, {v(RM)}, {v(STA)}")
        gelu_scale(STA, KK)
    gemmB(ACC, [vAD]*4, False, [64*KB + g*4096 for g in range(16)], bases, fq)
    mark("w1.gemm")
    k(f"s_mov_b32 {s(sT0)}, {FH_}")
    k.wait(lg="all")
    with Rec() as fq:
        gelu(ACC, 16, G0, CS1, RM, KK)
        cvt(TMP, ACC, 8)
    mix(fq, 24, 2)
    dual([f"buffer_store_dwordx4 {v(TMP+4*i,4)}, {v(vP16)}, {s(ACT,4)}, {s(sT0)} offen offset:{1024*i}" for i in range(2)], sPUREH)
    mark("w1.epi")
    k("s_barrier")
    qB(W4, [(g, W4S[g]) for g in range(11)]); q3([2])
    bg(P("ha", 4))
    for i in range(0, 16, 2): pk("fma", v(XB+i,2), v(RES+i,2), v(RM,2), v(RM+2,2), bsel=0, csel=0)
    T = G0
    k(f"s_lshl_b32 {s(sT0)}, {s(sTB16)}, 4\nv_and_b32 {v(T+3)}, 15, v0\nv_add_u32 {v(T+3)}, {s(sT0)}, {v(T+3)}\n"
      f"v_and_b32 {v(T+4)}, 0x300, {v(vL16)}\nv_add_u32 {v(T+4)}, {FH_}, {v(T+4)}\nv_mov_b32 {v(T+2)}, 0x80000000")
    for i, d in enumerate((-1, 1, -2, 2)):
        k(f"""v_add_u32 {v(vT0)}, {d}, {v(T+3)}
        v_cmp_gt_u32 vcc, 0x800, {v(vT0)}
        v_lshrrev_b32 {v(T)}, 4, {v(vT0)}
        v_and_b32 {v(vT0)}, 15, {v(vT0)}
        v_mad_u32_u24 {v(T)}, {v(T)}, {s(s2R)}, {v(T+4)}
        v_lshl_add_u32 {v(T)}, {v(vT0)}, 4, {v(T)}
        v_cndmask_b32 {v(vAD+i)}, {v(T+2)}, {v(T)}, vcc""")
    flag(sFHo, sPUREH)
    mark("w1.pub")
    stop(5)
    bg(P("hw", 6))
    poll(vPH)
    mark("w2.poll")
    gemmB(XB, [vAD+i for i in range(4)], True)
    mark("w2.gemm")
    assert len(bgq) <= 7
    pub_tile(XB, FX1, STX1, TMP)
    bg(99)
    for i in range(0, 16, 2): pk("add", v(RES+i,2), v(RES+i,2), v(XB+i,2))

def w3_w4():
    ACC, FR, BX0, BX1 = 56, 112, 168, A0 + 176
    STA, RM, vW, vAD, KK, VB = 156, 240, 140, 146, 148, 232
    CS = 112
    k(f"""v_lshrrev_b32 {v(vT0)}, 2, v0
    v_mul_u32_u24 {v(vT0)}, 224, {v(vT0)}
    v_and_b32 {v(vT1)}, 3, v0
    v_lshl_add_u32 {v(vT0)}, {v(vT1)}, 3, {v(vT0)}
    s_and_b32 {s(sT0)}, {s(sHP)}, 1
    s_lshl_b32 {s(sT1)}, {s(sT0)}, 5
    s_mul_i32 {s(sT0)}, {s(sT0)}, 192
    s_sub_u32 {s(sT0)}, 192, {s(sT0)}
    v_add_u32 {v(vW)}, {s(sT1)}, {v(vT0)}
    v_add_u32 {v(vW+1)}, {s(sT0)}, {v(vT0)}
    v_add_u32 {v(vW+2)}, {W3H}, {v(vW)}
    v_add_u32 {v(vW+3)}, {W3H}, {v(vW+1)}
    v_add_u32 {v(vAD)}, {FX1}, {v(vA3)}
    v_add_u32 {v(vAD+1)}, {FX1 + R2}, {v(vA3)}
    s_mov_b32 {s(sT3)}, {STX1 - FX1}""")
    bases = rb_bases(VB, [0, 1, 2])
    flag(sFBo, sPURE)
    mark("w2.pub")
    stop(6)
    k("s_barrier")
    fill(W4S, A0, bases)
    def rd3(dst, base, st, b, tag):
        for j in range(2):
            off = (st % 8)*7168 + j*3584 + (b*32 if b < 6 else 0)
            k.ds(f"ds_read_b64_tr_b16 {v(dst+2*j,2)}, {v(base + 2*(st//8) + (b == 6))} offset:{off}", tag)
    mark("w3.fill")
    poll(vPB32)
    mark("w3.poll")
    for t in range(2): k.vmem(f"buffer_load_dwordx4 {v(STA+4*t,4)}, {v(vAD+t)}, {s(ACT,4)}, {s(sT3)} offen sc1", "st")
    for st in range(16):
        for t, B in enumerate((BX0, BX1)):
            bgq.append(lambda st=st, t=t, B=B: k.vmem(f"buffer_load_dwordx4 {r(B+4*st,4)}, {v(vAD+t)}, {s(ACT,4)}, {SK[st//4]} offen offset:{(st%4)*1024} sc1", ("x", st)))
    bg(P("n3", 6))
    k.wait(lg="all")
    def colsum():
        for i in range(4): k(f"v_add_u32 {v(XB+i)}, {s(s3L)}, {v(vW+i)}\nv_mov_b32 {v(XB+4+i)}, 0x3f803f80")
        for i in range(28 + 5):
            if i < 28: rd3(FR + 4*(i % 6), XB, 4*(i//7), i % 7, ("c", i))
            m = i - 5
            if m >= 0:
                k.wait(lg=("c", m)); c = v(ACC + 4*(m % 7), 4)
                k(f"{M16} {c}, {v(XB+4,4)}, {v(FR+4*(m%6),4)}, {c if m >= 7 else 0}")
        k(f"s_mul_i32 {s(sT0)}, {s(sW)}, 448\ns_add_u32 {s(sT0)}, {s(sT0)}, {PART}\nv_and_b32 {v(vT1)}, 15, v0\n"
          f"v_lshl_add_u32 {v(vT1)}, {v(vT1)}, 2, {s(sT0)}")
        for b in range(7): k.ds(f"ds_write_b32 {v(vT1)}, {v(ACC+4*b)} offset:{b*64}")
        k.wait(lg="all")
    l0_only(colsum)
    k("s_barrier")
    l0_only(lambda: sum_partials(28, 448, CS3, FR))
    qB(W4, [(11 + g, W4S[g]) for g in range(11)])
    D = 5
    for n in range(D): rd3(FR + 4*n, vW, 0, n, ("w", n))
    with Rec() as fq:
        for t in range(2):
            for i in (0, 1): k(f"v_add_f32 {v(STA+4*t+i)}, {v(STA+4*t+i)}, {v(STA+4*t+2+i)}")
            finish_stats(STA + 4*t, RM + 4*t, True)
            gelu_scale(RM + 4*t, KK + 4*t)
        k(f"v_and_b32 {v(vT0)}, 0x30, v0\nv_add_u32 {v(vT0)}, {CS3}, {v(vT0)}")
    for n in range(112):
        st, b = divmod(n, 7)
        k.wait(vm=("x", st), lg=("w", min(n + 1, 111)) if n % 2 == 0 else None)
        for t, B in enumerate((BX0, BX1)):
            c = v(ACC + 28*t + 4*b, 4)
            k(f"{M16} {c}, {v(FR+4*(n%7),4)}, {r(B+4*st,4)}, {c if st else 0}")
            if t == 0 and n + D < 112: rd3(FR + 4*((n+D) % 7), vW, (n+D)//7, (n+D) % 7, ("w", n + D))
            if t == 1:
                if n % 2 and bgq: bg()
                elif n % 2: emit(fq, 2)
                else: emit(fq, 1)
    assert not fq and not bgq
    mark("w3.gemm")
    k(f"v_add_u32 {v(vAD)}, {R2}, {v(vA3)}")
    for b in range(7): k.ds(f"ds_read_b128 {v(CS+4*b,4)}, {v(vT0)} offset:{b*64}")
    k.wait(vm="all")
    barrier()
    mark("w3.bar")
    qB(W4, [(22 + g, W4C[g]) for g in range(28)])
    G0, PKD = 168, 196
    for t in range(2):
        A = ACC + 28*t
        with Rec() as fq:
            gelu(A, 28, G0, CS, RM + 4*t, KK + 4*t)
            cvt(PKD + 16*t, A, 14)
        mix(fq, 12, P("e0", 12) if t == 0 else P("e1", 8))
        va = vA3 if t == 0 else vAD
        dual([f"buffer_store_dwordx4 {v(PKD+16*t+4*p,4)}, {v(va)}, {s(ACT,4)}, {s(sH3p)} offen offset:{p*1024}" for p in range(3)] +
             [f"buffer_store_dwordx2 {v(PKD+16*t+12,2)}, {v(va)}, {s(ACT,4)}, {s(sH3s)} offen"], sPURE)
    mark("w3.epi")
    NR = 16
    RING, AR, BV, vH = 136, 200, 40, 240
    with Rec() as fq:
        fill(W4S[:5], A0 + 176, bases); fill(W4S[5:], BV, bases)
    nf = P("h3f", 56)
    f0 = fq[:nf]; mix(f0, 12, P("h3a", 4))
    for i in range(4): k(f"v_add_u32 {v(vH+i)}, {FH3 + i*16384}, {v(vA16)}")
    flag(sFAo, sPURE)
    mark("w3.pub")
    stop(7)
    mix(fq[nf:], 8, len(bgq))
    barrier()
    qB(W4, [(50 + g, W4S[g]) for g in range(6)]); bg(99)
    src = {}
    for g in range(16): src[g] = ("r", A0 + 16*g)
    for g in range(6): src[16+g] = ("r", BV + 16*g)
    for g in range(28): src[22+g] = ("l", W4C[g])
    for g in range(6): src[50+g] = ("l", W4S[g])
    regs = [g for g in range(56) if src[g][0] == "r"]
    lds = sorted((g for g in range(56) if src[g][0] == "l"), key=lambda g: src[g][1] >= 96*KB)
    order = []
    for i in range(56):
        order.append(regs.pop(0) if regs and (i < 2 or i % 5 in (1, 3) or not lds) else lds.pop(0))
    nlow = max(i for i, g in enumerate(order) if src[g][0] == "l" and src[g][1] < 96*KB) + 1
    assert sorted(order) == list(range(56)) and nlow <= 56 - NR
    mark("w4.fill")
    poll(vPA)
    mark("w4.poll")
    def ldx(i):
        g = order[i]
        k.vmem(f"buffer_load_dwordx4 {v(RING+4*(i%NR),4)}, {v(vH+g//16)}, {s(ACT,4)}, {SK[(g//4)%4]} offen offset:{(g%4)*1024} sc1", ("x", i))
    N0 = P("n4", 9)
    for i in range(N0): ldx(i)
    k("s_barrier")
    lf = [(i, fb) for i in range(56) if src[order[i]][0] == "l" for fb in range(4)]
    pos = {x: n for n, x in enumerate(lf)}
    nxt = 0; used = 0
    for i in range(56):
        kind, loc = src[order[i]]
        if i == nlow + 2: k("s_barrier"); qQ(0, 2)
        for fb in range(4):
            if kind == "l":
                n = pos[(i, fb)]; A = v(AR + 4*(n % 8), 4)
                assert n + 1 - fb % 2 < nxt
                k.wait(vm=("x", i), lg=("w", n + 1) if fb % 2 == 0 else None)
            else:
                k.wait(vm=("x", i)); A = r(loc + 4*fb, 4)
            c = v(RES + 4*fb, 4)
            k(f"{M16} {c}, {A}, {v(RING+4*(i%NR),4)}, {c}")
            if fb == 0:
                if i + N0 < 56: ldx(i + N0)
                elif (55 - i) % 2 or N0 < 12: bg()
            if nxt < len(lf) and nxt - used < 7:
                rd_fragB(AR + 4*(nxt % 8), src[order[lf[nxt][0]]][1], lf[nxt][1], bases, ("w", nxt)); nxt += 1
            if kind == "l": used += 1
    assert not bgq
    k.vm.clear(); k.vm.append("dma")
    mark("w4.gemm")

def final():
    k(f"""v_and_b32 v57, 15, v0
    v_lshrrev_b32 v58, 4, v0
    s_lshl_b32 {s(sT0)}, {s(sTB16)}, 14
    s_lshl_b32 {s(sT1)}, {s(sNT)}, 7
    s_add_u32 {s(sT0)}, {s(sT0)}, {s(sT1)}
    v_lshlrev_b32 v56, 10, v57
    v_lshl_add_u32 v56, v58, 3, v56""")
    cvt(64, RES, 8)
    for f in range(4): k(f"buffer_store_dwordx2 {v(64+2*f,2)}, v56, {s(XO,4)}, {s(sT0)} offen offset:{32*f}")

def main():
    prologue()
    k("layer:")
    k.vm.append("dma")
    n0 = nmark[0]
    x_pub()
    mark("x.pub")
    stop(1)
    qkv_att()
    wo_w1_w2()
    w3_w4()
    k(f"s_cmp_lg_u32 {s(sLAY)}, 0\ns_cbranch_scc1 done")
    k(f"s_mov_b32 {s(sLAY)}, 1\ns_add_u32 {s(FLG)}, {s(FLG)}, 0x10000\ns_addc_u32 {s(FLG+1)}, {s(FLG+1)}, 0\ns_add_u32 {s(ACT)}, {s(ACT)}, {R}\ns_addc_u32 {s(ACT+1)}, {s(ACT+1)}, 0")
    if PROF: k(f"v_mov_b32 {v(vPR2)}, {v(vPR)}")
    k("s_branch layer\ndone:")
    final()
    k("s_waitcnt vmcnt(0)")
    if TM:
        mark("end")
        if OPT.get("wb"): k("buffer_wbl2 sc1\ns_waitcnt vmcnt(0)")
        k("tm_l:\ns_sleep 4\ns_memrealtime s[94:95]\ns_waitcnt lgkmcnt(0)\ns_sub_u32 s94, s94, s92\ns_cmp_lt_u32 s94, 15000\ns_cbranch_scc1 tm_l")
    if PROF:
        mark("end")
        k(f"s_memrealtime {s(sPT,2)}\ns_waitcnt lgkmcnt(0)\nv_writelane_b32 {v(vPR)}, {s(sPT)}, 63")
        k(f"""s_add_u32 {s(DBG)}, {s(FLG)}, {PROF_OFF - 0x10000}
        s_addc_u32 {s(DBG+1)}, {s(FLG+1)}, 0
        s_mov_b32 {s(DBG+2)}, 0x100000
        s_lshl_b32 {s(sT0)}, s2, 2
        s_add_u32 {s(sT0)}, {s(sT0)}, {s(sW)}
        s_lshl_b32 {s(sT0)}, {s(sT0)}, 9
        v_lshlrev_b32 v56, 2, v0
        buffer_store_dword {v(vPR2)}, v56, {s(DBG,4)}, {s(sT0)} offen
        buffer_store_dword {v(vPR)}, v56, {s(DBG,4)}, {s(sT0)} offen offset:256""")
    k("bail:\ns_endpgm")
    for t in cold: k(t)
    body, nn = fix_hazards(k.L)
    ref = open(f"cdna_kernels/{NAME}.s.ref").read().split("\n")
    hd = [l for l in ref[:ref.index(f"{NAME}_kernel:") + 1]]
    hd = ["; @launch grid=(256,1,1) block=(256,1,1) lds=163840" if l.startswith("; @launch") else l for l in hd]
    tl = ref[ref.index('.section .rodata,"a"'):]
    tl = [l.replace("next_free_vgpr 256", "next_free_vgpr 512") for l in tl]
    out = hd + [("" if t.endswith(":") else "    ") + t for t in body] + tl
    open(sys.argv[1], "w").write("\n".join(out))
    if PROF: open(sys.argv[1] + ".marks", "w").write(" ".join(marks))
    print("instructions", len(body), "nops", nn)

main()
```

```python
import sys, math, struct
from asmlib import *

NAME = "interleave_layers__sliding_block__mixer_s_mlp__prompt"
OPT = dict(x.split("=") if "=" in x else (x, "1") for x in sys.argv[2:])
PROF = int(OPT.get("prof", 0)); STOP = int(OPT.get("stop", 99))
KB = 1024
FX, FO, FX2, FH_, FX1, FKV_, FH3 = 0, 16*KB, 32*KB, 48*KB, 64*KB, 80*KB, 112*KB
STX, STX2, STX1 = 168*KB, 169*KB, 170*KB
R = 172*KB; R2 = 2*R
ACT_OFF = 0x30000; PROF_OFF = 0x8000000; E_OFF = 0x20000
GB, GH, GA, GKV = 0, 2048, 4096, 5120
KVB = 110*KB; PART = 156*KB; CSQ = 158*KB; CS3 = 158*KB + 512; CS1L = 159*KB
W3A, W3H = 0, 100*KB
W3Q = [W3A, W3A + 28*KB, W3H, W3H + 28*KB]
W4S = [56*KB + g*4096 for g in range(11)]
W4C = [g*4096 for g in range(14)] + [W3H + g*4096 for g in range(14)]
NEG = 0xf1800000
def P(name, d): return int(OPT.get(name, d))
M32 = "v_mfma_f32_32x32x16_bf16"; M16 = "v_mfma_f32_16x16x32_bf16"
def f2u(x): return "0x%08x" % struct.unpack("<I", struct.pack("<f", x))[0]
LOG2E = 1.4426950408889634
C1 = -2*math.sqrt(2/math.pi)*LOG2E; C2 = C1*0.044715

ACT, FLG, WQ, WO, W1, W2, W3, W4, XO, DBG = 4, 8, 12, 16, 20, 24, 28, 32, 36, 40
(sW, sC, sHP, sNT, sTB32, sTB16, sLAY, sPURE, sPUREH, s4K, s8K, s12K, s32K, s2R, sOFF, sCNT,
 sT0, sT1, sOUT, _o1, sV, _v1, sXP, _x1, sW1K, sFBo, sFHo, sFAo, sFKVo, sKVo, sKVf, sNTL,
 sT2, sT3, sH3p, sH3s, sIT, sMT, sG0, sQA, sQB, sM1, sM2, s3L, s3G, sEDG) = range(44, 90)
sPT = 90
SK = [0, s(s4K), s(s8K), s(s12K)]
(vL, vA16, vP16, vA32, vA3, vST, vDB, vDQ) = range(0, 8)
vRB = [8, 9, 10, 11]; vWq = 12; vL16 = 13
vPB32, vPB16, vPA, vPH, vPKV = 14, 15, 16, 17, 18
vT0, vT1, vT2 = 19, 20, 21
vPR2, vPR = 22, 23
RES = 24; XB = 40; vD3 = 248
A0 = 256

k = Asm()
nmark = [0]; marks = []
TM = OPT.get("tm")
def mark(name):
    if TM and TM.split(":")[0] == name:
        L = k.lab("tm")
        if name not in ("first", "start", "xload", "init", "end"): k(f"s_cmp_lg_u32 {s(sLAY)}, {TM.split(':')[1]}\ns_cbranch_scc1 {L}")
        k(f"s_memrealtime s[92:93]\n{L}:\ns_waitcnt lgkmcnt(0)"); k.lg.clear()
    if not PROF or name == "first": return
    k(f"s_memtime {s(sPT,2)}\ns_waitcnt lgkmcnt(0)\nv_writelane_b32 {v(vPR)}, {s(sPT)}, {nmark[0]}")
    k.lg.clear(); marks.append(name); nmark[0] += 1

def srd(d, nbytes):
    k(f"s_mov_b32 {s(d+2)}, {nbytes}\ns_mov_b32 {s(d+3)}, 0x20000")

def barrier():
    k.wait(lg="all"); k("s_barrier")

def poll(va):
    L = k.lab("poll")
    k(f"s_mov_b32 {s(sCNT)}, 0x8000\n{L}:")
    k.vmem(f"buffer_load_dwordx2 {v(vT1,2)}, {v(va)}, {s(FLG,4)}, 0 offen sc1")
    k(f"s_sub_u32 {s(sCNT)}, {s(sCNT)}, 1\ns_cbranch_scc1 bail")
    k.wait(vm="all")
    k(f"v_cmp_ne_u64 vcc, {s(sV,2)}, {v(vT1,2)}\ns_cbranch_vccnz {L}")

cold = []
def dual(stores, spure):
    La, Lb = k.lab("sc"), k.lab("scb")
    k(f"s_cmp_eq_u32 {s(spure)}, 0\ns_cbranch_scc1 {La}")
    for t in stores: k.vmem(t, "pub")
    k(f"{Lb}:")
    cold.extend([f"{La}:"] + [t + " sc1" for t in stores] + [f"s_branch {Lb}"])

def flag(saddr, spure):
    k(f"s_add_u32 {s(sV)}, {s(sV)}, 1\nv_mov_b32 {v(vT2)}, {s(sV+1)}\nv_mov_b32 {v(vT1)}, {s(sV)}\ns_mov_b64 exec, 1")
    t = f"buffer_store_dwordx2 {v(vT1,2)}, off, {s(FLG,4)}, {s(saddr)}"
    k.wait(vm="pub")
    if spure is None: k.vmem(t + " sc1")
    else: dual([t], spure)
    k("s_mov_b64 exec, -1")

bgq = []
def bg(n=1):
    for _ in range(min(n, len(bgq))): bgq.pop(0)()

def qB(w, groups):
    for n, (g, lds) in enumerate(groups):
        def f(n=n, g=g, lds=lds):
            p = groups[n-1] if n else None
            if p and lds - p[1] == 4096: k(f"s_add_u32 m0, m0, {s(s4K)}")
            else: k(f"s_add_u32 m0, {s(sW1K)}, {lds}")
            if p and g - p[0] == 1: k(f"s_add_u32 {s(sOFF)}, {s(sOFF)}, {s(s32K)}")
            else: k(f"s_mov_b32 {s(sOFF)}, {g*32768}")
            k.vmem(f"buffer_load_dwordx4 {v(vDB)}, {s(w,4)}, {s(sOFF)} offen lds", "dma")
        bgq.append(f)

def qQ(lo, hi):
    for n in range(lo, hi):
        def f0(n=n):
            k(f"s_xor_b32 m0, {s(sQB)}, {n*4096}\ns_xor_b32 {s(sOFF)}, {s(sG0)}, {n}\ns_mul_i32 {s(sOFF)}, {s(sOFF)}, {64*3072}")
            k.vmem(f"buffer_load_dwordx4 {v(vDQ)}, {s(WQ,4)}, {s(sOFF)} offen lds", "dma")
        def f1(n=n):
            k(f"s_xor_b32 m0, {s(sQA)}, {n*8192}\ns_bitset1_b32 {s(sOFF)}, 10")
            k.vmem(f"buffer_load_dwordx4 {v(vDQ)}, {s(WQ,4)}, {s(sOFF)} offen lds", "dma")
        def f2():
            k.vmem(f"buffer_load_dwordx4 {v(vDQ)}, {s(WQ,4)}, {s(sOFF)} offen offset:1024 lds", "dma")
        bgq.extend([f0, f1, f2])

def q3(quads):
    for q in quads:
        for p in range(7):
            def f(q=q, p=p):
                if p == 0: k(f"s_add_u32 m0, {s(s3L)}, {W3Q[q]}\ns_add_u32 {s(sOFF)}, {s(s3G)}, {q*4*32*3584}")
                if p == 4: k(f"s_add_u32 m0, m0, {s(s4K)}\ns_add_u32 {s(sOFF)}, {s(sOFF)}, {s(s4K)}")
                k.vmem(f"buffer_load_dwordx4 {v(vD3+p)}, {s(W3,4)}, {s(sOFF)} offen offset:{(p%4)*1024} lds", "dma")
            bgq.append(f)

class Rec:
    def __enter__(self):
        self.n = len(k.L); self.q = []; self.g = len(k.lg); return self.q
    def __exit__(self, *a):
        self.q.extend(k.L[self.n:]); del k.L[self.n:]; del k.lg[self.g:]
def emit(q, n=999):
    for _ in range(min(n, len(q))):
        t = q.pop(0)
        if callable(t): t()
        elif t.startswith("ds_"): k.ds(t, "fill")
        else: k(t)

def rb_bases(vb, his):
    m = {0: vRB}
    for n, hi in enumerate(h for h in his if h):
        m[hi] = [vb + 4*n + f for f in range(4)]
        for f in range(4): k(f"v_add_u32 {v(m[hi][f])}, {hi*65536}, {v(vRB[f])}")
    return m

def rd_fragB(dst, lds, fb, bases, tag):
    hi = lds // 65536
    for j in range(2):
        k.ds(f"ds_read_b64_tr_b16 {r(dst+2*j,2)}, {v(bases[hi][fb])} offset:{lds%65536 + j*2048}", tag)

def fill(slots, dst, bases):
    for i in range(len(slots)*4): rd_fragB(dst + 4*i, slots[i//4], i % 4, bases, "fill")

def mix(q, per, nbg):
    while q or nbg > 0:
        if nbg > 0: bg(); nbg -= 1
        emit(q, per)

def pk(op, d, a_, b_, c_=None, bsel=None, csel=None):
    n = 3 if c_ is not None else 2
    t = f"v_pk_{op}_f32 {d}, {a_}, {b_}" + (f", {c_}" if c_ is not None else "")
    if bsel is not None:
        lo = [0]*n; hi = [1]*n; lo[1] = bsel; hi[1] = bsel
        if csel is not None: lo[2] = csel; hi[2] = csel
        t += f" op_sel:[{','.join(map(str,lo))}] op_sel_hi:[{','.join(map(str,hi))}]"
    k(t)

def cvt(d, src, n):
    for i in range(n): k(f"v_cvt_pk_bf16_f32 {v(d+i)}, {v(src+2*i)}, {v(src+2*i+1)}")

def finish_stats(sq, out, two_level):
    a_, b_ = v(sq), v(sq+1)
    k(f"v_permlane32_swap_b32 {a_}, {b_}\nv_add_f32 {a_}, {a_}, {b_}\nv_mov_b32 {b_}, {a_}")
    if two_level: k(f"v_permlane16_swap_b32 {a_}, {b_}\nv_add_f32 {a_}, {a_}, {b_}\nv_mov_b32 {b_}, {a_}")
    k(f"v_permlane32_swap_b32 {a_}, {b_}\nv_mul_f32 {v(out+1)}, {f2u(-1/512)}, {a_}\nv_mul_f32 {b_}, {f2u(1/512)}, {b_}\n"
      f"v_fma_f32 {b_}, -{v(out+1)}, {v(out+1)}, {b_}\nv_max_f32 {v(out+2)}, 0, {b_}\nv_add_f32 {b_}, {f2u(1e-5)}, {v(out+2)}\n"
      f"v_rsq_f32 {v(out)}, {b_}")

def gelu_scale(rr, kk):
    k(f"v_rcp_f32 {v(kk+2)}, {v(rr)}\nv_mul_f32 {v(kk+1)}, {f2u(C1)}, {v(rr)}\nv_mul_f32 {v(kk)}, {v(rr)}, {v(rr)}\n"
      f"v_mul_f32 {v(kk)}, {f2u(0.044715)}, {v(kk)}\nv_mul_f32 {v(kk)}, {v(kk)}, {v(kk+1)}")

def pub_tile(src, field, stf, tmp):
    k(f"s_mov_b32 {s(sT0)}, {field}\ns_mov_b32 {s(sT1)}, {stf}")
    cvt(tmp, src, 8)
    dual([f"buffer_store_dwordx4 {v(tmp+4*i,4)}, {v(vP16)}, {s(ACT,4)}, {s(sT0)} offen offset:{1024*i}" for i in range(2)], sPURE)
    S, Q = tmp + 8, tmp + 10
    pk("add", v(S,2), v(src,2), v(src+2,2)); pk("mul", v(Q,2), v(src,2), v(src,2))
    for i in range(1, 8):
        if i > 1: pk("add", v(S,2), v(S,2), v(src+2*i,2))
        pk("fma", v(Q,2), v(src+2*i,2), v(src+2*i,2), v(Q,2))
    k(f"v_add_f32 {v(S)}, {v(S)}, {v(S+1)}\nv_add_f32 {v(S+1)}, {v(Q)}, {v(Q+1)}\n"
      f"v_permlane32_swap_b32 {v(S)}, {v(S+1)}\nv_add_f32 {v(S)}, {v(S)}, {v(S+1)}\nv_mov_b32 {v(S+1)}, {v(S)}\n"
      f"v_permlane16_swap_b32 {v(S)}, {v(S+1)}\nv_add_f32 {v(S)}, {v(S)}, {v(S+1)}")
    dual([f"buffer_store_dword {v(S)}, {v(vST)}, {s(ACT,4)}, {s(sT1)} offen"], sPURE)

def gelu(y, n, tmp, cs, rm, kk):
    Pr = range(0, n, 2)
    for i in Pr: pk("fma", v(y+i,2), v(cs+i,2), v(rm,2), v(y+i,2), bsel=1)
    for i in Pr: pk("mul", v(tmp+i,2), v(y+i,2), v(y+i,2))
    for i in Pr: pk("fma", v(tmp+i,2), v(tmp+i,2), v(kk,2), v(kk,2), bsel=0, csel=1)
    for i in Pr: pk("mul", v(tmp+i,2), v(tmp+i,2), v(y+i,2))
    for i in range(n): k(f"v_exp_f32 {v(tmp+i)}, {v(tmp+i)}")
    for i in Pr: pk("fma", v(tmp+i,2), v(tmp+i,2), v(kk+2,2), v(kk+2,2), bsel=0, csel=0)
    for i in range(n): k(f"v_rcp_f32 {v(tmp+i)}, {v(tmp+i)}")
    for i in Pr: pk("mul", v(y+i,2), v(y+i,2), v(tmp+i,2))

def sum_partials(n16, stride, dst, tmp):
    k(f"v_min_u32 {v(vT0)}, {n16-1}, {v(vL)}\nv_lshlrev_b32 {v(vT0)}, 4, {v(vT0)}\nv_add_u32 {v(vT0)}, {PART}, {v(vT0)}")
    for i in range(4): k.ds(f"ds_read_b128 {v(tmp+4*i,4)}, {v(vT0)} offset:{i*stride}")
    k.wait(lg="all")
    for i in range(1, 4):
        for h in (0, 2): pk("add", v(tmp+h,2), v(tmp+h,2), v(tmp+4*i+h,2))
    k.ds(f"ds_write_b128 {v(vT0)}, {v(tmp,4)} offset:{dst-PART}")
    k.wait(lg="all")

def stop(n):
    if STOP == n: k("s_branch bail")

def prologue():
    k("s_cmp_ge_u32 s2, 0x100\ns_cbranch_scc1 bail")
    mark("first")
    for d, off in ((FLG, 80), (XO, 0), (WQ, 8), (DBG, 72), (WO, 16), (W1, 32), (W2, 40), (W3, 48), (W4, 56), (sOUT, 64)):
        k(f"s_load_dwordx2 {s(d,2)}, s[0:1], {off}")
    k(f"""v_lshrrev_b32 v1, 6, v0
    v_and_b32 v0, 63, v0
    v_readfirstlane_b32 {s(sW)}, v1
    s_and_b32 {s(sC)}, s2, 7
    s_lshr_b32 s3, s2, 3
    s_lshr_b32 {s(sHP)}, s2, 4
    s_lshr_b32 {s(sNT)}, s2, 5
    s_and_b32 {s(sMT)}, s3, 1
    s_lshl_b32 {s(sT0)}, {s(sC)}, 3
    s_lshl_b32 {s(sT1)}, {s(sMT)}, 2
    s_add_u32 {s(sT0)}, {s(sT0)}, {s(sT1)}
    s_add_u32 {s(sTB32)}, {s(sT0)}, {s(sW)}
    s_add_u32 {s(sIT)}, {s(sTB32)}, {s(sW)}
    s_and_b32 {s(sT1)}, {s(sTB32)}, -2
    s_sub_u32 {s(sIT)}, {s(sIT)}, 8
    s_cselect_b32 {s(sIT)}, {s(sT1)}, {s(sIT)}
    s_min_u32 {s(sNTL)}, {s(sTB32)}, 8
    s_lshl_b32 {s(sNTL)}, {s(sNTL)}, 15
    s_and_b32 {s(sG0)}, s3, 3
    s_lshl_b32 {s(sG0)}, {s(sG0)}, 1
    s_and_b32 {s(sT1)}, s2, 1
    s_or_b32 {s(sG0)}, {s(sG0)}, {s(sT1)}
    s_and_b32 {s(sT1)}, s3, 3
    s_lshl_b32 {s(sT1)}, {s(sT1)}, 2
    s_add_u32 {s(sT1)}, {s(sT1)}, {s(sW)}
    s_lshl_b32 {s(sT0)}, {s(sC)}, 4
    s_add_u32 {s(sTB16)}, {s(sT0)}, {s(sT1)}
    s_mov_b32 {s(s4K)}, 4096
    s_mov_b32 {s(s8K)}, 8192
    s_mov_b32 {s(s12K)}, 12288
    s_mov_b32 {s(s32K)}, 32768
    s_mov_b32 {s(s2R)}, {R2}
    s_lshl_b32 {s(sW1K)}, {s(sW)}, 10
    s_lshl_b32 {s(sQB)}, {s(sG0)}, 12
    s_add_u32 {s(sQB)}, {s(sQB)}, {s(sW1K)}
    s_lshl_b32 {s(sQA)}, {s(sQB)}, 1
    s_bitset1_b32 {s(sQB)}, 16
    v_lshlrev_b32 {v(vL16)}, 4, v0""")
    for d, n in ((FLG, 0x10100), (XO, 2097152), (WQ, 1572864), (DBG, 256), (WO, 524288), (W1, 524288), (W2, 524288),
                 (W3, 1835008), (W4, 1835008), (ACT, 128*R2)): srd(d, n)
    vXO = 56
    k(f"""v_and_b32 v57, 15, v0
    v_lshrrev_b32 v58, 4, v0
    s_lshl_b32 {s(sT0)}, {s(sTB16)}, 14
    s_lshl_b32 {s(sT1)}, {s(sNT)}, 7
    s_add_u32 {s(sT0)}, {s(sT0)}, {s(sT1)}
    v_lshlrev_b32 {v(vXO)}, 10, v57
    v_lshl_add_u32 {v(vXO)}, v58, 3, {v(vXO)}
    v_add_u32 {v(vXO)}, {s(sT0)}, {v(vXO)}
    v_lshrrev_b32 v59, 2, v0
    v_mul_u32_u24 v59, 3072, v59
    v_and_b32 v60, 3, v0
    v_lshl_add_u32 v59, v60, 4, v59
    s_mul_i32 {s(sT0)}, {s(sW)}, {16*3072}
    s_lshl_b32 {s(sT1)}, {s(sHP)}, 6
    s_add_u32 {s(sT0)}, {s(sT0)}, {s(sT1)}
    v_add_u32 {v(vDQ)}, {s(sT0)}, v59
    s_waitcnt lgkmcnt(0)
    s_add_u32 {s(ACT)}, {s(FLG)}, {ACT_OFF}
    s_addc_u32 {s(ACT+1)}, {s(FLG+1)}, 0""")
    mark("start")
    if PROF: k(f"s_memrealtime {s(sPT,2)}\ns_waitcnt lgkmcnt(0)\nv_writelane_b32 {v(vPR)}, {s(sPT)}, 62")
    for f in range(4):
        k.vmem(f"buffer_load_dwordx2 {v(64+2*f,2)}, {v(vXO)}, {s(XO,4)}, 0 offen offset:{32*f}", "x")
    k(f"s_load_dwordx2 {s(sV,2)}, {s(FLG,2)}, {E_OFF}")
    qQ(0, 2); bg(6)
    if P("pf", 1):
        k(f"""s_lshl_b32 {s(sT0)}, s2, 2
        s_add_u32 {s(sT0)}, {s(sT0)}, {s(sW)}
        s_lshl_b32 {s(sT1)}, {s(sT0)}, 9
        s_mul_i32 {s(sT0)}, {s(sT0)}, 1792
        v_lshlrev_b32 v61, 6, v0
        s_mov_b64 exec, 0xff""")
        for n, w in enumerate((WO, W1, W2)): k.vmem(f"buffer_load_dword {v(100+n)}, v61, {s(w,4)}, {s(sT1)} offen")
        k("s_mov_b64 exec, 0xfffffff")
        for n, w in enumerate((W3, W4)): k.vmem(f"buffer_load_dword {v(103+n)}, v61, {s(w,4)}, {s(sT0)} offen")
        k("s_mov_b64 exec, -1")
    k(f"""s_mul_i32 {s(sT0)}, {s(sTB16)}, {s(s2R)}
    v_add_u32 {v(vA16)}, {s(sT0)}, {v(vL16)}
    s_lshl_b32 {s(sT1)}, {s(sNT)}, 11
    v_add_u32 {v(vP16)}, {s(sT1)}, {v(vA16)}
    s_lshr_b32 {s(sT1)}, {s(sNT)}, 1
    s_lshl_b32 {s(sT1)}, {s(sT1)}, 8
    s_add_u32 {s(sT0)}, {s(sT0)}, {s(sT1)}
    s_and_b32 {s(sT1)}, {s(sNT)}, 1
    s_lshl_b32 {s(sT1)}, {s(sT1)}, 3
    s_add_u32 {s(sT0)}, {s(sT0)}, {s(sT1)}
    v_lshrrev_b32 v59, 5, v0
    v_lshlrev_b32 v60, 4, v57
    v_lshl_add_u32 v61, v59, 2, v60
    v_add_u32 {v(vST)}, {s(sT0)}, v61
    s_mul_i32 {s(sT0)}, {s(sTB32)}, {2*R2}
    v_add_u32 {v(vA3)}, {s(sT0)}, {v(vL16)}
    v_and_b32 v61, 1, v58
    v_mul_u32_u24 v62, {R2}, v61
    v_lshl_add_u32 v62, v59, 8, v62
    v_add3_u32 {v(vA32)}, v62, v60, {s(sT0)}
    s_lshr_b32 {s(sT1)}, {s(sHP)}, 3
    s_mul_i32 {s(sT1)}, {s(sT1)}, {s(s2R)}
    s_and_b32 {s(sT2)}, {s(sHP)}, 7
    s_lshl_b32 {s(sT2)}, {s(sT2)}, 12
    s_add_u32 {s(sT1)}, {s(sT1)}, {s(sT2)}
    s_add_u32 {s(sT1)}, {s(sT1)}, {FKV_}
    s_add_u32 {s(sKVo)}, {s(sT0)}, {s(sT1)}
    s_mul_i32 {s(sT0)}, {s(sIT)}, {2*R2}
    s_add_u32 {s(sKVf)}, {s(sT0)}, {s(sT1)}""")
    k(f"""v_lshrrev_b32 v62, 2, v57
    v_and_b32 v63, 3, v0
    v_lshl_add_u32 v72, v59, 2, v62
    v_lshl_add_u32 v73, v61, 2, v63
    v_lshlrev_b32 v73, 3, v73
    v_lshl_add_u32 {v(vWq)}, v72, 6, v73
    v_lshl_add_u32 v72, v61, 2, v62
    v_lshlrev_b32 v73, 10, v59
    v_lshl_add_u32 v73, v72, 7, v73
    v_lshl_add_u32 v73, v63, 3, v73
    v_lshrrev_b32 v72, 1, v72
    v_lshl_add_u32 {v(vRB[0])}, v72, 5, v73
    v_xor_b32 {v(vRB[1])}, 32, {v(vRB[0])}
    v_xor_b32 {v(vRB[2])}, 64, {v(vRB[0])}
    v_xor_b32 {v(vRB[3])}, 0x60, {v(vRB[0])}
    v_lshrrev_b32 v72, 3, v0
    v_and_b32 v73, 7, v0
    v_lshlrev_b32 v74, 1, v58
    v_xor_b32 v74, v74, v73
    v_lshlrev_b32 v74, 4, v74
    v_lshl_add_u32 v74, v72, 10, v74
    s_lshl_b32 {s(sT0)}, {s(sW)}, 13
    s_lshl_b32 {s(sT1)}, {s(sNT)}, 7
    s_add_u32 {s(sT0)}, {s(sT0)}, {s(sT1)}
    v_add_u32 {v(vDB)}, {s(sT0)}, v74""")
    k(f"""s_lshl_b32 {s(sT3)}, {s(sC)}, 13
    s_and_b32 {s(sT0)}, {s(sTB16)}, 15
    s_lshl_b32 {s(sT1)}, {s(sT0)}, 7
    s_add_u32 {s(sT1)}, {s(sT1)}, {s(sT3)}
    v_lshl_add_u32 {v(vPB16)}, v73, 3, {s(sT1)}
    s_lshl_b32 {s(sT2)}, {s(sNT)}, 3
    s_add_u32 {s(sFBo)}, {s(sT1)}, {s(sT2)}
    s_add_u32 {s(sFHo)}, {s(sFBo)}, {GH}
    s_lshr_b32 {s(sT0)}, {s(sT0)}, 1
    s_lshl_b32 {s(sT0)}, {s(sT0)}, 7
    s_add_u32 {s(sT0)}, {s(sT0)}, {s(sT3)}
    s_add_u32 {s(sT0)}, {s(sT0)}, {GA}
    v_lshl_add_u32 {v(vPA)}, v57, 3, {s(sT0)}
    s_and_b32 {s(sT0)}, {s(sTB32)}, 7
    s_lshl_b32 {s(sT1)}, {s(sT0)}, 8
    s_add_u32 {s(sT1)}, {s(sT1)}, {s(sT3)}
    v_and_b32 v74, 1, v72
    v_lshlrev_b32 v74, 7, v74
    v_lshl_add_u32 v74, v73, 3, v74
    v_add_u32 {v(vPB32)}, {s(sT1)}, v74
    s_lshl_b32 {s(sT1)}, {s(sT0)}, 7
    s_lshl_b32 {s(sT2)}, {s(sHP)}, 3
    s_add_u32 {s(sT1)}, {s(sT1)}, {s(sT2)}
    s_add_u32 {s(sT1)}, {s(sT1)}, {s(sT3)}
    s_add_u32 {s(sFAo)}, {s(sT1)}, {GA}
    s_lshl_b32 {s(sT2)}, {s(sHP)}, 7
    s_add_u32 {s(sT2)}, {s(sT2)}, {GKV}
    s_lshl_b32 {s(sT0)}, {s(sT0)}, 3
    s_add_u32 {s(sT0)}, {s(sT0)}, {s(sT2)}
    s_add_u32 {s(sFKVo)}, {s(sT0)}, {s(sT3)}
    s_lshr_b32 {s(sT0)}, {s(sIT)}, 3
    s_lshl_b32 {s(sT0)}, {s(sT0)}, 13
    s_add_u32 {s(sT2)}, {s(sT2)}, {s(sT0)}
    s_and_b32 {s(sT0)}, {s(sIT)}, 7
    s_lshl_b32 {s(sT0)}, {s(sT0)}, 3
    s_add_u32 {s(sT2)}, {s(sT2)}, {s(sT0)}
    v_and_b32 v74, 1, v0
    v_lshl_add_u32 {v(vPKV)}, v74, 3, {s(sT2)}
    v_min_u32 v74, 2, v72
    s_sub_u32 {s(sT0)}, {s(sTB16)}, 1
    v_add_u32 v74, {s(sT0)}, v74
    v_max_i32 v74, 0, v74
    v_min_i32 v74, 0x7f, v74
    v_lshrrev_b32 v75, 4, v74
    v_and_b32 v74, 15, v74
    v_lshlrev_b32 v75, 13, v75
    v_lshl_add_u32 v75, v74, 7, v75
    v_lshl_add_u32 v75, v73, 3, v75
    v_add_u32 {v(vPH)}, {GH}, v75
    s_and_b32 {s(sT0)}, {s(sHP)}, 1
    s_mul_i32 {s(sT1)}, {s(sHP)}, 7
    s_add_u32 {s(sT2)}, {s(sT1)}, {s(sT0)}
    s_lshl_b32 {s(sT2)}, {s(sT2)}, 9
    s_add_u32 {s(sH3p)}, {s(sT2)}, {FH3}
    s_mul_i32 {s(sT0)}, {s(sT0)}, {4096-8}
    s_add_u32 {s(sH3s)}, {s(sH3p)}, 3072
    s_sub_u32 {s(sH3s)}, {s(sH3s)}, {s(sT0)}
    s_mov_b32 {s(sLAY)}, 0
    s_mov_b32 {s(sPURE)}, 0
    s_mov_b32 {s(sPUREH)}, 0
    s_getreg_b32 {s(sT2)}, hwreg(HW_REG_XCC_ID, 0, 4)
    s_and_b32 {s(sT2)}, {s(sT2)}, 7
    s_lshl_b32 {s(sT2)}, {s(sT2)}, 3
    s_lshl_b64 {s(sXP,2)}, 32, {s(sT2)}
    s_add_u32 {s(sT0)}, {s(sTB16)}, 1
    s_and_b32 {s(sT0)}, {s(sT0)}, 14
    s_cselect_b32 {s(sEDG)}, 1, 0
    s_mul_i32 {s(s3L)}, {s(sW)}, 7168
    s_mul_i32 {s(s3G)}, {s(sW)}, {32*3584}
    s_mul_i32 {s(sT2)}, {s(sHP)}, 224
    s_add_u32 {s(s3G)}, {s(s3G)}, {s(sT2)}""")
    for q in range(7):
        k(f"v_add_u32 v72, {64*q}, v0\nv_mul_u32_u24 v72, 4682, v72\nv_lshrrev_b32 v72, 16, v72\n"
          f"v_mul_u32_u24 v72, 3360, v72\nv_add_u32 {v(vD3+q)}, v72, {v(vL16)}")
    if P("expb", 0):
        k(f"s_lshl_b32 {s(sT0)}, {s(sNT)}, 7\nv_subrev_u32 {v(vDB)}, {s(sT0)}, {v(vDB)}\ns_lshl_b32 {s(sT0)}, {s(sHP)}, 6\nv_subrev_u32 {v(vDQ)}, {s(sT0)}, {v(vDQ)}\n"
          f"s_and_b32 {s(sT0)}, {s(sHP)}, 12\ns_mul_i32 {s(sT0)}, {s(sT0)}, 224\ns_sub_u32 {s(s3G)}, {s(s3G)}, {s(sT0)}")
    if P("expa", 0):
        for w in (WQ, WO, W1, W2, W3, W4): k(f"s_mov_b32 {s(w+2)}, 0")
    k(f"s_waitcnt lgkmcnt(0)\ns_xor_b32 {s(sV+1)}, {s(sV+1)}, 0x5bd1e995")
    k.wait(vm="x")
    for i in range(8):
        k(f"v_lshlrev_b32 {v(RES+2*i)}, 16, {v(64+i)}\nv_and_b32 {v(RES+2*i+1)}, 0xffff0000, {v(64+i)}")
    mark("xload")
    k(f"s_mov_b32 {s(XO)}, {s(sOUT)}\ns_mov_b32 {s(XO+1)}, {s(sOUT+1)}")

def selector(d):
    k(f"v_lshrrev_b32 {v(vT0)}, 2, v0\nv_xor_b32 {v(vT0)}, {v(vT0)}, v0\nv_and_b32 {v(vT0)}, 4, {v(vT0)}\n"
      f"v_cmp_eq_u32 vcc, 0, {v(vT0)}\nv_mov_b32 {v(vT0)}, 0x3f803f80\nv_cndmask_b32 {v(d)}, 0, {v(vT0)}, vcc")
    for i in range(1, 4): k(f"v_mov_b32 {v(d+i)}, {v(d)}")

def l0_only(fn):
    L = k.lab("l0")
    k(f"s_cmp_lg_u32 {s(sLAY)}, 0\ns_cbranch_scc1 {L}")
    fn()
    k(f"{L}:")

def x_pub():
    pub_tile(RES, FX, STX, 56)
    qQ(2, 8); bg(P("xa", 3))
    flag(sFBo, sPURE)
    def count():
        L = k.lab("cnt")
        k(f"""s_barrier
        s_cmp_lg_u32 {s(sW)}, 0
        s_cbranch_scc1 {L}
        s_lshr_b64 {s(sT0,2)}, {s(sXP,2)}, 5
        v_mov_b32 v56, {s(sT0)}
        v_mov_b32 v57, {s(sT1)}
        s_lshl_b32 {s(sT2)}, {s(sC)}, 5
        s_mov_b64 exec, 1
        buffer_atomic_add_x2 v[56:57], off, {s(DBG,4)}, {s(sT2)} sc1
        s_mov_b64 exec, -1
        {L}:""")
    l0_only(count)
    bg(99)
    k(f"s_cmp_eq_u32 {s(sLAY)}, 0\ns_cselect_b32 {s(WQ+2)}, {s(WQ+2)}, 0")

def qkv_att():
    AK, AV, AQ = 56, 72, 88
    FR = 104; CS = 128; STA = 160; RM = 168; PKD = 208
    vWq2, vCS, vV0, vV1, vKW = 240, 241, 242, 243, 244
    SEL = 196; QF = 200
    N0 = P("qn", 12)
    k(f"v_add_u32 {v(vWq2)}, 0x10000, {v(vWq)}")
    selector(SEL)
    k(f"""v_lshrrev_b32 {v(vT1)}, 5, v0
    v_lshlrev_b32 {v(vCS)}, 4, {v(vT1)}
    v_add_u32 {v(vCS)}, {CSQ}, {v(vCS)}
    v_lshlrev_b32 {v(vT1)}, 6, {v(vT1)}
    v_xor_b32 {v(vV0)}, {v(vT1)}, {v(vL16)}
    v_xor_b32 {v(vV1)}, 0x80, {v(vV0)}
    s_lshl_b32 {s(sT0)}, {s(sW)}, 12
    s_add_u32 {s(sT0)}, {s(sT0)}, {KVB + 8*4096}
    v_add_u32 {v(vKW)}, {s(sT0)}, {v(vL16)}
    v_add_u32 {v(vKW+1)}, {s(sT0)}, {v(vV0)}
    v_add_u32 {v(vKW+2)}, {s(sT0)}, {v(vV1)}
    s_mov_b32 {s(sT1)}, {STX}""")
    S0, S1, CM, MD, O0, O1 = 56, 72, 104, 40, 160, 176
    KF, VF, PP, LS, MX = 208, 216, 224, 232, 120
    vK, vVa, vVb, vDB2 = 192, 193, 194, 195
    k(f"""v_bfe_u32 {v(vT0)}, v0, 4, 1
    v_bfe_u32 {v(vK)}, v0, 1, 1
    v_lshl_add_u32 {v(vT0)}, {v(vT0)}, 1, {v(vK)}
    v_lshrrev_b32 {v(vK)}, 5, v0
    v_xor_b32 {v(vK)}, {v(vK)}, {v(vT0)}
    v_lshlrev_b32 {v(vT0)}, 9, {v(vT0)}
    v_lshl_add_u32 {v(vT0)}, {v(vK)}, 6, {v(vT0)}
    v_bfe_u32 {v(vK)}, v0, 2, 2
    v_lshl_add_u32 {v(vT0)}, {v(vK)}, 4, {v(vT0)}
    v_and_b32 {v(vK)}, 1, v0
    v_lshl_add_u32 {v(vT0)}, {v(vK)}, 3, {v(vT0)}
    v_lshl_add_u32 {v(vT0)}, {s(sW)}, 12, {v(vT0)}
    v_add_u32 {v(vVa)}, {KVB + 8*4096 + 2048}, {v(vT0)}
    v_xor_b32 {v(vVb)}, 0x80, {v(vVa)}
    v_lshlrev_b32 {v(vT0)}, v0, -2
    v_lshrrev_b32 {v(vK)}, 3, v0
    v_and_b32 {v(vK)}, 4, {v(vK)}
    v_lshrrev_b32 {v(vT0)}, {v(vK)}, {v(vT0)}
    v_subrev_u32 {v(vK)}, {s(s4K)}, {v(vKW)}
    v_add_u32 {v(vDB2)}, {8*32768}, {v(vDB)}""")
    for i in range(16): k(f"v_bfe_i32 {v(MD+i)}, {v(vT0)}, {8*(i//4)+i%4}, 1\nv_and_b32 {v(MD+i)}, {NEG}, {v(MD+i)}")
    def rdq(dst, sp, b, tag):
        G = sp // 4
        for j in range(2):
            w_ = 2*((sp//2) % 2) + j
            off = G*8192 + w_*2048 + (b-1)*1024 if b else G*4096 + w_*1024
            k.ds(f"ds_read_b64_tr_b16 {v(dst+2*j,2)}, {v(vWq if b else vWq2)} offset:{off + (sp % 2)*512}", tag)
    def ldx(sp):
        k.vmem(f"buffer_load_dwordx4 {a(4*sp,4)}, {v(vA32)}, {s(ACT,4)}, {SK[sp//8]} offen offset:{(sp%8)*512} sc1", ("x", sp))
    mark("q.pre")
    poll(vPB32)
    mark("q.poll")
    for i in range(2): k.vmem(f"buffer_load_dwordx4 {v(STA+4*i,4)}, {v(vA32)}, {s(ACT,4)}, {s(sT1)} offen offset:{512*i} sc1", "st")
    for sp in range(N0): ldx(sp)
    def colsum():
        k(f"v_add_u32 {v(vT2)}, {s(sW1K)}, {v(vWq2)}\nv_lshl_add_u32 {v(vT1)}, {s(sW)}, 11, {v(vWq)}")
        for i in range(24 + 5):
            if i < 24:
                G, b = divmod(i, 3)
                for j in range(2):
                    off = G*8192 + (b-1)*1024 if b else G*4096
                    k.ds(f"ds_read_b64_tr_b16 {v(FR+4*(i%6)+2*j,2)}, {v(vT1 if b else vT2)} offset:{off + j*512}", ("c", i))
            m = i - 5
            if m >= 0:
                k.wait(lg=("c", m)); c = v(AK + 4*(m % 3), 4)
                k(f"{M16} {c}, {v(SEL,4)}, {v(FR+4*(m%6),4)}, {c if m >= 3 else 0}")
        k(f"s_mul_i32 {s(sT0)}, {s(sW)}, 384\ns_add_u32 {s(sT0)}, {s(sT0)}, {PART}\nv_and_b32 {v(vT1)}, 31, v0\n"
          f"v_lshl_add_u32 {v(vT1)}, {v(vT1)}, 2, {s(sT0)}")
        for b in range(3): k.ds(f"ds_write_b32 {v(vT1)}, {v(AK+4*b)} offset:{b*128}")
        k.wait(lg="all")
    l0_only(colsum)
    k("s_barrier")
    l0_only(lambda: sum_partials(24, 384, CSQ, CS))
    for sp in range(2):
        for b in (1, 2): rdq(FR + 8*sp + 4*(b-1), sp, b, ("w", sp))
    for b in (1, 2):
        for q in range(4): k.ds(f"ds_read_b128 {v(CS+16*(b-1)+4*q,4)}, {v(vCS)} offset:{b*128+q*32}", "cs")
    with Rec() as fq:
        for i in (0, 1): k(f"v_add_f32 {v(STA+i)}, {v(STA+i)}, {v(STA+2+i)}\nv_add_f32 {v(STA+4+i)}, {v(STA+4+i)}, {v(STA+6+i)}")
        for i in (0, 1): k(f"v_add_f32 {v(STA+i)}, {v(STA+i)}, {v(STA+4+i)}")
        finish_stats(STA, RM, False)
        k(f"v_mul_f32 {v(RM+1)}, {v(RM)}, {v(RM+1)}")
        for i in range(32): k(f"v_mul_f32 {v(CS+i)}, {v(RM+1)}, {v(CS+i)}")
    for sp in range(32):
        k.wait(vm=("x", sp), lg=("w", sp))
        for b, acc in ((1, AK), (2, AV)):
            k(f"{M32} {v(acc,16)}, {v(FR+8*(sp%3)+4*(b-1),4)}, {a(4*sp,4)}, {v(acc,16) if sp else 0}")
            if b == 1 and sp + N0 < 32: ldx(sp + N0)
            if sp + 2 < 32: rdq(FR + 8*((sp+2) % 3) + 4*(b-1), sp + 2, b, ("w", sp + 2))
            elif sp == 30: rdq(FR + 16 + 4*(b-1), b - 1, 0, ("q", b - 1))
            else: rdq(FR + 4*(b-1), b + 1, 0, ("q", b + 1))
            if sp >= 2: emit(fq, 1)
    assert not fq
    k("s_barrier")
    mark("q.kv")
    qB(WO, [(g, g*4096) for g in range(16)])
    with Rec() as f1:
        for i in range(32): k(f"v_fma_f32 {v(AK+i)}, {v(AK+i)}, {v(RM)}, {v(CS+i)}")
        cvt(PKD, AK, 16)
    f1 = [x for t in range(4) for x in f1[8*t:8*t+8] + f1[32+4*t:36+4*t] + [t]]
    with Rec() as f2:
        for q in range(4): k.ds(f"ds_read_b128 {v(CS+4*q,4)}, {v(vCS)} offset:{q*32}")
        k(f"""v_mul_f32 {v(RM)}, {f2u(0.25*LOG2E)}, {v(RM)}
        v_mul_f32 {v(RM+1)}, {f2u(0.25*LOG2E)}, {v(RM+1)}""")
        for i in range(16): k(f"v_mul_f32 {v(CS+i)}, {v(RM+1)}, {v(CS+i)}")
    f2.insert(6, lambda: k.wait(lg="fill"))
    def slot(n): return FR + 4*((n + 4) % 6)
    nd = 0
    for sp in range(32):
        k.wait(lg=("q", sp))
        k(f"{M32} {v(AQ,16)}, {v(slot(sp),4)}, {a(4*sp,4)}, {v(AQ,16) if sp else 0}")
        if sp + 4 < 32: rdq(slot(sp + 4), sp + 4, 0, ("q", sp + 4))
        if f1 and sp >= 1:
            for _ in range(4):
                t = f1.pop(0)
                if isinstance(t, int):
                    k.vmem(f"buffer_store_dwordx4 {v(PKD+4*t,4)}, {v((vL16, vL16, vV0, vV1)[t])}, {s(ACT,4)}, {s(sKVo)} offen offset:{t*1024} sc1", "pub")
                    k.ds(f"ds_write_b128 {v((vKW, vKW, vKW+1, vKW+2)[t])}, {v(PKD+4*t,4)} offset:{t*1024}", "kw")
                else: k(t)
        elif sp >= 1:
            if sp % 2 == 0: bg()
            else: emit(f2, 3)
    emit(f2)
    bg(2)
    for i in range(0, 16, 2): pk("fma", v(AQ+i,2), v(AQ+i,2), v(RM,2), v(CS+i,2), bsel=0)
    cvt(QF, AQ, 8)
    mark("q.q")
    stop(2)
    def qk(h, c): k(f"{M32} {v((S0,S1)[h],16)}, {v(KF+4*h,4)}, {v(QF+4*h,4)}, {v(c,16)}")
    def pv(h, u, first=False):
        O = v((O0, O1)[h], 16)
        k(f"{M32} {O}, {v(VF+4*u,4)}, {v(PP+4*u,4)}, {0 if first else O}")
    def rs(h, u, first=False): k(f"{M16} {v(LS+4*h,4)}, {v(SEL,4)}, {v(PP+4*u,4)}, {0 if first else v(LS+4*h,4)}")
    def rdV(u):
        for j, va in enumerate((vVa, vVb)): k.ds(f"ds_read_b64_tr_b16 {v(VF+4*u+2*j,2)}, {v(va)} offset:{u*256}", ("v", u))
    def rdK(h): k.ds(f"ds_read_b128 {v(KF+4*h,4)}, {v(vK)} offset:{h*1024}", ("k", h))
    def dec(*rs_):
        for x in rs_: k(f"v_subrev_u32 {v(x)}, {s(s4K)}, {v(x)}")
    def blk(h, u, at):
        S = (S0, S1)[h] + 8*u
        for i in range(12):
            if i in at: at[i]()
            if i < 8: k(f"v_exp_f32 {v(S+i)}, {v(S+i)}")
            else: cvt(PP + 4*u + i - 8, S + 2*(i-8), 1)
    qk(0, MD); rdV(0); rdV(1); bg(); qk(1, MD); dec(vVa, vVb)
    for i in range(16): k(f"v_mov_b32 {v(CM+i)}, 0")
    if P("kvf", 0) == 0: flag(sFKVo, None)
    blk(0, 0, {2: bg, 6: bg})
    if P("kvf", 0) == 1: flag(sFKVo, None)
    blk(0, 1, {2: lambda: (k.wait(lg="all"), pv(0, 0, True)), 5: lambda: rs(0, 0, True), 7: bg})
    blk(1, 0, {2: lambda: pv(0, 1), 5: lambda: rs(0, 1), 7: bg})
    bg(99)
    k(f"v_lshlrev_b32 {v(vT0)}, 5, v0")
    k.vmem(f"buffer_load_dwordx2 {v(MX,2)}, {v(vT0)}, {s(DBG,4)}, 0 offen sc1")
    mark("a.diag")
    poll(vPKV)
    mark("a.poll")
    k(f"s_lshl_b32 {s(sT0)}, {s(sW)}, 13\ns_add_u32 m0, {s(sT0)}, {KVB}\ns_mov_b32 {s(sOFF)}, {s(sKVf)}")
    for t in range(2):
        for i in range(4):
            def f(t=t, i=i):
                if t and not i: k(f"s_add_u32 m0, m0, {s(s4K)}\ns_add_u32 {s(sOFF)}, {s(sOFF)}, {2*R2}")
                k.vmem(f"buffer_load_dwordx4 {v(vL16)}, {s(ACT,4)}, {s(sOFF)} offen offset:{i*1024} sc1 lds", "kv")
            bgq.append(f)
    bg(P("ka", 3))
    k(f"v_readlane_b32 {s(sT0)}, {v(MX)}, {s(sC)}\nv_readlane_b32 {s(sT1)}, {v(MX+1)}, {s(sC)}\ns_barrier")
    with Rec() as fq: fill([g*4096 for g in range(16)], A0, {0: vRB})
    mix(fq, 8, 8)
    k(f"""s_cmp_eq_u64 {s(sT0,2)}, {s(sXP,2)}
    s_cselect_b32 {s(sPURE)}, 1, 0
    s_and_b32 {s(sPUREH)}, {s(sPURE)}, {s(sEDG)}
    s_add_u32 {s(sT0)}, s2, {s(sW)}
    s_cmp_lt_u32 {s(sT0)}, {s(sLAY)}
    s_cbranch_scc1 epoch
    epoch_b:
    s_mov_b32 m0, {s(sW1K)}
    s_mov_b32 {s(sOFF)}, 0""")
    cold.extend(f"""epoch:
    s_mov_b32 {s(sCNT)}, 0x8000
    epoch_l:
    buffer_load_dwordx2 {v(MX,2)}, {v(vT0)}, {s(DBG,4)}, 0 offen sc1
    s_sub_u32 {s(sCNT)}, {s(sCNT)}, 1
    s_cbranch_scc1 bail
    s_waitcnt vmcnt(0)
    v_sad_u8 {v(MX)}, {v(MX)}, 0, 0
    v_sad_u8 {v(MX)}, {v(MX+1)}, 0, {v(MX)}
    v_cmp_ne_u32 vcc, 32, {v(MX)}
    s_and_b32 {s(sT0)}, vcc_lo, 0xff
    s_cbranch_scc1 epoch_l
    s_add_u32 {s(sT0)}, {s(sV)}, 7
    v_mov_b32 {v(MX)}, {s(sT0)}
    s_mov_b32 {s(sT0)}, {E_OFF - 0x10000}
    s_mov_b64 exec, 1
    buffer_store_dword {v(MX)}, off, {s(FLG,4)}, {s(sT0)} sc1
    s_mov_b64 exec, -1
    s_branch epoch_b""".split("\n"))
    k.wait(vm="all")
    barrier()
    mark("a.kv")
    rdK(0); rdK(1); dec(vK)
    blk(1, 1, {0: lambda: pv(1, 0, True), 3: lambda: rs(1, 0, True), 6: lambda: (k.wait(lg="all"), qk(0, CM))})
    def dma(n):
        k.vmem(f"buffer_load_dwordx4 {v(vDB2 if n == 1 else vDB)}, {s(W2 if n == 2 else W1,4)}, {s(sOFF)} offen lds", "dma")
        if n < 2: k(f"s_add_u32 m0, m0, {s(s32K)}")
        else: k(f"s_sub_u32 m0, m0, {65536 - 4096}\ns_add_u32 {s(sOFF)}, {s(sOFF)}, {s(s32K)}")
    def setcm():
        k(f"s_cmp_eq_u32 {s(sOFF)}, {6*32768}\ns_cbranch_scc1 att_cm\natt_cmb:")
    cold.extend(["att_cm:"] + [f"v_xor_b32 {v(CM+i)}, {NEG}, {v(MD+i)}" for i in range(16)] + ["s_branch att_cmb"])
    k(f"s_cmp_eq_u32 {s(sNTL)}, 0\ns_cbranch_scc1 att_e\natt_l:")
    blk(0, 0, {0: lambda: (qk(1, CM), rdV(0), rdK(0)), 3: lambda: pv(1, 1), 6: lambda: rs(1, 1), 8: lambda: dma(0)})
    blk(0, 1, {0: lambda: (rdV(1), rdK(1)), 1: lambda: (k.wait(lg=("k", 0)), pv(0, 0)), 4: lambda: rs(0, 0), 6: setcm, 8: lambda: dma(1)})
    blk(1, 0, {0: lambda: qk(0, CM), 3: lambda: (k.wait(lg="all"), pv(0, 1)), 6: lambda: rs(0, 1)})
    blk(1, 1, {0: lambda: dec(vK, vVa), 1: lambda: pv(1, 0), 4: lambda: rs(1, 0), 6: lambda: dec(vVb), 8: lambda: dma(2)})
    k(f"s_cmp_lt_u32 {s(sOFF)}, {s(sNTL)}\ns_cbranch_scc1 att_l\natt_e:")
    pv(1, 1); rs(1, 1)
    k(f"s_cmp_lt_u32 {s(sOFF)}, {8*32768}\ns_cbranch_scc1 att_r\natt_rb:")
    with Rec() as q:
        k("att_r:")
        for n in range(3): dma(n)
        k(f"s_cmp_lt_u32 {s(sOFF)}, {8*32768}\ns_cbranch_scc1 att_r\ns_branch att_rb")
    cold.extend(q)
    mark("a.loop")
    k(f"""v_lshrrev_b32 {v(vT0)}, 5, v0
    v_lshl_add_u32 {v(vT0)}, {v(vT0)}, 8, {v(vA32)}
    s_lshl_b32 {s(sT0)}, {s(sHP)}, 10
    s_add_u32 {s(sT0)}, {s(sT0)}, {FO}""")
    pk("mul", v(MX,2), v(O0,2), 0)
    for i in range(2, 8, 2): pk("fma", v(MX,2), v(O0+i,2), 0, v(MX,2))
    for i in range(0, 8, 2): pk("fma", v(MX,2), v(O1+8+i,2), 0, v(MX,2))
    lo, hi = (127 - 48) << 23, (127 + 80) << 23
    k(f"""v_add_f32 {v(MX)}, {v(MX)}, {v(LS)}
    v_add_f32 {v(MX+1)}, {v(MX+1)}, {v(LS+4)}
    v_subrev_u32 {v(MX)}, {lo}, {v(MX)}
    v_subrev_u32 {v(MX+1)}, {lo}, {v(MX+1)}
    v_max_u32 {v(MX)}, {v(MX)}, {v(MX+1)}
    v_cmp_lt_u32 vcc, {hi - lo if not P("fb", 0) else 0}, {v(MX)}
    s_cbranch_vccnz att_x
    att_xb:
    v_rcp_f32 {v(MX)}, {v(LS)}
    v_rcp_f32 {v(MX+1)}, {v(LS+4)}""")
    C0, C1_ = 88, 104
    with Rec() as q:
        k("att_x:")
        def rk():
            rdK(0); rdK(1); dec(vK); k.wait(lg="all")
        def loop(name, body, last):
            k(f"v_mov_b32 {v(vK)}, {v(vKW)}\ns_mov_b32 {s(sIT)}, 0\n{name}:")
            rk(); qk(0, C0); qk(1, C1_)
            body()
            k(f"s_cmp_lg_u32 {s(sIT)}, {7*32768}\ns_cbranch_scc1 {name}_n")
            last()
            k(f"{name}_n:\ns_add_u32 {s(sIT)}, {s(sIT)}, {s(s32K)}\ns_cmp_le_u32 {s(sIT)}, {s(sNTL)}\ns_cbranch_scc1 {name}")
        def setc(mask):
            for i in range(16):
                if mask == "o": k(f"v_xor_b32 {v(C0+i)}, {NEG}, {v(MD+i)}")
                m = {"o": v(C0+i), "d": v(MD+i), "": 0}[mask]
                k(f"v_add_f32 {v(C1_+i)}, {m}, {v(MX+3)}\nv_add_f32 {v(C0+i)}, {m}, {v(MX+2)}")
        k(f"v_mov_b32 {v(MX)}, {NEG}\nv_mov_b32 {v(MX+1)}, {NEG}\nv_mov_b32 {v(MX+2)}, 0\nv_mov_b32 {v(MX+3)}, 0")
        setc("d")
        def p1():
            for h, S in enumerate((S0, S1)):
                for i in range(0, 16, 2): k(f"v_max3_f32 {v(MX+h)}, {v(MX+h)}, {v(S+i)}, {v(S+i+1)}")
            setc("")
        loop("att_x1", p1, lambda: setc("o"))
        k(f"""v_permlane32_swap_b32 {v(MX)}, {v(MX+1)}
        v_max_f32 {v(MX)}, {v(MX)}, {v(MX+1)}
        v_sub_f32 {v(MX+2)}, 0, {v(MX)}
        v_mov_b32 {v(MX+3)}, {v(MX+2)}
        v_permlane32_swap_b32 {v(MX+2)}, {v(MX+3)}
        s_lshr_b32 {s(sIT)}, {s(sNTL)}, 3
        s_add_u32 {s(sIT)}, {s(sIT)}, {s(s4K)}
        v_add_u32 {v(vVa)}, {s(sIT)}, {v(vVa)}
        v_add_u32 {v(vVb)}, {s(sIT)}, {v(vVb)}""")
        setc("d")
        for i in range(32): k(f"v_mov_b32 {v(O0+i)}, 0")
        for i in range(8): k(f"v_mov_b32 {v(LS+i)}, 0")
        def p2():
            rdV(0); rdV(1); dec(vVa, vVb); k.wait(lg="all")
            for h in range(2):
                for u in range(2): blk(h, u, {}); pv(h, u); rs(h, u)
            setc("")
        loop("att_x2", p2, lambda: setc("o"))
        k("s_branch att_xb")
    cold.extend(q)
    for i in range(0, 8, 2):
        pk("mul", v(O0+i,2), v(O0+i,2), v(MX,2), bsel=0); pk("mul", v(O1+8+i,2), v(O1+8+i,2), v(MX,2), bsel=1)
    for q in range(2):
        cvt(PP + 4*q, O0 + 4*q, 2); cvt(PP + 4*q + 2, O1 + 8 + 4*q, 2)
    dual([f"buffer_store_dwordx4 {v(PP+4*q,4)}, {v(vT0)}, {s(ACT,4)}, {s(sT0)} offen offset:{q*256}" for q in range(2)], sPURE)

BX = 56
def gemmB(acc, va, cinit, nxt=None, bases=None, fq=None, nbg=1):
    N0 = P("bn", 12)
    def ld(st):
        k.vmem(f"buffer_load_dwordx4 {v(BX+4*st,4)}, {v(va[st//4])}, {s(ACT,4)}, {SK[st//4]} offen offset:{(st%4)*1024} sc1", ("x", st))
    for st in range(N0): ld(st)
    for st in range(16):
        k.wait(vm=("x", st))
        for fb in range(4):
            c = v(acc + 4*fb, 4); n = 4*st + fb
            k(f"{M16} {c}, {a(4*n,4)}, {v(BX+4*st,4)}, {c if (st or cinit) else 0}")
            if fb == 0:
                if st + N0 < 16: ld(st + N0)
                elif st >= 8: bg(nbg)
            if nxt and n: rd_fragB(A0 + 4*(n-1), nxt[(n-1)//4], (n-1) % 4, bases, "fill")
            if fq and fb: emit(fq, 1)
    if fq: emit(fq)
    if nxt: rd_fragB(A0 + 4*63, nxt[15], 3, bases, "fill")

def wo_w1_w2():
    VB, TMP, vAD = 120, 128, 144
    ACC, CS1, ONES, STA, RM, KK, G0 = 160, 176, 192, 196, 200, 204, 208
    k(f"v_add_u32 {v(vAD)}, {FO}, {v(vA16)}")
    bases = rb_bases(VB, [0, 1])
    flag(sFAo, sPURE)
    mark("a.pub")
    stop(3)
    k("s_barrier")
    qB(W2, [(g, 64*KB + g*4096) for g in range(8, 16)]); q3([3])
    bg(P("ow", 6))
    poll(vPA)
    mark("wo.poll")
    gemmB(RES, [vAD]*4, True, [g*4096 for g in range(16)], bases)
    mark("wo.gemm")
    assert len(bgq) <= 7
    pub_tile(RES, FX2, STX2, TMP)
    bg(99)
    k(f"v_add_u32 {v(vAD)}, {FX2}, {v(vA16)}\ns_mov_b32 {s(sT3)}, {STX2}\nv_and_b32 {v(vT0)}, 0x30, v0\nv_add_u32 {v(vT0)}, {CS1L}, {v(vT0)}")
    k.wait(lg="all")
    def cs(lo, hi):
        if not lo:
            for i in range(4): k(f"v_mov_b32 {v(ONES+i)}, 0x3f803f80")
        for m in range(lo, hi):
            c = v(CS1 + 4*(m % 4), 4)
            k(f"{M16} {c}, {a(4*m,4)}, {v(ONES,4)}, {c if m >= 4 else 0}")
        if lo:
            for i in range(4): k(f"ds_write_b128 {v(vT0)}, {v(CS1+4*i,4)} offset:{64*i}")
    l0_only(lambda: cs(0, 24))
    flag(sFBo, sPURE)
    mark("wo.pub")
    stop(4)
    k("s_barrier")
    q3([0, 1]); bg(P("x2w", 4))
    l0_only(lambda: cs(24, 64))
    for i in range(4): k.ds(f"ds_read_b128 {v(CS1+4*i,4)}, {v(vT0)} offset:{64*i}", "fill")
    poll(vPB16)
    mark("w1.poll")
    k.vmem(f"buffer_load_dwordx4 {v(STA,4)}, {v(vA16)}, {s(ACT,4)}, {s(sT3)} offen sc1", "st")
    with Rec() as fq:
        for i in (0, 1): k(f"v_add_f32 {v(STA+i)}, {v(STA+i)}, {v(STA+2+i)}")
        finish_stats(STA, RM, True)
        k(f"v_mul_f32 {v(STA)}, {v(RM)}, {v(RM)}\nv_fmaak_f32 {v(STA)}, {v(STA)}, {v(RM+2)}, {f2u(1e-5)}\nv_rsq_f32 {v(STA)}, {v(STA)}\n"
          f"v_mul_f32 {v(RM+2)}, {v(RM)}, {v(RM+1)}\nv_mul_f32 {v(STA)}, {v(RM)}, {v(STA)}")
        gelu_scale(STA, KK)
    gemmB(ACC, [vAD]*4, False, [64*KB + g*4096 for g in range(16)], bases, fq)
    mark("w1.gemm")
    k(f"s_mov_b32 {s(sT0)}, {FH_}")
    k.wait(lg="all")
    with Rec() as fq:
        gelu(ACC, 16, G0, CS1, RM, KK)
        cvt(TMP, ACC, 8)
    mix(fq, 24, 2)
    dual([f"buffer_store_dwordx4 {v(TMP+4*i,4)}, {v(vP16)}, {s(ACT,4)}, {s(sT0)} offen offset:{1024*i}" for i in range(2)], sPUREH)
    mark("w1.epi")
    k("s_barrier")
    qB(W4, [(g, W4S[g]) for g in range(11)]); q3([2])
    bg(P("ha", 4))
    for i in range(0, 16, 2): pk("fma", v(XB+i,2), v(RES+i,2), v(RM,2), v(RM+2,2), bsel=0, csel=0)
    T = G0
    k(f"s_lshl_b32 {s(sT0)}, {s(sTB16)}, 4\nv_and_b32 {v(T+3)}, 15, v0\nv_add_u32 {v(T+3)}, {s(sT0)}, {v(T+3)}\n"
      f"v_and_b32 {v(T+4)}, 0x300, {v(vL16)}\nv_add_u32 {v(T+4)}, {FH_}, {v(T+4)}\nv_mov_b32 {v(T+2)}, 0x80000000")
    for i, d in enumerate((-1, 1, -2, 2)):
        k(f"""v_add_u32 {v(vT0)}, {d}, {v(T+3)}
        v_cmp_gt_u32 vcc, 0x800, {v(vT0)}
        v_lshrrev_b32 {v(T)}, 4, {v(vT0)}
        v_and_b32 {v(vT0)}, 15, {v(vT0)}
        v_mad_u32_u24 {v(T)}, {v(T)}, {s(s2R)}, {v(T+4)}
        v_lshl_add_u32 {v(T)}, {v(vT0)}, 4, {v(T)}
        v_cndmask_b32 {v(vAD+i)}, {v(T+2)}, {v(T)}, vcc""")
    flag(sFHo, sPUREH)
    mark("w1.pub")
    stop(5)
    bg(P("hw", 6))
    poll(vPH)
    mark("w2.poll")
    gemmB(XB, [vAD+i for i in range(4)], True)
    mark("w2.gemm")
    assert len(bgq) <= 7
    pub_tile(XB, FX1, STX1, TMP)
    bg(99)
    for i in range(0, 16, 2): pk("add", v(RES+i,2), v(RES+i,2), v(XB+i,2))

def w3_w4():
    ACC, FR, BX0, BX1 = 56, 112, 168, A0 + 176
    STA, RM, vW, vAD, KK, VB = 156, 240, 140, 146, 148, 232
    CS = 112
    k(f"""v_lshrrev_b32 {v(vT0)}, 2, v0
    v_mul_u32_u24 {v(vT0)}, 224, {v(vT0)}
    v_and_b32 {v(vT1)}, 3, v0
    v_lshl_add_u32 {v(vT0)}, {v(vT1)}, 3, {v(vT0)}
    s_and_b32 {s(sT0)}, {s(sHP)}, 1
    s_lshl_b32 {s(sT1)}, {s(sT0)}, 5
    s_mul_i32 {s(sT0)}, {s(sT0)}, 192
    s_sub_u32 {s(sT0)}, 192, {s(sT0)}
    v_add_u32 {v(vW)}, {s(sT1)}, {v(vT0)}
    v_add_u32 {v(vW+1)}, {s(sT0)}, {v(vT0)}
    v_add_u32 {v(vW+2)}, {W3H}, {v(vW)}
    v_add_u32 {v(vW+3)}, {W3H}, {v(vW+1)}
    v_add_u32 {v(vAD)}, {FX1}, {v(vA3)}
    v_add_u32 {v(vAD+1)}, {FX1 + R2}, {v(vA3)}
    s_mov_b32 {s(sT3)}, {STX1 - FX1}""")
    bases = rb_bases(VB, [0, 1, 2])
    flag(sFBo, sPURE)
    mark("w2.pub")
    stop(6)
    k("s_barrier")
    fill(W4S, A0, bases)
    def rd3(dst, base, st, b, tag):
        for j in range(2):
            off = (st % 8)*7168 + j*3584 + (b*32 if b < 6 else 0)
            k.ds(f"ds_read_b64_tr_b16 {v(dst+2*j,2)}, {v(base + 2*(st//8) + (b == 6))} offset:{off}", tag)
    mark("w3.fill")
    poll(vPB32)
    mark("w3.poll")
    for t in range(2): k.vmem(f"buffer_load_dwordx4 {v(STA+4*t,4)}, {v(vAD+t)}, {s(ACT,4)}, {s(sT3)} offen sc1", "st")
    for st in range(16):
        for t, B in enumerate((BX0, BX1)):
            bgq.append(lambda st=st, t=t, B=B: k.vmem(f"buffer_load_dwordx4 {r(B+4*st,4)}, {v(vAD+t)}, {s(ACT,4)}, {SK[st//4]} offen offset:{(st%4)*1024} sc1", ("x", st)))
    bg(P("n3", 10))
    k.wait(lg="all")
    def colsum():
        for i in range(4): k(f"v_add_u32 {v(XB+i)}, {s(s3L)}, {v(vW+i)}\nv_mov_b32 {v(XB+4+i)}, 0x3f803f80")
        for i in range(28 + 5):
            if i < 28: rd3(FR + 4*(i % 6), XB, 4*(i//7), i % 7, ("c", i))
            m = i - 5
            if m >= 0:
                k.wait(lg=("c", m)); c = v(ACC + 4*(m % 7), 4)
                k(f"{M16} {c}, {v(XB+4,4)}, {v(FR+4*(m%6),4)}, {c if m >= 7 else 0}")
        k(f"s_mul_i32 {s(sT0)}, {s(sW)}, 448\ns_add_u32 {s(sT0)}, {s(sT0)}, {PART}\nv_and_b32 {v(vT1)}, 15, v0\n"
          f"v_lshl_add_u32 {v(vT1)}, {v(vT1)}, 2, {s(sT0)}")
        for b in range(7): k.ds(f"ds_write_b32 {v(vT1)}, {v(ACC+4*b)} offset:{b*64}")
        k.wait(lg="all")
    l0_only(colsum)
    k("s_barrier")
    l0_only(lambda: sum_partials(28, 448, CS3, FR))
    qB(W4, [(11 + g, W4S[g]) for g in range(11)])
    D = 5
    for n in range(D): rd3(FR + 4*n, vW, 0, n, ("w", n))
    with Rec() as fq:
        for t in range(2):
            for i in (0, 1): k(f"v_add_f32 {v(STA+4*t+i)}, {v(STA+4*t+i)}, {v(STA+4*t+2+i)}")
            finish_stats(STA + 4*t, RM + 4*t, True)
            gelu_scale(RM + 4*t, KK + 4*t)
        k(f"v_and_b32 {v(vT0)}, 0x30, v0\nv_add_u32 {v(vT0)}, {CS3}, {v(vT0)}")
    for n in range(112):
        st, b = divmod(n, 7)
        k.wait(vm=("x", st), lg=("w", min(n + 1, 111)) if n % 2 == 0 else None)
        for t, B in enumerate((BX0, BX1)):
            c = v(ACC + 28*t + 4*b, 4)
            k(f"{M16} {c}, {v(FR+4*(n%7),4)}, {r(B+4*st,4)}, {c if st else 0}")
            if t == 0 and n + D < 112: rd3(FR + 4*((n+D) % 7), vW, (n+D)//7, (n+D) % 7, ("w", n + D))
            if t == 1:
                if n % 2 and bgq: bg()
                elif n % 2: emit(fq, 2)
                else: emit(fq, 1)
    assert not fq and not bgq
    mark("w3.gemm")
    k(f"v_add_u32 {v(vAD)}, {R2}, {v(vA3)}")
    for b in range(7): k.ds(f"ds_read_b128 {v(CS+4*b,4)}, {v(vT0)} offset:{b*64}")
    k.wait(vm="all")
    barrier()
    mark("w3.bar")
    qB(W4, [(22 + g, W4C[g]) for g in range(28)])
    G0, PKD = 168, 196
    for t in range(2):
        A = ACC + 28*t
        with Rec() as fq:
            gelu(A, 28, G0, CS, RM + 4*t, KK + 4*t)
            cvt(PKD + 16*t, A, 14)
        mix(fq, 12, P("e0", 12) if t == 0 else P("e1", 8))
        va = vA3 if t == 0 else vAD
        dual([f"buffer_store_dwordx4 {v(PKD+16*t+4*p,4)}, {v(va)}, {s(ACT,4)}, {s(sH3p)} offen offset:{p*1024}" for p in range(3)] +
             [f"buffer_store_dwordx2 {v(PKD+16*t+12,2)}, {v(va)}, {s(ACT,4)}, {s(sH3s)} offen"], sPURE)
    mark("w3.epi")
    NR = 16
    RING, AR, BV, vH = 136, 200, 40, 240
    with Rec() as fq:
        fill(W4S[:5], A0 + 176, bases); fill(W4S[5:], BV, bases)
    nf = P("h3f", 56)
    f0 = fq[:nf]; mix(f0, 12, P("h3a", 4))
    for i in range(4): k(f"v_add_u32 {v(vH+i)}, {FH3 + i*16384}, {v(vA16)}")
    flag(sFAo, sPURE)
    mark("w3.pub")
    stop(7)
    mix(fq[nf:], 8, len(bgq))
    barrier()
    qB(W4, [(50 + g, W4S[g]) for g in range(6)]); bg(99)
    src = {}
    for g in range(16): src[g] = ("r", A0 + 16*g)
    for g in range(6): src[16+g] = ("r", BV + 16*g)
    for g in range(28): src[22+g] = ("l", W4C[g])
    for g in range(6): src[50+g] = ("l", W4S[g])
    regs = [g for g in range(56) if src[g][0] == "r"]
    lds = sorted((g for g in range(56) if src[g][0] == "l"), key=lambda g: src[g][1] >= 96*KB)
    order = []
    for i in range(56):
        order.append(regs.pop(0) if regs and (i < 2 or i % 5 in (1, 3) or not lds) else lds.pop(0))
    nlow = max(i for i, g in enumerate(order) if src[g][0] == "l" and src[g][1] < 96*KB) + 1
    assert sorted(order) == list(range(56)) and nlow <= 56 - NR
    mark("w4.fill")
    poll(vPA)
    mark("w4.poll")
    def ldx(i):
        g = order[i]
        k.vmem(f"buffer_load_dwordx4 {v(RING+4*(i%NR),4)}, {v(vH+g//16)}, {s(ACT,4)}, {SK[(g//4)%4]} offen offset:{(g%4)*1024} sc1", ("x", i))
    N0 = P("n4", 12)
    for i in range(N0): ldx(i)
    k("s_barrier")
    lf = [(i, fb) for i in range(56) if src[order[i]][0] == "l" for fb in range(4)]
    pos = {x: n for n, x in enumerate(lf)}
    nxt = 0; used = 0
    for i in range(56):
        kind, loc = src[order[i]]
        if i == nlow + 2: k("s_barrier"); qQ(0, 2)
        for fb in range(4):
            if kind == "l":
                n = pos[(i, fb)]; A = v(AR + 4*(n % 8), 4)
                assert n + 1 - fb % 2 < nxt
                k.wait(vm=("x", i), lg=("w", n + 1) if fb % 2 == 0 else None)
            else:
                k.wait(vm=("x", i)); A = r(loc + 4*fb, 4)
            c = v(RES + 4*fb, 4)
            k(f"{M16} {c}, {A}, {v(RING+4*(i%NR),4)}, {c}")
            if fb == 0:
                if i + N0 < 56: ldx(i + N0)
                elif (55 - i) % 2 or N0 < 12: bg()
            if nxt < len(lf) and nxt - used < 7:
                rd_fragB(AR + 4*(nxt % 8), src[order[lf[nxt][0]]][1], lf[nxt][1], bases, ("w", nxt)); nxt += 1
            if kind == "l": used += 1
    assert not bgq
    k.vm.clear(); k.vm.append("dma")
    mark("w4.gemm")

def final():
    k(f"""v_and_b32 v57, 15, v0
    v_lshrrev_b32 v58, 4, v0
    s_lshl_b32 {s(sT0)}, {s(sTB16)}, 14
    s_lshl_b32 {s(sT1)}, {s(sNT)}, 7
    s_add_u32 {s(sT0)}, {s(sT0)}, {s(sT1)}
    v_lshlrev_b32 v56, 10, v57
    v_lshl_add_u32 v56, v58, 3, v56""")
    cvt(64, RES, 8)
    for f in range(4): k(f"buffer_store_dwordx2 {v(64+2*f,2)}, v56, {s(XO,4)}, {s(sT0)} offen offset:{32*f}")

def main():
    prologue()
    k("layer:")
    k.vm.append("dma")
    n0 = nmark[0]
    x_pub()
    mark("x.pub")
    stop(1)
    qkv_att()
    wo_w1_w2()
    w3_w4()
    k(f"s_cmp_lg_u32 {s(sLAY)}, 0\ns_cbranch_scc1 done")
    k(f"s_mov_b32 {s(sLAY)}, 1\ns_add_u32 {s(FLG)}, {s(FLG)}, 0x10000\ns_addc_u32 {s(FLG+1)}, {s(FLG+1)}, 0\ns_add_u32 {s(ACT)}, {s(ACT)}, {R}\ns_addc_u32 {s(ACT+1)}, {s(ACT+1)}, 0")
    if PROF: k(f"v_mov_b32 {v(vPR2)}, {v(vPR)}")
    k("s_branch layer\ndone:")
    final()
    k("s_waitcnt vmcnt(0)")
    if TM:
        mark("end")
        if OPT.get("wb"): k("buffer_wbl2 sc1\ns_waitcnt vmcnt(0)")
        k("tm_l:\ns_sleep 4\ns_memrealtime s[94:95]\ns_waitcnt lgkmcnt(0)\ns_sub_u32 s94, s94, s92\ns_cmp_lt_u32 s94, 15000\ns_cbranch_scc1 tm_l")
    if PROF:
        mark("end")
        k(f"s_memrealtime {s(sPT,2)}\ns_waitcnt lgkmcnt(0)\nv_writelane_b32 {v(vPR)}, {s(sPT)}, 63")
        k(f"""s_add_u32 {s(DBG)}, {s(FLG)}, {PROF_OFF - 0x10000}
        s_addc_u32 {s(DBG+1)}, {s(FLG+1)}, 0
        s_mov_b32 {s(DBG+2)}, 0x100000
        s_lshl_b32 {s(sT0)}, s2, 2
        s_add_u32 {s(sT0)}, {s(sT0)}, {s(sW)}
        s_lshl_b32 {s(sT0)}, {s(sT0)}, 9
        v_lshlrev_b32 v56, 2, v0
        buffer_store_dword {v(vPR2)}, v56, {s(DBG,4)}, {s(sT0)} offen
        buffer_store_dword {v(vPR)}, v56, {s(DBG,4)}, {s(sT0)} offen offset:256""")
    k("bail:\ns_endpgm")
    for t in cold: k(t)
    body, nn = fix_hazards(k.L)
    ref = open(f"cdna_kernels/{NAME}.s.ref").read().split("\n")
    hd = [l for l in ref[:ref.index(f"{NAME}_kernel:") + 1]]
    hd = ["; @launch grid=(256,1,1) block=(256,1,1) lds=163840" if l.startswith("; @launch") else l for l in hd]
    tl = ref[ref.index('.section .rodata,"a"'):]
    tl = [l.replace("next_free_vgpr 256", "next_free_vgpr 512") for l in tl]
    out = hd + [("" if t.endswith(":") else "    ") + t for t in body] + tl
    open(sys.argv[1], "w").write("\n".join(out))
    if PROF: open(sys.argv[1] + ".marks", "w").write(" ".join(marks))
    print("instructions", len(body), "nops", nn)

main()
```

```python
import sys, math, struct
from asmlib import *

NAME = "interleave_layers__sliding_block__mixer_s_mlp__prompt"
OPT = dict(x.split("=") if "=" in x else (x, "1") for x in sys.argv[2:])
PROF = int(OPT.get("prof", 0)); STOP = int(OPT.get("stop", 99))
KB = 1024
FX, FO, FX2, FH_, FX1, FKV_, FH3 = 0, 16*KB, 32*KB, 48*KB, 64*KB, 80*KB, 112*KB
STX, STX2, STX1 = 168*KB, 169*KB, 170*KB
R = 172*KB; R2 = 2*R
ACT_OFF = 0x30000; PROF_OFF = 0x8000000; E_OFF = 0x20000
GB, GH, GA, GKV = 0, 2048, 4096, 5120
KVB = 110*KB; PART = 156*KB; CSQ = 158*KB; CS3 = 158*KB + 512; CS1L = 159*KB
W3A, W3H = 0, 100*KB
W3Q = [W3A, W3A + 28*KB, W3H, W3H + 28*KB]
W4S = [56*KB + g*4096 for g in range(11)]
W4C = [g*4096 for g in range(14)] + [W3H + g*4096 for g in range(14)]
NEG = 0xf1800000
def P(name, d): return int(OPT.get(name, d))
M32 = "v_mfma_f32_32x32x16_bf16"; M16 = "v_mfma_f32_16x16x32_bf16"
def f2u(x): return "0x%08x" % struct.unpack("<I", struct.pack("<f", x))[0]
LOG2E = 1.4426950408889634
C1 = -2*math.sqrt(2/math.pi)*LOG2E; C2 = C1*0.044715

ACT, FLG, WQ, WO, W1, W2, W3, W4, XO, DBG = 4, 8, 12, 16, 20, 24, 28, 32, 36, 40
(sW, sC, sHP, sNT, sTB32, sTB16, sLAY, sPURE, sPUREH, s4K, s8K, s12K, s32K, s2R, sOFF, sCNT,
 sT0, sT1, sOUT, _o1, sV, _v1, sXP, _x1, sW1K, sFBo, sFHo, sFAo, sFKVo, sKVo, sKVf, sNTL,
 sT2, sT3, sH3p, sH3s, sIT, sMT, sG0, sQA, sQB, sM1, sM2, s3L, s3G, sEDG) = range(44, 90)
sPT = 90
SK = [0, s(s4K), s(s8K), s(s12K)]
(vL, vA16, vP16, vA32, vA3, vST, vDB, vDQ) = range(0, 8)
vRB = [8, 9, 10, 11]; vWq = 12; vL16 = 13
vPB32, vPB16, vPA, vPH, vPKV = 14, 15, 16, 17, 18
vT0, vT1, vT2 = 19, 20, 21
vPR2, vPR = 22, 23
RES = 24; XB = 40; vD3 = 248
A0 = 256

k = Asm()
nmark = [0]; marks = []
TM = OPT.get("tm")
def mark(name):
    if OPT.get("cyc") and OPT["cyc"].split(":")[0] == name:
        L = k.lab("cy")
        if name not in ("first", "start", "xload", "init", "end"): k(f"s_cmp_lg_u32 {s(sLAY)}, {OPT['cyc'].split(':')[1]}\ns_cbranch_scc1 {L}")
        k(f"s_memtime s[96:97]\n{L}:\ns_waitcnt lgkmcnt(0)"); k.lg.clear()
    if TM and TM.split(":")[0] == name:
        L = k.lab("tm")
        if name not in ("first", "start", "xload", "init", "end"): k(f"s_cmp_lg_u32 {s(sLAY)}, {TM.split(':')[1]}\ns_cbranch_scc1 {L}")
        k(f"s_memrealtime s[92:93]\n{L}:\ns_waitcnt lgkmcnt(0)"); k.lg.clear()
    if not PROF or name == "first": return
    k(f"s_memtime {s(sPT,2)}\ns_waitcnt lgkmcnt(0)\nv_writelane_b32 {v(vPR)}, {s(sPT)}, {nmark[0]}")
    k.lg.clear(); marks.append(name); nmark[0] += 1

def srd(d, nbytes):
    k(f"s_mov_b32 {s(d+2)}, {nbytes}\ns_mov_b32 {s(d+3)}, 0x20000")

def barrier():
    k.wait(lg="all"); k("s_barrier")

def poll(va):
    L = k.lab("poll")
    k(f"s_mov_b32 {s(sCNT)}, 0x8000\n{L}:")
    k.vmem(f"buffer_load_dwordx2 {v(vT1,2)}, {v(va)}, {s(FLG,4)}, 0 offen sc1")
    k(f"s_sub_u32 {s(sCNT)}, {s(sCNT)}, 1\ns_cbranch_scc1 bail")
    k.wait(vm="all")
    k(f"v_cmp_ne_u64 vcc, {s(sV,2)}, {v(vT1,2)}\ns_cbranch_vccnz {L}")

cold = []
def dual(stores, spure):
    La, Lb = k.lab("sc"), k.lab("scb")
    k(f"s_cmp_eq_u32 {s(spure)}, 0\ns_cbranch_scc1 {La}")
    for t in stores: k.vmem(t, "pub")
    k(f"{Lb}:")
    cold.extend([f"{La}:"] + [t + " sc1" for t in stores] + [f"s_branch {Lb}"])

def flag(saddr, spure):
    k(f"s_add_u32 {s(sV)}, {s(sV)}, 1\nv_mov_b32 {v(vT2)}, {s(sV+1)}\nv_mov_b32 {v(vT1)}, {s(sV)}\ns_mov_b64 exec, 1")
    t = f"buffer_store_dwordx2 {v(vT1,2)}, off, {s(FLG,4)}, {s(saddr)}"
    k.wait(vm="pub")
    if spure is None: k.vmem(t + " sc1")
    else: dual([t], spure)
    k("s_mov_b64 exec, -1")

bgq = []
def bg(n=1):
    for _ in range(min(n, len(bgq))): bgq.pop(0)()

def qB(w, groups):
    for n, (g, lds) in enumerate(groups):
        def f(n=n, g=g, lds=lds):
            p = groups[n-1] if n else None
            if p and lds - p[1] == 4096: k(f"s_add_u32 m0, m0, {s(s4K)}")
            else: k(f"s_add_u32 m0, {s(sW1K)}, {lds}")
            if p and g - p[0] == 1: k(f"s_add_u32 {s(sOFF)}, {s(sOFF)}, {s(s32K)}")
            else: k(f"s_mov_b32 {s(sOFF)}, {g*32768}")
            k.vmem(f"buffer_load_dwordx4 {v(vDB)}, {s(w,4)}, {s(sOFF)} offen lds", "dma")
        bgq.append(f)

def qQ(lo, hi):
    for n in range(lo, hi):
        def f0(n=n):
            k(f"s_xor_b32 m0, {s(sQB)}, {n*4096}\ns_xor_b32 {s(sOFF)}, {s(sG0)}, {n}\ns_mul_i32 {s(sOFF)}, {s(sOFF)}, {64*3072}")
            k.vmem(f"buffer_load_dwordx4 {v(vDQ)}, {s(WQ,4)}, {s(sOFF)} offen lds", "dma")
        def f1(n=n):
            k(f"s_xor_b32 m0, {s(sQA)}, {n*8192}\ns_bitset1_b32 {s(sOFF)}, 10")
            k.vmem(f"buffer_load_dwordx4 {v(vDQ)}, {s(WQ,4)}, {s(sOFF)} offen lds", "dma")
        def f2():
            k.vmem(f"buffer_load_dwordx4 {v(vDQ)}, {s(WQ,4)}, {s(sOFF)} offen offset:1024 lds", "dma")
        bgq.extend([f0, f1, f2])

def q3(quads):
    for q in quads:
        for p in range(7):
            def f(q=q, p=p):
                if p == 0: k(f"s_add_u32 m0, {s(s3L)}, {W3Q[q]}\ns_add_u32 {s(sOFF)}, {s(s3G)}, {q*4*32*3584}")
                if p == 4: k(f"s_add_u32 m0, m0, {s(s4K)}\ns_add_u32 {s(sOFF)}, {s(sOFF)}, {s(s4K)}")
                k.vmem(f"buffer_load_dwordx4 {v(vD3+p)}, {s(W3,4)}, {s(sOFF)} offen offset:{(p%4)*1024} lds", "dma")
            bgq.append(f)

class Rec:
    def __enter__(self):
        self.n = len(k.L); self.q = []; self.g = len(k.lg); return self.q
    def __exit__(self, *a):
        self.q.extend(k.L[self.n:]); del k.L[self.n:]; del k.lg[self.g:]
def emit(q, n=999):
    for _ in range(min(n, len(q))):
        t = q.pop(0)
        if callable(t): t()
        elif t.startswith("ds_"): k.ds(t, "fill")
        else: k(t)

def rb_bases(vb, his):
    m = {0: vRB}
    for n, hi in enumerate(h for h in his if h):
        m[hi] = [vb + 4*n + f for f in range(4)]
        for f in range(4): k(f"v_add_u32 {v(m[hi][f])}, {hi*65536}, {v(vRB[f])}")
    return m

def rd_fragB(dst, lds, fb, bases, tag):
    hi = lds // 65536
    for j in range(2):
        k.ds(f"ds_read_b64_tr_b16 {r(dst+2*j,2)}, {v(bases[hi][fb])} offset:{lds%65536 + j*2048}", tag)

def fill(slots, dst, bases):
    for i in range(len(slots)*4): rd_fragB(dst + 4*i, slots[i//4], i % 4, bases, "fill")

def mix(q, per, nbg):
    while q or nbg > 0:
        if nbg > 0: bg(); nbg -= 1
        emit(q, per)

def pk(op, d, a_, b_, c_=None, bsel=None, csel=None):
    n = 3 if c_ is not None else 2
    t = f"v_pk_{op}_f32 {d}, {a_}, {b_}" + (f", {c_}" if c_ is not None else "")
    if bsel is not None:
        lo = [0]*n; hi = [1]*n; lo[1] = bsel; hi[1] = bsel
        if csel is not None: lo[2] = csel; hi[2] = csel
        t += f" op_sel:[{','.join(map(str,lo))}] op_sel_hi:[{','.join(map(str,hi))}]"
    k(t)

def cvt(d, src, n):
    for i in range(n): k(f"v_cvt_pk_bf16_f32 {v(d+i)}, {v(src+2*i)}, {v(src+2*i+1)}")

def finish_stats(sq, out, two_level):
    a_, b_ = v(sq), v(sq+1)
    k(f"v_permlane32_swap_b32 {a_}, {b_}\nv_add_f32 {a_}, {a_}, {b_}\nv_mov_b32 {b_}, {a_}")
    if two_level: k(f"v_permlane16_swap_b32 {a_}, {b_}\nv_add_f32 {a_}, {a_}, {b_}\nv_mov_b32 {b_}, {a_}")
    k(f"v_permlane32_swap_b32 {a_}, {b_}\nv_mul_f32 {v(out+1)}, {f2u(-1/512)}, {a_}\nv_mul_f32 {b_}, {f2u(1/512)}, {b_}\n"
      f"v_fma_f32 {b_}, -{v(out+1)}, {v(out+1)}, {b_}\nv_max_f32 {v(out+2)}, 0, {b_}\nv_add_f32 {b_}, {f2u(1e-5)}, {v(out+2)}\n"
      f"v_rsq_f32 {v(out)}, {b_}")

def gelu_scale(rr, kk):
    k(f"v_rcp_f32 {v(kk+2)}, {v(rr)}\nv_mul_f32 {v(kk+1)}, {f2u(C1)}, {v(rr)}\nv_mul_f32 {v(kk)}, {v(rr)}, {v(rr)}\n"
      f"v_mul_f32 {v(kk)}, {f2u(0.044715)}, {v(kk)}\nv_mul_f32 {v(kk)}, {v(kk)}, {v(kk+1)}")

def pub_tile(src, field, stf, tmp):
    k(f"s_mov_b32 {s(sT0)}, {field}\ns_mov_b32 {s(sT1)}, {stf}")
    cvt(tmp, src, 8)
    dual([f"buffer_store_dwordx4 {v(tmp+4*i,4)}, {v(vP16)}, {s(ACT,4)}, {s(sT0)} offen offset:{1024*i}" for i in range(2)], sPURE)
    S, Q = tmp + 8, tmp + 10
    pk("add", v(S,2), v(src,2), v(src+2,2)); pk("mul", v(Q,2), v(src,2), v(src,2))
    for i in range(1, 8):
        if i > 1: pk("add", v(S,2), v(S,2), v(src+2*i,2))
        pk("fma", v(Q,2), v(src+2*i,2), v(src+2*i,2), v(Q,2))
    k(f"v_add_f32 {v(S)}, {v(S)}, {v(S+1)}\nv_add_f32 {v(S+1)}, {v(Q)}, {v(Q+1)}\n"
      f"v_permlane32_swap_b32 {v(S)}, {v(S+1)}\nv_add_f32 {v(S)}, {v(S)}, {v(S+1)}\nv_mov_b32 {v(S+1)}, {v(S)}\n"
      f"v_permlane16_swap_b32 {v(S)}, {v(S+1)}\nv_add_f32 {v(S)}, {v(S)}, {v(S+1)}")
    dual([f"buffer_store_dword {v(S)}, {v(vST)}, {s(ACT,4)}, {s(sT1)} offen"], sPURE)

def gelu(y, n, tmp, cs, rm, kk):
    Pr = range(0, n, 2)
    for i in Pr: pk("fma", v(y+i,2), v(cs+i,2), v(rm,2), v(y+i,2), bsel=1)
    for i in Pr: pk("mul", v(tmp+i,2), v(y+i,2), v(y+i,2))
    for i in Pr: pk("fma", v(tmp+i,2), v(tmp+i,2), v(kk,2), v(kk,2), bsel=0, csel=1)
    for i in Pr: pk("mul", v(tmp+i,2), v(tmp+i,2), v(y+i,2))
    for i in range(n): k(f"v_exp_f32 {v(tmp+i)}, {v(tmp+i)}")
    for i in Pr: pk("fma", v(tmp+i,2), v(tmp+i,2), v(kk+2,2), v(kk+2,2), bsel=0, csel=0)
    for i in range(n): k(f"v_rcp_f32 {v(tmp+i)}, {v(tmp+i)}")
    for i in Pr: pk("mul", v(y+i,2), v(y+i,2), v(tmp+i,2))

def sum_partials(n16, stride, dst, tmp):
    k(f"v_min_u32 {v(vT0)}, {n16-1}, {v(vL)}\nv_lshlrev_b32 {v(vT0)}, 4, {v(vT0)}\nv_add_u32 {v(vT0)}, {PART}, {v(vT0)}")
    for i in range(4): k.ds(f"ds_read_b128 {v(tmp+4*i,4)}, {v(vT0)} offset:{i*stride}")
    k.wait(lg="all")
    for i in range(1, 4):
        for h in (0, 2): pk("add", v(tmp+h,2), v(tmp+h,2), v(tmp+4*i+h,2))
    k.ds(f"ds_write_b128 {v(vT0)}, {v(tmp,4)} offset:{dst-PART}")
    k.wait(lg="all")

def stop(n):
    if STOP == n: k("s_branch bail")

def prologue():
    k("s_cmp_ge_u32 s2, 0x100\ns_cbranch_scc1 bail")
    mark("first")
    for d, off in ((FLG, 80), (XO, 0), (WQ, 8), (DBG, 72), (WO, 16), (W1, 32), (W2, 40), (W3, 48), (W4, 56), (sOUT, 64)):
        k(f"s_load_dwordx2 {s(d,2)}, s[0:1], {off}")
    k(f"""v_lshrrev_b32 v1, 6, v0
    v_and_b32 v0, 63, v0
    v_readfirstlane_b32 {s(sW)}, v1
    s_and_b32 {s(sC)}, s2, 7
    s_lshr_b32 s3, s2, 3
    s_lshr_b32 {s(sHP)}, s2, 4
    s_lshr_b32 {s(sNT)}, s2, 5
    s_and_b32 {s(sMT)}, s3, 1
    s_lshl_b32 {s(sT0)}, {s(sC)}, 3
    s_lshl_b32 {s(sT1)}, {s(sMT)}, 2
    s_add_u32 {s(sT0)}, {s(sT0)}, {s(sT1)}
    s_add_u32 {s(sTB32)}, {s(sT0)}, {s(sW)}
    s_add_u32 {s(sIT)}, {s(sTB32)}, {s(sW)}
    s_and_b32 {s(sT1)}, {s(sTB32)}, -2
    s_sub_u32 {s(sIT)}, {s(sIT)}, 8
    s_cselect_b32 {s(sIT)}, {s(sT1)}, {s(sIT)}
    s_min_u32 {s(sNTL)}, {s(sTB32)}, 8
    s_lshl_b32 {s(sNTL)}, {s(sNTL)}, 15
    s_and_b32 {s(sG0)}, s3, 3
    s_lshl_b32 {s(sG0)}, {s(sG0)}, 1
    s_and_b32 {s(sT1)}, s2, 1
    s_or_b32 {s(sG0)}, {s(sG0)}, {s(sT1)}
    s_and_b32 {s(sT1)}, s3, 3
    s_lshl_b32 {s(sT1)}, {s(sT1)}, 2
    s_add_u32 {s(sT1)}, {s(sT1)}, {s(sW)}
    s_lshl_b32 {s(sT0)}, {s(sC)}, 4
    s_add_u32 {s(sTB16)}, {s(sT0)}, {s(sT1)}
    s_mov_b32 {s(s4K)}, 4096
    s_mov_b32 {s(s8K)}, 8192
    s_mov_b32 {s(s12K)}, 12288
    s_mov_b32 {s(s32K)}, 32768
    s_mov_b32 {s(s2R)}, {R2}
    s_lshl_b32 {s(sW1K)}, {s(sW)}, 10
    s_lshl_b32 {s(sQB)}, {s(sG0)}, 12
    s_add_u32 {s(sQB)}, {s(sQB)}, {s(sW1K)}
    s_lshl_b32 {s(sQA)}, {s(sQB)}, 1
    s_bitset1_b32 {s(sQB)}, 16
    v_lshlrev_b32 {v(vL16)}, 4, v0""")
    for d, n in ((FLG, 0x10100), (XO, 2097152), (WQ, 1572864), (DBG, 256), (WO, 524288), (W1, 524288), (W2, 524288),
                 (W3, 1835008), (W4, 1835008), (ACT, 128*R2)): srd(d, n)
    vXO = 56
    k(f"""v_and_b32 v57, 15, v0
    v_lshrrev_b32 v58, 4, v0
    s_lshl_b32 {s(sT0)}, {s(sTB16)}, 14
    s_lshl_b32 {s(sT1)}, {s(sNT)}, 7
    s_add_u32 {s(sT0)}, {s(sT0)}, {s(sT1)}
    v_lshlrev_b32 {v(vXO)}, 10, v57
    v_lshl_add_u32 {v(vXO)}, v58, 3, {v(vXO)}
    v_add_u32 {v(vXO)}, {s(sT0)}, {v(vXO)}
    v_lshrrev_b32 v59, 2, v0
    v_mul_u32_u24 v59, 3072, v59
    v_and_b32 v60, 3, v0
    v_lshl_add_u32 v59, v60, 4, v59
    s_mul_i32 {s(sT0)}, {s(sW)}, {16*3072}
    s_lshl_b32 {s(sT1)}, {s(sHP)}, 6
    s_add_u32 {s(sT0)}, {s(sT0)}, {s(sT1)}
    v_add_u32 {v(vDQ)}, {s(sT0)}, v59
    s_waitcnt lgkmcnt(0)
    s_add_u32 {s(ACT)}, {s(FLG)}, {ACT_OFF}
    s_addc_u32 {s(ACT+1)}, {s(FLG+1)}, 0""")
    mark("start")
    if PROF: k(f"s_memrealtime {s(sPT,2)}\ns_waitcnt lgkmcnt(0)\nv_writelane_b32 {v(vPR)}, {s(sPT)}, 62")
    for f in range(4):
        k.vmem(f"buffer_load_dwordx2 {v(64+2*f,2)}, {v(vXO)}, {s(XO,4)}, 0 offen offset:{32*f}", "x")
    k(f"s_load_dwordx2 {s(sV,2)}, {s(FLG,2)}, {E_OFF}")
    qQ(0, 2); bg(6)
    if P("pf", 1):
        k(f"""s_lshl_b32 {s(sT0)}, s2, 2
        s_add_u32 {s(sT0)}, {s(sT0)}, {s(sW)}
        s_lshl_b32 {s(sT1)}, {s(sT0)}, 9
        s_mul_i32 {s(sT0)}, {s(sT0)}, 1792
        v_lshlrev_b32 v61, 6, v0
        s_mov_b64 exec, 0xff""")
        for n, w in enumerate((WO, W1, W2)): k.vmem(f"buffer_load_dword {v(100+n)}, v61, {s(w,4)}, {s(sT1)} offen")
        k("s_mov_b64 exec, 0xfffffff")
        for n, w in enumerate((W3, W4)): k.vmem(f"buffer_load_dword {v(103+n)}, v61, {s(w,4)}, {s(sT0)} offen")
        k("s_mov_b64 exec, -1")
    k(f"""s_mul_i32 {s(sT0)}, {s(sTB16)}, {s(s2R)}
    v_add_u32 {v(vA16)}, {s(sT0)}, {v(vL16)}
    s_lshl_b32 {s(sT1)}, {s(sNT)}, 11
    v_add_u32 {v(vP16)}, {s(sT1)}, {v(vA16)}
    s_lshr_b32 {s(sT1)}, {s(sNT)}, 1
    s_lshl_b32 {s(sT1)}, {s(sT1)}, 8
    s_add_u32 {s(sT0)}, {s(sT0)}, {s(sT1)}
    s_and_b32 {s(sT1)}, {s(sNT)}, 1
    s_lshl_b32 {s(sT1)}, {s(sT1)}, 3
    s_add_u32 {s(sT0)}, {s(sT0)}, {s(sT1)}
    v_lshrrev_b32 v59, 5, v0
    v_lshlrev_b32 v60, 4, v57
    v_lshl_add_u32 v61, v59, 2, v60
    v_add_u32 {v(vST)}, {s(sT0)}, v61
    s_mul_i32 {s(sT0)}, {s(sTB32)}, {2*R2}
    v_add_u32 {v(vA3)}, {s(sT0)}, {v(vL16)}
    v_and_b32 v61, 1, v58
    v_mul_u32_u24 v62, {R2}, v61
    v_lshl_add_u32 v62, v59, 8, v62
    v_add3_u32 {v(vA32)}, v62, v60, {s(sT0)}
    s_lshr_b32 {s(sT1)}, {s(sHP)}, 3
    s_mul_i32 {s(sT1)}, {s(sT1)}, {s(s2R)}
    s_and_b32 {s(sT2)}, {s(sHP)}, 7
    s_lshl_b32 {s(sT2)}, {s(sT2)}, 12
    s_add_u32 {s(sT1)}, {s(sT1)}, {s(sT2)}
    s_add_u32 {s(sT1)}, {s(sT1)}, {FKV_}
    s_add_u32 {s(sKVo)}, {s(sT0)}, {s(sT1)}
    s_mul_i32 {s(sT0)}, {s(sIT)}, {2*R2}
    s_add_u32 {s(sKVf)}, {s(sT0)}, {s(sT1)}""")
    k(f"""v_lshrrev_b32 v62, 2, v57
    v_and_b32 v63, 3, v0
    v_lshl_add_u32 v72, v59, 2, v62
    v_lshl_add_u32 v73, v61, 2, v63
    v_lshlrev_b32 v73, 3, v73
    v_lshl_add_u32 {v(vWq)}, v72, 6, v73
    v_lshl_add_u32 v72, v61, 2, v62
    v_lshlrev_b32 v73, 10, v59
    v_lshl_add_u32 v73, v72, 7, v73
    v_lshl_add_u32 v73, v63, 3, v73
    v_lshrrev_b32 v72, 1, v72
    v_lshl_add_u32 {v(vRB[0])}, v72, 5, v73
    v_xor_b32 {v(vRB[1])}, 32, {v(vRB[0])}
    v_xor_b32 {v(vRB[2])}, 64, {v(vRB[0])}
    v_xor_b32 {v(vRB[3])}, 0x60, {v(vRB[0])}
    v_lshrrev_b32 v72, 3, v0
    v_and_b32 v73, 7, v0
    v_lshlrev_b32 v74, 1, v58
    v_xor_b32 v74, v74, v73
    v_lshlrev_b32 v74, 4, v74
    v_lshl_add_u32 v74, v72, 10, v74
    s_lshl_b32 {s(sT0)}, {s(sW)}, 13
    s_lshl_b32 {s(sT1)}, {s(sNT)}, 7
    s_add_u32 {s(sT0)}, {s(sT0)}, {s(sT1)}
    v_add_u32 {v(vDB)}, {s(sT0)}, v74""")
    k(f"""s_lshl_b32 {s(sT3)}, {s(sC)}, 13
    s_and_b32 {s(sT0)}, {s(sTB16)}, 15
    s_lshl_b32 {s(sT1)}, {s(sT0)}, 7
    s_add_u32 {s(sT1)}, {s(sT1)}, {s(sT3)}
    v_lshl_add_u32 {v(vPB16)}, v73, 3, {s(sT1)}
    s_lshl_b32 {s(sT2)}, {s(sNT)}, 3
    s_add_u32 {s(sFBo)}, {s(sT1)}, {s(sT2)}
    s_add_u32 {s(sFHo)}, {s(sFBo)}, {GH}
    s_lshr_b32 {s(sT0)}, {s(sT0)}, 1
    s_lshl_b32 {s(sT0)}, {s(sT0)}, 7
    s_add_u32 {s(sT0)}, {s(sT0)}, {s(sT3)}
    s_add_u32 {s(sT0)}, {s(sT0)}, {GA}
    v_lshl_add_u32 {v(vPA)}, v57, 3, {s(sT0)}
    s_and_b32 {s(sT0)}, {s(sTB32)}, 7
    s_lshl_b32 {s(sT1)}, {s(sT0)}, 8
    s_add_u32 {s(sT1)}, {s(sT1)}, {s(sT3)}
    v_and_b32 v74, 1, v72
    v_lshlrev_b32 v74, 7, v74
    v_lshl_add_u32 v74, v73, 3, v74
    v_add_u32 {v(vPB32)}, {s(sT1)}, v74
    s_lshl_b32 {s(sT1)}, {s(sT0)}, 7
    s_lshl_b32 {s(sT2)}, {s(sHP)}, 3
    s_add_u32 {s(sT1)}, {s(sT1)}, {s(sT2)}
    s_add_u32 {s(sT1)}, {s(sT1)}, {s(sT3)}
    s_add_u32 {s(sFAo)}, {s(sT1)}, {GA}
    s_lshl_b32 {s(sT2)}, {s(sHP)}, 7
    s_add_u32 {s(sT2)}, {s(sT2)}, {GKV}
    s_lshl_b32 {s(sT0)}, {s(sT0)}, 3
    s_add_u32 {s(sT0)}, {s(sT0)}, {s(sT2)}
    s_add_u32 {s(sFKVo)}, {s(sT0)}, {s(sT3)}
    s_lshr_b32 {s(sT0)}, {s(sIT)}, 3
    s_lshl_b32 {s(sT0)}, {s(sT0)}, 13
    s_add_u32 {s(sT2)}, {s(sT2)}, {s(sT0)}
    s_and_b32 {s(sT0)}, {s(sIT)}, 7
    s_lshl_b32 {s(sT0)}, {s(sT0)}, 3
    s_add_u32 {s(sT2)}, {s(sT2)}, {s(sT0)}
    v_and_b32 v74, 1, v0
    v_lshl_add_u32 {v(vPKV)}, v74, 3, {s(sT2)}
    v_min_u32 v74, 2, v72
    s_sub_u32 {s(sT0)}, {s(sTB16)}, 1
    v_add_u32 v74, {s(sT0)}, v74
    v_max_i32 v74, 0, v74
    v_min_i32 v74, 0x7f, v74
    v_lshrrev_b32 v75, 4, v74
    v_and_b32 v74, 15, v74
    v_lshlrev_b32 v75, 13, v75
    v_lshl_add_u32 v75, v74, 7, v75
    v_lshl_add_u32 v75, v73, 3, v75
    v_add_u32 {v(vPH)}, {GH}, v75
    s_and_b32 {s(sT0)}, {s(sHP)}, 1
    s_mul_i32 {s(sT1)}, {s(sHP)}, 7
    s_add_u32 {s(sT2)}, {s(sT1)}, {s(sT0)}
    s_lshl_b32 {s(sT2)}, {s(sT2)}, 9
    s_add_u32 {s(sH3p)}, {s(sT2)}, {FH3}
    s_mul_i32 {s(sT0)}, {s(sT0)}, {4096-8}
    s_add_u32 {s(sH3s)}, {s(sH3p)}, 3072
    s_sub_u32 {s(sH3s)}, {s(sH3s)}, {s(sT0)}
    s_mov_b32 {s(sLAY)}, 0
    s_mov_b32 {s(sPURE)}, 0
    s_mov_b32 {s(sPUREH)}, 0
    s_getreg_b32 {s(sT2)}, hwreg(HW_REG_XCC_ID, 0, 4)
    s_and_b32 {s(sT2)}, {s(sT2)}, 7
    s_lshl_b32 {s(sT2)}, {s(sT2)}, 3
    s_lshl_b64 {s(sXP,2)}, 32, {s(sT2)}
    s_add_u32 {s(sT0)}, {s(sTB16)}, 1
    s_and_b32 {s(sT0)}, {s(sT0)}, 14
    s_cselect_b32 {s(sEDG)}, 1, 0
    s_mul_i32 {s(s3L)}, {s(sW)}, 7168
    s_mul_i32 {s(s3G)}, {s(sW)}, {32*3584}
    s_mul_i32 {s(sT2)}, {s(sHP)}, 224
    s_add_u32 {s(s3G)}, {s(s3G)}, {s(sT2)}""")
    for q in range(7):
        k(f"v_add_u32 v72, {64*q}, v0\nv_mul_u32_u24 v72, 4682, v72\nv_lshrrev_b32 v72, 16, v72\n"
          f"v_mul_u32_u24 v72, 3360, v72\nv_add_u32 {v(vD3+q)}, v72, {v(vL16)}")
    if P("expb", 0):
        k(f"s_lshl_b32 {s(sT0)}, {s(sNT)}, 7\nv_subrev_u32 {v(vDB)}, {s(sT0)}, {v(vDB)}\ns_lshl_b32 {s(sT0)}, {s(sHP)}, 6\nv_subrev_u32 {v(vDQ)}, {s(sT0)}, {v(vDQ)}\n"
          f"s_and_b32 {s(sT0)}, {s(sHP)}, 12\ns_mul_i32 {s(sT0)}, {s(sT0)}, 224\ns_sub_u32 {s(s3G)}, {s(s3G)}, {s(sT0)}")
    if P("expa", 0):
        for w in (WQ, WO, W1, W2, W3, W4): k(f"s_mov_b32 {s(w+2)}, 0")
    k(f"s_waitcnt lgkmcnt(0)\ns_xor_b32 {s(sV+1)}, {s(sV+1)}, 0x5bd1e995")
    k.wait(vm="x")
    for i in range(8):
        k(f"v_lshlrev_b32 {v(RES+2*i)}, 16, {v(64+i)}\nv_and_b32 {v(RES+2*i+1)}, 0xffff0000, {v(64+i)}")
    mark("xload")
    k(f"s_mov_b32 {s(XO)}, {s(sOUT)}\ns_mov_b32 {s(XO+1)}, {s(sOUT+1)}")

def selector(d):
    k(f"v_lshrrev_b32 {v(vT0)}, 2, v0\nv_xor_b32 {v(vT0)}, {v(vT0)}, v0\nv_and_b32 {v(vT0)}, 4, {v(vT0)}\n"
      f"v_cmp_eq_u32 vcc, 0, {v(vT0)}\nv_mov_b32 {v(vT0)}, 0x3f803f80\nv_cndmask_b32 {v(d)}, 0, {v(vT0)}, vcc")
    for i in range(1, 4): k(f"v_mov_b32 {v(d+i)}, {v(d)}")

def l0_only(fn):
    L = k.lab("l0")
    k(f"s_cmp_lg_u32 {s(sLAY)}, 0\ns_cbranch_scc1 {L}")
    fn()
    k(f"{L}:")

def x_pub():
    pub_tile(RES, FX, STX, 56)
    qQ(2, 8); bg(P("xa", 3))
    flag(sFBo, sPURE)
    def count():
        L = k.lab("cnt")
        k(f"""s_barrier
        s_cmp_lg_u32 {s(sW)}, 0
        s_cbranch_scc1 {L}
        s_lshr_b64 {s(sT0,2)}, {s(sXP,2)}, 5
        v_mov_b32 v56, {s(sT0)}
        v_mov_b32 v57, {s(sT1)}
        s_lshl_b32 {s(sT2)}, {s(sC)}, 5
        s_mov_b64 exec, 1
        buffer_atomic_add_x2 v[56:57], off, {s(DBG,4)}, {s(sT2)} sc1
        s_mov_b64 exec, -1
        {L}:""")
    l0_only(count)
    bg(99)
    k(f"s_cmp_eq_u32 {s(sLAY)}, 0\ns_cselect_b32 {s(WQ+2)}, {s(WQ+2)}, 0")

def qkv_att():
    AK, AV, AQ = 56, 72, 88
    FR = 104; CS = 128; STA = 160; RM = 168; PKD = 208
    vWq2, vCS, vV0, vV1, vKW = 240, 241, 242, 243, 244
    SEL = 196; QF = 200
    N0 = P("qn", 12)
    k(f"v_add_u32 {v(vWq2)}, 0x10000, {v(vWq)}")
    selector(SEL)
    k(f"""v_lshrrev_b32 {v(vT1)}, 5, v0
    v_lshlrev_b32 {v(vCS)}, 4, {v(vT1)}
    v_add_u32 {v(vCS)}, {CSQ}, {v(vCS)}
    v_lshlrev_b32 {v(vT1)}, 6, {v(vT1)}
    v_xor_b32 {v(vV0)}, {v(vT1)}, {v(vL16)}
    v_xor_b32 {v(vV1)}, 0x80, {v(vV0)}
    s_lshl_b32 {s(sT0)}, {s(sW)}, 12
    s_add_u32 {s(sT0)}, {s(sT0)}, {KVB + 8*4096}
    v_add_u32 {v(vKW)}, {s(sT0)}, {v(vL16)}
    v_add_u32 {v(vKW+1)}, {s(sT0)}, {v(vV0)}
    v_add_u32 {v(vKW+2)}, {s(sT0)}, {v(vV1)}
    s_mov_b32 {s(sT1)}, {STX}""")
    S0, S1, CM, MD, O0, O1 = 56, 72, 104, 40, 160, 176
    KF, VF, PP, LS, MX = 208, 216, 224, 232, 120
    vK, vVa, vVb, vDB2 = 192, 193, 194, 195
    k(f"""v_bfe_u32 {v(vT0)}, v0, 4, 1
    v_bfe_u32 {v(vK)}, v0, 1, 1
    v_lshl_add_u32 {v(vT0)}, {v(vT0)}, 1, {v(vK)}
    v_lshrrev_b32 {v(vK)}, 5, v0
    v_xor_b32 {v(vK)}, {v(vK)}, {v(vT0)}
    v_lshlrev_b32 {v(vT0)}, 9, {v(vT0)}
    v_lshl_add_u32 {v(vT0)}, {v(vK)}, 6, {v(vT0)}
    v_bfe_u32 {v(vK)}, v0, 2, 2
    v_lshl_add_u32 {v(vT0)}, {v(vK)}, 4, {v(vT0)}
    v_and_b32 {v(vK)}, 1, v0
    v_lshl_add_u32 {v(vT0)}, {v(vK)}, 3, {v(vT0)}
    v_lshl_add_u32 {v(vT0)}, {s(sW)}, 12, {v(vT0)}
    v_add_u32 {v(vVa)}, {KVB + 8*4096 + 2048}, {v(vT0)}
    v_xor_b32 {v(vVb)}, 0x80, {v(vVa)}
    v_lshlrev_b32 {v(vT0)}, v0, -2
    v_lshrrev_b32 {v(vK)}, 3, v0
    v_and_b32 {v(vK)}, 4, {v(vK)}
    v_lshrrev_b32 {v(vT0)}, {v(vK)}, {v(vT0)}
    v_subrev_u32 {v(vK)}, {s(s4K)}, {v(vKW)}
    v_add_u32 {v(vDB2)}, {8*32768}, {v(vDB)}""")
    for i in range(16): k(f"v_bfe_i32 {v(MD+i)}, {v(vT0)}, {8*(i//4)+i%4}, 1\nv_and_b32 {v(MD+i)}, {NEG}, {v(MD+i)}")
    def rdq(dst, sp, b, tag):
        G = sp // 4
        for j in range(2):
            w_ = 2*((sp//2) % 2) + j
            off = G*8192 + w_*2048 + (b-1)*1024 if b else G*4096 + w_*1024
            k.ds(f"ds_read_b64_tr_b16 {v(dst+2*j,2)}, {v(vWq if b else vWq2)} offset:{off + (sp % 2)*512}", tag)
    def ldx(sp):
        k.vmem(f"buffer_load_dwordx4 {a(4*sp,4)}, {v(vA32)}, {s(ACT,4)}, {SK[sp//8]} offen offset:{(sp%8)*512} sc1", ("x", sp))
    mark("q.pre")
    poll(vPB32)
    mark("q.poll")
    for i in range(2): k.vmem(f"buffer_load_dwordx4 {v(STA+4*i,4)}, {v(vA32)}, {s(ACT,4)}, {s(sT1)} offen offset:{512*i} sc1", "st")
    for sp in range(N0): ldx(sp)
    def colsum():
        k(f"v_add_u32 {v(vT2)}, {s(sW1K)}, {v(vWq2)}\nv_lshl_add_u32 {v(vT1)}, {s(sW)}, 11, {v(vWq)}")
        for i in range(24 + 5):
            if i < 24:
                G, b = divmod(i, 3)
                for j in range(2):
                    off = G*8192 + (b-1)*1024 if b else G*4096
                    k.ds(f"ds_read_b64_tr_b16 {v(FR+4*(i%6)+2*j,2)}, {v(vT1 if b else vT2)} offset:{off + j*512}", ("c", i))
            m = i - 5
            if m >= 0:
                k.wait(lg=("c", m)); c = v(AK + 4*(m % 3), 4)
                k(f"{M16} {c}, {v(SEL,4)}, {v(FR+4*(m%6),4)}, {c if m >= 3 else 0}")
        k(f"s_mul_i32 {s(sT0)}, {s(sW)}, 384\ns_add_u32 {s(sT0)}, {s(sT0)}, {PART}\nv_and_b32 {v(vT1)}, 31, v0\n"
          f"v_lshl_add_u32 {v(vT1)}, {v(vT1)}, 2, {s(sT0)}")
        for b in range(3): k.ds(f"ds_write_b32 {v(vT1)}, {v(AK+4*b)} offset:{b*128}")
        k.wait(lg="all")
    l0_only(colsum)
    k("s_barrier")
    l0_only(lambda: sum_partials(24, 384, CSQ, CS))
    for sp in range(2):
        for b in (1, 2): rdq(FR + 8*sp + 4*(b-1), sp, b, ("w", sp))
    for b in (1, 2):
        for q in range(4): k.ds(f"ds_read_b128 {v(CS+16*(b-1)+4*q,4)}, {v(vCS)} offset:{b*128+q*32}", "cs")
    with Rec() as fq:
        for i in (0, 1): k(f"v_add_f32 {v(STA+i)}, {v(STA+i)}, {v(STA+2+i)}\nv_add_f32 {v(STA+4+i)}, {v(STA+4+i)}, {v(STA+6+i)}")
        for i in (0, 1): k(f"v_add_f32 {v(STA+i)}, {v(STA+i)}, {v(STA+4+i)}")
        finish_stats(STA, RM, False)
        k(f"v_mul_f32 {v(RM+1)}, {v(RM)}, {v(RM+1)}")
        for i in range(32): k(f"v_mul_f32 {v(CS+i)}, {v(RM+1)}, {v(CS+i)}")
    for sp in range(32):
        k.wait(vm=("x", sp), lg=("w", sp))
        for b, acc in ((1, AK), (2, AV)):
            k(f"{M32} {v(acc,16)}, {v(FR+8*(sp%3)+4*(b-1),4)}, {a(4*sp,4)}, {v(acc,16) if sp else 0}")
            if b == 1 and sp + N0 < 32: ldx(sp + N0)
            if sp + 2 < 32: rdq(FR + 8*((sp+2) % 3) + 4*(b-1), sp + 2, b, ("w", sp + 2))
            elif sp == 30: rdq(FR + 16 + 4*(b-1), b - 1, 0, ("q", b - 1))
            else: rdq(FR + 4*(b-1), b + 1, 0, ("q", b + 1))
            if sp >= 2: emit(fq, 1)
    assert not fq
    k("s_barrier")
    mark("q.kv")
    qB(WO, [(g, g*4096) for g in range(16)])
    with Rec() as f1:
        for i in range(32): k(f"v_fma_f32 {v(AK+i)}, {v(AK+i)}, {v(RM)}, {v(CS+i)}")
        cvt(PKD, AK, 16)
    f1 = [x for t in range(4) for x in f1[8*t:8*t+8] + f1[32+4*t:36+4*t] + [t]]
    with Rec() as f2:
        for q in range(4): k.ds(f"ds_read_b128 {v(CS+4*q,4)}, {v(vCS)} offset:{q*32}")
        k(f"""v_mul_f32 {v(RM)}, {f2u(0.25*LOG2E)}, {v(RM)}
        v_mul_f32 {v(RM+1)}, {f2u(0.25*LOG2E)}, {v(RM+1)}""")
        for i in range(16): k(f"v_mul_f32 {v(CS+i)}, {v(RM+1)}, {v(CS+i)}")
    f2.insert(6, lambda: k.wait(lg="fill"))
    def slot(n): return FR + 4*((n + 4) % 6)
    nd = 0
    for sp in range(32):
        k.wait(lg=("q", sp))
        k(f"{M32} {v(AQ,16)}, {v(slot(sp),4)}, {a(4*sp,4)}, {v(AQ,16) if sp else 0}")
        if sp + 4 < 32: rdq(slot(sp + 4), sp + 4, 0, ("q", sp + 4))
        if f1 and sp >= 1:
            for _ in range(4):
                t = f1.pop(0)
                if isinstance(t, int):
                    k.vmem(f"buffer_store_dwordx4 {v(PKD+4*t,4)}, {v((vL16, vL16, vV0, vV1)[t])}, {s(ACT,4)}, {s(sKVo)} offen offset:{t*1024} sc1", "pub")
                    k.ds(f"ds_write_b128 {v((vKW, vKW, vKW+1, vKW+2)[t])}, {v(PKD+4*t,4)} offset:{t*1024}", "kw")
                else: k(t)
        elif sp >= 1:
            if sp % 2 == 0: bg()
            else: emit(f2, 3)
    emit(f2)
    bg(2)
    for i in range(0, 16, 2): pk("fma", v(AQ+i,2), v(AQ+i,2), v(RM,2), v(CS+i,2), bsel=0)
    cvt(QF, AQ, 8)
    mark("q.q")
    stop(2)
    def qk(h, c): k(f"{M32} {v((S0,S1)[h],16)}, {v(KF+4*h,4)}, {v(QF+4*h,4)}, {v(c,16)}")
    def pv(h, u, first=False):
        O = v((O0, O1)[h], 16)
        k(f"{M32} {O}, {v(VF+4*u,4)}, {v(PP+4*u,4)}, {0 if first else O}")
    def rs(h, u, first=False): k(f"{M16} {v(LS+4*h,4)}, {v(SEL,4)}, {v(PP+4*u,4)}, {0 if first else v(LS+4*h,4)}")
    def rdV(u):
        for j, va in enumerate((vVa, vVb)): k.ds(f"ds_read_b64_tr_b16 {v(VF+4*u+2*j,2)}, {v(va)} offset:{u*256}", ("v", u))
    def rdK(h): k.ds(f"ds_read_b128 {v(KF+4*h,4)}, {v(vK)} offset:{h*1024}", ("k", h))
    def dec(*rs_):
        for x in rs_: k(f"v_subrev_u32 {v(x)}, {s(s4K)}, {v(x)}")
    def blk(h, u, at):
        S = (S0, S1)[h] + 8*u
        for i in range(12):
            if i in at: at[i]()
            if i < 8: k(f"v_exp_f32 {v(S+i)}, {v(S+i)}")
            else: cvt(PP + 4*u + i - 8, S + 2*(i-8), 1)
    qk(0, MD); rdV(0); rdV(1); bg(); qk(1, MD); dec(vVa, vVb)
    for i in range(16): k(f"v_mov_b32 {v(CM+i)}, 0")
    if P("kvf", 0) == 0: flag(sFKVo, None)
    blk(0, 0, {2: bg, 6: bg})
    if P("kvf", 0) == 1: flag(sFKVo, None)
    blk(0, 1, {2: lambda: (k.wait(lg="all"), pv(0, 0, True)), 5: lambda: rs(0, 0, True), 7: bg})
    blk(1, 0, {2: lambda: pv(0, 1), 5: lambda: rs(0, 1), 7: bg})
    bg(99)
    k(f"v_lshlrev_b32 {v(vT0)}, 5, v0")
    k.vmem(f"buffer_load_dwordx2 {v(MX,2)}, {v(vT0)}, {s(DBG,4)}, 0 offen sc1")
    mark("a.diag")
    poll(vPKV)
    mark("a.poll")
    k(f"s_lshl_b32 {s(sT0)}, {s(sW)}, 13\ns_add_u32 m0, {s(sT0)}, {KVB}\ns_mov_b32 {s(sOFF)}, {s(sKVf)}")
    for t in range(2):
        for i in range(4):
            def f(t=t, i=i):
                if t and not i: k(f"s_add_u32 m0, m0, {s(s4K)}\ns_add_u32 {s(sOFF)}, {s(sOFF)}, {2*R2}")
                k.vmem(f"buffer_load_dwordx4 {v(vL16)}, {s(ACT,4)}, {s(sOFF)} offen offset:{i*1024} sc1 lds", "kv")
            bgq.append(f)
    bg(P("ka", 3))
    k(f"v_readlane_b32 {s(sT0)}, {v(MX)}, {s(sC)}\nv_readlane_b32 {s(sT1)}, {v(MX+1)}, {s(sC)}\ns_barrier")
    with Rec() as fq: fill([g*4096 for g in range(16)], A0, {0: vRB})
    mix(fq, 8, 8)
    k(f"""s_cmp_eq_u64 {s(sT0,2)}, {s(sXP,2)}
    s_cselect_b32 {s(sPURE)}, 1, 0
    s_and_b32 {s(sPUREH)}, {s(sPURE)}, {s(sEDG)}
    s_add_u32 {s(sT0)}, s2, {s(sW)}
    s_cmp_lt_u32 {s(sT0)}, {s(sLAY)}
    s_cbranch_scc1 epoch
    epoch_b:
    s_mov_b32 m0, {s(sW1K)}
    s_mov_b32 {s(sOFF)}, 0""")
    cold.extend(f"""epoch:
    s_mov_b32 {s(sCNT)}, 0x8000
    epoch_l:
    buffer_load_dwordx2 {v(MX,2)}, {v(vT0)}, {s(DBG,4)}, 0 offen sc1
    s_sub_u32 {s(sCNT)}, {s(sCNT)}, 1
    s_cbranch_scc1 bail
    s_waitcnt vmcnt(0)
    v_sad_u8 {v(MX)}, {v(MX)}, 0, 0
    v_sad_u8 {v(MX)}, {v(MX+1)}, 0, {v(MX)}
    v_cmp_ne_u32 vcc, 32, {v(MX)}
    s_and_b32 {s(sT0)}, vcc_lo, 0xff
    s_cbranch_scc1 epoch_l
    s_add_u32 {s(sT0)}, {s(sV)}, 7
    v_mov_b32 {v(MX)}, {s(sT0)}
    s_mov_b32 {s(sT0)}, {E_OFF - 0x10000}
    s_mov_b64 exec, 1
    buffer_store_dword {v(MX)}, off, {s(FLG,4)}, {s(sT0)} sc1
    s_mov_b64 exec, -1
    s_branch epoch_b""".split("\n"))
    k.wait(vm="all")
    barrier()
    mark("a.kv")
    rdK(0); rdK(1); dec(vK)
    blk(1, 1, {0: lambda: pv(1, 0, True), 3: lambda: rs(1, 0, True), 6: lambda: (k.wait(lg="all"), qk(0, CM))})
    def dma(n):
        k.vmem(f"buffer_load_dwordx4 {v(vDB2 if n == 1 else vDB)}, {s(W2 if n == 2 else W1,4)}, {s(sOFF)} offen lds", "dma")
        if n < 2: k(f"s_add_u32 m0, m0, {s(s32K)}")
        else: k(f"s_sub_u32 m0, m0, {65536 - 4096}\ns_add_u32 {s(sOFF)}, {s(sOFF)}, {s(s32K)}")
    def setcm():
        k(f"s_cmp_eq_u32 {s(sOFF)}, {6*32768}\ns_cbranch_scc1 att_cm\natt_cmb:")
    cold.extend(["att_cm:"] + [f"v_xor_b32 {v(CM+i)}, {NEG}, {v(MD+i)}" for i in range(16)] + ["s_branch att_cmb"])
    k(f"s_cmp_eq_u32 {s(sNTL)}, 0\ns_cbranch_scc1 att_e\natt_l:")
    blk(0, 0, {0: lambda: (qk(1, CM), rdV(0), rdK(0)), 3: lambda: pv(1, 1), 6: lambda: rs(1, 1), 8: lambda: dma(0)})
    blk(0, 1, {0: lambda: (rdV(1), rdK(1)), 1: lambda: (k.wait(lg=("k", 0)), pv(0, 0)), 4: lambda: rs(0, 0), 6: setcm, 8: lambda: dma(1)})
    blk(1, 0, {0: lambda: qk(0, CM), 3: lambda: (k.wait(lg="all"), pv(0, 1)), 6: lambda: rs(0, 1)})
    blk(1, 1, {0: lambda: dec(vK, vVa), 1: lambda: pv(1, 0), 4: lambda: rs(1, 0), 6: lambda: dec(vVb), 8: lambda: dma(2)})
    k(f"s_cmp_lt_u32 {s(sOFF)}, {s(sNTL)}\ns_cbranch_scc1 att_l\natt_e:")
    pv(1, 1); rs(1, 1)
    k(f"s_cmp_lt_u32 {s(sOFF)}, {8*32768}\ns_cbranch_scc1 att_r\natt_rb:")
    with Rec() as q:
        k("att_r:")
        for n in range(3): dma(n)
        k(f"s_cmp_lt_u32 {s(sOFF)}, {8*32768}\ns_cbranch_scc1 att_r\ns_branch att_rb")
    cold.extend(q)
    mark("a.loop")
    k(f"""v_lshrrev_b32 {v(vT0)}, 5, v0
    v_lshl_add_u32 {v(vT0)}, {v(vT0)}, 8, {v(vA32)}
    s_lshl_b32 {s(sT0)}, {s(sHP)}, 10
    s_add_u32 {s(sT0)}, {s(sT0)}, {FO}""")
    pk("mul", v(MX,2), v(O0,2), 0)
    for i in range(2, 8, 2): pk("fma", v(MX,2), v(O0+i,2), 0, v(MX,2))
    for i in range(0, 8, 2): pk("fma", v(MX,2), v(O1+8+i,2), 0, v(MX,2))
    lo, hi = (127 - 48) << 23, (127 + 80) << 23
    k(f"""v_add_f32 {v(MX)}, {v(MX)}, {v(LS)}
    v_add_f32 {v(MX+1)}, {v(MX+1)}, {v(LS+4)}
    v_subrev_u32 {v(MX)}, {lo}, {v(MX)}
    v_subrev_u32 {v(MX+1)}, {lo}, {v(MX+1)}
    v_max_u32 {v(MX)}, {v(MX)}, {v(MX+1)}
    v_cmp_lt_u32 vcc, {hi - lo if not P("fb", 0) else 0}, {v(MX)}
    s_cbranch_vccnz att_x
    att_xb:
    v_rcp_f32 {v(MX)}, {v(LS)}
    v_rcp_f32 {v(MX+1)}, {v(LS+4)}""")
    C0, C1_ = 88, 104
    with Rec() as q:
        k("att_x:")
        def rk():
            rdK(0); rdK(1); dec(vK); k.wait(lg="all")
        def loop(name, body, last):
            k(f"v_mov_b32 {v(vK)}, {v(vKW)}\ns_mov_b32 {s(sIT)}, 0\n{name}:")
            rk(); qk(0, C0); qk(1, C1_)
            body()
            k(f"s_cmp_lg_u32 {s(sIT)}, {7*32768}\ns_cbranch_scc1 {name}_n")
            last()
            k(f"{name}_n:\ns_add_u32 {s(sIT)}, {s(sIT)}, {s(s32K)}\ns_cmp_le_u32 {s(sIT)}, {s(sNTL)}\ns_cbranch_scc1 {name}")
        def setc(mask):
            for i in range(16):
                if mask == "o": k(f"v_xor_b32 {v(C0+i)}, {NEG}, {v(MD+i)}")
                m = {"o": v(C0+i), "d": v(MD+i), "": 0}[mask]
                k(f"v_add_f32 {v(C1_+i)}, {m}, {v(MX+3)}\nv_add_f32 {v(C0+i)}, {m}, {v(MX+2)}")
        k(f"v_mov_b32 {v(MX)}, {NEG}\nv_mov_b32 {v(MX+1)}, {NEG}\nv_mov_b32 {v(MX+2)}, 0\nv_mov_b32 {v(MX+3)}, 0")
        setc("d")
        def p1():
            for h, S in enumerate((S0, S1)):
                for i in range(0, 16, 2): k(f"v_max3_f32 {v(MX+h)}, {v(MX+h)}, {v(S+i)}, {v(S+i+1)}")
            setc("")
        loop("att_x1", p1, lambda: setc("o"))
        k(f"""v_permlane32_swap_b32 {v(MX)}, {v(MX+1)}
        v_max_f32 {v(MX)}, {v(MX)}, {v(MX+1)}
        v_sub_f32 {v(MX+2)}, 0, {v(MX)}
        v_mov_b32 {v(MX+3)}, {v(MX+2)}
        v_permlane32_swap_b32 {v(MX+2)}, {v(MX+3)}
        s_lshr_b32 {s(sIT)}, {s(sNTL)}, 3
        s_add_u32 {s(sIT)}, {s(sIT)}, {s(s4K)}
        v_add_u32 {v(vVa)}, {s(sIT)}, {v(vVa)}
        v_add_u32 {v(vVb)}, {s(sIT)}, {v(vVb)}""")
        setc("d")
        for i in range(32): k(f"v_mov_b32 {v(O0+i)}, 0")
        for i in range(8): k(f"v_mov_b32 {v(LS+i)}, 0")
        def p2():
            rdV(0); rdV(1); dec(vVa, vVb); k.wait(lg="all")
            for h in range(2):
                for u in range(2): blk(h, u, {}); pv(h, u); rs(h, u)
            setc("")
        loop("att_x2", p2, lambda: setc("o"))
        k("s_branch att_xb")
    cold.extend(q)
    for i in range(0, 8, 2):
        pk("mul", v(O0+i,2), v(O0+i,2), v(MX,2), bsel=0); pk("mul", v(O1+8+i,2), v(O1+8+i,2), v(MX,2), bsel=1)
    for q in range(2):
        cvt(PP + 4*q, O0 + 4*q, 2); cvt(PP + 4*q + 2, O1 + 8 + 4*q, 2)
    dual([f"buffer_store_dwordx4 {v(PP+4*q,4)}, {v(vT0)}, {s(ACT,4)}, {s(sT0)} offen offset:{q*256}" for q in range(2)], sPURE)

BX = 56
def gemmB(acc, va, cinit, nxt=None, bases=None, fq=None, nbg=1):
    N0 = P("bn", 12)
    def ld(st):
        k.vmem(f"buffer_load_dwordx4 {v(BX+4*st,4)}, {v(va[st//4])}, {s(ACT,4)}, {SK[st//4]} offen offset:{(st%4)*1024} sc1", ("x", st))
    for st in range(N0): ld(st)
    for st in range(16):
        k.wait(vm=("x", st))
        for fb in range(4):
            c = v(acc + 4*fb, 4); n = 4*st + fb
            k(f"{M16} {c}, {a(4*n,4)}, {v(BX+4*st,4)}, {c if (st or cinit) else 0}")
            if fb == 0:
                if st + N0 < 16: ld(st + N0)
                elif st >= 8: bg(nbg)
            if nxt and n: rd_fragB(A0 + 4*(n-1), nxt[(n-1)//4], (n-1) % 4, bases, "fill")
            if fq and fb: emit(fq, 1)
    if fq: emit(fq)
    if nxt: rd_fragB(A0 + 4*63, nxt[15], 3, bases, "fill")

def wo_w1_w2():
    VB, TMP, vAD = 120, 128, 144
    ACC, CS1, ONES, STA, RM, KK, G0 = 160, 176, 192, 196, 200, 204, 208
    k(f"v_add_u32 {v(vAD)}, {FO}, {v(vA16)}")
    bases = rb_bases(VB, [0, 1])
    flag(sFAo, sPURE)
    mark("a.pub")
    stop(3)
    k("s_barrier")
    qB(W2, [(g, 64*KB + g*4096) for g in range(8, 16)]); q3([3])
    bg(P("ow", 6))
    poll(vPA)
    mark("wo.poll")
    gemmB(RES, [vAD]*4, True, [g*4096 for g in range(16)], bases)
    mark("wo.gemm")
    assert len(bgq) <= 7
    pub_tile(RES, FX2, STX2, TMP)
    bg(99)
    k(f"v_add_u32 {v(vAD)}, {FX2}, {v(vA16)}\ns_mov_b32 {s(sT3)}, {STX2}\nv_and_b32 {v(vT0)}, 0x30, v0\nv_add_u32 {v(vT0)}, {CS1L}, {v(vT0)}")
    k.wait(lg="all")
    def cs(lo, hi):
        if not lo:
            for i in range(4): k(f"v_mov_b32 {v(ONES+i)}, 0x3f803f80")
        for m in range(lo, hi):
            c = v(CS1 + 4*(m % 4), 4)
            k(f"{M16} {c}, {a(4*m,4)}, {v(ONES,4)}, {c if m >= 4 else 0}")
        if lo:
            for i in range(4): k(f"ds_write_b128 {v(vT0)}, {v(CS1+4*i,4)} offset:{64*i}")
    l0_only(lambda: cs(0, 24))
    flag(sFBo, sPURE)
    mark("wo.pub")
    stop(4)
    k("s_barrier")
    q3([0, 1]); bg(P("x2w", 4))
    l0_only(lambda: cs(24, 64))
    for i in range(4): k.ds(f"ds_read_b128 {v(CS1+4*i,4)}, {v(vT0)} offset:{64*i}", "fill")
    poll(vPB16)
    mark("w1.poll")
    k.vmem(f"buffer_load_dwordx4 {v(STA,4)}, {v(vA16)}, {s(ACT,4)}, {s(sT3)} offen sc1", "st")
    with Rec() as fq:
        for i in (0, 1): k(f"v_add_f32 {v(STA+i)}, {v(STA+i)}, {v(STA+2+i)}")
        finish_stats(STA, RM, True)
        k(f"v_mul_f32 {v(STA)}, {v(RM)}, {v(RM)}\nv_fmaak_f32 {v(STA)}, {v(STA)}, {v(RM+2)}, {f2u(1e-5)}\nv_rsq_f32 {v(STA)}, {v(STA)}\n"
          f"v_mul_f32 {v(RM+2)}, {v(RM)}, {v(RM+1)}\nv_mul_f32 {v(STA)}, {v(RM)}, {v(STA)}")
        gelu_scale(STA, KK)
    gemmB(ACC, [vAD]*4, False, [64*KB + g*4096 for g in range(16)], bases, fq)
    mark("w1.gemm")
    k(f"s_mov_b32 {s(sT0)}, {FH_}")
    k.wait(lg="all")
    with Rec() as fq:
        gelu(ACC, 16, G0, CS1, RM, KK)
        cvt(TMP, ACC, 8)
    mix(fq, 24, 2)
    dual([f"buffer_store_dwordx4 {v(TMP+4*i,4)}, {v(vP16)}, {s(ACT,4)}, {s(sT0)} offen offset:{1024*i}" for i in range(2)], sPUREH)
    mark("w1.epi")
    k("s_barrier")
    qB(W4, [(g, W4S[g]) for g in range(11)]); q3([2])
    bg(P("ha", 4))
    for i in range(0, 16, 2): pk("fma", v(XB+i,2), v(RES+i,2), v(RM,2), v(RM+2,2), bsel=0, csel=0)
    T = G0
    k(f"s_lshl_b32 {s(sT0)}, {s(sTB16)}, 4\nv_and_b32 {v(T+3)}, 15, v0\nv_add_u32 {v(T+3)}, {s(sT0)}, {v(T+3)}\n"
      f"v_and_b32 {v(T+4)}, 0x300, {v(vL16)}\nv_add_u32 {v(T+4)}, {FH_}, {v(T+4)}\nv_mov_b32 {v(T+2)}, 0x80000000")
    for i, d in enumerate((-1, 1, -2, 2)):
        k(f"""v_add_u32 {v(vT0)}, {d}, {v(T+3)}
        v_cmp_gt_u32 vcc, 0x800, {v(vT0)}
        v_lshrrev_b32 {v(T)}, 4, {v(vT0)}
        v_and_b32 {v(vT0)}, 15, {v(vT0)}
        v_mad_u32_u24 {v(T)}, {v(T)}, {s(s2R)}, {v(T+4)}
        v_lshl_add_u32 {v(T)}, {v(vT0)}, 4, {v(T)}
        v_cndmask_b32 {v(vAD+i)}, {v(T+2)}, {v(T)}, vcc""")
    flag(sFHo, sPUREH)
    mark("w1.pub")
    stop(5)
    bg(P("hw", 6))
    poll(vPH)
    mark("w2.poll")
    gemmB(XB, [vAD+i for i in range(4)], True)
    mark("w2.gemm")
    assert len(bgq) <= 7
    pub_tile(XB, FX1, STX1, TMP)
    bg(99)
    for i in range(0, 16, 2): pk("add", v(RES+i,2), v(RES+i,2), v(XB+i,2))

def w3_w4():
    ACC, FR, BX0, BX1 = 56, 112, 168, A0 + 176
    STA, RM, vW, vAD, KK, VB = 156, 240, 140, 146, 148, 232
    CS = 112
    k(f"""v_lshrrev_b32 {v(vT0)}, 2, v0
    v_mul_u32_u24 {v(vT0)}, 224, {v(vT0)}
    v_and_b32 {v(vT1)}, 3, v0
    v_lshl_add_u32 {v(vT0)}, {v(vT1)}, 3, {v(vT0)}
    s_and_b32 {s(sT0)}, {s(sHP)}, 1
    s_lshl_b32 {s(sT1)}, {s(sT0)}, 5
    s_mul_i32 {s(sT0)}, {s(sT0)}, 192
    s_sub_u32 {s(sT0)}, 192, {s(sT0)}
    v_add_u32 {v(vW)}, {s(sT1)}, {v(vT0)}
    v_add_u32 {v(vW+1)}, {s(sT0)}, {v(vT0)}
    v_add_u32 {v(vW+2)}, {W3H}, {v(vW)}
    v_add_u32 {v(vW+3)}, {W3H}, {v(vW+1)}
    v_add_u32 {v(vAD)}, {FX1}, {v(vA3)}
    v_add_u32 {v(vAD+1)}, {FX1 + R2}, {v(vA3)}
    s_mov_b32 {s(sT3)}, {STX1 - FX1}""")
    bases = rb_bases(VB, [0, 1, 2])
    flag(sFBo, sPURE)
    mark("w2.pub")
    stop(6)
    k("s_barrier")
    fill(W4S, A0, bases)
    def rd3(dst, base, st, b, tag):
        for j in range(2):
            off = (st % 8)*7168 + j*3584 + (b*32 if b < 6 else 0)
            k.ds(f"ds_read_b64_tr_b16 {v(dst+2*j,2)}, {v(base + 2*(st//8) + (b == 6))} offset:{off}", tag)
    mark("w3.fill")
    poll(vPB32)
    mark("w3.poll")
    for t in range(2): k.vmem(f"buffer_load_dwordx4 {v(STA+4*t,4)}, {v(vAD+t)}, {s(ACT,4)}, {s(sT3)} offen sc1", "st")
    for st in range(16):
        for t, B in enumerate((BX0, BX1)):
            bgq.append(lambda st=st, t=t, B=B: k.vmem(f"buffer_load_dwordx4 {r(B+4*st,4)}, {v(vAD+t)}, {s(ACT,4)}, {SK[st//4]} offen offset:{(st%4)*1024} sc1", ("x", st)))
    bg(P("n3", 10))
    k.wait(lg="all")
    def colsum():
        for i in range(4): k(f"v_add_u32 {v(XB+i)}, {s(s3L)}, {v(vW+i)}\nv_mov_b32 {v(XB+4+i)}, 0x3f803f80")
        for i in range(28 + 5):
            if i < 28: rd3(FR + 4*(i % 6), XB, 4*(i//7), i % 7, ("c", i))
            m = i - 5
            if m >= 0:
                k.wait(lg=("c", m)); c = v(ACC + 4*(m % 7), 4)
                k(f"{M16} {c}, {v(XB+4,4)}, {v(FR+4*(m%6),4)}, {c if m >= 7 else 0}")
        k(f"s_mul_i32 {s(sT0)}, {s(sW)}, 448\ns_add_u32 {s(sT0)}, {s(sT0)}, {PART}\nv_and_b32 {v(vT1)}, 15, v0\n"
          f"v_lshl_add_u32 {v(vT1)}, {v(vT1)}, 2, {s(sT0)}")
        for b in range(7): k.ds(f"ds_write_b32 {v(vT1)}, {v(ACC+4*b)} offset:{b*64}")
        k.wait(lg="all")
    l0_only(colsum)
    k("s_barrier")
    l0_only(lambda: sum_partials(28, 448, CS3, FR))
    qB(W4, [(11 + g, W4S[g]) for g in range(11)])
    D = 5
    for n in range(D): rd3(FR + 4*n, vW, 0, n, ("w", n))
    with Rec() as fq:
        for t in range(2):
            for i in (0, 1): k(f"v_add_f32 {v(STA+4*t+i)}, {v(STA+4*t+i)}, {v(STA+4*t+2+i)}")
            finish_stats(STA + 4*t, RM + 4*t, True)
            gelu_scale(RM + 4*t, KK + 4*t)
        k(f"v_and_b32 {v(vT0)}, 0x30, v0\nv_add_u32 {v(vT0)}, {CS3}, {v(vT0)}")
    for n in range(112):
        st, b = divmod(n, 7)
        k.wait(vm=("x", st), lg=("w", min(n + 1, 111)) if n % 2 == 0 else None)
        for t, B in enumerate((BX0, BX1)):
            c = v(ACC + 28*t + 4*b, 4)
            k(f"{M16} {c}, {v(FR+4*(n%7),4)}, {r(B+4*st,4)}, {c if st else 0}")
            if t == 0 and n + D < 112: rd3(FR + 4*((n+D) % 7), vW, (n+D)//7, (n+D) % 7, ("w", n + D))
            if t == 1:
                if n % 2 and bgq: bg()
                elif n % 2: emit(fq, 2)
                else: emit(fq, 1)
    assert not fq and not bgq
    mark("w3.gemm")
    k(f"v_add_u32 {v(vAD)}, {R2}, {v(vA3)}")
    for b in range(7): k.ds(f"ds_read_b128 {v(CS+4*b,4)}, {v(vT0)} offset:{b*64}")
    k.wait(vm="all")
    barrier()
    mark("w3.bar")
    qB(W4, [(22 + g, W4C[g]) for g in range(28)])
    G0, PKD = 168, 196
    for t in range(2):
        A = ACC + 28*t
        with Rec() as fq:
            gelu(A, 28, G0, CS, RM + 4*t, KK + 4*t)
            cvt(PKD + 16*t, A, 14)
        mix(fq, 12, P("e0", 12) if t == 0 else P("e1", 8))
        va = vA3 if t == 0 else vAD
        dual([f"buffer_store_dwordx4 {v(PKD+16*t+4*p,4)}, {v(va)}, {s(ACT,4)}, {s(sH3p)} offen offset:{p*1024}" for p in range(3)] +
             [f"buffer_store_dwordx2 {v(PKD+16*t+12,2)}, {v(va)}, {s(ACT,4)}, {s(sH3s)} offen"], sPURE)
    mark("w3.epi")
    NR = 16
    RING, AR, BV, vH = 136, 200, 40, 240
    with Rec() as fq:
        fill(W4S[:5], A0 + 176, bases); fill(W4S[5:], BV, bases)
    nf = P("h3f", 56)
    f0 = fq[:nf]; mix(f0, 12, P("h3a", 4))
    for i in range(4): k(f"v_add_u32 {v(vH+i)}, {FH3 + i*16384}, {v(vA16)}")
    flag(sFAo, sPURE)
    mark("w3.pub")
    stop(7)
    mix(fq[nf:], 8, len(bgq))
    barrier()
    qB(W4, [(50 + g, W4S[g]) for g in range(6)]); bg(99)
    src = {}
    for g in range(16): src[g] = ("r", A0 + 16*g)
    for g in range(6): src[16+g] = ("r", BV + 16*g)
    for g in range(28): src[22+g] = ("l", W4C[g])
    for g in range(6): src[50+g] = ("l", W4S[g])
    regs = [g for g in range(56) if src[g][0] == "r"]
    lds = sorted((g for g in range(56) if src[g][0] == "l"), key=lambda g: src[g][1] >= 96*KB)
    order = []
    for i in range(56):
        order.append(regs.pop(0) if regs and (i < 2 or i % 5 in (1, 3) or not lds) else lds.pop(0))
    nlow = max(i for i, g in enumerate(order) if src[g][0] == "l" and src[g][1] < 96*KB) + 1
    assert sorted(order) == list(range(56)) and nlow <= 56 - NR
    mark("w4.fill")
    poll(vPA)
    mark("w4.poll")
    def ldx(i):
        g = order[i]
        k.vmem(f"buffer_load_dwordx4 {v(RING+4*(i%NR),4)}, {v(vH+g//16)}, {s(ACT,4)}, {SK[(g//4)%4]} offen offset:{(g%4)*1024} sc1", ("x", i))
    N0 = P("n4", 12)
    for i in range(N0): ldx(i)
    k("s_barrier")
    lf = [(i, fb) for i in range(56) if src[order[i]][0] == "l" for fb in range(4)]
    pos = {x: n for n, x in enumerate(lf)}
    nxt = 0; used = 0
    for i in range(56):
        kind, loc = src[order[i]]
        if i == nlow + 2: k("s_barrier"); qQ(0, 2)
        for fb in range(4):
            if kind == "l":
                n = pos[(i, fb)]; A = v(AR + 4*(n % 8), 4)
                assert n + 1 - fb % 2 < nxt
                k.wait(vm=("x", i), lg=("w", n + 1) if fb % 2 == 0 else None)
            else:
                k.wait(vm=("x", i)); A = r(loc + 4*fb, 4)
            c = v(RES + 4*fb, 4)
            k(f"{M16} {c}, {A}, {v(RING+4*(i%NR),4)}, {c}")
            if fb == 0:
                if i + N0 < 56: ldx(i + N0)
                elif (55 - i) % 2 or N0 < 12: bg()
            if nxt < len(lf) and nxt - used < 7:
                rd_fragB(AR + 4*(nxt % 8), src[order[lf[nxt][0]]][1], lf[nxt][1], bases, ("w", nxt)); nxt += 1
            if kind == "l": used += 1
    assert not bgq
    k.vm.clear(); k.vm.append("dma")
    mark("w4.gemm")

def final():
    k(f"""v_and_b32 v57, 15, v0
    v_lshrrev_b32 v58, 4, v0
    s_lshl_b32 {s(sT0)}, {s(sTB16)}, 14
    s_lshl_b32 {s(sT1)}, {s(sNT)}, 7
    s_add_u32 {s(sT0)}, {s(sT0)}, {s(sT1)}
    v_lshlrev_b32 v56, 10, v57
    v_lshl_add_u32 v56, v58, 3, v56""")
    cvt(64, RES, 8)
    for f in range(4): k(f"buffer_store_dwordx2 {v(64+2*f,2)}, v56, {s(XO,4)}, {s(sT0)} offen offset:{32*f}")

def main():
    prologue()
    k("layer:")
    k.vm.append("dma")
    n0 = nmark[0]
    x_pub()
    mark("x.pub")
    stop(1)
    qkv_att()
    wo_w1_w2()
    w3_w4()
    k(f"s_cmp_lg_u32 {s(sLAY)}, 0\ns_cbranch_scc1 done")
    k(f"s_mov_b32 {s(sLAY)}, 1\ns_add_u32 {s(FLG)}, {s(FLG)}, 0x10000\ns_addc_u32 {s(FLG+1)}, {s(FLG+1)}, 0\ns_add_u32 {s(ACT)}, {s(ACT)}, {R}\ns_addc_u32 {s(ACT+1)}, {s(ACT+1)}, 0")
    if PROF: k(f"v_mov_b32 {v(vPR2)}, {v(vPR)}")
    k("s_branch layer\ndone:")
    final()
    k("s_waitcnt vmcnt(0)")
    if OPT.get("cyc"):
        k("s_memtime s[94:95]\ns_memrealtime s[92:93]\ns_waitcnt lgkmcnt(0)\ns_sub_u32 s94, s94, s96\ns_lshr_b32 s96, s94, 3")
        k("cy_l:\ns_sleep 4\ns_memrealtime s[94:95]\ns_waitcnt lgkmcnt(0)\ns_sub_u32 s94, s94, s92\ns_cmp_lt_u32 s94, s96\ns_cbranch_scc1 cy_l")
    if TM:
        mark("end")
        if OPT.get("wb"): k("buffer_wbl2 sc1\ns_waitcnt vmcnt(0)")
        k("tm_l:\ns_sleep 4\ns_memrealtime s[94:95]\ns_waitcnt lgkmcnt(0)\ns_sub_u32 s94, s94, s92\ns_cmp_lt_u32 s94, 15000\ns_cbranch_scc1 tm_l")
    if PROF:
        mark("end")
        k(f"s_memrealtime {s(sPT,2)}\ns_waitcnt lgkmcnt(0)\nv_writelane_b32 {v(vPR)}, {s(sPT)}, 63")
        k(f"""s_add_u32 {s(DBG)}, {s(FLG)}, {PROF_OFF - 0x10000}
        s_addc_u32 {s(DBG+1)}, {s(FLG+1)}, 0
        s_mov_b32 {s(DBG+2)}, 0x100000
        s_lshl_b32 {s(sT0)}, s2, 2
        s_add_u32 {s(sT0)}, {s(sT0)}, {s(sW)}
        s_lshl_b32 {s(sT0)}, {s(sT0)}, 9
        v_lshlrev_b32 v56, 2, v0
        buffer_store_dword {v(vPR2)}, v56, {s(DBG,4)}, {s(sT0)} offen
        buffer_store_dword {v(vPR)}, v56, {s(DBG,4)}, {s(sT0)} offen offset:256""")
    k("bail:\ns_endpgm")
    for t in cold: k(t)
    body, nn = fix_hazards(k.L)
    ref = open(f"cdna_kernels/{NAME}.s.ref").read().split("\n")
    hd = [l for l in ref[:ref.index(f"{NAME}_kernel:") + 1]]
    hd = ["; @launch grid=(256,1,1) block=(256,1,1) lds=163840" if l.startswith("; @launch") else l for l in hd]
    tl = ref[ref.index('.section .rodata,"a"'):]
    tl = [l.replace("next_free_vgpr 256", "next_free_vgpr 512") for l in tl]
    out = hd + [("" if t.endswith(":") else "    ") + t for t in body] + tl
    open(sys.argv[1], "w").write("\n".join(out))
    if PROF: open(sys.argv[1] + ".marks", "w").write(" ".join(marks))
    print("instructions", len(body), "nops", nn)

main()
```

```python
import sys, math, struct
from asmlib import *

NAME = "interleave_layers__sliding_block__mixer_s_mlp__prompt"
OPT = dict(x.split("=") if "=" in x else (x, "1") for x in sys.argv[2:])
PROF = int(OPT.get("prof", 0)); STOP = int(OPT.get("stop", 99))
KB = 1024
FX, FO, FX2, FH_, FX1, FKV_, FH3 = 0, 17*KB, 0, 73*KB, 0, 105*KB, 17*KB
STX, STX2, STX1 = 16*KB, 16*KB, 16*KB
R2 = 169*KB
ACT_OFF = 0x30000; PROF_OFF = 0x8000000; E_OFF = 0x20000
GB, GH, GA, GKV = 0, 2048, 4096, 5120
KVB = 110*KB; PART = 156*KB; CSQ = 158*KB; CS3 = 158*KB + 512; CS1L = 159*KB
W3A, W3H = 0, 100*KB
W3Q = [W3A, W3A + 28*KB, W3H, W3H + 28*KB]
W4S = [56*KB + g*4096 for g in range(11)]
W4C = [g*4096 for g in range(14)] + [W3H + g*4096 for g in range(14)]
NEG = 0xf1800000
def P(name, d): return int(OPT.get(name, d))
M32 = "v_mfma_f32_32x32x16_bf16"; M16 = "v_mfma_f32_16x16x32_bf16"
def f2u(x): return "0x%08x" % struct.unpack("<I", struct.pack("<f", x))[0]
LOG2E = 1.4426950408889634
C1 = -2*math.sqrt(2/math.pi)*LOG2E; C2 = C1*0.044715

ACT, FLG, WQ, WO, W1, W2, W3, W4, XO, DBG = 4, 8, 12, 16, 20, 24, 28, 32, 36, 40
(sW, sC, sHP, sNT, sTB32, sTB16, sLAY, sPURE, sPUREH, s4K, s8K, s12K, s32K, s2R, sOFF, sCNT,
 sT0, sT1, sOUT, _o1, sV, _v1, sXP, _x1, sW1K, sFBo, sFHo, sFAo, sFKVo, sKVo, sKVf, sNTL,
 sT2, sT3, sH3p, sH3s, sIT, sMT, sG0, sQA, sQB, sM1, sM2, s3L, s3G, sEDG) = range(44, 90)
sPT = 90; sFH = 98; sPR = 99
SK = [0, s(s4K), s(s8K), s(s12K)]
(vL, vA16, vP16, vA32, vA3, vST, vDB, vDQ) = range(0, 8)
vRB = [8, 9, 10, 11]; vWq = 12; vL16 = 13
vPB32, vPB16, vPA, vPH, vPKV = 14, 15, 16, 17, 18
vT0, vT1, vT2 = 19, 20, 21
vPR2, vPR = 22, 23
RES = 24; XB = 40; vD3 = 248; vJ = 255
A0 = 256

k = Asm()
nmark = [0]; marks = []
TM = OPT.get("tm")
def mark(name):
    if OPT.get("cyc") and OPT["cyc"].split(":")[0] == name:
        L = k.lab("cy")
        if name not in ("first", "start", "xload", "init", "end"): k(f"s_cmp_lg_u32 {s(sLAY)}, {OPT['cyc'].split(':')[1]}\ns_cbranch_scc1 {L}")
        k(f"s_memtime s[96:97]\n{L}:\ns_waitcnt lgkmcnt(0)"); k.lg.clear()
    if TM and TM.split(":")[0] == name:
        L = k.lab("tm")
        if name not in ("first", "start", "xload", "init", "end"): k(f"s_cmp_lg_u32 {s(sLAY)}, {TM.split(':')[1]}\ns_cbranch_scc1 {L}")
        k(f"s_memrealtime s[92:93]\n{L}:\ns_waitcnt lgkmcnt(0)"); k.lg.clear()
    if not PROF or name == "first": return
    k(f"s_memtime {s(sPT,2)}\ns_waitcnt lgkmcnt(0)\nv_writelane_b32 {v(vPR)}, {s(sPT)}, {nmark[0]}")
    k.lg.clear(); marks.append(name); nmark[0] += 1

def srd(d, nbytes):
    k(f"s_mov_b32 {s(d+2)}, {nbytes}\ns_mov_b32 {s(d+3)}, 0x20000")

def barrier():
    k.wait(lg="all"); k("s_barrier")

def poll(va):
    L = k.lab("poll")
    k(f"s_mov_b32 {s(sCNT)}, 0x8000\n{L}:")
    k.vmem(f"buffer_load_dwordx2 {v(vT1,2)}, {v(va)}, {s(FLG,4)}, 0 offen sc1")
    k(f"s_sub_u32 {s(sCNT)}, {s(sCNT)}, 1\ns_cbranch_scc1 bail")
    k.wait(vm="all")
    k(f"v_cmp_ne_u64 vcc, {s(sV,2)}, {v(vT1,2)}\ns_cbranch_vccnz {L}")

cold = []
def dual(stores, spure):
    La, Lb = k.lab("sc"), k.lab("scb")
    k(f"s_cmp_eq_u32 {s(spure)}, 0\ns_cbranch_scc1 {La}")
    for t in stores: k.vmem(t, "pub")
    k(f"{Lb}:")
    cold.extend([f"{La}:"] + [t + " sc1" for t in stores] + [f"s_branch {Lb}"])

def flag(saddr, spure):
    k(f"s_add_u32 {s(sV)}, {s(sV)}, 1\nv_mov_b32 {v(vT2)}, {s(sV+1)}\nv_mov_b32 {v(vT1)}, {s(sV)}\ns_mov_b64 exec, 1")
    t = f"buffer_store_dwordx2 {v(vT1,2)}, off, {s(FLG,4)}, {s(saddr)}"
    k.wait(vm="pub")
    if spure is None: k.vmem(t + " sc1")
    else: dual([t], spure)
    k("s_mov_b64 exec, -1")

def touch(tmp, h):
    k(f"v_mad_u32_u24 {v(tmp)}, v0, {s(sPR+1)}, {v(vA16)}")
    if not h:
        k.vmem(f"buffer_load_dword {v(vJ)}, {v(tmp)}, {s(ACT,4)}, {s(sPR)} offen sc1", "pre")
        return
    k(f"""v_lshl_add_u32 {v(tmp)}, {s(sNT)}, 11, {v(tmp)}
    s_sub_u32 {s(sT0)}, {s(sFH)}, {FO + 2048}
    s_mov_b32 {s(sT1)}, {FO}
    s_mov_b32 exec_hi, 0
    s_mov_b32 exec_lo, 0xffff0000
    v_add_u32 {v(tmp)}, {s(sT0)}, {v(tmp)}
    s_mov_b32 exec_lo, -1""")
    k.vmem(f"buffer_load_dword {v(vJ)}, {v(tmp)}, {s(ACT,4)}, {s(sT1)} offen sc1", "pre")
    k("s_mov_b64 exec, -1")

def code_touch(tmp):
    L = k.lab("pc")
    k(f"""s_getpc_b64 {s(sT0,2)}
    {L}:
    s_sub_u32 {s(sT0)}, {s(sT0)}, {L}-{NAME}_kernel
    s_subb_u32 {s(sT1)}, {s(sT1)}, 0
    s_lshr_b32 {s(sT2)}, s2, 3
    s_lshl2_add_u32 {s(sT2)}, {s(sT2)}, {s(sW)}
    s_mul_i32 {s(sT2)}, {s(sT2)}, 384
    v_lshl_add_u32 {v(tmp)}, v0, 7, {s(sT2)}
    v_min_u32 {v(tmp)}, text_end-{NAME}_kernel-4, {v(tmp)}
    v_mov_b32 {v(tmp+2)}, {s(sT1)}
    v_add_co_u32 {v(tmp+1)}, vcc, {s(sT0)}, {v(tmp)}
    v_addc_co_u32 {v(tmp+2)}, vcc, 0, {v(tmp+2)}, vcc
    s_mov_b64 exec, 7
    global_load_dword {v(vJ)}, {v(tmp+1,2)}, off
    s_mov_b64 exec, -1""")

bgq = []
def bg(n=1):
    for _ in range(min(n, len(bgq))): bgq.pop(0)()

def qB(w, groups):
    for n, (g, lds) in enumerate(groups):
        def f(n=n, g=g, lds=lds):
            p = groups[n-1] if n else None
            if p and lds - p[1] == 4096: k(f"s_add_u32 m0, m0, {s(s4K)}")
            else: k(f"s_add_u32 m0, {s(sW1K)}, {lds}")
            if p and g - p[0] == 1: k(f"s_add_u32 {s(sOFF)}, {s(sOFF)}, {s(s32K)}")
            else: k(f"s_mov_b32 {s(sOFF)}, {g*32768}")
            k.vmem(f"buffer_load_dwordx4 {v(vDB)}, {s(w,4)}, {s(sOFF)} offen lds", "dma")
        bgq.append(f)

def qQ(lo, hi):
    for n in range(lo, hi):
        def f0(n=n):
            k(f"s_xor_b32 m0, {s(sQB)}, {n*4096}\ns_xor_b32 {s(sOFF)}, {s(sG0)}, {n}\ns_mul_i32 {s(sOFF)}, {s(sOFF)}, {64*3072}")
            k.vmem(f"buffer_load_dwordx4 {v(vDQ)}, {s(WQ,4)}, {s(sOFF)} offen lds", "dma")
        def f1(n=n):
            k(f"s_xor_b32 m0, {s(sQA)}, {n*8192}\ns_bitset1_b32 {s(sOFF)}, 10")
            k.vmem(f"buffer_load_dwordx4 {v(vDQ)}, {s(WQ,4)}, {s(sOFF)} offen lds", "dma")
        def f2():
            k.vmem(f"buffer_load_dwordx4 {v(vDQ)}, {s(WQ,4)}, {s(sOFF)} offen offset:1024 lds", "dma")
        bgq.extend([f0, f1, f2])

def q3(quads):
    for q in quads:
        for p in range(7):
            def f(q=q, p=p):
                if p == 0: k(f"s_add_u32 m0, {s(s3L)}, {W3Q[q]}\ns_add_u32 {s(sOFF)}, {s(s3G)}, {q*4*32*3584}")
                if p == 4: k(f"s_add_u32 m0, m0, {s(s4K)}\ns_add_u32 {s(sOFF)}, {s(sOFF)}, {s(s4K)}")
                k.vmem(f"buffer_load_dwordx4 {v(vD3+p)}, {s(W3,4)}, {s(sOFF)} offen offset:{(p%4)*1024} lds", "dma")
            bgq.append(f)

class Rec:
    def __enter__(self):
        self.n = len(k.L); self.q = []; self.g = len(k.lg); return self.q
    def __exit__(self, *a):
        self.q.extend(k.L[self.n:]); del k.L[self.n:]; del k.lg[self.g:]
def emit(q, n=999):
    for _ in range(min(n, len(q))):
        t = q.pop(0)
        if callable(t): t()
        elif t.startswith("ds_"): k.ds(t, "fill")
        else: k(t)

def rb_bases(vb, his):
    m = {0: vRB}
    for n, hi in enumerate(h for h in his if h):
        m[hi] = [vb + 4*n + f for f in range(4)]
        for f in range(4): k(f"v_add_u32 {v(m[hi][f])}, {hi*65536}, {v(vRB[f])}")
    return m

def rd_fragB(dst, lds, fb, bases, tag):
    hi = lds // 65536
    for j in range(2):
        k.ds(f"ds_read_b64_tr_b16 {r(dst+2*j,2)}, {v(bases[hi][fb])} offset:{lds%65536 + j*2048}", tag)

def fill(slots, dst, bases):
    for i in range(len(slots)*4): rd_fragB(dst + 4*i, slots[i//4], i % 4, bases, "fill")

def mix(q, per, nbg):
    while q or nbg > 0:
        if nbg > 0: bg(); nbg -= 1
        emit(q, per)

def pk(op, d, a_, b_, c_=None, bsel=None, csel=None):
    n = 3 if c_ is not None else 2
    t = f"v_pk_{op}_f32 {d}, {a_}, {b_}" + (f", {c_}" if c_ is not None else "")
    if bsel is not None:
        lo = [0]*n; hi = [1]*n; lo[1] = bsel; hi[1] = bsel
        if csel is not None: lo[2] = csel; hi[2] = csel
        t += f" op_sel:[{','.join(map(str,lo))}] op_sel_hi:[{','.join(map(str,hi))}]"
    k(t)

def cvt(d, src, n):
    for i in range(n): k(f"v_cvt_pk_bf16_f32 {v(d+i)}, {v(src+2*i)}, {v(src+2*i+1)}")

def finish_stats(sq, out, two_level):
    a_, b_ = v(sq), v(sq+1)
    k(f"v_permlane32_swap_b32 {a_}, {b_}\nv_add_f32 {a_}, {a_}, {b_}\nv_mov_b32 {b_}, {a_}")
    if two_level: k(f"v_permlane16_swap_b32 {a_}, {b_}\nv_add_f32 {a_}, {a_}, {b_}\nv_mov_b32 {b_}, {a_}")
    k(f"v_permlane32_swap_b32 {a_}, {b_}\nv_mul_f32 {v(out+1)}, {f2u(-1/512)}, {a_}\nv_mul_f32 {b_}, {f2u(1/512)}, {b_}\n"
      f"v_fma_f32 {b_}, -{v(out+1)}, {v(out+1)}, {b_}\nv_max_f32 {v(out+2)}, 0, {b_}\nv_add_f32 {b_}, {f2u(1e-5)}, {v(out+2)}\n"
      f"v_rsq_f32 {v(out)}, {b_}")

def gelu_scale(rr, kk):
    k(f"v_rcp_f32 {v(kk+2)}, {v(rr)}\nv_mul_f32 {v(kk+1)}, {f2u(C1)}, {v(rr)}\nv_mul_f32 {v(kk)}, {v(rr)}, {v(rr)}\n"
      f"v_mul_f32 {v(kk)}, {f2u(0.044715)}, {v(kk)}\nv_mul_f32 {v(kk)}, {v(kk)}, {v(kk+1)}")

def pub_tile(src, field, stf, tmp):
    k(f"s_mov_b32 {s(sT0)}, {field}\ns_mov_b32 {s(sT1)}, {stf}")
    cvt(tmp, src, 8)
    dual([f"buffer_store_dwordx4 {v(tmp+4*i,4)}, {v(vP16)}, {s(ACT,4)}, {s(sT0)} offen offset:{1024*i}" for i in range(2)], sPURE)
    S, Q = tmp + 8, tmp + 10
    pk("add", v(S,2), v(src,2), v(src+2,2)); pk("mul", v(Q,2), v(src,2), v(src,2))
    for i in range(1, 8):
        if i > 1: pk("add", v(S,2), v(S,2), v(src+2*i,2))
        pk("fma", v(Q,2), v(src+2*i,2), v(src+2*i,2), v(Q,2))
    k(f"v_add_f32 {v(S)}, {v(S)}, {v(S+1)}\nv_add_f32 {v(S+1)}, {v(Q)}, {v(Q+1)}\n"
      f"v_permlane32_swap_b32 {v(S)}, {v(S+1)}\nv_add_f32 {v(S)}, {v(S)}, {v(S+1)}\nv_mov_b32 {v(S+1)}, {v(S)}\n"
      f"v_permlane16_swap_b32 {v(S)}, {v(S+1)}\nv_add_f32 {v(S)}, {v(S)}, {v(S+1)}")
    dual([f"buffer_store_dword {v(S)}, {v(vST)}, {s(ACT,4)}, {s(sT1)} offen"], sPURE)

def gelu(y, n, tmp, cs, rm, kk):
    Pr = range(0, n, 2)
    for i in Pr: pk("fma", v(y+i,2), v(cs+i,2), v(rm,2), v(y+i,2), bsel=1)
    for i in Pr: pk("mul", v(tmp+i,2), v(y+i,2), v(y+i,2))
    for i in Pr: pk("fma", v(tmp+i,2), v(tmp+i,2), v(kk,2), v(kk,2), bsel=0, csel=1)
    for i in Pr: pk("mul", v(tmp+i,2), v(tmp+i,2), v(y+i,2))
    for i in range(n): k(f"v_exp_f32 {v(tmp+i)}, {v(tmp+i)}")
    for i in Pr: pk("fma", v(tmp+i,2), v(tmp+i,2), v(kk+2,2), v(kk+2,2), bsel=0, csel=0)
    for i in range(n): k(f"v_rcp_f32 {v(tmp+i)}, {v(tmp+i)}")
    for i in Pr: pk("mul", v(y+i,2), v(y+i,2), v(tmp+i,2))

def sum_partials(n16, stride, dst, tmp):
    k(f"v_min_u32 {v(vT0)}, {n16-1}, {v(vL)}\nv_lshlrev_b32 {v(vT0)}, 4, {v(vT0)}\nv_add_u32 {v(vT0)}, {PART}, {v(vT0)}")
    for i in range(4): k.ds(f"ds_read_b128 {v(tmp+4*i,4)}, {v(vT0)} offset:{i*stride}")
    k.wait(lg="all")
    for i in range(1, 4):
        for h in (0, 2): pk("add", v(tmp+h,2), v(tmp+h,2), v(tmp+4*i+h,2))
    k.ds(f"ds_write_b128 {v(vT0)}, {v(tmp,4)} offset:{dst-PART}")
    k.wait(lg="all")

def stop(n):
    if STOP == n: k("s_branch bail")

def prologue():
    k("s_cmp_ge_u32 s2, 0x100\ns_cbranch_scc1 bail")
    mark("first")
    for d, off in ((FLG, 80), (XO, 0), (WQ, 8), (DBG, 72), (WO, 16), (W1, 32), (W2, 40), (W3, 48), (W4, 56), (sOUT, 64)):
        k(f"s_load_dwordx2 {s(d,2)}, s[0:1], {off}")
    k(f"""v_lshrrev_b32 v1, 6, v0
    v_and_b32 v0, 63, v0
    v_readfirstlane_b32 {s(sW)}, v1
    s_and_b32 {s(sC)}, s2, 7
    s_lshr_b32 s3, s2, 3
    s_lshr_b32 {s(sHP)}, s2, 4
    s_lshr_b32 {s(sNT)}, s2, 5
    s_and_b32 {s(sMT)}, s3, 1
    s_lshl_b32 {s(sT0)}, {s(sC)}, 3
    s_lshl_b32 {s(sT1)}, {s(sMT)}, 2
    s_add_u32 {s(sT0)}, {s(sT0)}, {s(sT1)}
    s_add_u32 {s(sTB32)}, {s(sT0)}, {s(sW)}
    s_add_u32 {s(sIT)}, {s(sTB32)}, {s(sW)}
    s_and_b32 {s(sT1)}, {s(sTB32)}, -2
    s_sub_u32 {s(sIT)}, {s(sIT)}, 8
    s_cselect_b32 {s(sIT)}, {s(sT1)}, {s(sIT)}
    s_min_u32 {s(sNTL)}, {s(sTB32)}, 8
    s_lshl_b32 {s(sNTL)}, {s(sNTL)}, 15
    s_and_b32 {s(sG0)}, s3, 3
    s_lshl_b32 {s(sG0)}, {s(sG0)}, 1
    s_and_b32 {s(sT1)}, s2, 1
    s_or_b32 {s(sG0)}, {s(sG0)}, {s(sT1)}
    s_and_b32 {s(sT1)}, s3, 3
    s_lshl_b32 {s(sT1)}, {s(sT1)}, 2
    s_add_u32 {s(sT1)}, {s(sT1)}, {s(sW)}
    s_lshl_b32 {s(sT0)}, {s(sC)}, 4
    s_add_u32 {s(sTB16)}, {s(sT0)}, {s(sT1)}
    s_mov_b32 {s(s4K)}, 4096
    s_mov_b32 {s(s8K)}, 8192
    s_mov_b32 {s(s12K)}, 12288
    s_mov_b32 {s(s32K)}, 32768
    s_mov_b32 {s(s2R)}, {R2}
    s_lshl_b32 {s(sW1K)}, {s(sW)}, 10
    s_lshl_b32 {s(sQB)}, {s(sG0)}, 12
    s_add_u32 {s(sQB)}, {s(sQB)}, {s(sW1K)}
    s_lshl_b32 {s(sQA)}, {s(sQB)}, 1
    s_bitset1_b32 {s(sQB)}, 16
    v_lshlrev_b32 {v(vL16)}, 4, v0""")
    for d, n in ((FLG, 0x20100), (XO, 2097152), (WQ, 1572864), (DBG, 256), (WO, 524288), (W1, 524288), (W2, 524288),
                 (W3, 1835008), (W4, 1835008), (ACT, 128*R2)): srd(d, n)
    vXO = 56
    k(f"""v_and_b32 v57, 15, v0
    v_lshrrev_b32 v58, 4, v0
    s_lshl_b32 {s(sT0)}, {s(sTB16)}, 14
    s_lshl_b32 {s(sT1)}, {s(sNT)}, 7
    s_add_u32 {s(sT0)}, {s(sT0)}, {s(sT1)}
    v_lshlrev_b32 {v(vXO)}, 10, v57
    v_lshl_add_u32 {v(vXO)}, v58, 3, {v(vXO)}
    v_add_u32 {v(vXO)}, {s(sT0)}, {v(vXO)}
    v_lshrrev_b32 v59, 2, v0
    v_mul_u32_u24 v59, 3072, v59
    v_and_b32 v60, 3, v0
    v_lshl_add_u32 v59, v60, 4, v59
    s_mul_i32 {s(sT0)}, {s(sW)}, {16*3072}
    s_lshl_b32 {s(sT1)}, {s(sHP)}, 6
    s_add_u32 {s(sT0)}, {s(sT0)}, {s(sT1)}
    v_add_u32 {v(vDQ)}, {s(sT0)}, v59
    s_waitcnt lgkmcnt(0)
    s_add_u32 {s(ACT)}, {s(FLG)}, {ACT_OFF}
    s_addc_u32 {s(ACT+1)}, {s(FLG+1)}, 0""")
    mark("start")
    if PROF: k(f"s_memrealtime {s(sPT,2)}\ns_waitcnt lgkmcnt(0)\nv_writelane_b32 {v(vPR)}, {s(sPT)}, 62")
    for f in range(4):
        k.vmem(f"buffer_load_dwordx2 {v(64+2*f,2)}, {v(vXO)}, {s(XO,4)}, 0 offen offset:{32*f}", "x")
    k(f"s_load_dwordx2 {s(sV,2)}, {s(FLG,2)}, {E_OFF}")
    if P("cp", 3) & 1: code_touch(vT0); k.vm.append(None)
    qQ(0, 2); bg(6)
    if P("pf", 1):
        k(f"""s_lshl_b32 {s(sT0)}, s2, 2
        s_add_u32 {s(sT0)}, {s(sT0)}, {s(sW)}
        s_lshl_b32 {s(sT1)}, {s(sT0)}, 9
        s_mul_i32 {s(sT0)}, {s(sT0)}, 1792
        v_lshlrev_b32 v61, 6, v0
        s_mov_b64 exec, 0xff""")
        for n, w in enumerate((WO, W1, W2)): k.vmem(f"buffer_load_dword {v(100+n)}, v61, {s(w,4)}, {s(sT1)} offen")
        k("s_mov_b64 exec, 0xfffffff")
        for n, w in enumerate((W3, W4)): k.vmem(f"buffer_load_dword {v(103+n)}, v61, {s(w,4)}, {s(sT0)} offen")
        k("s_mov_b64 exec, -1")
    k(f"""s_mul_i32 {s(sT0)}, {s(sTB16)}, {s(s2R)}
    v_add_u32 {v(vA16)}, {s(sT0)}, {v(vL16)}
    s_lshl_b32 {s(sT1)}, {s(sNT)}, 11
    v_add_u32 {v(vP16)}, {s(sT1)}, {v(vA16)}
    s_lshr_b32 {s(sT1)}, {s(sNT)}, 1
    s_lshl_b32 {s(sT1)}, {s(sT1)}, 8
    s_add_u32 {s(sT0)}, {s(sT0)}, {s(sT1)}
    s_and_b32 {s(sT1)}, {s(sNT)}, 1
    s_lshl_b32 {s(sT1)}, {s(sT1)}, 3
    s_add_u32 {s(sT0)}, {s(sT0)}, {s(sT1)}
    v_lshrrev_b32 v59, 5, v0
    v_lshlrev_b32 v60, 4, v57
    v_lshl_add_u32 v61, v59, 2, v60
    v_add_u32 {v(vST)}, {s(sT0)}, v61
    s_mul_i32 {s(sT0)}, {s(sTB32)}, {2*R2}
    v_add_u32 {v(vA3)}, {s(sT0)}, {v(vL16)}
    v_and_b32 v61, 1, v58
    v_mul_u32_u24 v62, {R2}, v61
    v_lshl_add_u32 v62, v59, 8, v62
    v_add3_u32 {v(vA32)}, v62, v60, {s(sT0)}
    s_lshr_b32 {s(sT1)}, {s(sHP)}, 3
    s_mul_i32 {s(sT1)}, {s(sT1)}, {s(s2R)}
    s_and_b32 {s(sT2)}, {s(sHP)}, 7
    s_lshl_b32 {s(sT2)}, {s(sT2)}, 12
    s_add_u32 {s(sT1)}, {s(sT1)}, {s(sT2)}
    s_add_u32 {s(sT1)}, {s(sT1)}, {FKV_}
    s_add_u32 {s(sKVo)}, {s(sT0)}, {s(sT1)}
    s_mul_i32 {s(sT0)}, {s(sIT)}, {2*R2}
    s_add_u32 {s(sKVf)}, {s(sT0)}, {s(sT1)}""")
    k(f"""v_lshrrev_b32 v62, 2, v57
    v_and_b32 v63, 3, v0
    v_lshl_add_u32 v72, v59, 2, v62
    v_lshl_add_u32 v73, v61, 2, v63
    v_lshlrev_b32 v73, 3, v73
    v_lshl_add_u32 {v(vWq)}, v72, 6, v73
    v_lshl_add_u32 v72, v61, 2, v62
    v_lshlrev_b32 v73, 10, v59
    v_lshl_add_u32 v73, v72, 7, v73
    v_lshl_add_u32 v73, v63, 3, v73
    v_lshrrev_b32 v72, 1, v72
    v_lshl_add_u32 {v(vRB[0])}, v72, 5, v73
    v_xor_b32 {v(vRB[1])}, 32, {v(vRB[0])}
    v_xor_b32 {v(vRB[2])}, 64, {v(vRB[0])}
    v_xor_b32 {v(vRB[3])}, 0x60, {v(vRB[0])}
    v_lshrrev_b32 v72, 3, v0
    v_and_b32 v73, 7, v0
    v_lshlrev_b32 v74, 1, v58
    v_xor_b32 v74, v74, v73
    v_lshlrev_b32 v74, 4, v74
    v_lshl_add_u32 v74, v72, 10, v74
    s_lshl_b32 {s(sT0)}, {s(sW)}, 13
    s_lshl_b32 {s(sT1)}, {s(sNT)}, 7
    s_add_u32 {s(sT0)}, {s(sT0)}, {s(sT1)}
    v_add_u32 {v(vDB)}, {s(sT0)}, v74""")
    k(f"""s_lshl_b32 {s(sT3)}, {s(sC)}, 13
    s_and_b32 {s(sT0)}, {s(sTB16)}, 15
    s_lshl_b32 {s(sT1)}, {s(sT0)}, 7
    s_add_u32 {s(sT1)}, {s(sT1)}, {s(sT3)}
    v_lshl_add_u32 {v(vPB16)}, v73, 3, {s(sT1)}
    s_lshl_b32 {s(sT2)}, {s(sNT)}, 3
    s_add_u32 {s(sFBo)}, {s(sT1)}, {s(sT2)}
    s_add_u32 {s(sFHo)}, {s(sFBo)}, {GH}
    s_lshr_b32 {s(sT0)}, {s(sT0)}, 1
    s_lshl_b32 {s(sT0)}, {s(sT0)}, 7
    s_add_u32 {s(sT0)}, {s(sT0)}, {s(sT3)}
    s_add_u32 {s(sT0)}, {s(sT0)}, {GA}
    v_lshl_add_u32 {v(vPA)}, v57, 3, {s(sT0)}
    s_and_b32 {s(sT0)}, {s(sTB32)}, 7
    s_lshl_b32 {s(sT1)}, {s(sT0)}, 8
    s_add_u32 {s(sT1)}, {s(sT1)}, {s(sT3)}
    v_and_b32 v74, 1, v72
    v_lshlrev_b32 v74, 7, v74
    v_lshl_add_u32 v74, v73, 3, v74
    v_add_u32 {v(vPB32)}, {s(sT1)}, v74
    s_lshl_b32 {s(sT1)}, {s(sT0)}, 7
    s_lshl_b32 {s(sT2)}, {s(sHP)}, 3
    s_add_u32 {s(sT1)}, {s(sT1)}, {s(sT2)}
    s_add_u32 {s(sT1)}, {s(sT1)}, {s(sT3)}
    s_add_u32 {s(sFAo)}, {s(sT1)}, {GA}
    s_lshl_b32 {s(sT2)}, {s(sHP)}, 7
    s_add_u32 {s(sT2)}, {s(sT2)}, {GKV}
    s_lshl_b32 {s(sT0)}, {s(sT0)}, 3
    s_add_u32 {s(sT0)}, {s(sT0)}, {s(sT2)}
    s_add_u32 {s(sFKVo)}, {s(sT0)}, {s(sT3)}
    s_lshr_b32 {s(sT0)}, {s(sIT)}, 3
    s_lshl_b32 {s(sT0)}, {s(sT0)}, 13
    s_add_u32 {s(sT2)}, {s(sT2)}, {s(sT0)}
    s_and_b32 {s(sT0)}, {s(sIT)}, 7
    s_lshl_b32 {s(sT0)}, {s(sT0)}, 3
    s_add_u32 {s(sT2)}, {s(sT2)}, {s(sT0)}
    v_and_b32 v74, 1, v0
    v_lshl_add_u32 {v(vPKV)}, v74, 3, {s(sT2)}
    v_min_u32 v74, 2, v72
    s_sub_u32 {s(sT0)}, {s(sTB16)}, 1
    v_add_u32 v74, {s(sT0)}, v74
    v_max_i32 v74, 0, v74
    v_min_i32 v74, 0x7f, v74
    v_lshrrev_b32 v75, 4, v74
    v_and_b32 v74, 15, v74
    v_lshlrev_b32 v75, 13, v75
    v_lshl_add_u32 v75, v74, 7, v75
    v_lshl_add_u32 v75, v73, 3, v75
    v_add_u32 {v(vPH)}, {GH}, v75
    s_and_b32 {s(sT0)}, {s(sHP)}, 1
    s_mul_i32 {s(sT1)}, {s(sHP)}, 7
    s_add_u32 {s(sT2)}, {s(sT1)}, {s(sT0)}
    s_lshl_b32 {s(sT2)}, {s(sT2)}, 9
    s_add_u32 {s(sH3p)}, {s(sT2)}, {FH3}
    s_mul_i32 {s(sT0)}, {s(sT0)}, {4096-8}
    s_add_u32 {s(sH3s)}, {s(sH3p)}, 3072
    s_sub_u32 {s(sH3s)}, {s(sH3s)}, {s(sT0)}
    s_mov_b32 {s(sLAY)}, 0
    s_mov_b32 {s(sFH)}, {FH_}
    s_mul_i32 {s(sPR)}, {s(sNT)}, 7168
    s_add_u32 {s(sPR)}, {s(sPR)}, {FH3}
    s_mov_b32 {s(sPR+1)}, 112
    s_mov_b32 {s(sPURE)}, 0
    s_mov_b32 {s(sPUREH)}, 0
    s_getreg_b32 {s(sT2)}, hwreg(HW_REG_XCC_ID, 0, 4)
    s_and_b32 {s(sT2)}, {s(sT2)}, 7
    s_lshl_b32 {s(sT2)}, {s(sT2)}, 3
    s_lshl_b64 {s(sXP,2)}, 32, {s(sT2)}
    s_add_u32 {s(sT0)}, {s(sTB16)}, 1
    s_and_b32 {s(sT0)}, {s(sT0)}, 14
    s_cselect_b32 {s(sEDG)}, 1, 0
    s_mul_i32 {s(s3L)}, {s(sW)}, 7168
    s_mul_i32 {s(s3G)}, {s(sW)}, {32*3584}
    s_mul_i32 {s(sT2)}, {s(sHP)}, 224
    s_add_u32 {s(s3G)}, {s(s3G)}, {s(sT2)}""")
    for q in range(7):
        k(f"v_add_u32 v72, {64*q}, v0\nv_mul_u32_u24 v72, 4682, v72\nv_lshrrev_b32 v72, 16, v72\n"
          f"v_mul_u32_u24 v72, 3360, v72\nv_add_u32 {v(vD3+q)}, v72, {v(vL16)}")
    if P("expb", 0):
        k(f"s_lshl_b32 {s(sT0)}, {s(sNT)}, 7\nv_subrev_u32 {v(vDB)}, {s(sT0)}, {v(vDB)}\ns_lshl_b32 {s(sT0)}, {s(sHP)}, 6\nv_subrev_u32 {v(vDQ)}, {s(sT0)}, {v(vDQ)}\n"
          f"s_and_b32 {s(sT0)}, {s(sHP)}, 12\ns_mul_i32 {s(sT0)}, {s(sT0)}, 224\ns_sub_u32 {s(s3G)}, {s(s3G)}, {s(sT0)}")
    if P("expa", 0):
        for w in (WQ, WO, W1, W2, W3, W4): k(f"s_mov_b32 {s(w+2)}, 0")
    k(f"s_waitcnt lgkmcnt(0)\ns_xor_b32 {s(sV+1)}, {s(sV+1)}, 0x5bd1e995")
    k.wait(vm="x")
    for i in range(8):
        k(f"v_lshlrev_b32 {v(RES+2*i)}, 16, {v(64+i)}\nv_and_b32 {v(RES+2*i+1)}, 0xffff0000, {v(64+i)}")
    mark("xload")
    k(f"s_mov_b32 {s(XO)}, {s(sOUT)}\ns_mov_b32 {s(XO+1)}, {s(sOUT+1)}")

def selector(d):
    k(f"v_lshrrev_b32 {v(vT0)}, 2, v0\nv_xor_b32 {v(vT0)}, {v(vT0)}, v0\nv_and_b32 {v(vT0)}, 4, {v(vT0)}\n"
      f"v_cmp_eq_u32 vcc, 0, {v(vT0)}\nv_mov_b32 {v(vT0)}, 0x3f803f80\nv_cndmask_b32 {v(d)}, 0, {v(vT0)}, vcc")
    for i in range(1, 4): k(f"v_mov_b32 {v(d+i)}, {v(d)}")

def l0_only(fn):
    L = k.lab("l0")
    k(f"s_cmp_lg_u32 {s(sLAY)}, 0\ns_cbranch_scc1 {L}")
    fn()
    k(f"{L}:")

def x_pub():
    pub_tile(RES, FX, STX, 56)
    qQ(2, 8); bg(P("xa", 3))
    flag(sFBo, sPURE)
    def count():
        L = k.lab("cnt")
        k(f"""s_barrier
        s_cmp_lg_u32 {s(sW)}, 0
        s_cbranch_scc1 {L}
        s_lshr_b64 {s(sT0,2)}, {s(sXP,2)}, 5
        v_mov_b32 v56, {s(sT0)}
        v_mov_b32 v57, {s(sT1)}
        s_lshl_b32 {s(sT2)}, {s(sC)}, 5
        s_mov_b64 exec, 1
        buffer_atomic_add_x2 v[56:57], off, {s(DBG,4)}, {s(sT2)} sc1
        s_mov_b64 exec, -1
        {L}:""")
    l0_only(count)
    if P("tf", 1):
        for va in (vPKV, vPA, vPH): k.vmem(f"buffer_load_dword {v(vJ)}, {v(va)}, {s(FLG,4)}, 0 offen sc1")
    bg(99)
    k(f"s_cmp_eq_u32 {s(sLAY)}, 0\ns_cselect_b32 {s(WQ+2)}, {s(WQ+2)}, 0")

def qkv_att():
    AK, AV, AQ = 56, 72, 88
    FR = 104; CS = 128; STA = 160; RM = 168; PKD = 208
    vWq2, vCS, vV0, vV1, vKW = 240, 241, 242, 243, 244
    SEL = 196; QF = 200
    N0 = P("qn", 12)
    k(f"v_add_u32 {v(vWq2)}, 0x10000, {v(vWq)}")
    selector(SEL)
    k(f"""v_lshrrev_b32 {v(vT1)}, 5, v0
    v_lshlrev_b32 {v(vCS)}, 4, {v(vT1)}
    v_add_u32 {v(vCS)}, {CSQ}, {v(vCS)}
    v_lshlrev_b32 {v(vT1)}, 6, {v(vT1)}
    v_xor_b32 {v(vV0)}, {v(vT1)}, {v(vL16)}
    v_xor_b32 {v(vV1)}, 0x80, {v(vV0)}
    s_lshl_b32 {s(sT0)}, {s(sW)}, 12
    s_add_u32 {s(sT0)}, {s(sT0)}, {KVB + 8*4096}
    v_add_u32 {v(vKW)}, {s(sT0)}, {v(vL16)}
    v_add_u32 {v(vKW+1)}, {s(sT0)}, {v(vV0)}
    v_add_u32 {v(vKW+2)}, {s(sT0)}, {v(vV1)}
    s_mov_b32 {s(sT1)}, {STX}""")
    S0, S1, CM, MD, O0, O1 = 56, 72, 104, 40, 160, 176
    KF, VF, PP, LS, MX = 208, 216, 224, 232, 120
    vK, vVa, vVb, vDB2 = 192, 193, 194, 195
    k(f"""v_bfe_u32 {v(vT0)}, v0, 4, 1
    v_bfe_u32 {v(vK)}, v0, 1, 1
    v_lshl_add_u32 {v(vT0)}, {v(vT0)}, 1, {v(vK)}
    v_lshrrev_b32 {v(vK)}, 5, v0
    v_xor_b32 {v(vK)}, {v(vK)}, {v(vT0)}
    v_lshlrev_b32 {v(vT0)}, 9, {v(vT0)}
    v_lshl_add_u32 {v(vT0)}, {v(vK)}, 6, {v(vT0)}
    v_bfe_u32 {v(vK)}, v0, 2, 2
    v_lshl_add_u32 {v(vT0)}, {v(vK)}, 4, {v(vT0)}
    v_and_b32 {v(vK)}, 1, v0
    v_lshl_add_u32 {v(vT0)}, {v(vK)}, 3, {v(vT0)}
    v_lshl_add_u32 {v(vT0)}, {s(sW)}, 12, {v(vT0)}
    v_add_u32 {v(vVa)}, {KVB + 8*4096 + 2048}, {v(vT0)}
    v_xor_b32 {v(vVb)}, 0x80, {v(vVa)}
    v_lshlrev_b32 {v(vT0)}, v0, -2
    v_lshrrev_b32 {v(vK)}, 3, v0
    v_and_b32 {v(vK)}, 4, {v(vK)}
    v_lshrrev_b32 {v(vT0)}, {v(vK)}, {v(vT0)}
    v_subrev_u32 {v(vK)}, {s(s4K)}, {v(vKW)}
    v_add_u32 {v(vDB2)}, {8*32768}, {v(vDB)}""")
    for i in range(16): k(f"v_bfe_i32 {v(MD+i)}, {v(vT0)}, {8*(i//4)+i%4}, 1\nv_and_b32 {v(MD+i)}, {NEG}, {v(MD+i)}")
    def rdq(dst, sp, b, tag):
        G = sp // 4
        for j in range(2):
            w_ = 2*((sp//2) % 2) + j
            off = G*8192 + w_*2048 + (b-1)*1024 if b else G*4096 + w_*1024
            k.ds(f"ds_read_b64_tr_b16 {v(dst+2*j,2)}, {v(vWq if b else vWq2)} offset:{off + (sp % 2)*512}", tag)
    def ldx(sp):
        k.vmem(f"buffer_load_dwordx4 {a(4*sp,4)}, {v(vA32)}, {s(ACT,4)}, {SK[sp//8]} offen offset:{(sp%8)*512} sc1", ("x", sp))
    mark("q.pre")
    poll(vPB32)
    mark("q.poll")
    for i in range(2): k.vmem(f"buffer_load_dwordx4 {v(STA+4*i,4)}, {v(vA32)}, {s(ACT,4)}, {s(sT1)} offen offset:{512*i} sc1", "st")
    for sp in range(N0): ldx(sp)
    def colsum():
        k(f"v_add_u32 {v(vT2)}, {s(sW1K)}, {v(vWq2)}\nv_lshl_add_u32 {v(vT1)}, {s(sW)}, 11, {v(vWq)}")
        for i in range(24 + 5):
            if i < 24:
                G, b = divmod(i, 3)
                for j in range(2):
                    off = G*8192 + (b-1)*1024 if b else G*4096
                    k.ds(f"ds_read_b64_tr_b16 {v(FR+4*(i%6)+2*j,2)}, {v(vT1 if b else vT2)} offset:{off + j*512}", ("c", i))
            m = i - 5
            if m >= 0:
                k.wait(lg=("c", m)); c = v(AK + 4*(m % 3), 4)
                k(f"{M16} {c}, {v(SEL,4)}, {v(FR+4*(m%6),4)}, {c if m >= 3 else 0}")
        k(f"s_mul_i32 {s(sT0)}, {s(sW)}, 384\ns_add_u32 {s(sT0)}, {s(sT0)}, {PART}\nv_and_b32 {v(vT1)}, 31, v0\n"
          f"v_lshl_add_u32 {v(vT1)}, {v(vT1)}, 2, {s(sT0)}")
        for b in range(3): k.ds(f"ds_write_b32 {v(vT1)}, {v(AK+4*b)} offset:{b*128}")
        k.wait(lg="all")
    l0_only(colsum)
    k("s_barrier")
    l0_only(lambda: sum_partials(24, 384, CSQ, CS))
    for sp in range(2):
        for b in (1, 2): rdq(FR + 8*sp + 4*(b-1), sp, b, ("w", sp))
    for b in (1, 2):
        for q in range(4): k.ds(f"ds_read_b128 {v(CS+16*(b-1)+4*q,4)}, {v(vCS)} offset:{b*128+q*32}", "cs")
    with Rec() as fq:
        for i in (0, 1): k(f"v_add_f32 {v(STA+i)}, {v(STA+i)}, {v(STA+2+i)}\nv_add_f32 {v(STA+4+i)}, {v(STA+4+i)}, {v(STA+6+i)}")
        for i in (0, 1): k(f"v_add_f32 {v(STA+i)}, {v(STA+i)}, {v(STA+4+i)}")
        finish_stats(STA, RM, False)
        k(f"v_mul_f32 {v(RM+1)}, {v(RM)}, {v(RM+1)}")
        for i in range(32): k(f"v_mul_f32 {v(CS+i)}, {v(RM+1)}, {v(CS+i)}")
    for sp in range(32):
        k.wait(vm=("x", sp), lg=("w", sp))
        for b, acc in ((1, AK), (2, AV)):
            k(f"{M32} {v(acc,16)}, {v(FR+8*(sp%3)+4*(b-1),4)}, {a(4*sp,4)}, {v(acc,16) if sp else 0}")
            if b == 1 and sp + N0 < 32: ldx(sp + N0)
            if sp + 2 < 32: rdq(FR + 8*((sp+2) % 3) + 4*(b-1), sp + 2, b, ("w", sp + 2))
            elif sp == 30: rdq(FR + 16 + 4*(b-1), b - 1, 0, ("q", b - 1))
            else: rdq(FR + 4*(b-1), b + 1, 0, ("q", b + 1))
            if sp >= 2: emit(fq, 1)
    assert not fq
    k("s_barrier")
    mark("q.kv")
    qB(WO, [(g, g*4096) for g in range(16)])
    with Rec() as f1:
        for i in range(32): k(f"v_fma_f32 {v(AK+i)}, {v(AK+i)}, {v(RM)}, {v(CS+i)}")
        cvt(PKD, AK, 16)
    f1 = [x for t in range(4) for x in f1[8*t:8*t+8] + f1[32+4*t:36+4*t] + [t]]
    with Rec() as f2:
        for q in range(4): k.ds(f"ds_read_b128 {v(CS+4*q,4)}, {v(vCS)} offset:{q*32}")
        k(f"""v_mul_f32 {v(RM)}, {f2u(0.25*LOG2E)}, {v(RM)}
        v_mul_f32 {v(RM+1)}, {f2u(0.25*LOG2E)}, {v(RM+1)}""")
        for i in range(16): k(f"v_mul_f32 {v(CS+i)}, {v(RM+1)}, {v(CS+i)}")
    f2.insert(6, lambda: k.wait(lg="fill"))
    def slot(n): return FR + 4*((n + 4) % 6)
    nd = 0
    for sp in range(32):
        k.wait(lg=("q", sp))
        k(f"{M32} {v(AQ,16)}, {v(slot(sp),4)}, {a(4*sp,4)}, {v(AQ,16) if sp else 0}")
        if sp + 4 < 32: rdq(slot(sp + 4), sp + 4, 0, ("q", sp + 4))
        if f1 and sp >= 1:
            for _ in range(4):
                t = f1.pop(0)
                if isinstance(t, int):
                    k.vmem(f"buffer_store_dwordx4 {v(PKD+4*t,4)}, {v((vL16, vL16, vV0, vV1)[t])}, {s(ACT,4)}, {s(sKVo)} offen offset:{t*1024} sc1", "pub")
                    k.ds(f"ds_write_b128 {v((vKW, vKW, vKW+1, vKW+2)[t])}, {v(PKD+4*t,4)} offset:{t*1024}", "kw")
                else: k(t)
        elif sp >= 1:
            if sp % 2 == 0: bg()
            else: emit(f2, 3)
    emit(f2)
    bg(2)
    for i in range(0, 16, 2): pk("fma", v(AQ+i,2), v(AQ+i,2), v(RM,2), v(CS+i,2), bsel=0)
    cvt(QF, AQ, 8)
    mark("q.q")
    stop(2)
    def qk(h, c): k(f"{M32} {v((S0,S1)[h],16)}, {v(KF+4*h,4)}, {v(QF+4*h,4)}, {v(c,16)}")
    def pv(h, u, first=False):
        O = v((O0, O1)[h], 16)
        k(f"{M32} {O}, {v(VF+4*u,4)}, {v(PP+4*u,4)}, {0 if first else O}")
    def rs(h, u, first=False): k(f"{M16} {v(LS+4*h,4)}, {v(SEL,4)}, {v(PP+4*u,4)}, {0 if first else v(LS+4*h,4)}")
    def rdV(u):
        for j, va in enumerate((vVa, vVb)): k.ds(f"ds_read_b64_tr_b16 {v(VF+4*u+2*j,2)}, {v(va)} offset:{u*256}", ("v", u))
    def rdK(h): k.ds(f"ds_read_b128 {v(KF+4*h,4)}, {v(vK)} offset:{h*1024}", ("k", h))
    def dec(*rs_):
        for x in rs_: k(f"v_subrev_u32 {v(x)}, {s(s4K)}, {v(x)}")
    def blk(h, u, at):
        S = (S0, S1)[h] + 8*u
        for i in range(12):
            if i in at: at[i]()
            if i < 8: k(f"v_exp_f32 {v(S+i)}, {v(S+i)}")
            else: cvt(PP + 4*u + i - 8, S + 2*(i-8), 1)
    qk(0, MD); rdV(0); rdV(1); bg(); qk(1, MD); dec(vVa, vVb)
    for i in range(16): k(f"v_mov_b32 {v(CM+i)}, 0")
    if P("kvf", 0) == 0: flag(sFKVo, None)
    blk(0, 0, {2: bg, 6: bg})
    if P("kvf", 0) == 1: flag(sFKVo, None)
    blk(0, 1, {2: lambda: (k.wait(lg="all"), pv(0, 0, True)), 5: lambda: rs(0, 0, True), 7: bg})
    blk(1, 0, {2: lambda: pv(0, 1), 5: lambda: rs(0, 1), 7: bg})
    bg(99)
    k(f"v_lshlrev_b32 {v(vT0)}, 5, v0")
    k.vmem(f"buffer_load_dwordx2 {v(MX,2)}, {v(vT0)}, {s(DBG,4)}, 0 offen sc1")
    mark("a.diag")
    poll(vPKV)
    mark("a.poll")
    k(f"s_lshl_b32 {s(sT0)}, {s(sW)}, 13\ns_add_u32 m0, {s(sT0)}, {KVB}\ns_mov_b32 {s(sOFF)}, {s(sKVf)}")
    for t in range(2):
        for i in range(4):
            def f(t=t, i=i):
                if t and not i: k(f"s_add_u32 m0, m0, {s(s4K)}\ns_add_u32 {s(sOFF)}, {s(sOFF)}, {2*R2}")
                k.vmem(f"buffer_load_dwordx4 {v(vL16)}, {s(ACT,4)}, {s(sOFF)} offen offset:{i*1024} sc1 lds", "kv")
            bgq.append(f)
    bg(P("ka", 3))
    k(f"v_readlane_b32 {s(sT0)}, {v(MX)}, {s(sC)}\nv_readlane_b32 {s(sT1)}, {v(MX+1)}, {s(sC)}\ns_barrier")
    with Rec() as fq: fill([g*4096 for g in range(16)], A0, {0: vRB})
    mix(fq, 8, 8)
    k(f"""s_cmp_eq_u64 {s(sT0,2)}, {s(sXP,2)}
    s_cselect_b32 {s(sPURE)}, 1, 0
    s_and_b32 {s(sPUREH)}, {s(sPURE)}, {s(sEDG)}
    s_add_u32 {s(sT0)}, s2, {s(sW)}
    s_cmp_lt_u32 {s(sT0)}, {s(sLAY)}
    s_cbranch_scc1 epoch
    epoch_b:
    s_mov_b32 m0, {s(sW1K)}
    s_mov_b32 {s(sOFF)}, 0""")
    cold.extend(f"""epoch:
    s_mov_b32 {s(sCNT)}, 0x8000
    epoch_l:
    buffer_load_dwordx2 {v(MX,2)}, {v(vT0)}, {s(DBG,4)}, 0 offen sc1
    s_sub_u32 {s(sCNT)}, {s(sCNT)}, 1
    s_cbranch_scc1 bail
    s_waitcnt vmcnt(0)
    v_sad_u8 {v(MX)}, {v(MX)}, 0, 0
    v_sad_u8 {v(MX)}, {v(MX+1)}, 0, {v(MX)}
    v_cmp_ne_u32 vcc, 32, {v(MX)}
    s_and_b32 {s(sT0)}, vcc_lo, 0xff
    s_cbranch_scc1 epoch_l
    s_add_u32 {s(sT0)}, {s(sV)}, 7
    v_mov_b32 {v(MX)}, {s(sT0)}
    s_mov_b32 {s(sT0)}, {E_OFF}
    s_mov_b64 exec, 1
    buffer_store_dword {v(MX)}, off, {s(FLG,4)}, {s(sT0)} sc1
    s_mov_b64 exec, -1
    s_branch epoch_b""".split("\n"))
    k.wait(vm="all")
    barrier()
    mark("a.kv")
    if P("t1", 1): touch(vT0, True)
    if P("cp", 3) & 2: l0_only(lambda: code_touch(vT0))
    rdK(0); rdK(1); dec(vK)
    blk(1, 1, {0: lambda: pv(1, 0, True), 3: lambda: rs(1, 0, True), 6: lambda: (k.wait(lg="all"), qk(0, CM))})
    def dma(n):
        k.vmem(f"buffer_load_dwordx4 {v(vDB2 if n == 1 else vDB)}, {s(W2 if n == 2 else W1,4)}, {s(sOFF)} offen lds", "dma")
        if n < 2: k(f"s_add_u32 m0, m0, {s(s32K)}")
        else: k(f"s_sub_u32 m0, m0, {65536 - 4096}\ns_add_u32 {s(sOFF)}, {s(sOFF)}, {s(s32K)}")
    def setcm():
        k(f"s_cmp_eq_u32 {s(sOFF)}, {6*32768}\ns_cbranch_scc1 att_cm\natt_cmb:")
    cold.extend(["att_cm:"] + [f"v_xor_b32 {v(CM+i)}, {NEG}, {v(MD+i)}" for i in range(16)] + ["s_branch att_cmb"])
    k(f"s_cmp_eq_u32 {s(sNTL)}, 0\ns_cbranch_scc1 att_e\natt_l:")
    blk(0, 0, {0: lambda: (qk(1, CM), rdV(0), rdK(0)), 3: lambda: pv(1, 1), 6: lambda: rs(1, 1), 8: lambda: dma(0)})
    blk(0, 1, {0: lambda: (rdV(1), rdK(1)), 1: lambda: (k.wait(lg=("k", 0)), pv(0, 0)), 4: lambda: rs(0, 0), 6: setcm, 8: lambda: dma(1)})
    blk(1, 0, {0: lambda: qk(0, CM), 3: lambda: (k.wait(lg="all"), pv(0, 1)), 6: lambda: rs(0, 1)})
    blk(1, 1, {0: lambda: dec(vK, vVa), 1: lambda: pv(1, 0), 4: lambda: rs(1, 0), 6: lambda: dec(vVb), 8: lambda: dma(2)})
    k(f"s_cmp_lt_u32 {s(sOFF)}, {s(sNTL)}\ns_cbranch_scc1 att_l\natt_e:")
    pv(1, 1); rs(1, 1)
    k(f"s_cmp_lt_u32 {s(sOFF)}, {8*32768}\ns_cbranch_scc1 att_r\natt_rb:")
    with Rec() as q:
        k("att_r:")
        for n in range(3): dma(n)
        k(f"s_cmp_lt_u32 {s(sOFF)}, {8*32768}\ns_cbranch_scc1 att_r\ns_branch att_rb")
    cold.extend(q)
    mark("a.loop")
    k(f"""v_lshrrev_b32 {v(vT0)}, 5, v0
    v_lshl_add_u32 {v(vT0)}, {v(vT0)}, 8, {v(vA32)}
    s_lshl_b32 {s(sT0)}, {s(sHP)}, 10
    s_add_u32 {s(sT0)}, {s(sT0)}, {FO}""")
    pk("mul", v(MX,2), v(O0,2), 0)
    for i in range(2, 8, 2): pk("fma", v(MX,2), v(O0+i,2), 0, v(MX,2))
    for i in range(0, 8, 2): pk("fma", v(MX,2), v(O1+8+i,2), 0, v(MX,2))
    lo, hi = (127 - 48) << 23, (127 + 80) << 23
    k(f"""v_add_f32 {v(MX)}, {v(MX)}, {v(LS)}
    v_add_f32 {v(MX+1)}, {v(MX+1)}, {v(LS+4)}
    v_subrev_u32 {v(MX)}, {lo}, {v(MX)}
    v_subrev_u32 {v(MX+1)}, {lo}, {v(MX+1)}
    v_max_u32 {v(MX)}, {v(MX)}, {v(MX+1)}
    v_cmp_lt_u32 vcc, {hi - lo if not P("fb", 0) else 0}, {v(MX)}
    s_cbranch_vccnz att_x
    att_xb:
    v_rcp_f32 {v(MX)}, {v(LS)}
    v_rcp_f32 {v(MX+1)}, {v(LS+4)}""")
    C0, C1_ = 88, 104
    with Rec() as q:
        k("att_x:")
        def rk():
            rdK(0); rdK(1); dec(vK); k.wait(lg="all")
        def loop(name, body, last):
            k(f"v_mov_b32 {v(vK)}, {v(vKW)}\ns_mov_b32 {s(sIT)}, 0\n{name}:")
            rk(); qk(0, C0); qk(1, C1_)
            body()
            k(f"s_cmp_lg_u32 {s(sIT)}, {7*32768}\ns_cbranch_scc1 {name}_n")
            last()
            k(f"{name}_n:\ns_add_u32 {s(sIT)}, {s(sIT)}, {s(s32K)}\ns_cmp_le_u32 {s(sIT)}, {s(sNTL)}\ns_cbranch_scc1 {name}")
        def setc(mask):
            for i in range(16):
                if mask == "o": k(f"v_xor_b32 {v(C0+i)}, {NEG}, {v(MD+i)}")
                m = {"o": v(C0+i), "d": v(MD+i), "": 0}[mask]
                k(f"v_add_f32 {v(C1_+i)}, {m}, {v(MX+3)}\nv_add_f32 {v(C0+i)}, {m}, {v(MX+2)}")
        k(f"v_mov_b32 {v(MX)}, {NEG}\nv_mov_b32 {v(MX+1)}, {NEG}\nv_mov_b32 {v(MX+2)}, 0\nv_mov_b32 {v(MX+3)}, 0")
        setc("d")
        def p1():
            for h, S in enumerate((S0, S1)):
                for i in range(0, 16, 2): k(f"v_max3_f32 {v(MX+h)}, {v(MX+h)}, {v(S+i)}, {v(S+i+1)}")
            setc("")
        loop("att_x1", p1, lambda: setc("o"))
        k(f"""v_permlane32_swap_b32 {v(MX)}, {v(MX+1)}
        v_max_f32 {v(MX)}, {v(MX)}, {v(MX+1)}
        v_sub_f32 {v(MX+2)}, 0, {v(MX)}
        v_mov_b32 {v(MX+3)}, {v(MX+2)}
        v_permlane32_swap_b32 {v(MX+2)}, {v(MX+3)}
        s_lshr_b32 {s(sIT)}, {s(sNTL)}, 3
        s_add_u32 {s(sIT)}, {s(sIT)}, {s(s4K)}
        v_add_u32 {v(vVa)}, {s(sIT)}, {v(vVa)}
        v_add_u32 {v(vVb)}, {s(sIT)}, {v(vVb)}""")
        setc("d")
        for i in range(32): k(f"v_mov_b32 {v(O0+i)}, 0")
        for i in range(8): k(f"v_mov_b32 {v(LS+i)}, 0")
        def p2():
            rdV(0); rdV(1); dec(vVa, vVb); k.wait(lg="all")
            for h in range(2):
                for u in range(2): blk(h, u, {}); pv(h, u); rs(h, u)
            setc("")
        loop("att_x2", p2, lambda: setc("o"))
        k("s_branch att_xb")
    cold.extend(q)
    for i in range(0, 8, 2):
        pk("mul", v(O0+i,2), v(O0+i,2), v(MX,2), bsel=0); pk("mul", v(O1+8+i,2), v(O1+8+i,2), v(MX,2), bsel=1)
    for q in range(2):
        cvt(PP + 4*q, O0 + 4*q, 2); cvt(PP + 4*q + 2, O1 + 8 + 4*q, 2)
    dual([f"buffer_store_dwordx4 {v(PP+4*q,4)}, {v(vT0)}, {s(ACT,4)}, {s(sT0)} offen offset:{q*256}" for q in range(2)], sPURE)

BX = 56
def gemmB(acc, va, cinit, nxt=None, bases=None, fq=None, nbg=1):
    N0 = P("bn", 12)
    def ld(st):
        k.vmem(f"buffer_load_dwordx4 {v(BX+4*st,4)}, {v(va[st//4])}, {s(ACT,4)}, {SK[st//4]} offen offset:{(st%4)*1024} sc1", ("x", st))
    for st in range(N0): ld(st)
    for st in range(16):
        k.wait(vm=("x", st))
        for fb in range(4):
            c = v(acc + 4*fb, 4); n = 4*st + fb
            k(f"{M16} {c}, {a(4*n,4)}, {v(BX+4*st,4)}, {c if (st or cinit) else 0}")
            if fb == 0:
                if st + N0 < 16: ld(st + N0)
                elif st >= 8: bg(nbg)
            if nxt and n: rd_fragB(A0 + 4*(n-1), nxt[(n-1)//4], (n-1) % 4, bases, "fill")
            if fq and fb: emit(fq, 1)
    if fq: emit(fq)
    if nxt: rd_fragB(A0 + 4*63, nxt[15], 3, bases, "fill")

def wo_w1_w2():
    VB, TMP, vAD = 120, 128, 144
    ACC, CS1, ONES, STA, RM, KK, G0 = 160, 176, 192, 196, 200, 204, 208
    k(f"v_add_u32 {v(vAD)}, {FO}, {v(vA16)}")
    bases = rb_bases(VB, [0, 1])
    flag(sFAo, sPURE)
    mark("a.pub")
    stop(3)
    k("s_barrier")
    qB(W2, [(g, 64*KB + g*4096) for g in range(8, 16)]); q3([3])
    bg(P("ow", 6))
    poll(vPA)
    mark("wo.poll")
    gemmB(RES, [vAD]*4, True, [g*4096 for g in range(16)], bases)
    mark("wo.gemm")
    assert len(bgq) <= 7
    pub_tile(RES, FX2, STX2, TMP)
    bg(99)
    k(f"v_add_u32 {v(vAD)}, {FX2}, {v(vA16)}\ns_mov_b32 {s(sT3)}, {STX2}\nv_and_b32 {v(vT0)}, 0x30, v0\nv_add_u32 {v(vT0)}, {CS1L}, {v(vT0)}")
    k.wait(lg="all")
    def cs(lo, hi):
        if not lo:
            for i in range(4): k(f"v_mov_b32 {v(ONES+i)}, 0x3f803f80")
        for m in range(lo, hi):
            c = v(CS1 + 4*(m % 4), 4)
            k(f"{M16} {c}, {a(4*m,4)}, {v(ONES,4)}, {c if m >= 4 else 0}")
        if lo:
            for i in range(4): k(f"ds_write_b128 {v(vT0)}, {v(CS1+4*i,4)} offset:{64*i}")
    l0_only(lambda: cs(0, 24))
    flag(sFBo, sPURE)
    mark("wo.pub")
    stop(4)
    k("s_barrier")
    q3([0, 1]); bg(P("x2w", 4))
    l0_only(lambda: cs(24, 64))
    for i in range(4): k.ds(f"ds_read_b128 {v(CS1+4*i,4)}, {v(vT0)} offset:{64*i}", "fill")
    poll(vPB16)
    mark("w1.poll")
    k.vmem(f"buffer_load_dwordx4 {v(STA,4)}, {v(vA16)}, {s(ACT,4)}, {s(sT3)} offen sc1", "st")
    with Rec() as fq:
        for i in (0, 1): k(f"v_add_f32 {v(STA+i)}, {v(STA+i)}, {v(STA+2+i)}")
        finish_stats(STA, RM, True)
        k(f"v_mul_f32 {v(STA)}, {v(RM)}, {v(RM)}\nv_fmaak_f32 {v(STA)}, {v(STA)}, {v(RM+2)}, {f2u(1e-5)}\nv_rsq_f32 {v(STA)}, {v(STA)}\n"
          f"v_mul_f32 {v(RM+2)}, {v(RM)}, {v(RM+1)}\nv_mul_f32 {v(STA)}, {v(RM)}, {v(STA)}")
        gelu_scale(STA, KK)
    gemmB(ACC, [vAD]*4, False, [64*KB + g*4096 for g in range(16)], bases, fq)
    mark("w1.gemm")
    k.wait(lg="all")
    with Rec() as fq:
        gelu(ACC, 16, G0, CS1, RM, KK)
        cvt(TMP, ACC, 8)
    mix(fq, 24, 2)
    dual([f"buffer_store_dwordx4 {v(TMP+4*i,4)}, {v(vP16)}, {s(ACT,4)}, {s(sFH)} offen offset:{1024*i}" for i in range(2)], sPUREH)
    mark("w1.epi")
    k("s_barrier")
    qB(W4, [(g, W4S[g]) for g in range(11)]); q3([2])
    bg(P("ha", 4))
    for i in range(0, 16, 2): pk("fma", v(XB+i,2), v(RES+i,2), v(RM,2), v(RM+2,2), bsel=0, csel=0)
    T = G0
    k(f"s_lshl_b32 {s(sT0)}, {s(sTB16)}, 4\nv_and_b32 {v(T+3)}, 15, v0\nv_add_u32 {v(T+3)}, {s(sT0)}, {v(T+3)}\n"
      f"v_and_b32 {v(T+4)}, 0x300, {v(vL16)}\nv_add_u32 {v(T+4)}, {s(sFH)}, {v(T+4)}\nv_mov_b32 {v(T+2)}, 0x80000000")
    for i, d in enumerate((-1, 1, -2, 2)):
        k(f"""v_add_u32 {v(vT0)}, {d}, {v(T+3)}
        v_cmp_gt_u32 vcc, 0x800, {v(vT0)}
        v_lshrrev_b32 {v(T)}, 4, {v(vT0)}
        v_and_b32 {v(vT0)}, 15, {v(vT0)}
        v_mad_u32_u24 {v(T)}, {v(T)}, {s(s2R)}, {v(T+4)}
        v_lshl_add_u32 {v(T)}, {v(vT0)}, 4, {v(T)}
        v_cndmask_b32 {v(vAD+i)}, {v(T+2)}, {v(T)}, vcc""")
    flag(sFHo, sPUREH)
    mark("w1.pub")
    stop(5)
    bg(P("hw", 6))
    poll(vPH)
    mark("w2.poll")
    gemmB(XB, [vAD+i for i in range(4)], True)
    mark("w2.gemm")
    assert len(bgq) <= 7
    pub_tile(XB, FX1, STX1, TMP)
    bg(99)
    for i in range(0, 16, 2): pk("add", v(RES+i,2), v(RES+i,2), v(XB+i,2))

def w3_w4():
    ACC, FR, BX0, BX1 = 56, 112, 168, A0 + 176
    STA, RM, vW, vAD, KK, VB = 156, 240, 140, 146, 148, 232
    CS = 112
    k(f"""v_lshrrev_b32 {v(vT0)}, 2, v0
    v_mul_u32_u24 {v(vT0)}, 224, {v(vT0)}
    v_and_b32 {v(vT1)}, 3, v0
    v_lshl_add_u32 {v(vT0)}, {v(vT1)}, 3, {v(vT0)}
    s_and_b32 {s(sT0)}, {s(sHP)}, 1
    s_lshl_b32 {s(sT1)}, {s(sT0)}, 5
    s_mul_i32 {s(sT0)}, {s(sT0)}, 192
    s_sub_u32 {s(sT0)}, 192, {s(sT0)}
    v_add_u32 {v(vW)}, {s(sT1)}, {v(vT0)}
    v_add_u32 {v(vW+1)}, {s(sT0)}, {v(vT0)}
    v_add_u32 {v(vW+2)}, {W3H}, {v(vW)}
    v_add_u32 {v(vW+3)}, {W3H}, {v(vW+1)}
    v_add_u32 {v(vAD)}, {FX1}, {v(vA3)}
    v_add_u32 {v(vAD+1)}, {FX1 + R2}, {v(vA3)}
    s_mov_b32 {s(sT3)}, {STX1 - FX1}""")
    bases = rb_bases(VB, [0, 1, 2])
    flag(sFBo, sPURE)
    mark("w2.pub")
    stop(6)
    k("s_barrier")
    fill(W4S, A0, bases)
    def rd3(dst, base, st, b, tag):
        for j in range(2):
            off = (st % 8)*7168 + j*3584 + (b*32 if b < 6 else 0)
            k.ds(f"ds_read_b64_tr_b16 {v(dst+2*j,2)}, {v(base + 2*(st//8) + (b == 6))} offset:{off}", tag)
    mark("w3.fill")
    poll(vPB32)
    mark("w3.poll")
    for t in range(2): k.vmem(f"buffer_load_dwordx4 {v(STA+4*t,4)}, {v(vAD+t)}, {s(ACT,4)}, {s(sT3)} offen sc1", "st")
    for st in range(16):
        for t, B in enumerate((BX0, BX1)):
            bgq.append(lambda st=st, t=t, B=B: k.vmem(f"buffer_load_dwordx4 {r(B+4*st,4)}, {v(vAD+t)}, {s(ACT,4)}, {SK[st//4]} offen offset:{(st%4)*1024} sc1", ("x", st)))
    bg(P("n3", 10))
    k.wait(lg="all")
    def colsum():
        for i in range(4): k(f"v_add_u32 {v(XB+i)}, {s(s3L)}, {v(vW+i)}\nv_mov_b32 {v(XB+4+i)}, 0x3f803f80")
        for i in range(28 + 5):
            if i < 28: rd3(FR + 4*(i % 6), XB, 4*(i//7), i % 7, ("c", i))
            m = i - 5
            if m >= 0:
                k.wait(lg=("c", m)); c = v(ACC + 4*(m % 7), 4)
                k(f"{M16} {c}, {v(XB+4,4)}, {v(FR+4*(m%6),4)}, {c if m >= 7 else 0}")
        k(f"s_mul_i32 {s(sT0)}, {s(sW)}, 448\ns_add_u32 {s(sT0)}, {s(sT0)}, {PART}\nv_and_b32 {v(vT1)}, 15, v0\n"
          f"v_lshl_add_u32 {v(vT1)}, {v(vT1)}, 2, {s(sT0)}")
        for b in range(7): k.ds(f"ds_write_b32 {v(vT1)}, {v(ACC+4*b)} offset:{b*64}")
        k.wait(lg="all")
    l0_only(colsum)
    k("s_barrier")
    l0_only(lambda: sum_partials(28, 448, CS3, FR))
    qB(W4, [(11 + g, W4S[g]) for g in range(11)])
    if P("t3", 1): bgq.append(lambda: touch(vT1, False))
    D = 5
    for n in range(D): rd3(FR + 4*n, vW, 0, n, ("w", n))
    with Rec() as fq:
        for t in range(2):
            for i in (0, 1): k(f"v_add_f32 {v(STA+4*t+i)}, {v(STA+4*t+i)}, {v(STA+4*t+2+i)}")
            finish_stats(STA + 4*t, RM + 4*t, True)
            gelu_scale(RM + 4*t, KK + 4*t)
        k(f"v_and_b32 {v(vT0)}, 0x30, v0\nv_add_u32 {v(vT0)}, {CS3}, {v(vT0)}")
    for n in range(112):
        st, b = divmod(n, 7)
        k.wait(vm=("x", st), lg=("w", min(n + 1, 111)) if n % 2 == 0 else None)
        for t, B in enumerate((BX0, BX1)):
            c = v(ACC + 28*t + 4*b, 4)
            k(f"{M16} {c}, {v(FR+4*(n%7),4)}, {r(B+4*st,4)}, {c if st else 0}")
            if t == 0 and n + D < 112: rd3(FR + 4*((n+D) % 7), vW, (n+D)//7, (n+D) % 7, ("w", n + D))
            if t == 1:
                if n % 2 and bgq: bg()
                elif n % 2: emit(fq, 2)
                else: emit(fq, 1)
    assert not fq and not bgq
    mark("w3.gemm")
    k(f"v_add_u32 {v(vAD)}, {R2}, {v(vA3)}")
    for b in range(7): k.ds(f"ds_read_b128 {v(CS+4*b,4)}, {v(vT0)} offset:{b*64}")
    k.wait(vm="dma")
    barrier()
    mark("w3.bar")
    qB(W4, [(22 + g, W4C[g]) for g in range(28)])
    G0, PKD = 168, 196
    for t in range(2):
        A = ACC + 28*t
        with Rec() as fq:
            gelu(A, 28, G0, CS, RM + 4*t, KK + 4*t)
            cvt(PKD + 16*t, A, 14)
        mix(fq, 12, P("e0", 12) if t == 0 else P("e1", 8))
        va = vA3 if t == 0 else vAD
        dual([f"buffer_store_dwordx4 {v(PKD+16*t+4*p,4)}, {v(va)}, {s(ACT,4)}, {s(sH3p)} offen offset:{p*1024}" for p in range(3)] +
             [f"buffer_store_dwordx2 {v(PKD+16*t+12,2)}, {v(va)}, {s(ACT,4)}, {s(sH3s)} offen"], sPURE)
    mark("w3.epi")
    NR = 16
    RING, AR, BV, vH = 136, 200, 40, 240
    with Rec() as fq:
        fill(W4S[:5], A0 + 176, bases); fill(W4S[5:], BV, bases)
    nf = P("h3f", 56)
    f0 = fq[:nf]; mix(f0, 12, P("h3a", 4))
    for i in range(4): k(f"v_add_u32 {v(vH+i)}, {FH3 + i*16384}, {v(vA16)}")
    flag(sFAo, sPURE)
    mark("w3.pub")
    stop(7)
    mix(fq[nf:], 8, len(bgq))
    barrier()
    qB(W4, [(50 + g, W4S[g]) for g in range(6)]); bg(99)
    src = {}
    for g in range(16): src[g] = ("r", A0 + 16*g)
    for g in range(6): src[16+g] = ("r", BV + 16*g)
    for g in range(28): src[22+g] = ("l", W4C[g])
    for g in range(6): src[50+g] = ("l", W4S[g])
    regs = [g for g in range(56) if src[g][0] == "r"]
    lds = sorted((g for g in range(56) if src[g][0] == "l"), key=lambda g: src[g][1] >= 96*KB)
    order = []
    for i in range(56):
        order.append(regs.pop(0) if regs and (i < 2 or i % 5 in (1, 3) or not lds) else lds.pop(0))
    nlow = max(i for i, g in enumerate(order) if src[g][0] == "l" and src[g][1] < 96*KB) + 1
    assert sorted(order) == list(range(56)) and nlow <= 56 - NR
    mark("w4.fill")
    poll(vPA)
    mark("w4.poll")
    def ldx(i):
        g = order[i]
        k.vmem(f"buffer_load_dwordx4 {v(RING+4*(i%NR),4)}, {v(vH+g//16)}, {s(ACT,4)}, {SK[(g//4)%4]} offen offset:{(g%4)*1024} sc1", ("x", i))
    N0 = P("n4", 12)
    for i in range(N0): ldx(i)
    k("s_barrier")
    lf = [(i, fb) for i in range(56) if src[order[i]][0] == "l" for fb in range(4)]
    pos = {x: n for n, x in enumerate(lf)}
    nxt = 0; used = 0
    for i in range(56):
        kind, loc = src[order[i]]
        if i == nlow + 2: k("s_barrier"); qQ(0, 2)
        for fb in range(4):
            if kind == "l":
                n = pos[(i, fb)]; A = v(AR + 4*(n % 8), 4)
                assert n + 1 - fb % 2 < nxt
                k.wait(vm=("x", i), lg=("w", n + 1) if fb % 2 == 0 else None)
            else:
                k.wait(vm=("x", i)); A = r(loc + 4*fb, 4)
            c = v(RES + 4*fb, 4)
            k(f"{M16} {c}, {A}, {v(RING+4*(i%NR),4)}, {c}")
            if fb == 0:
                if i + N0 < 56: ldx(i + N0)
                elif (55 - i) % 2 or N0 < 12: bg()
            if nxt < len(lf) and nxt - used < 7:
                rd_fragB(AR + 4*(nxt % 8), src[order[lf[nxt][0]]][1], lf[nxt][1], bases, ("w", nxt)); nxt += 1
            if kind == "l": used += 1
    assert not bgq
    k.vm.clear(); k.vm.append("dma")
    mark("w4.gemm")

def final():
    k(f"""v_and_b32 v57, 15, v0
    v_lshrrev_b32 v58, 4, v0
    s_lshl_b32 {s(sT0)}, {s(sTB16)}, 14
    s_lshl_b32 {s(sT1)}, {s(sNT)}, 7
    s_add_u32 {s(sT0)}, {s(sT0)}, {s(sT1)}
    v_lshlrev_b32 v56, 10, v57
    v_lshl_add_u32 v56, v58, 3, v56""")
    cvt(64, RES, 8)
    for f in range(4): k(f"buffer_store_dwordx2 {v(64+2*f,2)}, v56, {s(XO,4)}, {s(sT0)} offen offset:{32*f}")

def main():
    prologue()
    k("layer:")
    k.vm.append("dma")
    n0 = nmark[0]
    x_pub()
    mark("x.pub")
    stop(1)
    qkv_att()
    wo_w1_w2()
    w3_w4()
    k(f"s_cmp_lg_u32 {s(sLAY)}, 0\ns_cbranch_scc1 done")
    k(f"s_mov_b32 {s(sLAY)}, 1\ns_bitset1_b32 {s(sFHo)}, 16\ns_bitset1_b32 {s(sFKVo)}, 16\nv_or_b32 {v(vPH)}, 0x10000, {v(vPH)}\nv_or_b32 {v(vPKV)}, 0x10000, {v(vPKV)}\n"
      f"s_add_u32 {s(sFH)}, {s(sFH)}, 0x4000\ns_add_u32 {s(sKVo)}, {s(sKVo)}, {s(s32K)}\ns_add_u32 {s(sKVf)}, {s(sKVf)}, {s(s32K)}")
    if PROF: k(f"v_mov_b32 {v(vPR2)}, {v(vPR)}")
    k("s_branch layer\ndone:")
    final()
    k("s_waitcnt vmcnt(0)")
    if OPT.get("cyc"):
        k("s_memtime s[94:95]\ns_memrealtime s[92:93]\ns_waitcnt lgkmcnt(0)\ns_sub_u32 s94, s94, s96\ns_lshr_b32 s96, s94, 3")
        k("cy_l:\ns_sleep 4\ns_memrealtime s[94:95]\ns_waitcnt lgkmcnt(0)\ns_sub_u32 s94, s94, s92\ns_cmp_lt_u32 s94, s96\ns_cbranch_scc1 cy_l")
    if TM:
        mark("end")
        if OPT.get("wb"): k("buffer_wbl2 sc1\ns_waitcnt vmcnt(0)")
        k("tm_l:\ns_sleep 4\ns_memrealtime s[94:95]\ns_waitcnt lgkmcnt(0)\ns_sub_u32 s94, s94, s92\ns_cmp_lt_u32 s94, 15000\ns_cbranch_scc1 tm_l")
    if PROF:
        mark("end")
        k(f"s_memrealtime {s(sPT,2)}\ns_waitcnt lgkmcnt(0)\nv_writelane_b32 {v(vPR)}, {s(sPT)}, 63")
        k(f"""s_add_u32 {s(DBG)}, {s(FLG)}, {PROF_OFF}
        s_addc_u32 {s(DBG+1)}, {s(FLG+1)}, 0
        s_mov_b32 {s(DBG+2)}, 0x100000
        s_lshl_b32 {s(sT0)}, s2, 2
        s_add_u32 {s(sT0)}, {s(sT0)}, {s(sW)}
        s_lshl_b32 {s(sT0)}, {s(sT0)}, 9
        v_lshlrev_b32 v56, 2, v0
        buffer_store_dword {v(vPR2)}, v56, {s(DBG,4)}, {s(sT0)} offen
        buffer_store_dword {v(vPR)}, v56, {s(DBG,4)}, {s(sT0)} offen offset:256""")
    k("bail:\ns_endpgm")
    for t in cold: k(t)
    k("text_end:")
    body, nn = fix_hazards(k.L)
    ref = open(f"cdna_kernels/{NAME}.s.ref").read().split("\n")
    hd = [l for l in ref[:ref.index(f"{NAME}_kernel:") + 1]]
    hd = ["; @launch grid=(256,1,1) block=(256,1,1) lds=163840" if l.startswith("; @launch") else l for l in hd]
    tl = ref[ref.index('.section .rodata,"a"'):]
    tl = [l.replace("next_free_vgpr 256", "next_free_vgpr 512") for l in tl]
    out = hd + [("" if t.endswith(":") else "    ") + t for t in body] + tl
    open(sys.argv[1], "w").write("\n".join(out))
    if PROF: open(sys.argv[1] + ".marks", "w").write(" ".join(marks))
    print("instructions", len(body), "nops", nn)

main()
```

```python
import sys, math, struct
from asmlib import *

NAME = "interleave_layers__sliding_block__mixer_s_mlp__prompt"
OPT = dict(x.split("=") if "=" in x else (x, "1") for x in sys.argv[2:])
PROF = int(OPT.get("prof", 0)); STOP = int(OPT.get("stop", 99))
KB = 1024
FX, FO, FX2, FH_, FX1, FKV_, FH3 = 0, 17*KB, 0, 73*KB, 0, 105*KB, 17*KB
STX, STX2, STX1 = 16*KB, 16*KB, 16*KB
R2 = 169*KB
ACT_OFF = 0x30000; PROF_OFF = 0x8000000; E_OFF = 0x20000
GB, GH, GA, GKV = 0, 2048, 4096, 5120
KVB = 110*KB; PART = 156*KB; CSQ = 158*KB; CS3 = 158*KB + 512; CS1L = 159*KB
W3A, W3H = 0, 100*KB
W3Q = [W3A, W3A + 28*KB, W3H, W3H + 28*KB]
W4S = [56*KB + g*4096 for g in range(11)]
W4C = [g*4096 for g in range(14)] + [W3H + g*4096 for g in range(14)]
NEG = 0xf1800000
def P(name, d): return int(OPT.get(name, d))
M32 = "v_mfma_f32_32x32x16_bf16"; M16 = "v_mfma_f32_16x16x32_bf16"
def f2u(x): return "0x%08x" % struct.unpack("<I", struct.pack("<f", x))[0]
LOG2E = 1.4426950408889634
C1 = -2*math.sqrt(2/math.pi)*LOG2E; C2 = C1*0.044715

ACT, FLG, WQ, WO, W1, W2, W3, W4, XO, DBG = 4, 8, 12, 16, 20, 24, 28, 32, 36, 40
(sW, sC, sHP, sNT, sTB32, sTB16, sLAY, sPURE, sPUREH, s4K, s8K, s12K, s32K, s2R, sOFF, sCNT,
 sT0, sT1, sOUT, _o1, sV, _v1, sXP, _x1, sW1K, sFBo, sFHo, sFAo, sFKVo, sKVo, sKVf, sNTL,
 sT2, sT3, sH3p, sH3s, sIT, sMT, sG0, sQA, sQB, sM1, sM2, s3L, s3G, sEDG) = range(44, 90)
sPT = 90; sFH = 98; sPR = 99
SK = [0, s(s4K), s(s8K), s(s12K)]
(vL, vA16, vP16, vA32, vA3, vST, vDB, vDQ) = range(0, 8)
vRB = [8, 9, 10, 11]; vWq = 12; vL16 = 13
vPB32, vPB16, vPA, vPH, vPKV = 14, 15, 16, 17, 18
vT0, vT1, vT2 = 19, 20, 21
vPR2, vPR = 22, 23
RES = 24; XB = 40; vD3 = 248; vJ = 255
A0 = 256

k = Asm()
nmark = [0]; marks = []
TM = OPT.get("tm")
def mark(name):
    if OPT.get("cyc") and OPT["cyc"].split(":")[0] == name:
        L = k.lab("cy")
        if name not in ("first", "start", "xload", "init", "end"): k(f"s_cmp_lg_u32 {s(sLAY)}, {OPT['cyc'].split(':')[1]}\ns_cbranch_scc1 {L}")
        k(f"s_memtime s[96:97]\n{L}:\ns_waitcnt lgkmcnt(0)"); k.lg.clear()
    if TM and TM.split(":")[0] == name:
        L = k.lab("tm")
        if name not in ("first", "start", "xload", "init", "end"): k(f"s_cmp_lg_u32 {s(sLAY)}, {TM.split(':')[1]}\ns_cbranch_scc1 {L}")
        k(f"s_memrealtime s[92:93]\n{L}:\ns_waitcnt lgkmcnt(0)"); k.lg.clear()
    if not PROF or name == "first": return
    k(f"s_memtime {s(sPT,2)}\ns_waitcnt lgkmcnt(0)\nv_writelane_b32 {v(vPR)}, {s(sPT)}, {nmark[0]}")
    k.lg.clear(); marks.append(name); nmark[0] += 1

def srd(d, nbytes):
    k(f"s_mov_b32 {s(d+2)}, {nbytes}\ns_mov_b32 {s(d+3)}, 0x20000")

def barrier():
    k.wait(lg="all"); k("s_barrier")

def poll(va):
    L = k.lab("poll")
    k(f"s_mov_b32 {s(sCNT)}, 0x8000\n{L}:")
    k.vmem(f"buffer_load_dwordx2 {v(vT1,2)}, {v(va)}, {s(FLG,4)}, 0 offen sc1")
    k(f"s_sub_u32 {s(sCNT)}, {s(sCNT)}, 1\ns_cbranch_scc1 bail")
    k.wait(vm="all")
    k(f"v_cmp_ne_u64 vcc, {s(sV,2)}, {v(vT1,2)}\ns_cbranch_vccnz {L}")

cold = []
def dual(stores, spure):
    La, Lb = k.lab("sc"), k.lab("scb")
    k(f"s_cmp_eq_u32 {s(spure)}, 0\ns_cbranch_scc1 {La}")
    for t in stores: k.vmem(t, "pub")
    k(f"{Lb}:")
    cold.extend([f"{La}:"] + [t + " sc1" for t in stores] + [f"s_branch {Lb}"])

def flag(saddr, spure):
    k(f"s_add_u32 {s(sV)}, {s(sV)}, 1\nv_mov_b32 {v(vT2)}, {s(sV+1)}\nv_mov_b32 {v(vT1)}, {s(sV)}\ns_mov_b64 exec, 1")
    t = f"buffer_store_dwordx2 {v(vT1,2)}, off, {s(FLG,4)}, {s(saddr)}"
    k.wait(vm="pub")
    if spure is None: k.vmem(t + " sc1")
    else: dual([t], spure)
    k("s_mov_b64 exec, -1")

def touch(tmp, h):
    k(f"v_mad_u32_u24 {v(tmp)}, v0, {s(sPR+1)}, {v(vA16)}")
    if not h:
        k.vmem(f"buffer_load_dword {v(vJ)}, {v(tmp)}, {s(ACT,4)}, {s(sPR)} offen sc1", "pre")
        return
    k(f"""v_lshl_add_u32 {v(tmp)}, {s(sNT)}, 11, {v(tmp)}
    s_sub_u32 {s(sT0)}, {s(sFH)}, {FO + 2048}
    s_mov_b32 {s(sT1)}, {FO}
    s_mov_b32 exec_hi, 0
    s_mov_b32 exec_lo, 0xffff0000
    v_add_u32 {v(tmp)}, {s(sT0)}, {v(tmp)}
    s_mov_b32 exec_lo, -1""")
    k.vmem(f"buffer_load_dword {v(vJ)}, {v(tmp)}, {s(ACT,4)}, {s(sT1)} offen sc1", "pre")
    k("s_mov_b64 exec, -1")

def code_touch(tmp, first):
    L = k.lab("pc")
    k(f"s_getpc_b64 {s(sT0,2)}\n{L}:")
    if first:
        n = P("cn", 9)
        k(f"""s_lshr_b32 {s(sT2)}, s2, 3
        s_mul_i32 {s(sT2)}, {s(sT2)}, {9*128}
        v_lshl_add_u32 {v(tmp)}, v0, 7, {s(sT2)}
        v_min_u32 {v(tmp)}, text_end-{L}-4, {v(tmp)}
        v_mov_b32 {v(tmp+2)}, {s(sT1)}
        v_add_co_u32 {v(tmp+1)}, vcc, {s(sT0)}, {v(tmp)}
        v_addc_co_u32 {v(tmp+2)}, vcc, 0, {v(tmp+2)}, vcc
        v_cmp_gt_u32 vcc, {n}, v0
        s_or_b32 vcc_lo, vcc_lo, 1
        s_mov_b64 exec, vcc
        global_load_dword {v(vJ)}, {v(tmp+1,2)}, off
        s_mov_b64 exec, -1""")
        return
    k(f"""s_lshr_b32 {s(sT2)}, s2, 3
    s_lshl2_add_u32 {s(sT2)}, {s(sT2)}, {s(sW)}
    s_lshl_b32 {s(sT2)}, {s(sT2)}, 8
    v_lshl_add_u32 {v(tmp)}, v0, 7, {s(sT2)}
    v_min_u32 {v(tmp)}, text_end-{L}-4, {v(tmp)}
    v_mov_b32 {v(tmp+2)}, {s(sT1)}
    v_add_co_u32 {v(tmp+1)}, vcc, {s(sT0)}, {v(tmp)}
    v_addc_co_u32 {v(tmp+2)}, vcc, 0, {v(tmp+2)}, vcc
    s_mov_b64 exec, 3
    global_load_dword {v(vJ)}, {v(tmp+1,2)}, off
    s_mov_b64 exec, -1""")

def pref(loc, tmp):
    sm = [w for w, o in ((WO, "pfo"), (W1, "pf1"), (W2, "pf1")) if P(o, P("pf", 3)) == loc]
    lg = [w for w, o in ((W3, "pf3"), (W4, "pf4")) if P(o, P("pf", 3)) == loc]
    if not sm and not lg: return
    k(f"s_lshl2_add_u32 {s(sM1)}, s2, {s(sW)}\nv_lshlrev_b32 {v(tmp)}, 6, v0\ns_mul_i32 {s(sM2)}, {s(sM1)}, 1792\ns_lshl_b32 {s(sM1)}, {s(sM1)}, 9\ns_mov_b32 exec_hi, 0")
    if loc > 1: k(f"s_cmp_eq_u32 {s(sLAY)}, 0")
    for ws_, m, so in ((sm, 0xff, sM1), (lg, 0xfffffff, sM2)):
        if ws_: k(f"s_cselect_b32 exec_lo, {m}, 1" if loc > 1 else f"s_mov_b32 exec_lo, {m}")
        for w in ws_: k.vmem(f"buffer_load_dword {v(vJ)}, {v(tmp)}, {s(w,4)}, {s(so)} offen")
    k("s_mov_b64 exec, -1")

bgq = []
def bg(n=1):
    for _ in range(min(n, len(bgq))): bgq.pop(0)()

def qB(w, groups):
    for n, (g, lds) in enumerate(groups):
        def f(n=n, g=g, lds=lds):
            p = groups[n-1] if n else None
            if p and lds - p[1] == 4096: k(f"s_add_u32 m0, m0, {s(s4K)}")
            else: k(f"s_add_u32 m0, {s(sW1K)}, {lds}")
            if p and g - p[0] == 1: k(f"s_add_u32 {s(sOFF)}, {s(sOFF)}, {s(s32K)}")
            else: k(f"s_mov_b32 {s(sOFF)}, {g*32768}")
            k.vmem(f"buffer_load_dwordx4 {v(vDB)}, {s(w,4)}, {s(sOFF)} offen lds", "dma")
        bgq.append(f)

def qQ(lo, hi):
    for n in range(lo, hi):
        def f0(n=n):
            k(f"s_xor_b32 m0, {s(sQB)}, {n*4096}\ns_xor_b32 {s(sOFF)}, {s(sG0)}, {n}\ns_mul_i32 {s(sOFF)}, {s(sOFF)}, {64*3072}")
            k.vmem(f"buffer_load_dwordx4 {v(vDQ)}, {s(WQ,4)}, {s(sOFF)} offen lds", "dma")
        bgq.append(f0)

def qKV(lo, hi):
    for n in range(lo, hi):
        def f1(n=n):
            k(f"s_xor_b32 m0, {s(sQA)}, {n*8192}\ns_xor_b32 {s(sOFF)}, {s(sG0)}, {n}\ns_mul_i32 {s(sOFF)}, {s(sOFF)}, {64*3072}\ns_bitset1_b32 {s(sOFF)}, 10")
            k.vmem(f"buffer_load_dwordx4 {v(vDQ)}, {s(WQ,4)}, {s(sOFF)} offen lds", "dma")
        def f2():
            k.vmem(f"buffer_load_dwordx4 {v(vDQ)}, {s(WQ,4)}, {s(sOFF)} offen offset:1024 lds", "dma")
        bgq.extend([f1, f2])

def q3(quads):
    for q in quads:
        for p in range(7):
            def f(q=q, p=p):
                if p == 0: k(f"s_add_u32 m0, {s(s3L)}, {W3Q[q]}\ns_add_u32 {s(sOFF)}, {s(s3G)}, {q*4*32*3584}")
                if p == 4: k(f"s_add_u32 m0, m0, {s(s4K)}\ns_add_u32 {s(sOFF)}, {s(sOFF)}, {s(s4K)}")
                k.vmem(f"buffer_load_dwordx4 {v(vD3+p)}, {s(W3,4)}, {s(sOFF)} offen offset:{(p%4)*1024} lds", "dma")
            bgq.append(f)

class Rec:
    def __enter__(self):
        self.n = len(k.L); self.q = []; self.g = len(k.lg); return self.q
    def __exit__(self, *a):
        self.q.extend(k.L[self.n:]); del k.L[self.n:]; del k.lg[self.g:]
def emit(q, n=999):
    for _ in range(min(n, len(q))):
        t = q.pop(0)
        if callable(t): t()
        elif t.startswith("ds_"): k.ds(t, "fill")
        else: k(t)

def rb_bases(vb, his):
    m = {0: vRB}
    for n, hi in enumerate(h for h in his if h):
        m[hi] = [vb + 4*n + f for f in range(4)]
        for f in range(4): k(f"v_add_u32 {v(m[hi][f])}, {hi*65536}, {v(vRB[f])}")
    return m

def rd_fragB(dst, lds, fb, bases, tag):
    hi = lds // 65536
    for j in range(2):
        k.ds(f"ds_read_b64_tr_b16 {r(dst+2*j,2)}, {v(bases[hi][fb])} offset:{lds%65536 + j*2048}", tag)

def fill(slots, dst, bases):
    for i in range(len(slots)*4): rd_fragB(dst + 4*i, slots[i//4], i % 4, bases, "fill")

def mix(q, per, nbg):
    while q or nbg > 0:
        if nbg > 0: bg(); nbg -= 1
        emit(q, per)

def pk(op, d, a_, b_, c_=None, bsel=None, csel=None):
    n = 3 if c_ is not None else 2
    t = f"v_pk_{op}_f32 {d}, {a_}, {b_}" + (f", {c_}" if c_ is not None else "")
    if bsel is not None:
        lo = [0]*n; hi = [1]*n; lo[1] = bsel; hi[1] = bsel
        if csel is not None: lo[2] = csel; hi[2] = csel
        t += f" op_sel:[{','.join(map(str,lo))}] op_sel_hi:[{','.join(map(str,hi))}]"
    k(t)

def cvt(d, src, n):
    for i in range(n): k(f"v_cvt_pk_bf16_f32 {v(d+i)}, {v(src+2*i)}, {v(src+2*i+1)}")

def finish_stats(sq, out, two_level):
    a_, b_ = v(sq), v(sq+1)
    k(f"v_permlane32_swap_b32 {a_}, {b_}\nv_add_f32 {a_}, {a_}, {b_}\nv_mov_b32 {b_}, {a_}")
    if two_level: k(f"v_permlane16_swap_b32 {a_}, {b_}\nv_add_f32 {a_}, {a_}, {b_}\nv_mov_b32 {b_}, {a_}")
    k(f"v_permlane32_swap_b32 {a_}, {b_}\nv_mul_f32 {v(out+1)}, {f2u(-1/512)}, {a_}\nv_mul_f32 {b_}, {f2u(1/512)}, {b_}\n"
      f"v_fma_f32 {b_}, -{v(out+1)}, {v(out+1)}, {b_}\nv_max_f32 {v(out+2)}, 0, {b_}\nv_add_f32 {b_}, {f2u(1e-5)}, {v(out+2)}\n"
      f"v_rsq_f32 {v(out)}, {b_}")

def gelu_scale(rr, kk):
    k(f"v_rcp_f32 {v(kk+2)}, {v(rr)}\nv_mul_f32 {v(kk+1)}, {f2u(C1)}, {v(rr)}\nv_mul_f32 {v(kk)}, {v(rr)}, {v(rr)}\n"
      f"v_mul_f32 {v(kk)}, {f2u(0.044715)}, {v(kk)}\nv_mul_f32 {v(kk)}, {v(kk)}, {v(kk+1)}")

def pub_tile(src, field, stf, tmp):
    k(f"s_mov_b32 {s(sT0)}, {field}\ns_mov_b32 {s(sT1)}, {stf}")
    cvt(tmp, src, 8)
    dual([f"buffer_store_dwordx4 {v(tmp+4*i,4)}, {v(vP16)}, {s(ACT,4)}, {s(sT0)} offen offset:{1024*i}" for i in range(2)], sPURE)
    S, Q = tmp + 8, tmp + 10
    pk("add", v(S,2), v(src,2), v(src+2,2)); pk("mul", v(Q,2), v(src,2), v(src,2))
    for i in range(1, 8):
        if i > 1: pk("add", v(S,2), v(S,2), v(src+2*i,2))
        pk("fma", v(Q,2), v(src+2*i,2), v(src+2*i,2), v(Q,2))
    k(f"v_add_f32 {v(S)}, {v(S)}, {v(S+1)}\nv_add_f32 {v(S+1)}, {v(Q)}, {v(Q+1)}\n"
      f"v_permlane32_swap_b32 {v(S)}, {v(S+1)}\nv_add_f32 {v(S)}, {v(S)}, {v(S+1)}\nv_mov_b32 {v(S+1)}, {v(S)}\n"
      f"v_permlane16_swap_b32 {v(S)}, {v(S+1)}\nv_add_f32 {v(S)}, {v(S)}, {v(S+1)}")
    dual([f"buffer_store_dword {v(S)}, {v(vST)}, {s(ACT,4)}, {s(sT1)} offen"], sPURE)

def gelu(y, n, tmp, cs, rm, kk):
    Pr = range(0, n, 2)
    for i in Pr: pk("fma", v(y+i,2), v(cs+i,2), v(rm,2), v(y+i,2), bsel=1)
    for i in Pr: pk("mul", v(tmp+i,2), v(y+i,2), v(y+i,2))
    for i in Pr: pk("fma", v(tmp+i,2), v(tmp+i,2), v(kk,2), v(kk,2), bsel=0, csel=1)
    for i in Pr: pk("mul", v(tmp+i,2), v(tmp+i,2), v(y+i,2))
    for i in range(n): k(f"v_exp_f32 {v(tmp+i)}, {v(tmp+i)}")
    for i in Pr: pk("fma", v(tmp+i,2), v(tmp+i,2), v(kk+2,2), v(kk+2,2), bsel=0, csel=0)
    for i in range(n): k(f"v_rcp_f32 {v(tmp+i)}, {v(tmp+i)}")
    for i in Pr: pk("mul", v(y+i,2), v(y+i,2), v(tmp+i,2))

def sum_partials(n16, stride, dst, tmp, lo=0, PART=PART):
    k(f"v_min_u32 {v(vT0)}, {n16-1}, {v(vL)}\nv_lshlrev_b32 {v(vT0)}, 4, {v(vT0)}\nv_add_u32 {v(vT0)}, {PART + 16*lo}, {v(vT0)}")
    for i in range(4): k.ds(f"ds_read_b128 {v(tmp+4*i,4)}, {v(vT0)} offset:{i*stride}")
    k.wait(lg="all")
    for i in range(1, 4):
        for h in (0, 2): pk("add", v(tmp+h,2), v(tmp+h,2), v(tmp+4*i+h,2))
    k.ds(f"ds_write_b128 {v(vT0)}, {v(tmp,4)} offset:{dst-PART}")
    k.wait(lg="all")

def stop(n):
    if STOP == n: k("s_branch bail")

late = []
def prologue():
    k("s_cmp_ge_u32 s2, 0x100\ns_cbranch_scc1 bail")
    mark("first")
    for d, off in ((XO, 0), (WQ, 8), (FLG, 80)): k(f"s_load_dwordx2 {s(d,2)}, s[0:1], {off}")
    if P("cp", 3) & 1: code_touch(vT0, True); k.vm += [None]
    vXO = 56
    k(f"""v_lshrrev_b32 v1, 6, v0
    v_and_b32 v0, 63, v0
    v_readfirstlane_b32 {s(sW)}, v1
    s_and_b32 {s(sC)}, s2, 7
    s_lshr_b32 s3, s2, 3
    s_lshr_b32 {s(sNT)}, s2, 5
    s_and_b32 {s(sT1)}, s3, 3
    s_lshl2_add_u32 {s(sT1)}, {s(sT1)}, {s(sW)}
    s_lshl4_add_u32 {s(sTB16)}, {s(sC)}, {s(sT1)}
    v_and_b32 v57, 15, v0
    v_lshrrev_b32 v58, 4, v0
    s_lshl_b32 {s(sT0)}, {s(sTB16)}, 14
    s_lshl_b32 {s(sT1)}, {s(sNT)}, 7
    s_add_u32 {s(sT0)}, {s(sT0)}, {s(sT1)}
    v_lshlrev_b32 {v(vXO)}, 10, v57
    v_lshl_add_u32 {v(vXO)}, v58, 3, {v(vXO)}""")
    srd(XO, 2097152)
    k("s_waitcnt lgkmcnt(0)")
    mark("start")
    if PROF: k(f"s_memrealtime {s(sPT,2)}\ns_waitcnt lgkmcnt(0)\nv_writelane_b32 {v(vPR)}, {s(sPT)}, 62")
    for f in range(4):
        k.vmem(f"buffer_load_dwordx2 {v(64+2*f,2)}, {v(vXO)}, {s(XO,4)}, {s(sT0)} offen offset:{32*f}", "x")
    k(f"s_load_dwordx2 {s(sV,2)}, {s(FLG,2)}, {E_OFF}")
    for d, off in ((DBG, 72), (WO, 16), (W1, 32), (W2, 40), (W3, 48), (W4, 56), (sOUT, 64)):
        k(f"s_load_dwordx2 {s(d,2)}, s[0:1], {off}")
    srd(WQ, 1572864); srd(ACT, 128*R2)
    k(f"""s_add_u32 {s(ACT)}, {s(FLG)}, {ACT_OFF}
    s_addc_u32 {s(ACT+1)}, {s(FLG+1)}, 0
    s_mov_b32 {s(s2R)}, {R2}
    s_mul_i32 {s(sT3)}, {s(sTB16)}, {s(s2R)}""")
    if P("tw", 1): k.vmem(f"buffer_load_dword {v(vJ)}, off, {s(ACT,4)}, {s(sT3)} sc1")
    if P("tk", 0):
        k(f"""s_lshl2_add_u32 {s(sT1)}, s3, {s(sW)}
        s_mul_i32 {s(sT1)}, {s(sT1)}, 12288
        v_mul_u32_u24 v59, 3072, v58
        v_lshl_add_u32 v59, v57, 7, v59""")
        k.vmem(f"buffer_load_dword {v(vJ)}, v59, {s(WQ,4)}, {s(sT1)} offen offset:1024")
        if P("tk", 0) == 2:
            k("s_mov_b32 exec_lo, 0xff00ff\ns_mov_b32 exec_hi, 0xff00ff")
            k.vmem(f"buffer_load_dword {v(vJ)}, v59, {s(WQ,4)}, {s(sT1)} offen")
            k("s_mov_b64 exec, -1")
    k(f"""s_lshr_b32 {s(sHP)}, s2, 4
    s_and_b32 {s(sG0)}, s3, 3
    s_lshl_b32 {s(sG0)}, {s(sG0)}, 1
    s_and_b32 {s(sT1)}, s2, 1
    s_or_b32 {s(sG0)}, {s(sG0)}, {s(sT1)}
    s_lshl_b32 {s(sW1K)}, {s(sW)}, 10
    s_lshl_b32 {s(sQB)}, {s(sG0)}, 12
    s_add_u32 {s(sQB)}, {s(sQB)}, {s(sW1K)}
    s_lshl_b32 {s(sQA)}, {s(sQB)}, 1
    s_bitset1_b32 {s(sQB)}, 16
    v_lshrrev_b32 v59, 2, v0
    v_mul_u32_u24 v59, 3072, v59
    v_and_b32 v60, 3, v0
    v_lshl_add_u32 v59, v60, 4, v59
    s_mul_i32 {s(sT0)}, {s(sW)}, {16*3072}
    s_lshl_b32 {s(sT1)}, {s(sHP)}, 6
    s_add_u32 {s(sT0)}, {s(sT0)}, {s(sT1)}
    v_add_u32 {v(vDQ)}, {s(sT0)}, v59""")
    qKV(0, 3); bg(P("p0", 0))
    k(f"""s_and_b32 {s(sMT)}, s3, 1
    s_lshl_b32 {s(sT0)}, {s(sC)}, 3
    s_lshl_b32 {s(sT1)}, {s(sMT)}, 2
    s_add_u32 {s(sT0)}, {s(sT0)}, {s(sT1)}
    s_add_u32 {s(sTB32)}, {s(sT0)}, {s(sW)}
    s_add_u32 {s(sIT)}, {s(sTB32)}, {s(sW)}
    s_and_b32 {s(sT1)}, {s(sTB32)}, -2
    s_sub_u32 {s(sIT)}, {s(sIT)}, 8
    s_cselect_b32 {s(sIT)}, {s(sT1)}, {s(sIT)}
    s_min_u32 {s(sNTL)}, {s(sTB32)}, 8
    s_lshl_b32 {s(sNTL)}, {s(sNTL)}, 15
    s_mov_b32 {s(s4K)}, 4096
    s_mov_b32 {s(s8K)}, 8192
    s_mov_b32 {s(s12K)}, 12288
    s_mov_b32 {s(s32K)}, 32768
    v_lshlrev_b32 {v(vL16)}, 4, v0
    s_waitcnt lgkmcnt(0)""")
    for d, n in ((FLG, 0x20100), (DBG, 256), (WO, 524288), (W1, 524288), (W2, 524288), (W3, 1835008), (W4, 1835008)): srd(d, n)
    pref(1, 61)
    k(f"""s_mul_i32 {s(sT0)}, {s(sTB16)}, {s(s2R)}
    v_add_u32 {v(vA16)}, {s(sT0)}, {v(vL16)}
    s_lshl_b32 {s(sT1)}, {s(sNT)}, 11
    v_add_u32 {v(vP16)}, {s(sT1)}, {v(vA16)}
    s_lshr_b32 {s(sT1)}, {s(sNT)}, 1
    s_lshl_b32 {s(sT1)}, {s(sT1)}, 8
    s_add_u32 {s(sT0)}, {s(sT0)}, {s(sT1)}
    s_and_b32 {s(sT1)}, {s(sNT)}, 1
    s_lshl_b32 {s(sT1)}, {s(sT1)}, 3
    s_add_u32 {s(sT0)}, {s(sT0)}, {s(sT1)}
    v_lshrrev_b32 v59, 5, v0
    v_lshlrev_b32 v60, 4, v57
    v_lshl_add_u32 v61, v59, 2, v60
    v_add_u32 {v(vST)}, {s(sT0)}, v61
    s_mul_i32 {s(sT0)}, {s(sTB32)}, {2*R2}
    v_add_u32 {v(vA3)}, {s(sT0)}, {v(vL16)}
    v_and_b32 v61, 1, v58
    v_mul_u32_u24 v62, {R2}, v61
    v_lshl_add_u32 v62, v59, 8, v62
    v_add3_u32 {v(vA32)}, v62, v60, {s(sT0)}
    s_lshr_b32 {s(sT1)}, {s(sHP)}, 3
    s_mul_i32 {s(sT1)}, {s(sT1)}, {s(s2R)}
    s_and_b32 {s(sT2)}, {s(sHP)}, 7
    s_lshl_b32 {s(sT2)}, {s(sT2)}, 12
    s_add_u32 {s(sT1)}, {s(sT1)}, {s(sT2)}
    s_add_u32 {s(sT1)}, {s(sT1)}, {FKV_}
    s_add_u32 {s(sKVo)}, {s(sT0)}, {s(sT1)}
    s_mul_i32 {s(sT0)}, {s(sIT)}, {2*R2}
    s_add_u32 {s(sKVf)}, {s(sT0)}, {s(sT1)}""")
    k(f"""v_lshrrev_b32 v62, 2, v57
    v_and_b32 v63, 3, v0
    v_lshl_add_u32 v72, v59, 2, v62
    v_lshl_add_u32 v73, v61, 2, v63
    v_lshlrev_b32 v73, 3, v73
    v_lshl_add_u32 {v(vWq)}, v72, 6, v73
    v_lshl_add_u32 v72, v61, 2, v62
    v_lshlrev_b32 v73, 10, v59
    v_lshl_add_u32 v73, v72, 7, v73
    v_lshl_add_u32 v73, v63, 3, v73
    v_lshrrev_b32 v72, 1, v72
    v_lshl_add_u32 {v(vRB[0])}, v72, 5, v73
    v_xor_b32 {v(vRB[1])}, 32, {v(vRB[0])}
    v_xor_b32 {v(vRB[2])}, 64, {v(vRB[0])}
    v_xor_b32 {v(vRB[3])}, 0x60, {v(vRB[0])}
    v_lshrrev_b32 v72, 3, v0
    v_and_b32 v73, 7, v0
    v_lshlrev_b32 v74, 1, v58
    v_xor_b32 v74, v74, v73
    v_lshlrev_b32 v74, 4, v74
    v_lshl_add_u32 v74, v72, 10, v74
    s_lshl_b32 {s(sT0)}, {s(sW)}, 13
    s_lshl_b32 {s(sT1)}, {s(sNT)}, 7
    s_add_u32 {s(sT0)}, {s(sT0)}, {s(sT1)}
    v_add_u32 {v(vDB)}, {s(sT0)}, v74""")
    k(f"""s_lshl_b32 {s(sT3)}, {s(sC)}, 13
    s_and_b32 {s(sT0)}, {s(sTB16)}, 15
    s_lshl_b32 {s(sT1)}, {s(sT0)}, 7
    s_add_u32 {s(sT1)}, {s(sT1)}, {s(sT3)}
    v_lshl_add_u32 {v(vPB16)}, v73, 3, {s(sT1)}
    s_lshl_b32 {s(sT2)}, {s(sNT)}, 3
    s_add_u32 {s(sFBo)}, {s(sT1)}, {s(sT2)}
    s_add_u32 {s(sFHo)}, {s(sFBo)}, {GH}
    s_lshr_b32 {s(sT0)}, {s(sT0)}, 1
    s_lshl_b32 {s(sT0)}, {s(sT0)}, 7
    s_add_u32 {s(sT0)}, {s(sT0)}, {s(sT3)}
    s_add_u32 {s(sT0)}, {s(sT0)}, {GA}
    v_lshl_add_u32 {v(vPA)}, v57, 3, {s(sT0)}
    s_and_b32 {s(sT0)}, {s(sTB32)}, 7
    s_lshl_b32 {s(sT1)}, {s(sT0)}, 8
    s_add_u32 {s(sT1)}, {s(sT1)}, {s(sT3)}
    v_and_b32 v74, 1, v72
    v_lshlrev_b32 v74, 7, v74
    v_lshl_add_u32 v74, v73, 3, v74
    v_add_u32 {v(vPB32)}, {s(sT1)}, v74
    s_lshl_b32 {s(sT1)}, {s(sT0)}, 7
    s_lshl_b32 {s(sT2)}, {s(sHP)}, 3
    s_add_u32 {s(sT1)}, {s(sT1)}, {s(sT2)}
    s_add_u32 {s(sT1)}, {s(sT1)}, {s(sT3)}
    s_add_u32 {s(sFAo)}, {s(sT1)}, {GA}
    s_lshl_b32 {s(sT2)}, {s(sHP)}, 7
    s_add_u32 {s(sT2)}, {s(sT2)}, {GKV}
    s_lshl_b32 {s(sT0)}, {s(sT0)}, 3
    s_add_u32 {s(sT0)}, {s(sT0)}, {s(sT2)}
    s_add_u32 {s(sFKVo)}, {s(sT0)}, {s(sT3)}
    s_lshr_b32 {s(sT0)}, {s(sIT)}, 3
    s_lshl_b32 {s(sT0)}, {s(sT0)}, 13
    s_add_u32 {s(sT2)}, {s(sT2)}, {s(sT0)}
    s_and_b32 {s(sT0)}, {s(sIT)}, 7
    s_lshl_b32 {s(sT0)}, {s(sT0)}, 3
    s_add_u32 {s(sT2)}, {s(sT2)}, {s(sT0)}
    v_and_b32 v74, 1, v0
    v_lshl_add_u32 {v(vPKV)}, v74, 3, {s(sT2)}
    v_min_u32 v74, 2, v72
    s_sub_u32 {s(sT0)}, {s(sTB16)}, 1
    v_add_u32 v74, {s(sT0)}, v74
    v_max_i32 v74, 0, v74
    v_min_i32 v74, 0x7f, v74
    v_lshrrev_b32 v75, 4, v74
    v_and_b32 v74, 15, v74
    v_lshlrev_b32 v75, 13, v75
    v_lshl_add_u32 v75, v74, 7, v75
    v_lshl_add_u32 v75, v73, 3, v75
    v_add_u32 {v(vPH)}, {GH}, v75
    s_and_b32 {s(sT0)}, {s(sHP)}, 1
    s_mul_i32 {s(sT1)}, {s(sHP)}, 7
    s_add_u32 {s(sT2)}, {s(sT1)}, {s(sT0)}
    s_lshl_b32 {s(sT2)}, {s(sT2)}, 9
    s_add_u32 {s(sH3p)}, {s(sT2)}, {FH3}
    s_mul_i32 {s(sT0)}, {s(sT0)}, {4096-8}
    s_add_u32 {s(sH3s)}, {s(sH3p)}, 3072
    s_sub_u32 {s(sH3s)}, {s(sH3s)}, {s(sT0)}
    s_mov_b32 {s(sLAY)}, 0
    s_mov_b32 {s(sFH)}, {FH_}
    s_mul_i32 {s(sPR)}, {s(sNT)}, 7168
    s_add_u32 {s(sPR)}, {s(sPR)}, {FH3}
    s_mov_b32 {s(sPR+1)}, 112
    s_mov_b32 {s(sPURE)}, 0
    s_mov_b32 {s(sPUREH)}, 0
    s_getreg_b32 {s(sT2)}, hwreg(HW_REG_XCC_ID, 0, 4)
    s_and_b32 {s(sT2)}, {s(sT2)}, 7
    s_lshl_b32 {s(sT2)}, {s(sT2)}, 3
    s_lshl_b64 {s(sXP,2)}, 32, {s(sT2)}
    s_add_u32 {s(sT0)}, {s(sTB16)}, 1
    s_and_b32 {s(sT0)}, {s(sT0)}, 14
    s_cselect_b32 {s(sEDG)}, 1, 0
    s_mul_i32 {s(s3L)}, {s(sW)}, 7168
    s_mul_i32 {s(s3G)}, {s(sW)}, {32*3584}
    s_mul_i32 {s(sT2)}, {s(sHP)}, 224
    s_add_u32 {s(s3G)}, {s(s3G)}, {s(sT2)}""")
    for q in range(7):
        k(f"v_add_u32 v72, {64*q}, v0\nv_mul_u32_u24 v72, 4682, v72\nv_lshrrev_b32 v72, 16, v72\n"
          f"v_mul_u32_u24 v72, 3360, v72\nv_add_u32 {v(vD3+q)}, v72, {v(vL16)}")
    if P("expb", 0):
        k(f"s_lshl_b32 {s(sT0)}, {s(sNT)}, 7\nv_subrev_u32 {v(vDB)}, {s(sT0)}, {v(vDB)}\ns_lshl_b32 {s(sT0)}, {s(sHP)}, 6\nv_subrev_u32 {v(vDQ)}, {s(sT0)}, {v(vDQ)}\n"
          f"s_and_b32 {s(sT0)}, {s(sHP)}, 12\ns_mul_i32 {s(sT0)}, {s(sT0)}, 224\ns_sub_u32 {s(s3G)}, {s(s3G)}, {s(sT0)}")
    if P("expa", 0):
        for w in (WQ, WO, W1, W2, W3, W4): k(f"s_mov_b32 {s(w+2)}, 0")
    k(f"s_xor_b32 {s(sV+1)}, {s(sV+1)}, 0x5bd1e995")
    bg(P("p1", 0) - P("p0", 0))
    late.extend(bgq); bgq.clear()
    k.wait(vm="x")
    for i in range(8):
        k(f"v_lshlrev_b32 {v(RES+2*i)}, 16, {v(64+i)}\nv_and_b32 {v(RES+2*i+1)}, 0xffff0000, {v(64+i)}")
    mark("xload")
    k(f"s_mov_b32 {s(XO)}, {s(sOUT)}\ns_mov_b32 {s(XO+1)}, {s(sOUT+1)}")

def selector(d):
    k(f"v_lshrrev_b32 {v(vT0)}, 2, v0\nv_xor_b32 {v(vT0)}, {v(vT0)}, v0\nv_and_b32 {v(vT0)}, 4, {v(vT0)}\n"
      f"v_cmp_eq_u32 vcc, 0, {v(vT0)}\nv_mov_b32 {v(vT0)}, 0x3f803f80\nv_cndmask_b32 {v(d)}, 0, {v(vT0)}, vcc")
    for i in range(1, 4): k(f"v_mov_b32 {v(d+i)}, {v(d)}")

def l0_only(fn):
    L = k.lab("l0")
    k(f"s_cmp_lg_u32 {s(sLAY)}, 0\ns_cbranch_scc1 {L}")
    fn()
    k(f"{L}:")

def x_pub():
    pub_tile(RES, FX, STX, 56)
    qKV(3, 8); bg(P("xa", 2))
    flag(sFBo, sPURE)
    mark("x.pub")
    def count():
        L = k.lab("cnt")
        k(f"""s_barrier
        s_cmp_lg_u32 {s(sW)}, 0
        s_cbranch_scc1 {L}
        s_lshr_b64 {s(sT0,2)}, {s(sXP,2)}, 5
        v_mov_b32 v56, {s(sT0)}
        v_mov_b32 v57, {s(sT1)}
        s_lshl_b32 {s(sT2)}, {s(sC)}, 5
        s_mov_b64 exec, 1
        buffer_atomic_add_x2 v[56:57], off, {s(DBG,4)}, {s(sT2)} sc1
        s_mov_b64 exec, -1
        {L}:""")
        n = len(k.vm)
        for f in late: f()
        del k.vm[n:]
    assert P("xa", 2) % 2 == 0 or not late
    l0_only(count)
    pref(2, vT0)
    if P("tf", 0):
        for va in (vPKV, vPA, vPH): k.vmem(f"buffer_load_dword {v(vJ)}, {v(va)}, {s(FLG,4)}, 0 offen sc1")
    bg(99)
    pref(3, vT0)

def qkv_att():
    AK, AV, AQ = 56, 72, 88
    FR = 104; CS = 128; STA = 160; RM = 168; PKD = 208
    vWq2, vCS, vV0, vV1, vKW = 240, 241, 242, 243, 244
    SEL = 196; QF = 200
    N0 = P("qn", 12)
    k(f"v_add_u32 {v(vWq2)}, 0x10000, {v(vWq)}")
    selector(SEL)
    k(f"""v_lshrrev_b32 {v(vT1)}, 5, v0
    v_lshlrev_b32 {v(vCS)}, 4, {v(vT1)}
    v_add_u32 {v(vCS)}, {CSQ}, {v(vCS)}
    v_lshlrev_b32 {v(vT1)}, 6, {v(vT1)}
    v_xor_b32 {v(vV0)}, {v(vT1)}, {v(vL16)}
    v_xor_b32 {v(vV1)}, 0x80, {v(vV0)}
    s_lshl_b32 {s(sT0)}, {s(sW)}, 12
    s_add_u32 {s(sT0)}, {s(sT0)}, {KVB + 8*4096}
    v_add_u32 {v(vKW)}, {s(sT0)}, {v(vL16)}
    v_add_u32 {v(vKW+1)}, {s(sT0)}, {v(vV0)}
    v_add_u32 {v(vKW+2)}, {s(sT0)}, {v(vV1)}
    s_mov_b32 {s(sT1)}, {STX}""")
    S0, S1, CM, MD, O0, O1 = 56, 72, 104, 40, 160, 176
    KF, VF, PP, LS, MX = 208, 216, 224, 232, 120
    vK, vVa, vVb, vDB2 = 192, 193, 194, 195
    k(f"""v_bfe_u32 {v(vT0)}, v0, 4, 1
    v_bfe_u32 {v(vK)}, v0, 1, 1
    v_lshl_add_u32 {v(vT0)}, {v(vT0)}, 1, {v(vK)}
    v_lshrrev_b32 {v(vK)}, 5, v0
    v_xor_b32 {v(vK)}, {v(vK)}, {v(vT0)}
    v_lshlrev_b32 {v(vT0)}, 9, {v(vT0)}
    v_lshl_add_u32 {v(vT0)}, {v(vK)}, 6, {v(vT0)}
    v_bfe_u32 {v(vK)}, v0, 2, 2
    v_lshl_add_u32 {v(vT0)}, {v(vK)}, 4, {v(vT0)}
    v_and_b32 {v(vK)}, 1, v0
    v_lshl_add_u32 {v(vT0)}, {v(vK)}, 3, {v(vT0)}
    v_lshl_add_u32 {v(vT0)}, {s(sW)}, 12, {v(vT0)}
    v_add_u32 {v(vVa)}, {KVB + 8*4096 + 2048}, {v(vT0)}
    v_xor_b32 {v(vVb)}, 0x80, {v(vVa)}
    v_lshlrev_b32 {v(vT0)}, v0, -2
    v_lshrrev_b32 {v(vK)}, 3, v0
    v_and_b32 {v(vK)}, 4, {v(vK)}
    v_lshrrev_b32 {v(vT0)}, {v(vK)}, {v(vT0)}
    v_subrev_u32 {v(vK)}, {s(s4K)}, {v(vKW)}
    v_add_u32 {v(vDB2)}, {8*32768}, {v(vDB)}""")
    for i in range(16): k(f"v_bfe_i32 {v(MD+i)}, {v(vT0)}, {8*(i//4)+i%4}, 1\nv_and_b32 {v(MD+i)}, {NEG}, {v(MD+i)}")
    def rdq(dst, sp, b, tag):
        G = sp // 4
        for j in range(2):
            w_ = 2*((sp//2) % 2) + j
            off = G*8192 + w_*2048 + (b-1)*1024 if b else G*4096 + w_*1024
            k.ds(f"ds_read_b64_tr_b16 {v(dst+2*j,2)}, {v(vWq if b else vWq2)} offset:{off + (sp % 2)*512}", tag)
    def ldx(sp):
        k.vmem(f"buffer_load_dwordx4 {a(4*sp,4)}, {v(vA32)}, {s(ACT,4)}, {SK[sp//8]} offen offset:{(sp%8)*512} sc1", ("x", sp))
    mark("q.pre")
    poll(vPB32)
    mark("q.poll")
    for i in range(2): k.vmem(f"buffer_load_dwordx4 {v(STA+4*i,4)}, {v(vA32)}, {s(ACT,4)}, {s(sT1)} offen offset:{512*i} sc1", "st")
    for sp in range(N0): ldx(sp)
    def colsum(bs):
        nb = len(bs)
        if bs[0]: k(f"v_lshl_add_u32 {v(vT1)}, {s(sW)}, 11, {v(vWq)}")
        else: k(f"v_add_u32 {v(vT1)}, {s(sW1K)}, {v(vWq2)}")
        for i in range(8*nb + 5):
            if i < 8*nb:
                G, b = i // nb, bs[i % nb]
                for j in range(2):
                    off = G*8192 + (b-1)*1024 if b else G*4096
                    k.ds(f"ds_read_b64_tr_b16 {v(FR+4*(i%6)+2*j,2)}, {v(vT1)} offset:{off + j*512}", ("c", i))
            m = i - 5
            if m >= 0:
                k.wait(lg=("c", m)); c = v(AK + 4*(m % 2), 4)
                k(f"{M16} {c}, {v(SEL,4)}, {v(FR+4*(m%6),4)}, {c if m >= 2 else 0}")
        k(f"s_mul_i32 {s(sT0)}, {s(sW)}, 384\ns_add_u32 {s(sT0)}, {s(sT0)}, {KVB}\nv_and_b32 {v(vT1)}, 31, v0\n"
          f"v_lshl_add_u32 {v(vT1)}, {v(vT1)}, 2, {s(sT0)}")
        if nb == 1: k(f"v_add_f32 {v(AK)}, {v(AK)}, {v(AK+4)}")
        for n, b in enumerate(bs): k.ds(f"ds_write_b32 {v(vT1)}, {v(AK+4*n)} offset:{b*128}")
        k.wait(lg="all")
    l0_only(lambda: colsum((1, 2)))
    k("s_barrier")
    l0_only(lambda: sum_partials(16, 384, CSQ, CS, 8, KVB))
    for sp in range(2):
        for b in (1, 2): rdq(FR + 8*sp + 4*(b-1), sp, b, ("w", sp))
    for b in (1, 2):
        for q in range(4): k.ds(f"ds_read_b128 {v(CS+16*(b-1)+4*q,4)}, {v(vCS)} offset:{b*128+q*32}", "cs")
    with Rec() as fq:
        for i in (0, 1): k(f"v_add_f32 {v(STA+i)}, {v(STA+i)}, {v(STA+2+i)}\nv_add_f32 {v(STA+4+i)}, {v(STA+4+i)}, {v(STA+6+i)}")
        for i in (0, 1): k(f"v_add_f32 {v(STA+i)}, {v(STA+i)}, {v(STA+4+i)}")
        finish_stats(STA, RM, False)
        k(f"v_mul_f32 {v(RM+1)}, {v(RM)}, {v(RM+1)}")
        for i in range(32): k(f"v_mul_f32 {v(CS+i)}, {v(RM+1)}, {v(CS+i)}")
    qQ(0, 8)
    for sp in range(32):
        k.wait(vm=("x", sp), lg=("w", sp))
        for b, acc in ((1, AK), (2, AV)):
            k(f"{M32} {v(acc,16)}, {v(FR+8*(sp%3)+4*(b-1),4)}, {a(4*sp,4)}, {v(acc,16) if sp else 0}")
            if b == 1:
                if sp + N0 < 32: ldx(sp + N0)
                else: bg()
            if sp + 2 < 32: rdq(FR + 8*((sp+2) % 3) + 4*(b-1), sp + 2, b, ("w", sp + 2))
            if sp >= 2: emit(fq, 1)
        if sp == 31 - N0: pref(4, vT0)
    assert not fq and not bgq
    pref(5, vT0)
    k(f"s_cmp_eq_u32 {s(sLAY)}, 0\ns_cselect_b32 {s(WQ+2)}, {s(WQ+2)}, 0")
    mark("q.kv")
    for t in range(4):
        for i in range(8*t, 8*t + 8, 2): pk("fma", v(AK+i,2), v(AK+i,2), v(RM,2), v(CS+i,2), bsel=0)
        cvt(PKD + 4*t, AK + 8*t, 4)
        k.vmem(f"buffer_store_dwordx4 {v(PKD+4*t,4)}, {v((vL16, vL16, vV0, vV1)[t])}, {s(ACT,4)}, {s(sKVo)} offen offset:{t*1024} sc1", "pub")
        k.ds(f"ds_write_b128 {v((vKW, vKW, vKW+1, vKW+2)[t])}, {v(PKD+4*t,4)} offset:{t*1024}", "kw")
    k.wait(vm="dma")
    l0_only(lambda: colsum((0,)))
    k("s_barrier")
    l0_only(lambda: sum_partials(8, 384, CSQ, CS, 0, KVB))
    def slot(n): return FR + 4*(n % 6)
    for sp in range(4): rdq(slot(sp), sp, 0, ("q", sp))
    qB(WO, [(g, g*4096) for g in range(16)])
    bg(2)
    with Rec() as f2:
        for q in range(4): k.ds(f"ds_read_b128 {v(CS+4*q,4)}, {v(vCS)} offset:{q*32}")
        k(f"""v_mul_f32 {v(RM)}, {f2u(0.25*LOG2E)}, {v(RM)}
        v_mul_f32 {v(RM+1)}, {f2u(0.25*LOG2E)}, {v(RM+1)}""")
        for i in range(16): k(f"v_mul_f32 {v(CS+i)}, {v(RM+1)}, {v(CS+i)}")
    f2.insert(6, lambda: k.wait(lg="fill"))
    for sp in range(32):
        k.wait(lg=("q", sp))
        k(f"{M32} {v(AQ,16)}, {v(slot(sp),4)}, {a(4*sp,4)}, {v(AQ,16) if sp else 0}")
        if sp + 4 < 32: rdq(slot(sp + 4), sp + 4, 0, ("q", sp + 4))
        if sp % 3 == 0: bg()
        else: emit(f2, 2)
        if sp == P("kvs", 99): flag(sFKVo, None)
    emit(f2)
    bg(2)
    for i in range(0, 16, 2): pk("fma", v(AQ+i,2), v(AQ+i,2), v(RM,2), v(CS+i,2), bsel=0)
    cvt(QF, AQ, 8)
    mark("q.q")
    stop(2)
    def qk(h, c): k(f"{M32} {v((S0,S1)[h],16)}, {v(KF+4*h,4)}, {v(QF+4*h,4)}, {v(c,16)}")
    def pv(h, u, first=False):
        O = v((O0, O1)[h], 16)
        k(f"{M32} {O}, {v(VF+4*u,4)}, {v(PP+4*u,4)}, {0 if first else O}")
    def rs(h, u, first=False): k(f"{M16} {v(LS+4*h,4)}, {v(SEL,4)}, {v(PP+4*u,4)}, {0 if first else v(LS+4*h,4)}")
    def rdV(u):
        for j, va in enumerate((vVa, vVb)): k.ds(f"ds_read_b64_tr_b16 {v(VF+4*u+2*j,2)}, {v(va)} offset:{u*256}", ("v", u))
    def rdK(h): k.ds(f"ds_read_b128 {v(KF+4*h,4)}, {v(vK)} offset:{h*1024}", ("k", h))
    def dec(*rs_):
        for x in rs_: k(f"v_subrev_u32 {v(x)}, {s(s4K)}, {v(x)}")
    def blk(h, u, at):
        S = (S0, S1)[h] + 8*u
        for i in range(12):
            if i in at: at[i]()
            if i < 8: k(f"v_exp_f32 {v(S+i)}, {v(S+i)}")
            else: cvt(PP + 4*u + i - 8, S + 2*(i-8), 1)
    qk(0, MD); rdV(0); rdV(1); bg(); qk(1, MD); dec(vVa, vVb)
    for i in range(16): k(f"v_mov_b32 {v(CM+i)}, 0")
    if P("kvf", 0) == 0 and P("kvs", 99) > 31: flag(sFKVo, None)
    pref(6, vT0)
    blk(0, 0, {2: bg, 6: bg})
    if P("kvf", 0) == 1: flag(sFKVo, None)
    blk(0, 1, {2: lambda: (k.wait(lg="all"), pv(0, 0, True)), 5: lambda: rs(0, 0, True), 7: bg})
    blk(1, 0, {2: lambda: pv(0, 1), 5: lambda: rs(0, 1), 7: bg})
    bg(99)
    k(f"v_lshlrev_b32 {v(vT0)}, 5, v0")
    k.vmem(f"buffer_load_dwordx2 {v(MX,2)}, {v(vT0)}, {s(DBG,4)}, 0 offen sc1")
    mark("a.diag")
    poll(vPKV)
    mark("a.poll")
    k(f"s_lshl_b32 {s(sT0)}, {s(sW)}, 13\ns_add_u32 m0, {s(sT0)}, {KVB}\ns_mov_b32 {s(sOFF)}, {s(sKVf)}")
    for t in range(2):
        for i in range(4):
            def f(t=t, i=i):
                if t and not i: k(f"s_add_u32 m0, m0, {s(s4K)}\ns_add_u32 {s(sOFF)}, {s(sOFF)}, {2*R2}")
                k.vmem(f"buffer_load_dwordx4 {v(vL16)}, {s(ACT,4)}, {s(sOFF)} offen offset:{i*1024} sc1 lds", "kv")
            bgq.append(f)
    bg(P("ka", 3))
    k(f"v_readlane_b32 {s(sT0)}, {v(MX)}, {s(sC)}\nv_readlane_b32 {s(sT1)}, {v(MX+1)}, {s(sC)}\ns_barrier")
    with Rec() as fq: fill([g*4096 for g in range(16)], A0, {0: vRB})
    mix(fq, 8, 8)
    k(f"""s_cmp_eq_u64 {s(sT0,2)}, {s(sXP,2)}
    s_cselect_b32 {s(sPURE)}, 1, 0
    s_and_b32 {s(sPUREH)}, {s(sPURE)}, {s(sEDG)}
    s_add_u32 {s(sT0)}, s2, {s(sW)}
    s_cmp_lt_u32 {s(sT0)}, {s(sLAY)}
    s_cbranch_scc1 epoch
    epoch_b:
    s_mov_b32 m0, {s(sW1K)}
    s_mov_b32 {s(sOFF)}, 0""")
    cold.extend(f"""epoch:
    s_mov_b32 {s(sCNT)}, 0x8000
    epoch_l:
    buffer_load_dwordx2 {v(MX,2)}, {v(vT0)}, {s(DBG,4)}, 0 offen sc1
    s_sub_u32 {s(sCNT)}, {s(sCNT)}, 1
    s_cbranch_scc1 bail
    s_waitcnt vmcnt(0)
    v_sad_u8 {v(MX)}, {v(MX)}, 0, 0
    v_sad_u8 {v(MX)}, {v(MX+1)}, 0, {v(MX)}
    v_cmp_ne_u32 vcc, 32, {v(MX)}
    s_and_b32 {s(sT0)}, vcc_lo, 0xff
    s_cbranch_scc1 epoch_l
    s_add_u32 {s(sT0)}, {s(sV)}, 7
    v_mov_b32 {v(MX)}, {s(sT0)}
    s_mov_b32 {s(sT0)}, {E_OFF}
    s_mov_b64 exec, 1
    buffer_store_dword {v(MX)}, off, {s(FLG,4)}, {s(sT0)} sc1
    s_mov_b64 exec, -1
    s_branch epoch_b""".split("\n"))
    k.wait(vm="all")
    barrier()
    mark("a.kv")
    if P("t1", 1): touch(vT0, True)
    pref(7, vT0)
    if P("cp", 3) & 2: l0_only(lambda: code_touch(vT0, False))
    rdK(0); rdK(1); dec(vK)
    blk(1, 1, {0: lambda: pv(1, 0, True), 3: lambda: rs(1, 0, True), 6: lambda: (k.wait(lg="all"), qk(0, CM))})
    def dma(n):
        k.vmem(f"buffer_load_dwordx4 {v(vDB2 if n == 1 else vDB)}, {s(W2 if n == 2 else W1,4)}, {s(sOFF)} offen lds", "dma")
        if n < 2: k(f"s_add_u32 m0, m0, {s(s32K)}")
        else: k(f"s_sub_u32 m0, m0, {65536 - 4096}\ns_add_u32 {s(sOFF)}, {s(sOFF)}, {s(s32K)}")
    def setcm():
        k(f"s_cmp_eq_u32 {s(sOFF)}, {6*32768}\ns_cbranch_scc1 att_cm\natt_cmb:")
    cold.extend(["att_cm:"] + [f"v_xor_b32 {v(CM+i)}, {NEG}, {v(MD+i)}" for i in range(16)] + ["s_branch att_cmb"])
    k(f"s_cmp_eq_u32 {s(sNTL)}, 0\ns_cbranch_scc1 att_e\natt_l:")
    blk(0, 0, {0: lambda: (qk(1, CM), rdV(0), rdK(0)), 3: lambda: pv(1, 1), 6: lambda: rs(1, 1), 8: lambda: dma(0)})
    blk(0, 1, {0: lambda: (rdV(1), rdK(1)), 1: lambda: (k.wait(lg=("k", 0)), pv(0, 0)), 4: lambda: rs(0, 0), 6: setcm, 8: lambda: dma(1)})
    blk(1, 0, {0: lambda: qk(0, CM), 3: lambda: (k.wait(lg="all"), pv(0, 1)), 6: lambda: rs(0, 1)})
    blk(1, 1, {0: lambda: dec(vK, vVa), 1: lambda: pv(1, 0), 4: lambda: rs(1, 0), 6: lambda: dec(vVb), 8: lambda: dma(2)})
    k(f"s_cmp_lt_u32 {s(sOFF)}, {s(sNTL)}\ns_cbranch_scc1 att_l\natt_e:")
    pv(1, 1); rs(1, 1)
    k(f"s_cmp_lt_u32 {s(sOFF)}, {8*32768}\ns_cbranch_scc1 att_r\natt_rb:")
    with Rec() as q:
        k("att_r:")
        for n in range(3): dma(n)
        k(f"s_cmp_lt_u32 {s(sOFF)}, {8*32768}\ns_cbranch_scc1 att_r\ns_branch att_rb")
    cold.extend(q)
    mark("a.loop")
    k(f"""v_lshrrev_b32 {v(vT0)}, 5, v0
    v_lshl_add_u32 {v(vT0)}, {v(vT0)}, 8, {v(vA32)}
    s_lshl_b32 {s(sT0)}, {s(sHP)}, 10
    s_add_u32 {s(sT0)}, {s(sT0)}, {FO}""")
    pk("mul", v(MX,2), v(O0,2), 0)
    for i in range(2, 8, 2): pk("fma", v(MX,2), v(O0+i,2), 0, v(MX,2))
    for i in range(0, 8, 2): pk("fma", v(MX,2), v(O1+8+i,2), 0, v(MX,2))
    lo, hi = (127 - 48) << 23, (127 + 80) << 23
    k(f"""v_add_f32 {v(MX)}, {v(MX)}, {v(LS)}
    v_add_f32 {v(MX+1)}, {v(MX+1)}, {v(LS+4)}
    v_subrev_u32 {v(MX)}, {lo}, {v(MX)}
    v_subrev_u32 {v(MX+1)}, {lo}, {v(MX+1)}
    v_max_u32 {v(MX)}, {v(MX)}, {v(MX+1)}
    v_cmp_lt_u32 vcc, {hi - lo if not P("fb", 0) else 0}, {v(MX)}
    s_cbranch_vccnz att_x
    att_xb:
    v_rcp_f32 {v(MX)}, {v(LS)}
    v_rcp_f32 {v(MX+1)}, {v(LS+4)}""")
    C0, C1_ = 88, 104
    with Rec() as q:
        k("att_x:")
        def rk():
            rdK(0); rdK(1); dec(vK); k.wait(lg="all")
        def loop(name, body, last):
            k(f"v_mov_b32 {v(vK)}, {v(vKW)}\ns_mov_b32 {s(sIT)}, 0\n{name}:")
            rk(); qk(0, C0); qk(1, C1_)
            body()
            k(f"s_cmp_lg_u32 {s(sIT)}, {7*32768}\ns_cbranch_scc1 {name}_n")
            last()
            k(f"{name}_n:\ns_add_u32 {s(sIT)}, {s(sIT)}, {s(s32K)}\ns_cmp_le_u32 {s(sIT)}, {s(sNTL)}\ns_cbranch_scc1 {name}")
        def setc(mask):
            for i in range(16):
                if mask == "o": k(f"v_xor_b32 {v(C0+i)}, {NEG}, {v(MD+i)}")
                m = {"o": v(C0+i), "d": v(MD+i), "": 0}[mask]
                k(f"v_add_f32 {v(C1_+i)}, {m}, {v(MX+3)}\nv_add_f32 {v(C0+i)}, {m}, {v(MX+2)}")
        k(f"v_mov_b32 {v(MX)}, {NEG}\nv_mov_b32 {v(MX+1)}, {NEG}\nv_mov_b32 {v(MX+2)}, 0\nv_mov_b32 {v(MX+3)}, 0")
        setc("d")
        def p1():
            for h, S in enumerate((S0, S1)):
                for i in range(0, 16, 2): k(f"v_max3_f32 {v(MX+h)}, {v(MX+h)}, {v(S+i)}, {v(S+i+1)}")
            setc("")
        loop("att_x1", p1, lambda: setc("o"))
        k(f"""v_permlane32_swap_b32 {v(MX)}, {v(MX+1)}
        v_max_f32 {v(MX)}, {v(MX)}, {v(MX+1)}
        v_sub_f32 {v(MX+2)}, 0, {v(MX)}
        v_mov_b32 {v(MX+3)}, {v(MX+2)}
        v_permlane32_swap_b32 {v(MX+2)}, {v(MX+3)}
        s_lshr_b32 {s(sIT)}, {s(sNTL)}, 3
        s_add_u32 {s(sIT)}, {s(sIT)}, {s(s4K)}
        v_add_u32 {v(vVa)}, {s(sIT)}, {v(vVa)}
        v_add_u32 {v(vVb)}, {s(sIT)}, {v(vVb)}""")
        setc("d")
        for i in range(32): k(f"v_mov_b32 {v(O0+i)}, 0")
        for i in range(8): k(f"v_mov_b32 {v(LS+i)}, 0")
        def p2():
            rdV(0); rdV(1); dec(vVa, vVb); k.wait(lg="all")
            for h in range(2):
                for u in range(2): blk(h, u, {}); pv(h, u); rs(h, u)
            setc("")
        loop("att_x2", p2, lambda: setc("o"))
        k("s_branch att_xb")
    cold.extend(q)
    for i in range(0, 8, 2):
        pk("mul", v(O0+i,2), v(O0+i,2), v(MX,2), bsel=0); pk("mul", v(O1+8+i,2), v(O1+8+i,2), v(MX,2), bsel=1)
    for q in range(2):
        cvt(PP + 4*q, O0 + 4*q, 2); cvt(PP + 4*q + 2, O1 + 8 + 4*q, 2)
    dual([f"buffer_store_dwordx4 {v(PP+4*q,4)}, {v(vT0)}, {s(ACT,4)}, {s(sT0)} offen offset:{q*256}" for q in range(2)], sPURE)

BX = 56
def gemmB(acc, va, cinit, nxt=None, bases=None, fq=None, nbg=1):
    N0 = P("bn", 12)
    def ld(st):
        k.vmem(f"buffer_load_dwordx4 {v(BX+4*st,4)}, {v(va[st//4])}, {s(ACT,4)}, {SK[st//4]} offen offset:{(st%4)*1024} sc1", ("x", st))
    for st in range(N0): ld(st)
    for st in range(16):
        k.wait(vm=("x", st))
        for fb in range(4):
            c = v(acc + 4*fb, 4); n = 4*st + fb
            k(f"{M16} {c}, {a(4*n,4)}, {v(BX+4*st,4)}, {c if (st or cinit) else 0}")
            if fb == 0:
                if st + N0 < 16: ld(st + N0)
                elif st >= 8: bg(nbg)
            if nxt and n: rd_fragB(A0 + 4*(n-1), nxt[(n-1)//4], (n-1) % 4, bases, "fill")
            if fq and fb: emit(fq, 1)
    if fq: emit(fq)
    if nxt: rd_fragB(A0 + 4*63, nxt[15], 3, bases, "fill")

def wo_w1_w2():
    VB, TMP, vAD = 120, 128, 144
    ACC, CS1, ONES, STA, RM, KK, G0 = 160, 176, 192, 196, 200, 204, 208
    k(f"v_add_u32 {v(vAD)}, {FO}, {v(vA16)}")
    bases = rb_bases(VB, [0, 1])
    flag(sFAo, sPURE)
    mark("a.pub")
    stop(3)
    k("s_barrier")
    qB(W2, [(g, 64*KB + g*4096) for g in range(8, 16)]); q3([3])
    bg(P("ow", 6))
    poll(vPA)
    mark("wo.poll")
    gemmB(RES, [vAD]*4, True, [g*4096 for g in range(16)], bases)
    mark("wo.gemm")
    assert len(bgq) <= 7
    pub_tile(RES, FX2, STX2, TMP)
    bg(99)
    k(f"v_add_u32 {v(vAD)}, {FX2}, {v(vA16)}\ns_mov_b32 {s(sT3)}, {STX2}\nv_and_b32 {v(vT0)}, 0x30, v0\nv_add_u32 {v(vT0)}, {CS1L}, {v(vT0)}")
    k.wait(lg="all")
    def cs(lo, hi):
        if not lo:
            for i in range(4): k(f"v_mov_b32 {v(ONES+i)}, 0x3f803f80")
        for m in range(lo, hi):
            c = v(CS1 + 4*(m % 4), 4)
            k(f"{M16} {c}, {a(4*m,4)}, {v(ONES,4)}, {c if m >= 4 else 0}")
        if lo:
            for i in range(4): k(f"ds_write_b128 {v(vT0)}, {v(CS1+4*i,4)} offset:{64*i}")
    l0_only(lambda: cs(0, 24))
    flag(sFBo, sPURE)
    mark("wo.pub")
    stop(4)
    k("s_barrier")
    q3([0, 1]); bg(P("x2w", 4))
    l0_only(lambda: cs(24, 64))
    for i in range(4): k.ds(f"ds_read_b128 {v(CS1+4*i,4)}, {v(vT0)} offset:{64*i}", "fill")
    poll(vPB16)
    mark("w1.poll")
    k.vmem(f"buffer_load_dwordx4 {v(STA,4)}, {v(vA16)}, {s(ACT,4)}, {s(sT3)} offen sc1", "st")
    with Rec() as fq:
        for i in (0, 1): k(f"v_add_f32 {v(STA+i)}, {v(STA+i)}, {v(STA+2+i)}")
        finish_stats(STA, RM, True)
        k(f"v_mul_f32 {v(STA)}, {v(RM)}, {v(RM)}\nv_fmaak_f32 {v(STA)}, {v(STA)}, {v(RM+2)}, {f2u(1e-5)}\nv_rsq_f32 {v(STA)}, {v(STA)}\n"
          f"v_mul_f32 {v(RM+2)}, {v(RM)}, {v(RM+1)}\nv_mul_f32 {v(STA)}, {v(RM)}, {v(STA)}")
        gelu_scale(STA, KK)
    gemmB(ACC, [vAD]*4, False, [64*KB + g*4096 for g in range(16)], bases, fq)
    mark("w1.gemm")
    k.wait(lg="all")
    with Rec() as fq:
        gelu(ACC, 16, G0, CS1, RM, KK)
        cvt(TMP, ACC, 8)
    mix(fq, 24, 2)
    dual([f"buffer_store_dwordx4 {v(TMP+4*i,4)}, {v(vP16)}, {s(ACT,4)}, {s(sFH)} offen offset:{1024*i}" for i in range(2)], sPUREH)
    mark("w1.epi")
    k("s_barrier")
    qB(W4, [(g, W4S[g]) for g in range(11)]); q3([2])
    bg(P("ha", 4))
    for i in range(0, 16, 2): pk("fma", v(XB+i,2), v(RES+i,2), v(RM,2), v(RM+2,2), bsel=0, csel=0)
    T = G0
    k(f"s_lshl_b32 {s(sT0)}, {s(sTB16)}, 4\nv_and_b32 {v(T+3)}, 15, v0\nv_add_u32 {v(T+3)}, {s(sT0)}, {v(T+3)}\n"
      f"v_and_b32 {v(T+4)}, 0x300, {v(vL16)}\nv_add_u32 {v(T+4)}, {s(sFH)}, {v(T+4)}\nv_mov_b32 {v(T+2)}, 0x80000000")
    for i, d in enumerate((-1, 1, -2, 2)):
        k(f"""v_add_u32 {v(vT0)}, {d}, {v(T+3)}
        v_cmp_gt_u32 vcc, 0x800, {v(vT0)}
        v_lshrrev_b32 {v(T)}, 4, {v(vT0)}
        v_and_b32 {v(vT0)}, 15, {v(vT0)}
        v_mad_u32_u24 {v(T)}, {v(T)}, {s(s2R)}, {v(T+4)}
        v_lshl_add_u32 {v(T)}, {v(vT0)}, 4, {v(T)}
        v_cndmask_b32 {v(vAD+i)}, {v(T+2)}, {v(T)}, vcc""")
    flag(sFHo, sPUREH)
    mark("w1.pub")
    stop(5)
    bg(P("hw", 6))
    poll(vPH)
    mark("w2.poll")
    gemmB(XB, [vAD+i for i in range(4)], True)
    mark("w2.gemm")
    assert len(bgq) <= 7
    pub_tile(XB, FX1, STX1, TMP)
    bg(99)
    for i in range(0, 16, 2): pk("add", v(RES+i,2), v(RES+i,2), v(XB+i,2))

def w3_w4():
    ACC, FR, BX0, BX1 = 56, 112, 168, A0 + 176
    STA, RM, vW, vAD, KK, VB = 156, 240, 140, 146, 148, 232
    CS = 112
    k(f"""v_lshrrev_b32 {v(vT0)}, 2, v0
    v_mul_u32_u24 {v(vT0)}, 224, {v(vT0)}
    v_and_b32 {v(vT1)}, 3, v0
    v_lshl_add_u32 {v(vT0)}, {v(vT1)}, 3, {v(vT0)}
    s_and_b32 {s(sT0)}, {s(sHP)}, 1
    s_lshl_b32 {s(sT1)}, {s(sT0)}, 5
    s_mul_i32 {s(sT0)}, {s(sT0)}, 192
    s_sub_u32 {s(sT0)}, 192, {s(sT0)}
    v_add_u32 {v(vW)}, {s(sT1)}, {v(vT0)}
    v_add_u32 {v(vW+1)}, {s(sT0)}, {v(vT0)}
    v_add_u32 {v(vW+2)}, {W3H}, {v(vW)}
    v_add_u32 {v(vW+3)}, {W3H}, {v(vW+1)}
    v_add_u32 {v(vAD)}, {FX1}, {v(vA3)}
    v_add_u32 {v(vAD+1)}, {FX1 + R2}, {v(vA3)}
    s_mov_b32 {s(sT3)}, {STX1 - FX1}""")
    bases = rb_bases(VB, [0, 1, 2])
    flag(sFBo, sPURE)
    mark("w2.pub")
    stop(6)
    k("s_barrier")
    fill(W4S, A0, bases)
    def rd3(dst, base, st, b, tag):
        for j in range(2):
            off = (st % 8)*7168 + j*3584 + (b*32 if b < 6 else 0)
            k.ds(f"ds_read_b64_tr_b16 {v(dst+2*j,2)}, {v(base + 2*(st//8) + (b == 6))} offset:{off}", tag)
    mark("w3.fill")
    poll(vPB32)
    mark("w3.poll")
    for t in range(2): k.vmem(f"buffer_load_dwordx4 {v(STA+4*t,4)}, {v(vAD+t)}, {s(ACT,4)}, {s(sT3)} offen sc1", "st")
    for st in range(16):
        for t, B in enumerate((BX0, BX1)):
            bgq.append(lambda st=st, t=t, B=B: k.vmem(f"buffer_load_dwordx4 {r(B+4*st,4)}, {v(vAD+t)}, {s(ACT,4)}, {SK[st//4]} offen offset:{(st%4)*1024} sc1", ("x", st)))
    bg(P("n3", 10))
    k.wait(lg="all")
    def colsum():
        for i in range(4): k(f"v_add_u32 {v(XB+i)}, {s(s3L)}, {v(vW+i)}\nv_mov_b32 {v(XB+4+i)}, 0x3f803f80")
        for i in range(28 + 5):
            if i < 28: rd3(FR + 4*(i % 6), XB, 4*(i//7), i % 7, ("c", i))
            m = i - 5
            if m >= 0:
                k.wait(lg=("c", m)); c = v(ACC + 4*(m % 7), 4)
                k(f"{M16} {c}, {v(XB+4,4)}, {v(FR+4*(m%6),4)}, {c if m >= 7 else 0}")
        k(f"s_mul_i32 {s(sT0)}, {s(sW)}, 448\ns_add_u32 {s(sT0)}, {s(sT0)}, {PART}\nv_and_b32 {v(vT1)}, 15, v0\n"
          f"v_lshl_add_u32 {v(vT1)}, {v(vT1)}, 2, {s(sT0)}")
        for b in range(7): k.ds(f"ds_write_b32 {v(vT1)}, {v(ACC+4*b)} offset:{b*64}")
        k.wait(lg="all")
    l0_only(colsum)
    k("s_barrier")
    l0_only(lambda: sum_partials(28, 448, CS3, FR))
    qB(W4, [(11 + g, W4S[g]) for g in range(11)])
    if P("t3", 1): bgq.append(lambda: touch(vT1, False))
    D = 5
    for n in range(D): rd3(FR + 4*n, vW, 0, n, ("w", n))
    with Rec() as fq:
        for t in range(2):
            for i in (0, 1): k(f"v_add_f32 {v(STA+4*t+i)}, {v(STA+4*t+i)}, {v(STA+4*t+2+i)}")
            finish_stats(STA + 4*t, RM + 4*t, True)
            gelu_scale(RM + 4*t, KK + 4*t)
        k(f"v_and_b32 {v(vT0)}, 0x30, v0\nv_add_u32 {v(vT0)}, {CS3}, {v(vT0)}")
    for n in range(112):
        st, b = divmod(n, 7)
        k.wait(vm=("x", st), lg=("w", min(n + 1, 111)) if n % 2 == 0 else None)
        for t, B in enumerate((BX0, BX1)):
            c = v(ACC + 28*t + 4*b, 4)
            k(f"{M16} {c}, {v(FR+4*(n%7),4)}, {r(B+4*st,4)}, {c if st else 0}")
            if t == 0 and n + D < 112: rd3(FR + 4*((n+D) % 7), vW, (n+D)//7, (n+D) % 7, ("w", n + D))
            if t == 1:
                if n % 2 and bgq: bg()
                elif n % 2: emit(fq, 2)
                else: emit(fq, 1)
    assert not fq and not bgq
    mark("w3.gemm")
    k(f"v_add_u32 {v(vAD)}, {R2}, {v(vA3)}")
    for b in range(7): k.ds(f"ds_read_b128 {v(CS+4*b,4)}, {v(vT0)} offset:{b*64}")
    k.wait(vm="dma")
    barrier()
    mark("w3.bar")
    qB(W4, [(22 + g, W4C[g]) for g in range(28)])
    G0, PKD = 168, 196
    for t in range(2):
        A = ACC + 28*t
        with Rec() as fq:
            gelu(A, 28, G0, CS, RM + 4*t, KK + 4*t)
            cvt(PKD + 16*t, A, 14)
        mix(fq, 12, P("e0", 12) if t == 0 else P("e1", 8))
        va = vA3 if t == 0 else vAD
        dual([f"buffer_store_dwordx4 {v(PKD+16*t+4*p,4)}, {v(va)}, {s(ACT,4)}, {s(sH3p)} offen offset:{p*1024}" for p in range(3)] +
             [f"buffer_store_dwordx2 {v(PKD+16*t+12,2)}, {v(va)}, {s(ACT,4)}, {s(sH3s)} offen"], sPURE)
    mark("w3.epi")
    NR = 16
    RING, AR, BV, vH = 136, 200, 40, 240
    with Rec() as fq:
        fill(W4S[:5], A0 + 176, bases); fill(W4S[5:], BV, bases)
    nf = P("h3f", 56)
    f0 = fq[:nf]; mix(f0, 12, P("h3a", 4))
    for i in range(4): k(f"v_add_u32 {v(vH+i)}, {FH3 + i*16384}, {v(vA16)}")
    flag(sFAo, sPURE)
    mark("w3.pub")
    stop(7)
    mix(fq[nf:], 8, len(bgq))
    barrier()
    qB(W4, [(50 + g, W4S[g]) for g in range(6)]); bg(99)
    src = {}
    for g in range(16): src[g] = ("r", A0 + 16*g)
    for g in range(6): src[16+g] = ("r", BV + 16*g)
    for g in range(28): src[22+g] = ("l", W4C[g])
    for g in range(6): src[50+g] = ("l", W4S[g])
    regs = [g for g in range(56) if src[g][0] == "r"]
    lds = sorted((g for g in range(56) if src[g][0] == "l"), key=lambda g: src[g][1] >= 96*KB)
    order = []
    for i in range(56):
        order.append(regs.pop(0) if regs and (i < 2 or i % 5 in (1, 3) or not lds) else lds.pop(0))
    nlow = max(i for i, g in enumerate(order) if src[g][0] == "l" and src[g][1] < 96*KB) + 1
    assert sorted(order) == list(range(56)) and nlow <= 56 - NR
    TQ = P("tq", 6)
    if TQ:
        k(f"s_lshr_b32 {s(sT2)}, s2, 3\ns_lshl2_add_u32 {s(sT2)}, {s(sT2)}, {s(sW)}\ns_mul_i32 {s(sT2)}, {s(sT2)}, 12288\n"
          f"v_lshl_add_u32 {v(vH+4)}, v0, {int(math.log2(192//TQ))}, {s(sT2)}")
    tq = {P("tq0", 4) + n*P("tqs", 6): n*12288//TQ for n in range(TQ)}
    mark("w4.fill")
    poll(vPA)
    mark("w4.poll")
    def ldx(i):
        g = order[i]
        k.vmem(f"buffer_load_dwordx4 {v(RING+4*(i%NR),4)}, {v(vH+g//16)}, {s(ACT,4)}, {SK[(g//4)%4]} offen offset:{(g%4)*1024} sc1", ("x", i))
    N0 = P("n4", 12)
    for i in range(N0): ldx(i)
    k("s_barrier")
    lf = [(i, fb) for i in range(56) if src[order[i]][0] == "l" for fb in range(4)]
    pos = {x: n for n, x in enumerate(lf)}
    nxt = 0; used = 0
    for i in range(56):
        kind, loc = src[order[i]]
        if i == nlow + 2: k("s_barrier"); qKV(0, 3)
        for fb in range(4):
            if kind == "l":
                n = pos[(i, fb)]; A = v(AR + 4*(n % 8), 4)
                assert n + 1 - fb % 2 < nxt
                k.wait(vm=("x", i), lg=("w", n + 1) if fb % 2 == 0 else None)
            else:
                k.wait(vm=("x", i)); A = r(loc + 4*fb, 4)
            c = v(RES + 4*fb, 4)
            k(f"{M16} {c}, {A}, {v(RING+4*(i%NR),4)}, {c}")
            if fb == 0:
                if i + N0 < 56: ldx(i + N0)
                elif (55 - i) % 2 or N0 < 12: bg()
            if fb == 2 and i in tq: k.vmem(f"buffer_load_dword {v(vJ)}, {v(vH+4)}, {s(WQ,4)}, {SK[tq[i]//4096]} offen offset:{tq[i]%4096}")
            if nxt < len(lf) and nxt - used < 7:
                rd_fragB(AR + 4*(nxt % 8), src[order[lf[nxt][0]]][1], lf[nxt][1], bases, ("w", nxt)); nxt += 1
            if kind == "l": used += 1
    assert not bgq
    k.vm.clear(); k.vm.append("dma")
    mark("w4.gemm")

def final():
    k(f"""v_and_b32 v57, 15, v0
    v_lshrrev_b32 v58, 4, v0
    s_lshl_b32 {s(sT0)}, {s(sTB16)}, 14
    s_lshl_b32 {s(sT1)}, {s(sNT)}, 7
    s_add_u32 {s(sT0)}, {s(sT0)}, {s(sT1)}
    v_lshlrev_b32 v56, 10, v57
    v_lshl_add_u32 v56, v58, 3, v56""")
    cvt(64, RES, 8)
    for f in range(4): k(f"buffer_store_dwordx2 {v(64+2*f,2)}, v56, {s(XO,4)}, {s(sT0)} offen offset:{32*f}")

def main():
    prologue()
    k("layer:")
    k.vm.append("dma")
    n0 = nmark[0]
    x_pub()
    mark("x.dma")
    stop(1)
    qkv_att()
    wo_w1_w2()
    w3_w4()
    k(f"s_cmp_lg_u32 {s(sLAY)}, 0\ns_cbranch_scc1 done")
    k(f"s_mov_b32 {s(sLAY)}, 1\ns_bitset1_b32 {s(sFHo)}, 16\ns_bitset1_b32 {s(sFKVo)}, 16\nv_or_b32 {v(vPH)}, 0x10000, {v(vPH)}\nv_or_b32 {v(vPKV)}, 0x10000, {v(vPKV)}\n"
      f"s_add_u32 {s(sFH)}, {s(sFH)}, 0x4000\ns_add_u32 {s(sKVo)}, {s(sKVo)}, {s(s32K)}\ns_add_u32 {s(sKVf)}, {s(sKVf)}, {s(s32K)}")
    if PROF: k(f"v_mov_b32 {v(vPR2)}, {v(vPR)}")
    k("s_branch layer\ndone:")
    final()
    k("s_waitcnt vmcnt(0)")
    if OPT.get("cyc"):
        k("s_memtime s[94:95]\ns_memrealtime s[92:93]\ns_waitcnt lgkmcnt(0)\ns_sub_u32 s94, s94, s96\ns_lshr_b32 s96, s94, 3")
        k("cy_l:\ns_sleep 4\ns_memrealtime s[94:95]\ns_waitcnt lgkmcnt(0)\ns_sub_u32 s94, s94, s92\ns_cmp_lt_u32 s94, s96\ns_cbranch_scc1 cy_l")
    if TM:
        mark("end")
        if OPT.get("wb"): k("buffer_wbl2 sc1\ns_waitcnt vmcnt(0)")
        k("tm_l:\ns_sleep 4\ns_memrealtime s[94:95]\ns_waitcnt lgkmcnt(0)\ns_sub_u32 s94, s94, s92\ns_cmp_lt_u32 s94, 15000\ns_cbranch_scc1 tm_l")
    if PROF:
        mark("end")
        k(f"s_memrealtime {s(sPT,2)}\ns_waitcnt lgkmcnt(0)\nv_writelane_b32 {v(vPR)}, {s(sPT)}, 63")
        k(f"""s_add_u32 {s(DBG)}, {s(FLG)}, {PROF_OFF}
        s_addc_u32 {s(DBG+1)}, {s(FLG+1)}, 0
        s_mov_b32 {s(DBG+2)}, 0x100000
        s_lshl_b32 {s(sT0)}, s2, 2
        s_add_u32 {s(sT0)}, {s(sT0)}, {s(sW)}
        s_lshl_b32 {s(sT0)}, {s(sT0)}, 9
        v_lshlrev_b32 v56, 2, v0
        buffer_store_dword {v(vPR2)}, v56, {s(DBG,4)}, {s(sT0)} offen
        buffer_store_dword {v(vPR)}, v56, {s(DBG,4)}, {s(sT0)} offen offset:256""")
    k("bail:\ns_endpgm")
    for t in cold: k(t)
    k("text_end:")
    body, nn = fix_hazards(k.L)
    ref = open(f"cdna_kernels/{NAME}.s.ref").read().split("\n")
    hd = [l for l in ref[:ref.index(f"{NAME}_kernel:") + 1]]
    hd = ["; @launch grid=(256,1,1) block=(256,1,1) lds=163840" if l.startswith("; @launch") else l for l in hd]
    tl = ref[ref.index('.section .rodata,"a"'):]
    tl = [l.replace("next_free_vgpr 256", "next_free_vgpr 512") for l in tl]
    out = hd + [("" if t.endswith(":") else "    ") + t for t in body] + tl
    open(sys.argv[1], "w").write("\n".join(out))
    if PROF: open(sys.argv[1] + ".marks", "w").write(" ".join(marks))
    print("instructions", len(body), "nops", nn)

main()
```

```python
import sys, math, struct
from asmlib import *

NAME = "interleave_layers__sliding_block__mixer_s_mlp__prompt"
OPT = dict(x.split("=") if "=" in x else (x, "1") for x in sys.argv[2:])
PROF = int(OPT.get("prof", 0)); STOP = int(OPT.get("stop", 99))
KB = 1024
FX, FO, FX2, FH_, FX1, FKV_, FH3 = 0, 17*KB, 0, 73*KB, 0, 105*KB, 17*KB
STX, STX2, STX1 = 16*KB, 16*KB, 16*KB
R2 = 169*KB
ACT_OFF = 0x90000; PROF_OFF = 0x8000000; E_OFF = 0x80000
GB, GH, GA = 0, 2048, 4096
GH2, GKV = 0x10000, 0x20000
KVB = 110*KB; PQ = 108*KB; PART = 156*KB; CSQ = 158*KB; CS3 = 158*KB + 512; CS1L = 159*KB
W3A, W3H = 44*KB, 100*KB
W3Q = [W3A, W3A + 28*KB, W3H, W3H + 28*KB]
W4S = [g*4096 for g in range(11)]
W4C = [W3A + g*4096 for g in range(28)]
NEG = 0xf1800000
def P(name, d): return int(OPT.get(name, d))
def NT(b): return " nt" if P("nt", 0) & b else ""
M32 = "v_mfma_f32_32x32x16_bf16"; M16 = "v_mfma_f32_16x16x32_bf16"
def f2u(x): return "0x%08x" % struct.unpack("<I", struct.pack("<f", x))[0]
LOG2E = 1.4426950408889634
C1 = -2*math.sqrt(2/math.pi)*LOG2E; C2 = C1*0.044715

ACT, FLG, WQ, WO, W1, W2, W3, W4, XO, DBG = 4, 8, 12, 16, 20, 24, 28, 32, 36, 40
(sW, sC, sHP, sNT, sTB32, sTB16, sLAY, sPURE, sPUREH, s4K, s8K, s12K, s32K, s2R, sOFF, sCNT,
 sT0, sT1, sOUT, _o1, sV, _v1, sXP, _x1, sW1K, sFBo, sFHo, sFAo, sFKVo, sKVo, sKVf, sNTL,
 sT2, sT3, sH3p, sH3s, sIT, sMT, sG0, sQA, sQB, sM1, sM2, s3L, s3G, sEDG) = range(44, 90)
sPT = 90; sFH = 98; sPR = 99
SK = [0, s(s4K), s(s8K), s(s12K)]
(vL, vA16, vP16, vA32, vA3, vST, vDB, vDQ) = range(0, 8)
vRB = [8, 9, 10, 11]; vWq = 12; vL16 = 13
vPB32, vPB16, vPA, vPH, vPKV = 14, 15, 16, 17, 18
vT0, vT1, vT2 = 19, 20, 21
vPR2, vPR = 22, 23
RES = 24; XB = 40; vD3 = 248; vJ = 255
A0 = 256

k = Asm()
nmark = [0]; marks = []
TM = OPT.get("tm")
def mark(name):
    if OPT.get("cyc") and OPT["cyc"].split(":")[0] == name:
        L = k.lab("cy")
        if name not in ("first", "start", "xload", "init", "end"): k(f"s_cmp_lg_u32 {s(sLAY)}, {OPT['cyc'].split(':')[1]}\ns_cbranch_scc1 {L}")
        k(f"s_memtime s[96:97]\n{L}:\ns_waitcnt lgkmcnt(0)"); k.lg.clear()
    if TM and TM.split(":")[0] == name:
        L = k.lab("tm")
        if name not in ("first", "start", "xload", "init", "end"): k(f"s_cmp_lg_u32 {s(sLAY)}, {TM.split(':')[1]}\ns_cbranch_scc1 {L}")
        k(f"s_memrealtime s[92:93]\n{L}:\ns_waitcnt lgkmcnt(0)"); k.lg.clear()
    if not PROF or name == "first": return
    k(f"s_memtime {s(sPT,2)}\ns_waitcnt lgkmcnt(0)\nv_writelane_b32 {v(vPR)}, {s(sPT)}, {nmark[0]}")
    k.lg.clear(); marks.append(name); nmark[0] += 1

def srd(d, nbytes):
    k(f"s_mov_b32 {s(d+2)}, {nbytes}\ns_mov_b32 {s(d+3)}, 0x20000")

def barrier():
    k.wait(lg="all"); k("s_barrier")

def poll(va):
    L = k.lab("poll")
    k(f"s_mov_b32 {s(sCNT)}, 0x8000\n{L}:")
    k.vmem(f"buffer_load_dwordx2 {v(vT1,2)}, {v(va)}, {s(FLG,4)}, 0 offen sc1")
    k(f"s_sub_u32 {s(sCNT)}, {s(sCNT)}, 1\ns_cbranch_scc1 bail")
    k.wait(vm="all")
    k(f"v_cmp_ne_u64 vcc, {s(sV,2)}, {v(vT1,2)}\ns_cbranch_vccnz {L}")

cold = []
def dual(stores, spure):
    La, Lb = k.lab("sc"), k.lab("scb")
    k(f"s_cmp_eq_u32 {s(spure)}, 0\ns_cbranch_scc1 {La}")
    for t in stores: k.vmem(t, "pub")
    k(f"{Lb}:")
    cold.extend([f"{La}:"] + [t + " sc1" for t in stores] + [f"s_branch {Lb}"])

def flag(saddr, spure, line=None):
    k(f"s_add_u32 {s(sV)}, {s(sV)}, 1\nv_mov_b32 {v(vT2)}, {s(sV+1)}\nv_mov_b32 {v(vT1)}, {s(sV)}")
    t = f"buffer_store_dwordx2 {v(vT1,2)}, off, {s(FLG,4)}, {s(saddr)}"
    if line and P("fl", 1):
        k(f"v_lshlrev_b32 {v(vT0)}, 3, v0\n" + ("s_mov_b64 exec, 0xffff" if line == "all" else f"s_cmp_eq_u32 {s(line)}, 0\ns_cselect_b64 exec, 0xffff, 1"))
        t = t.replace("off", v(vT0)) + " offen"
    else: k("s_mov_b64 exec, 1")
    k.wait(vm="pub")
    if spure is None: k.vmem(t + " sc1")
    else: dual([t], spure)
    k("s_mov_b64 exec, -1")

def touch(tmp, h):
    k(f"v_mad_u32_u24 {v(tmp)}, v0, {s(sPR+1)}, {v(vA16)}")
    if not h:
        k.vmem(f"buffer_load_dword {v(vJ)}, {v(tmp)}, {s(ACT,4)}, {s(sPR)} offen sc1", "pre")
        return
    k(f"""v_lshl_add_u32 {v(tmp)}, {s(sNT)}, 11, {v(tmp)}
    s_sub_u32 {s(sT0)}, {s(sFH)}, {FO + 2048}
    s_mov_b32 {s(sT1)}, {FO}
    s_mov_b32 exec_hi, 0
    s_mov_b32 exec_lo, 0xffff0000
    v_add_u32 {v(tmp)}, {s(sT0)}, {v(tmp)}
    s_mov_b32 exec_lo, -1""")
    k.vmem(f"buffer_load_dword {v(vJ)}, {v(tmp)}, {s(ACT,4)}, {s(sT1)} offen sc1", "pre")
    k("s_mov_b64 exec, -1")

def code_touch(tmp, first):
    L = k.lab("pc")
    k(f"s_getpc_b64 {s(sT0,2)}\n{L}:")
    if first:
        n = P("cn", 9)
        k(f"""s_lshr_b32 {s(sT2)}, s2, 3
        s_mul_i32 {s(sT2)}, {s(sT2)}, {9*128}
        v_lshl_add_u32 {v(tmp)}, v0, 7, {s(sT2)}
        v_min_u32 {v(tmp)}, text_end-{L}-4, {v(tmp)}
        v_mov_b32 {v(tmp+2)}, {s(sT1)}
        v_add_co_u32 {v(tmp+1)}, vcc, {s(sT0)}, {v(tmp)}
        v_addc_co_u32 {v(tmp+2)}, vcc, 0, {v(tmp+2)}, vcc
        v_cmp_gt_u32 vcc, {n}, v0
        s_or_b32 vcc_lo, vcc_lo, 1
        s_mov_b64 exec, vcc
        global_load_dword {v(vJ)}, {v(tmp+1,2)}, off
        s_mov_b64 exec, -1""")
        return
    k(f"""s_lshr_b32 {s(sT2)}, s2, 3
    s_lshl2_add_u32 {s(sT2)}, {s(sT2)}, {s(sW)}
    s_lshl_b32 {s(sT2)}, {s(sT2)}, 8
    v_lshl_add_u32 {v(tmp)}, v0, 7, {s(sT2)}
    v_min_u32 {v(tmp)}, text_end-{L}-4, {v(tmp)}
    v_mov_b32 {v(tmp+2)}, {s(sT1)}
    v_add_co_u32 {v(tmp+1)}, vcc, {s(sT0)}, {v(tmp)}
    v_addc_co_u32 {v(tmp+2)}, vcc, 0, {v(tmp+2)}, vcc
    s_mov_b64 exec, 3
    global_load_dword {v(vJ)}, {v(tmp+1,2)}, off
    s_mov_b64 exec, -1""")

def pref(loc, tmp):
    sm = [w for w, o in ((WO, "pfo"), (W1, "pf1"), (W2, "pf1")) if P(o, P("pf", 2)) == loc]
    lg = [w for w, o in ((W3, "pf3"), (W4, "pf4")) if P(o, P("pf", 2)) == loc]
    if not sm and not lg: return
    k(f"s_lshl2_add_u32 {s(sM1)}, s2, {s(sW)}\nv_lshlrev_b32 {v(tmp)}, 6, v0\ns_mul_i32 {s(sM2)}, {s(sM1)}, 1792\ns_lshl_b32 {s(sM1)}, {s(sM1)}, 9\ns_mov_b32 exec_hi, 0")
    if loc > 1: k(f"s_cmp_eq_u32 {s(sLAY)}, 0")
    for ws_, m, so in ((sm, 0xff, sM1), (lg, 0xfffffff, sM2)):
        if ws_: k(f"s_cselect_b32 exec_lo, {m}, 1" if loc > 1 else f"s_mov_b32 exec_lo, {m}")
        for w in ws_: k.vmem(f"buffer_load_dword {v(vJ)}, {v(tmp)}, {s(w,4)}, {s(so)} offen")
    k("s_mov_b64 exec, -1")

bgq = []
def bg(n=1):
    for _ in range(min(n, len(bgq))): bgq.pop(0)()

def qB(w, groups):
    for n, (g, lds) in enumerate(groups):
        def f(n=n, g=g, lds=lds):
            p = groups[n-1] if n else None
            if p and lds - p[1] == 4096: k(f"s_add_u32 m0, m0, {s(s4K)}")
            else: k(f"s_add_u32 m0, {s(sW1K)}, {lds}")
            if p and g - p[0] == 1: k(f"s_add_u32 {s(sOFF)}, {s(sOFF)}, {s(s32K)}")
            else: k(f"s_mov_b32 {s(sOFF)}, {g*32768}")
            k.vmem(f"buffer_load_dwordx4 {v(vDB)}, {s(w,4)}, {s(sOFF)} offen{NT(1)} lds", "dma")
        bgq.append(f)

def qQ(lo, hi):
    for n in range(lo, hi):
        def f0(n=n):
            k(f"s_xor_b32 m0, {s(sQB)}, {n*4096}\ns_xor_b32 {s(sOFF)}, {s(sG0)}, {n}\ns_mul_i32 {s(sOFF)}, {s(sOFF)}, {64*3072}")
            k.vmem(f"buffer_load_dwordx4 {v(vDQ)}, {s(WQ,4)}, {s(sOFF)} offen{NT(4)} lds", "dma")
        bgq.append(f0)

def qKV(lo, hi):
    for n in range(lo, hi):
        def f1(n=n):
            k(f"s_xor_b32 m0, {s(sQA)}, {n*8192}\ns_xor_b32 {s(sOFF)}, {s(sG0)}, {n}\ns_mul_i32 {s(sOFF)}, {s(sOFF)}, {64*3072}\ns_bitset1_b32 {s(sOFF)}, 10")
            k.vmem(f"buffer_load_dwordx4 {v(vDQ)}, {s(WQ,4)}, {s(sOFF)} offen{NT(4)} lds", "dma")
        def f2():
            k.vmem(f"buffer_load_dwordx4 {v(vDQ)}, {s(WQ,4)}, {s(sOFF)} offen offset:1024{NT(4)} lds", "dma")
        bgq.extend([f1, f2])

def q3(quads):
    for q in quads:
        for p in range(7):
            def f(q=q, p=p):
                if p == 0: k(f"s_add_u32 m0, {s(s3L)}, {W3Q[q]}\ns_add_u32 {s(sOFF)}, {s(s3G)}, {q*4*32*3584}")
                if p == 4: k(f"s_add_u32 m0, m0, {s(s4K)}\ns_add_u32 {s(sOFF)}, {s(sOFF)}, {s(s4K)}")
                k.vmem(f"buffer_load_dwordx4 {v(vD3+p)}, {s(W3,4)}, {s(sOFF)} offen offset:{(p%4)*1024}{NT(2)} lds", "dma")
            bgq.append(f)

class Rec:
    def __enter__(self):
        self.n = len(k.L); self.q = []; self.g = len(k.lg); return self.q
    def __exit__(self, *a):
        self.q.extend(k.L[self.n:]); del k.L[self.n:]; del k.lg[self.g:]
def emit(q, n=999):
    for _ in range(min(n, len(q))):
        t = q.pop(0)
        if callable(t): t()
        elif t.startswith("ds_"): k.ds(t, "fill")
        else: k(t)

def rb_bases(vb, his):
    m = {0: vRB}
    for n, hi in enumerate(h for h in his if h):
        m[hi] = [vb + 4*n + f for f in range(4)]
        for f in range(4): k(f"v_add_u32 {v(m[hi][f])}, {hi*65536}, {v(vRB[f])}")
    return m

def rd_fragB(dst, lds, fb, bases, tag):
    hi = lds // 65536
    for j in range(2):
        k.ds(f"ds_read_b64_tr_b16 {r(dst+2*j,2)}, {v(bases[hi][fb])} offset:{lds%65536 + j*2048}", tag)

def fill(slots, dst, bases):
    for i in range(len(slots)*4): rd_fragB(dst + 4*i, slots[i//4], i % 4, bases, "fill")

def mix(q, per, nbg):
    while q or nbg > 0:
        if nbg > 0: bg(); nbg -= 1
        emit(q, per)

def pk(op, d, a_, b_, c_=None, bsel=None, csel=None):
    n = 3 if c_ is not None else 2
    t = f"v_pk_{op}_f32 {d}, {a_}, {b_}" + (f", {c_}" if c_ is not None else "")
    if bsel is not None:
        lo = [0]*n; hi = [1]*n; lo[1] = bsel; hi[1] = bsel
        if csel is not None: lo[2] = csel; hi[2] = csel
        t += f" op_sel:[{','.join(map(str,lo))}] op_sel_hi:[{','.join(map(str,hi))}]"
    k(t)

def cvt(d, src, n):
    for i in range(n): k(f"v_cvt_pk_bf16_f32 {v(d+i)}, {v(src+2*i)}, {v(src+2*i+1)}")

def finish_stats(sq, out, two_level):
    a_, b_ = v(sq), v(sq+1)
    k(f"v_permlane32_swap_b32 {a_}, {b_}\nv_add_f32 {a_}, {a_}, {b_}\nv_mov_b32 {b_}, {a_}")
    if two_level: k(f"v_permlane16_swap_b32 {a_}, {b_}\nv_add_f32 {a_}, {a_}, {b_}\nv_mov_b32 {b_}, {a_}")
    k(f"v_permlane32_swap_b32 {a_}, {b_}\nv_mul_f32 {v(out+1)}, {f2u(-1/512)}, {a_}\nv_mul_f32 {b_}, {f2u(1/512)}, {b_}\n"
      f"v_fma_f32 {b_}, -{v(out+1)}, {v(out+1)}, {b_}\nv_max_f32 {v(out+2)}, 0, {b_}\nv_add_f32 {b_}, {f2u(1e-5)}, {v(out+2)}\n"
      f"v_rsq_f32 {v(out)}, {b_}")

def gelu_scale(rr, kk):
    k(f"v_rcp_f32 {v(kk+2)}, {v(rr)}\nv_mul_f32 {v(kk+1)}, {f2u(C1)}, {v(rr)}\nv_mul_f32 {v(kk)}, {v(rr)}, {v(rr)}\n"
      f"v_mul_f32 {v(kk)}, {f2u(0.044715)}, {v(kk)}\nv_mul_f32 {v(kk)}, {v(kk)}, {v(kk+1)}")

def pub_tile(src, field, stf, tmp):
    k(f"s_mov_b32 {s(sT0)}, {field}\ns_mov_b32 {s(sT1)}, {stf}")
    cvt(tmp, src, 8)
    dual([f"buffer_store_dwordx4 {v(tmp+4*i,4)}, {v(vP16)}, {s(ACT,4)}, {s(sT0)} offen offset:{1024*i}" for i in range(2)], sPURE)
    S, Q = tmp + 8, tmp + 10
    pk("add", v(S,2), v(src,2), v(src+2,2)); pk("mul", v(Q,2), v(src,2), v(src,2))
    for i in range(1, 8):
        if i > 1: pk("add", v(S,2), v(S,2), v(src+2*i,2))
        pk("fma", v(Q,2), v(src+2*i,2), v(src+2*i,2), v(Q,2))
    k(f"v_add_f32 {v(S)}, {v(S)}, {v(S+1)}\nv_add_f32 {v(S+1)}, {v(Q)}, {v(Q+1)}\n"
      f"v_permlane32_swap_b32 {v(S)}, {v(S+1)}\nv_add_f32 {v(S)}, {v(S)}, {v(S+1)}\nv_mov_b32 {v(S+1)}, {v(S)}\n"
      f"v_permlane16_swap_b32 {v(S)}, {v(S+1)}\nv_add_f32 {v(S)}, {v(S)}, {v(S+1)}")
    dual([f"buffer_store_dword {v(S)}, {v(vST)}, {s(ACT,4)}, {s(sT1)} offen"], sPURE)

def gelu(y, n, tmp, cs, rm, kk):
    Pr = range(0, n, 2)
    for i in Pr: pk("fma", v(y+i,2), v(cs+i,2), v(rm,2), v(y+i,2), bsel=1)
    for i in Pr: pk("mul", v(tmp+i,2), v(y+i,2), v(y+i,2))
    for i in Pr: pk("fma", v(tmp+i,2), v(tmp+i,2), v(kk,2), v(kk,2), bsel=0, csel=1)
    for i in Pr: pk("mul", v(tmp+i,2), v(tmp+i,2), v(y+i,2))
    for i in range(n): k(f"v_exp_f32 {v(tmp+i)}, {v(tmp+i)}")
    for i in Pr: pk("fma", v(tmp+i,2), v(tmp+i,2), v(kk+2,2), v(kk+2,2), bsel=0, csel=0)
    for i in range(n): k(f"v_rcp_f32 {v(tmp+i)}, {v(tmp+i)}")
    for i in Pr: pk("mul", v(y+i,2), v(y+i,2), v(tmp+i,2))

def sum_partials(n16, stride, dst, tmp, lo=0, PART=PART):
    k(f"v_min_u32 {v(vT0)}, {n16-1}, {v(vL)}\nv_lshlrev_b32 {v(vT0)}, 4, {v(vT0)}\nv_add_u32 {v(vT0)}, {PART + 16*lo}, {v(vT0)}")
    for i in range(4): k.ds(f"ds_read_b128 {v(tmp+4*i,4)}, {v(vT0)} offset:{i*stride}")
    k.wait(lg="all")
    for i in range(1, 4):
        for h in (0, 2): pk("add", v(tmp+h,2), v(tmp+h,2), v(tmp+4*i+h,2))
    k.ds(f"ds_write_b128 {v(vT0)}, {v(tmp,4)} offset:{dst-PART}")
    k.wait(lg="all")

def stop(n):
    if STOP == n: k("s_branch bail")

late = []
def prologue():
    k("s_cmp_ge_u32 s2, 0x100\ns_cbranch_scc1 bail")
    mark("first")
    for d, off in ((XO, 0), (WQ, 8), (FLG, 80)): k(f"s_load_dwordx2 {s(d,2)}, s[0:1], {off}")
    if P("cp", 3) & 1: code_touch(vT0, True); k.vm += [None]
    vXO = 56
    k(f"""v_lshrrev_b32 v1, 6, v0
    v_and_b32 v0, 63, v0
    v_readfirstlane_b32 {s(sW)}, v1
    s_and_b32 {s(sC)}, s2, 7
    s_lshr_b32 s3, s2, 3
    s_lshr_b32 {s(sNT)}, s2, 5
    s_and_b32 {s(sT1)}, s3, 3
    s_lshl2_add_u32 {s(sT1)}, {s(sT1)}, {s(sW)}
    s_lshl4_add_u32 {s(sTB16)}, {s(sC)}, {s(sT1)}
    v_and_b32 v57, 15, v0
    v_lshrrev_b32 v58, 4, v0
    s_lshl_b32 {s(sT0)}, {s(sTB16)}, 14
    s_lshl_b32 {s(sT1)}, {s(sNT)}, 7
    s_add_u32 {s(sT0)}, {s(sT0)}, {s(sT1)}
    v_lshlrev_b32 {v(vXO)}, 10, v57
    v_lshl_add_u32 {v(vXO)}, v58, 3, {v(vXO)}""")
    srd(XO, 2097152)
    k("s_waitcnt lgkmcnt(0)")
    mark("start")
    if PROF: k(f"s_memrealtime {s(sPT,2)}\ns_waitcnt lgkmcnt(0)\nv_writelane_b32 {v(vPR)}, {s(sPT)}, 62")
    for f in range(4):
        k.vmem(f"buffer_load_dwordx2 {v(64+2*f,2)}, {v(vXO)}, {s(XO,4)}, {s(sT0)} offen offset:{32*f}", "x")
    k(f"s_load_dwordx2 {s(sV,2)}, {s(FLG,2)}, {E_OFF}")
    for d, off in ((DBG, 72), (WO, 16), (W1, 32), (W2, 40), (W3, 48), (W4, 56), (sOUT, 64)):
        k(f"s_load_dwordx2 {s(d,2)}, s[0:1], {off}")
    srd(WQ, 1572864); srd(ACT, 128*R2)
    k(f"""s_add_u32 {s(ACT)}, {s(FLG)}, {ACT_OFF}
    s_addc_u32 {s(ACT+1)}, {s(FLG+1)}, 0
    s_mov_b32 {s(s2R)}, {R2}
    s_mul_i32 {s(sT3)}, {s(sTB16)}, {s(s2R)}""")
    if P("tw", 1): k.vmem(f"buffer_load_dword {v(vJ)}, off, {s(ACT,4)}, {s(sT3)} sc1")
    if P("tk", 0):
        k(f"""s_lshl2_add_u32 {s(sT1)}, s3, {s(sW)}
        s_mul_i32 {s(sT1)}, {s(sT1)}, 12288
        v_mul_u32_u24 v59, 3072, v58
        v_lshl_add_u32 v59, v57, 7, v59""")
        k.vmem(f"buffer_load_dword {v(vJ)}, v59, {s(WQ,4)}, {s(sT1)} offen offset:1024")
        if P("tk", 0) == 2:
            k("s_mov_b32 exec_lo, 0xff00ff\ns_mov_b32 exec_hi, 0xff00ff")
            k.vmem(f"buffer_load_dword {v(vJ)}, v59, {s(WQ,4)}, {s(sT1)} offen")
            k("s_mov_b64 exec, -1")
    k(f"""s_lshr_b32 {s(sHP)}, s2, 4
    s_and_b32 {s(sG0)}, s3, 3
    s_lshl_b32 {s(sG0)}, {s(sG0)}, 1
    s_and_b32 {s(sT1)}, s2, 1
    s_or_b32 {s(sG0)}, {s(sG0)}, {s(sT1)}
    s_lshl_b32 {s(sW1K)}, {s(sW)}, 10
    s_lshl_b32 {s(sQB)}, {s(sG0)}, 12
    s_add_u32 {s(sQB)}, {s(sQB)}, {s(sW1K)}
    s_lshl_b32 {s(sQA)}, {s(sQB)}, 1
    s_bitset1_b32 {s(sQB)}, 16
    v_lshrrev_b32 v59, 2, v0
    v_mul_u32_u24 v59, 3072, v59
    v_and_b32 v60, 3, v0
    v_lshl_add_u32 v59, v60, 4, v59
    s_mul_i32 {s(sT0)}, {s(sW)}, {16*3072}
    s_lshl_b32 {s(sT1)}, {s(sHP)}, 6
    s_add_u32 {s(sT0)}, {s(sT0)}, {s(sT1)}
    v_add_u32 {v(vDQ)}, {s(sT0)}, v59""")
    qKV(0, 3); bg(P("p0", 0))
    k(f"""s_and_b32 {s(sMT)}, s3, 1
    s_lshl_b32 {s(sT0)}, {s(sC)}, 3
    s_lshl_b32 {s(sT1)}, {s(sMT)}, 2
    s_add_u32 {s(sT0)}, {s(sT0)}, {s(sT1)}
    s_add_u32 {s(sTB32)}, {s(sT0)}, {s(sW)}
    s_sub_u32 {s(sIT)}, {s(sTB32)}, 4
    s_cselect_b32 {s(sIT)}, {s(sTB32)}, {s(sIT)}
    s_sub_u32 {s(sCNT)}, {s(sTB32)}, 8
    s_cselect_b32 {s(sCNT)}, {s(sTB32)}, {s(sCNT)}
    s_min_u32 {s(sNTL)}, {s(sTB32)}, 8
    s_lshl_b32 {s(sNTL)}, {s(sNTL)}, 15
    s_mov_b32 {s(s4K)}, 4096
    s_mov_b32 {s(s8K)}, 8192
    s_mov_b32 {s(s12K)}, 12288
    s_mov_b32 {s(s32K)}, 32768
    v_lshlrev_b32 {v(vL16)}, 4, v0
    s_waitcnt lgkmcnt(0)""")
    for d, n in ((FLG, E_OFF + 0x100), (DBG, 256), (WO, 524288), (W1, 524288), (W2, 524288), (W3, 1835008), (W4, 1835008)): srd(d, n)
    pref(1, 61)
    k(f"""s_mul_i32 {s(sT0)}, {s(sTB16)}, {s(s2R)}
    v_add_u32 {v(vA16)}, {s(sT0)}, {v(vL16)}
    s_lshl_b32 {s(sT1)}, {s(sNT)}, 11
    v_add_u32 {v(vP16)}, {s(sT1)}, {v(vA16)}
    s_lshr_b32 {s(sT1)}, {s(sNT)}, 1
    s_lshl_b32 {s(sT1)}, {s(sT1)}, 8
    s_add_u32 {s(sT0)}, {s(sT0)}, {s(sT1)}
    s_and_b32 {s(sT1)}, {s(sNT)}, 1
    s_lshl_b32 {s(sT1)}, {s(sT1)}, 3
    s_add_u32 {s(sT0)}, {s(sT0)}, {s(sT1)}
    v_lshrrev_b32 v59, 5, v0
    v_lshlrev_b32 v60, 4, v57
    v_lshl_add_u32 v61, v59, 2, v60
    v_add_u32 {v(vST)}, {s(sT0)}, v61
    s_mul_i32 {s(sT0)}, {s(sTB32)}, {2*R2}
    v_add_u32 {v(vA3)}, {s(sT0)}, {v(vL16)}
    v_and_b32 v61, 1, v58
    v_mul_u32_u24 v62, {R2}, v61
    v_lshl_add_u32 v62, v59, 8, v62
    v_add3_u32 {v(vA32)}, v62, v60, {s(sT0)}
    s_lshr_b32 {s(sT1)}, {s(sHP)}, 3
    s_mul_i32 {s(sT1)}, {s(sT1)}, {s(s2R)}
    s_and_b32 {s(sT2)}, {s(sHP)}, 7
    s_lshl_b32 {s(sT2)}, {s(sT2)}, 12
    s_add_u32 {s(sT1)}, {s(sT1)}, {s(sT2)}
    s_add_u32 {s(sT1)}, {s(sT1)}, {FKV_}
    s_add_u32 {s(sKVo)}, {s(sT0)}, {s(sT1)}
    s_mul_i32 {s(sT0)}, {s(sIT)}, {2*R2}
    s_add_u32 {s(sKVf)}, {s(sT0)}, {s(sT1)}
    s_mul_i32 {s(sT0)}, {s(sCNT)}, {2*R2}
    s_add_u32 {s(sMT)}, {s(sT0)}, {s(sT1)}""")
    k(f"""v_lshrrev_b32 v62, 2, v57
    v_and_b32 v63, 3, v0
    v_lshl_add_u32 v72, v59, 2, v62
    v_lshl_add_u32 v73, v61, 2, v63
    v_lshlrev_b32 v73, 3, v73
    v_lshl_add_u32 {v(vWq)}, v72, 6, v73
    v_lshl_add_u32 v72, v61, 2, v62
    v_lshlrev_b32 v73, 10, v59
    v_lshl_add_u32 v73, v72, 7, v73
    v_lshl_add_u32 v73, v63, 3, v73
    v_lshrrev_b32 v72, 1, v72
    v_lshl_add_u32 {v(vRB[0])}, v72, 5, v73
    v_xor_b32 {v(vRB[1])}, 32, {v(vRB[0])}
    v_xor_b32 {v(vRB[2])}, 64, {v(vRB[0])}
    v_xor_b32 {v(vRB[3])}, 0x60, {v(vRB[0])}
    v_lshrrev_b32 v72, 3, v0
    v_and_b32 v73, 7, v0
    v_lshlrev_b32 v74, 1, v58
    v_xor_b32 v74, v74, v73
    v_lshlrev_b32 v74, 4, v74
    v_lshl_add_u32 v74, v72, 10, v74
    s_lshl_b32 {s(sT0)}, {s(sW)}, 13
    s_lshl_b32 {s(sT1)}, {s(sNT)}, 7
    s_add_u32 {s(sT0)}, {s(sT0)}, {s(sT1)}
    v_add_u32 {v(vDB)}, {s(sT0)}, v74""")
    k(f"""s_lshl_b32 {s(sT3)}, {s(sC)}, 13
    s_and_b32 {s(sT0)}, {s(sTB16)}, 15
    s_lshl_b32 {s(sT1)}, {s(sT0)}, 7
    s_add_u32 {s(sT1)}, {s(sT1)}, {s(sT3)}
    v_lshl_add_u32 {v(vPB16)}, v73, 3, {s(sT1)}
    s_lshl_b32 {s(sT2)}, {s(sNT)}, 3
    s_add_u32 {s(sFBo)}, {s(sT1)}, {s(sT2)}
    s_add_u32 {s(sFHo)}, {s(sFBo)}, {GH}
    s_lshr_b32 {s(sT0)}, {s(sT0)}, 1
    s_lshl_b32 {s(sT0)}, {s(sT0)}, 7
    s_add_u32 {s(sT0)}, {s(sT0)}, {s(sT3)}
    s_add_u32 {s(sT0)}, {s(sT0)}, {GA}
    v_lshl_add_u32 {v(vPA)}, v57, 3, {s(sT0)}
    s_and_b32 {s(sT0)}, {s(sTB32)}, 7
    s_lshl_b32 {s(sT1)}, {s(sT0)}, 8
    s_add_u32 {s(sT1)}, {s(sT1)}, {s(sT3)}
    v_and_b32 v74, 1, v72
    v_lshlrev_b32 v74, 7, v74
    v_lshl_add_u32 v74, v73, 3, v74
    v_add_u32 {v(vPB32)}, {s(sT1)}, v74
    s_lshl_b32 {s(sT1)}, {s(sT0)}, 7
    s_lshl_b32 {s(sT2)}, {s(sHP)}, 3
    s_add_u32 {s(sT1)}, {s(sT1)}, {s(sT2)}
    s_add_u32 {s(sT1)}, {s(sT1)}, {s(sT3)}
    s_add_u32 {s(sFAo)}, {s(sT1)}, {GA}
    s_lshl_b32 {s(sT2)}, {s(sHP)}, 7
    s_add_u32 {s(sT2)}, {s(sT2)}, {GKV}
    s_lshl_b32 {s(sT0)}, {s(sTB32)}, 11
    s_add_u32 {s(sFKVo)}, {s(sT0)}, {s(sT2)}
    v_mov_b32 v74, {s(sIT)}
    v_writelane_b32 v74, {s(sCNT)}, 1
    v_lshl_add_u32 {v(vPKV)}, v74, 11, {s(sT2)}
    v_min_u32 v74, 2, v72
    s_sub_u32 {s(sT0)}, {s(sTB16)}, 1
    v_add_u32 v74, {s(sT0)}, v74
    v_max_i32 v74, 0, v74
    v_min_i32 v74, 0x7f, v74
    v_add_u32 v76, 1, v74
    v_and_b32 v76, 14, v76
    v_cmp_eq_u32 vcc, 0, v76
    v_lshrrev_b32 v76, 3, v74
    v_lshl_add_u32 v76, v76, 3, v73
    v_lshlrev_b32 v76, 7, v76
    v_add_u32 v76, {GH2}, v76
    v_lshrrev_b32 v75, 4, v74
    v_and_b32 v74, 15, v74
    v_lshlrev_b32 v75, 13, v75
    v_lshl_add_u32 v75, v74, 7, v75
    v_lshl_add_u32 v75, v73, 3, v75
    v_add_u32 v75, {GH}, v75
    v_cndmask_b32 {v(vPH)}, v75, v76, vcc
    s_and_b32 {s(sT0)}, {s(sHP)}, 1
    s_mul_i32 {s(sT1)}, {s(sHP)}, 7
    s_add_u32 {s(sT2)}, {s(sT1)}, {s(sT0)}
    s_lshl_b32 {s(sT2)}, {s(sT2)}, 9
    s_add_u32 {s(sH3p)}, {s(sT2)}, {FH3}
    s_mul_i32 {s(sT0)}, {s(sT0)}, {4096-8}
    s_add_u32 {s(sH3s)}, {s(sH3p)}, 3072
    s_sub_u32 {s(sH3s)}, {s(sH3s)}, {s(sT0)}
    s_mov_b32 {s(sLAY)}, 0
    s_mov_b32 {s(sFH)}, {FH_}
    s_mul_i32 {s(sPR)}, {s(sNT)}, 7168
    s_add_u32 {s(sPR)}, {s(sPR)}, {FH3}
    s_mov_b32 {s(sPR+1)}, 112
    s_mov_b32 {s(sPURE)}, 0
    s_mov_b32 {s(sPUREH)}, 0
    s_getreg_b32 {s(sT2)}, hwreg(HW_REG_XCC_ID, 0, 4)
    s_and_b32 {s(sT2)}, {s(sT2)}, 7
    s_lshl_b32 {s(sT2)}, {s(sT2)}, 3
    s_lshl_b64 {s(sXP,2)}, 32, {s(sT2)}
    s_and_b32 {s(sT1)}, {s(sTB16)}, -8
    s_add_u32 {s(sT1)}, {s(sT1)}, {s(sNT)}
    s_lshl_b32 {s(sT1)}, {s(sT1)}, 7
    s_add_u32 {s(sT1)}, {s(sT1)}, {GH2}
    s_add_u32 {s(sT0)}, {s(sTB16)}, 1
    s_and_b32 {s(sT0)}, {s(sT0)}, 14
    s_cselect_b32 {s(sEDG)}, 1, 0
    s_cselect_b32 {s(sFHo)}, {s(sFHo)}, {s(sT1)}
    s_mul_i32 {s(s3L)}, {s(sW)}, 7168
    s_mul_i32 {s(s3G)}, {s(sW)}, {32*3584}
    s_mul_i32 {s(sT2)}, {s(sHP)}, 224
    s_add_u32 {s(s3G)}, {s(s3G)}, {s(sT2)}""")
    for q in range(7):
        k(f"v_add_u32 v72, {64*q}, v0\nv_mul_u32_u24 v72, 4682, v72\nv_lshrrev_b32 v72, 16, v72\n"
          f"v_mul_u32_u24 v72, 3360, v72\nv_add_u32 {v(vD3+q)}, v72, {v(vL16)}")
    if P("expb", 0):
        k(f"s_lshl_b32 {s(sT0)}, {s(sNT)}, 7\nv_subrev_u32 {v(vDB)}, {s(sT0)}, {v(vDB)}\ns_lshl_b32 {s(sT0)}, {s(sHP)}, 6\nv_subrev_u32 {v(vDQ)}, {s(sT0)}, {v(vDQ)}\n"
          f"s_and_b32 {s(sT0)}, {s(sHP)}, 12\ns_mul_i32 {s(sT0)}, {s(sT0)}, 224\ns_sub_u32 {s(s3G)}, {s(s3G)}, {s(sT0)}")
    if P("expa", 0):
        for w in (WQ, WO, W1, W2, W3, W4): k(f"s_mov_b32 {s(w+2)}, 0")
    k(f"s_xor_b32 {s(sV+1)}, {s(sV+1)}, 0x5bd1e995")
    bg(P("p1", 0) - P("p0", 0))
    late.extend(bgq); bgq.clear()
    k.wait(vm="x")
    for i in range(8):
        k(f"v_lshlrev_b32 {v(RES+2*i)}, 16, {v(64+i)}\nv_and_b32 {v(RES+2*i+1)}, 0xffff0000, {v(64+i)}")
    mark("xload")
    k(f"s_mov_b32 {s(XO)}, {s(sOUT)}\ns_mov_b32 {s(XO+1)}, {s(sOUT+1)}")

def selector(d):
    k(f"v_lshrrev_b32 {v(vT0)}, 2, v0\nv_xor_b32 {v(vT0)}, {v(vT0)}, v0\nv_and_b32 {v(vT0)}, 4, {v(vT0)}\n"
      f"v_cmp_eq_u32 vcc, 0, {v(vT0)}\nv_mov_b32 {v(vT0)}, 0x3f803f80\nv_cndmask_b32 {v(d)}, 0, {v(vT0)}, vcc")
    for i in range(1, 4): k(f"v_mov_b32 {v(d+i)}, {v(d)}")

def l0_only(fn):
    L = k.lab("l0")
    k(f"s_cmp_lg_u32 {s(sLAY)}, 0\ns_cbranch_scc1 {L}")
    fn()
    k(f"{L}:")

def x_pub():
    pub_tile(RES, FX, STX, 56)
    qKV(3, 8); bg(P("xa", 2))
    flag(sFBo, sPURE)
    mark("x.pub")
    def count():
        L = k.lab("cnt")
        k(f"""s_barrier
        s_cmp_lg_u32 {s(sW)}, 0
        s_cbranch_scc1 {L}
        s_lshr_b64 {s(sT0,2)}, {s(sXP,2)}, 5
        v_mov_b32 v56, {s(sT0)}
        v_mov_b32 v57, {s(sT1)}
        s_lshl_b32 {s(sT2)}, {s(sC)}, 5
        s_mov_b64 exec, 1
        buffer_atomic_add_x2 v[56:57], off, {s(DBG,4)}, {s(sT2)} sc1
        s_mov_b64 exec, -1
        {L}:""")
        n = len(k.vm)
        for f in late: f()
        del k.vm[n:]
    assert P("xa", 2) % 2 == 0 or not late
    l0_only(count)
    pref(2, vT0)
    if P("tf", 2) & 1:
        for va in (vPKV, vPA): k.vmem(f"buffer_load_dword {v(vJ)}, {v(va)}, {s(FLG,4)}, 0 offen sc1")
    bg(99)
    pref(3, vT0)

def qkv_att():
    AK, AV, AQ = 56, 72, 88
    FR = 104; CS = 128; STA = 160; RM = 168; PKD = 208
    vWq2, vCS, vV0, vV1, vKW = 240, 241, 242, 243, 244
    SEL = 196; QF = 200
    N0 = P("qn", 12)
    k(f"v_add_u32 {v(vWq2)}, 0x10000, {v(vWq)}")
    selector(SEL)
    k(f"""v_lshrrev_b32 {v(vT1)}, 5, v0
    v_lshlrev_b32 {v(vCS)}, 4, {v(vT1)}
    v_add_u32 {v(vCS)}, {CSQ}, {v(vCS)}
    v_lshlrev_b32 {v(vT1)}, 6, {v(vT1)}
    v_xor_b32 {v(vV0)}, {v(vT1)}, {v(vL16)}
    v_xor_b32 {v(vV1)}, 0x80, {v(vV0)}
    s_lshl_b32 {s(sT0)}, {s(sW)}, 12
    s_add_u32 {s(sT0)}, {s(sT0)}, {KVB + 8*4096}
    v_add_u32 {v(vKW)}, {s(sT0)}, {v(vL16)}
    v_add_u32 {v(vKW+1)}, {s(sT0)}, {v(vV0)}
    v_add_u32 {v(vKW+2)}, {s(sT0)}, {v(vV1)}
    s_mov_b32 {s(sT1)}, {STX}""")
    S0, S1, CM, MD, O0, O1 = 56, 72, 104, 40, 160, 176
    KF, VF, PP, LS, MX = 208, 216, 224, 232, 120
    vK, vVa, vVb, vDB2 = 192, 193, 194, 195
    k(f"""v_bfe_u32 {v(vT0)}, v0, 4, 1
    v_bfe_u32 {v(vK)}, v0, 1, 1
    v_lshl_add_u32 {v(vT0)}, {v(vT0)}, 1, {v(vK)}
    v_lshrrev_b32 {v(vK)}, 5, v0
    v_xor_b32 {v(vK)}, {v(vK)}, {v(vT0)}
    v_lshlrev_b32 {v(vT0)}, 9, {v(vT0)}
    v_lshl_add_u32 {v(vT0)}, {v(vK)}, 6, {v(vT0)}
    v_bfe_u32 {v(vK)}, v0, 2, 2
    v_lshl_add_u32 {v(vT0)}, {v(vK)}, 4, {v(vT0)}
    v_and_b32 {v(vK)}, 1, v0
    v_lshl_add_u32 {v(vT0)}, {v(vK)}, 3, {v(vT0)}
    v_lshl_add_u32 {v(vT0)}, {s(sW)}, 12, {v(vT0)}
    v_add_u32 {v(vVa)}, {KVB + 8*4096 + 2048}, {v(vT0)}
    v_xor_b32 {v(vVb)}, 0x80, {v(vVa)}
    v_lshlrev_b32 {v(vT0)}, v0, -2
    v_lshrrev_b32 {v(vK)}, 3, v0
    v_and_b32 {v(vK)}, 4, {v(vK)}
    v_lshrrev_b32 {v(vT0)}, {v(vK)}, {v(vT0)}
    v_subrev_u32 {v(vK)}, {s(s4K)}, {v(vKW)}
    v_add_u32 {v(vDB2)}, {8*32768}, {v(vDB)}""")
    for i in range(16): k(f"v_bfe_i32 {v(MD+i)}, {v(vT0)}, {8*(i//4)+i%4}, 1\nv_and_b32 {v(MD+i)}, {NEG}, {v(MD+i)}")
    def rdq(dst, sp, b, tag):
        G = sp // 4
        for j in range(2):
            w_ = 2*((sp//2) % 2) + j
            off = G*8192 + w_*2048 + (b-1)*1024 if b else G*4096 + w_*1024
            k.ds(f"ds_read_b64_tr_b16 {v(dst+2*j,2)}, {v(vWq if b else vWq2)} offset:{off + (sp % 2)*512}", tag)
    def ldx(sp):
        k.vmem(f"buffer_load_dwordx4 {a(4*sp,4)}, {v(vA32)}, {s(ACT,4)}, {SK[sp//8]} offen offset:{(sp%8)*512} sc1", ("x", sp))
    mark("q.pre")
    poll(vPB32)
    mark("q.poll")
    for i in range(2): k.vmem(f"buffer_load_dwordx4 {v(STA+4*i,4)}, {v(vA32)}, {s(ACT,4)}, {s(sT1)} offen offset:{512*i} sc1", "st")
    for sp in range(N0): ldx(sp)
    def colsum(bs):
        nb = len(bs)
        if bs[0]: k(f"v_lshl_add_u32 {v(vT1)}, {s(sW)}, 11, {v(vWq)}")
        else: k(f"v_add_u32 {v(vT1)}, {s(sW1K)}, {v(vWq2)}")
        for i in range(8*nb + 5):
            if i < 8*nb:
                G, b = i // nb, bs[i % nb]
                for j in range(2):
                    off = G*8192 + (b-1)*1024 if b else G*4096
                    k.ds(f"ds_read_b64_tr_b16 {v(FR+4*(i%6)+2*j,2)}, {v(vT1)} offset:{off + j*512}", ("c", i))
            m = i - 5
            if m >= 0:
                k.wait(lg=("c", m)); c = v(AK + 4*(m % 2), 4)
                k(f"{M16} {c}, {v(SEL,4)}, {v(FR+4*(m%6),4)}, {c if m >= 2 else 0}")
        k(f"s_mul_i32 {s(sT0)}, {s(sW)}, 384\ns_add_u32 {s(sT0)}, {s(sT0)}, {PQ}\nv_and_b32 {v(vT1)}, 31, v0\n"
          f"v_lshl_add_u32 {v(vT1)}, {v(vT1)}, 2, {s(sT0)}")
        if nb == 1: k(f"v_add_f32 {v(AK)}, {v(AK)}, {v(AK+4)}")
        for n, b in enumerate(bs): k.ds(f"ds_write_b32 {v(vT1)}, {v(AK+4*n)} offset:{b*128}")
        k.wait(lg="all")
    l0_only(lambda: colsum((1, 2)))
    k("s_barrier")
    l0_only(lambda: sum_partials(16, 384, CSQ, CS, 8, PQ))
    for sp in range(2):
        for b in (1, 2): rdq(FR + 8*sp + 4*(b-1), sp, b, ("w", sp))
    for b in (1, 2):
        for q in range(4): k.ds(f"ds_read_b128 {v(CS+16*(b-1)+4*q,4)}, {v(vCS)} offset:{b*128+q*32}", "cs")
    with Rec() as fq:
        for i in (0, 1): k(f"v_add_f32 {v(STA+i)}, {v(STA+i)}, {v(STA+2+i)}\nv_add_f32 {v(STA+4+i)}, {v(STA+4+i)}, {v(STA+6+i)}")
        for i in (0, 1): k(f"v_add_f32 {v(STA+i)}, {v(STA+i)}, {v(STA+4+i)}")
        finish_stats(STA, RM, False)
        k(f"v_mul_f32 {v(RM+1)}, {v(RM)}, {v(RM+1)}")
        for i in range(32): k(f"v_mul_f32 {v(CS+i)}, {v(RM+1)}, {v(CS+i)}")
    qQ(0, 8)
    for sp in range(32):
        k.wait(vm=("x", sp), lg=("w", sp))
        for b, acc in ((1, AK), (2, AV)):
            k(f"{M32} {v(acc,16)}, {v(FR+8*(sp%3)+4*(b-1),4)}, {a(4*sp,4)}, {v(acc,16) if sp else 0}")
            if b == 1:
                if sp + N0 < 32: ldx(sp + N0)
                else: bg()
            if sp + 2 < 32: rdq(FR + 8*((sp+2) % 3) + 4*(b-1), sp + 2, b, ("w", sp + 2))
            if sp >= 2: emit(fq, 1)
        if sp == 31 - N0: pref(4, vT0)
    assert not fq and not bgq
    pref(5, vT0)
    k(f"s_cmp_eq_u32 {s(sLAY)}, 0\ns_cselect_b32 {s(WQ+2)}, {s(WQ+2)}, 0")
    mark("q.kv")
    for t in range(4):
        for i in range(8*t, 8*t + 8, 2): pk("fma", v(AK+i,2), v(AK+i,2), v(RM,2), v(CS+i,2), bsel=0)
        cvt(PKD + 4*t, AK + 8*t, 4)
        k.vmem(f"buffer_store_dwordx4 {v(PKD+4*t,4)}, {v((vL16, vL16, vV0, vV1)[t])}, {s(ACT,4)}, {s(sKVo)} offen offset:{t*1024} sc1", "pub")
        k.ds(f"ds_write_b128 {v((vKW, vKW, vKW+1, vKW+2)[t])}, {v(PKD+4*t,4)} offset:{t*1024}", "kw")
    k.wait(vm="dma")
    l0_only(lambda: colsum((0,)))
    k("s_barrier")
    l0_only(lambda: sum_partials(8, 384, CSQ, CS, 0, PQ))
    def slot(n): return FR + 4*(n % 6)
    for sp in range(4): rdq(slot(sp), sp, 0, ("q", sp))
    with Rec() as f2:
        for q in range(4): k.ds(f"ds_read_b128 {v(CS+4*q,4)}, {v(vCS)} offset:{q*32}")
        k(f"""v_mul_f32 {v(RM)}, {f2u(0.25*LOG2E)}, {v(RM)}
        v_mul_f32 {v(RM+1)}, {f2u(0.25*LOG2E)}, {v(RM+1)}""")
        for i in range(16): k(f"v_mul_f32 {v(CS+i)}, {v(RM+1)}, {v(CS+i)}")
    f2.insert(6, lambda: k.wait(lg="fill"))
    for sp in range(32):
        k.wait(lg=("q", sp))
        k(f"{M32} {v(AQ,16)}, {v(slot(sp),4)}, {a(4*sp,4)}, {v(AQ,16) if sp else 0}")
        if sp + 4 < 32: rdq(slot(sp + 4), sp + 4, 0, ("q", sp + 4))
        emit(f2, 1 + (sp < 4))
        if sp == P("kvs", 16): flag(sFKVo, None, "all")
    assert not f2
    for i in range(0, 16, 2): pk("fma", v(AQ+i,2), v(AQ+i,2), v(RM,2), v(CS+i,2), bsel=0)
    cvt(QF, AQ, 8)
    mark("q.q")
    stop(2)
    def qk(h, c): k(f"{M32} {v((S0,S1)[h],16)}, {v(KF+4*h,4)}, {v(QF+4*h,4)}, {v(c,16)}")
    def pv(h, u, first=False):
        O = v((O0, O1)[h], 16)
        k(f"{M32} {O}, {v(VF+4*u,4)}, {v(PP+4*u,4)}, {0 if first else O}")
    def rs(h, u, first=False): k(f"{M16} {v(LS+4*h,4)}, {v(SEL,4)}, {v(PP+4*u,4)}, {0 if first else v(LS+4*h,4)}")
    def rdV(u):
        for j, va in enumerate((vVa, vVb)): k.ds(f"ds_read_b64_tr_b16 {v(VF+4*u+2*j,2)}, {v(va)} offset:{u*256}", ("v", u))
    def rdK(h): k.ds(f"ds_read_b128 {v(KF+4*h,4)}, {v(vK)} offset:{h*1024}", ("k", h))
    def dec(*rs_):
        for x in rs_: k(f"v_subrev_u32 {v(x)}, {s(s4K)}, {v(x)}")
    def blk(h, u, at):
        S = (S0, S1)[h] + 8*u
        for i in range(12):
            if i in at: at[i]()
            if i < 8: k(f"v_exp_f32 {v(S+i)}, {v(S+i)}")
            else: cvt(PP + 4*u + i - 8, S + 2*(i-8), 1)
    W1E = [(g, 64*KB + g*4096) for g in range(8, 11)]
    if P("w1e", 0) == 0: qB(W1, W1E)
    qk(0, MD); rdV(0); rdV(1); bg(); qk(1, MD); dec(vVa, vVb)
    for i in range(16): k(f"v_mov_b32 {v(CM+i)}, 0")
    if P("kvf", 0) == 0 and P("kvs", 16) > 31: flag(sFKVo, None, "all")
    pref(6, vT0)
    blk(0, 0, {2: bg, 6: bg})
    if P("kvf", 0) == 1: flag(sFKVo, None, "all")
    blk(0, 1, {2: lambda: (k.wait(lg="all"), pv(0, 0, True)), 5: lambda: rs(0, 0, True), 7: bg})
    blk(1, 0, {2: lambda: pv(0, 1), 5: lambda: rs(0, 1), 7: bg})
    bg(99)
    k(f"v_lshlrev_b32 {v(vT0)}, 5, v0")
    k.vmem(f"buffer_load_dwordx2 {v(MX,2)}, {v(vT0)}, {s(DBG,4)}, 0 offen sc1")
    mark("a.diag")
    poll(vPKV)
    mark("a.poll")
    k(f"s_lshl_b32 {s(sT0)}, {s(sW)}, 12\ns_add_u32 m0, {s(sT0)}, {KVB + 16384}")
    for t in range(2):
        for i in range(4):
            def f(t=t, i=i):
                if t and not i: k(f"s_sub_u32 m0, m0, 16384")
                k.vmem(f"buffer_load_dwordx4 {v(vL16)}, {s(ACT,4)}, {s(sMT if t else sKVf)} offen offset:{i*1024} sc1 lds", ("kv", t))
            bgq.append(f)
    if P("w1e", 0) == 1: qB(W1, W1E)
    bg(99)
    k(f"v_readlane_b32 {s(sT0)}, {v(MX)}, {s(sC)}\nv_readlane_b32 {s(sT1)}, {v(MX+1)}, {s(sC)}")
    k(f"""s_cmp_eq_u64 {s(sT0,2)}, {s(sXP,2)}
    s_cselect_b32 {s(sPURE)}, 1, 0
    s_and_b32 {s(sPUREH)}, {s(sPURE)}, {s(sEDG)}
    s_add_u32 {s(sT0)}, s2, {s(sW)}
    s_cmp_lt_u32 {s(sT0)}, {s(sLAY)}
    s_cbranch_scc1 epoch
    epoch_b:
    s_mov_b32 m0, {s(sW1K)}
    s_mov_b32 {s(sOFF)}, 0""")
    cold.extend(f"""epoch:
    s_mov_b32 {s(sCNT)}, 0x8000
    epoch_l:
    buffer_load_dwordx2 {v(MX,2)}, {v(vT0)}, {s(DBG,4)}, 0 offen sc1
    s_sub_u32 {s(sCNT)}, {s(sCNT)}, 1
    s_cbranch_scc1 bail
    s_waitcnt vmcnt(0)
    v_sad_u8 {v(MX)}, {v(MX)}, 0, 0
    v_sad_u8 {v(MX)}, {v(MX+1)}, 0, {v(MX)}
    v_cmp_ne_u32 vcc, 32, {v(MX)}
    s_and_b32 {s(sT0)}, vcc_lo, 0xff
    s_cbranch_scc1 epoch_l
    s_add_u32 {s(sT0)}, {s(sV)}, 7
    v_mov_b32 {v(MX)}, {s(sT0)}
    s_mov_b32 {s(sT0)}, {E_OFF}
    s_mov_b64 exec, 1
    buffer_store_dword {v(MX)}, off, {s(FLG,4)}, {s(sT0)} sc1
    s_mov_b64 exec, -1
    s_branch epoch_b""".split("\n"))
    if P("t1", 1): touch(vT0, True)
    if P("tf", 2) & 2: k.vmem(f"buffer_load_dword {v(vJ)}, {v(vPH)}, {s(FLG,4)}, 0 offen sc1")
    pref(7, vT0)
    KS = P("ks", 1)
    A3 = P("a3", 0)
    if A3: k(f"s_lshr_b32 {s(sM1)}, s2, 3\ns_lshl2_add_u32 {s(sM1)}, {s(sM1)}, {s(sW)}\ns_mul_i32 {s(sM1)}, {s(sM1)}, {A3*3584}")
    def kv_ready():
        k.wait(vm=("kv", 1 - KS))
        barrier()
        mark("a.kv")
        rdK(0); rdK(1); dec(vK)
        if P("cp", 3) & 2: l0_only(lambda: code_touch(vT0, False))
        if A3: k(f"v_mul_u32_u24 {v(vT1)}, {8*A3}, v0")
        k.wait(lg="all"); qk(0, CM)
    blk(1, 1, {0: lambda: pv(1, 0, True), 3: lambda: rs(1, 0, True), 8: kv_ready})
    k("s_nop 1")
    def dma(n):
        k.vmem(f"buffer_load_dwordx4 {v(vDB2 if n == 1 else vDB)}, {s(W1 if n == 2 else WO,4)}, {s(sOFF)} offen{NT(1)} lds", "dma")
        if n == 1 and A3:
            k.vmem(f"buffer_load_dword {v(vJ)}, {v(vT1)}, {s(W3,4)}, {s(sM1)} offen")
            k(f"s_add_u32 {s(sM1)}, {s(sM1)}, {A3*448}")
        if n < 2: k(f"s_add_u32 m0, m0, {s(s32K)}")
        else: k(f"s_sub_u32 m0, m0, {65536 - 4096}\ns_add_u32 {s(sOFF)}, {s(sOFF)}, {s(s32K)}")
    def setcm():
        k(f"s_cmp_eq_u32 {s(sOFF)}, {6*32768}\ns_cbranch_scc1 att_cm\natt_cmb:")
    def far(lab, n):
        if not KS: return
        k(f"s_cmp_eq_u32 {s(sOFF)}, {2*32768}\ns_cbranch_scc1 {lab}\n{lab}b:")
        cold.extend([f"{lab}:", f"s_waitcnt vmcnt({n})", "s_barrier", f"s_branch {lab}b"])
    cold.extend(["att_cm:"] + [f"v_xor_b32 {v(CM+i)}, {NEG}, {v(MD+i)}" for i in range(16)] + ["s_branch att_cmb"])
    k(f"s_cmp_eq_u32 {s(sNTL)}, 0\ns_cbranch_scc1 att_e\natt_l:")
    blk(0, 0, {0: lambda: (qk(1, CM), rdV(0), rdK(0)), 3: lambda: pv(1, 1), 6: lambda: rs(1, 1), 8: lambda: dma(0)})
    blk(0, 1, {0: lambda: (rdV(1), rdK(1)), 1: lambda: (k.wait(lg=("k", 0)), pv(0, 0)), 4: lambda: rs(0, 0), 6: setcm, 8: lambda: dma(1)})
    blk(1, 0, {0: lambda: qk(0, CM), 3: lambda: (k.wait(lg="all"), pv(0, 1)), 6: lambda: rs(0, 1), 8: lambda: far("att_f", 8)})
    blk(1, 1, {0: lambda: dec(vK, vVa), 1: lambda: pv(1, 0), 4: lambda: rs(1, 0), 6: lambda: dec(vVb), 8: lambda: dma(2)})
    k(f"s_cmp_lt_u32 {s(sOFF)}, {s(sNTL)}\ns_cbranch_scc1 att_l\natt_e:")
    pv(1, 1); rs(1, 1)
    k(f"s_cmp_lt_u32 {s(sOFF)}, {8*32768}\ns_cbranch_scc1 att_r\natt_rb:")
    with Rec() as q:
        k("att_r:")
        far("att_g", 6)
        for n in range(3): dma(n)
        k(f"s_cmp_lt_u32 {s(sOFF)}, {8*32768}\ns_cbranch_scc1 att_r\ns_branch att_rb")
    cold.extend(q)
    mark("a.loop")
    k(f"""v_lshrrev_b32 {v(vT0)}, 5, v0
    v_lshl_add_u32 {v(vT0)}, {v(vT0)}, 8, {v(vA32)}
    s_lshl_b32 {s(sT0)}, {s(sHP)}, 10
    s_add_u32 {s(sT0)}, {s(sT0)}, {FO}""")
    pk("mul", v(MX,2), v(O0,2), 0)
    for i in range(2, 8, 2): pk("fma", v(MX,2), v(O0+i,2), 0, v(MX,2))
    for i in range(0, 8, 2): pk("fma", v(MX,2), v(O1+8+i,2), 0, v(MX,2))
    lo, hi = (127 - 48) << 23, (127 + 80) << 23
    k(f"""v_add_f32 {v(MX)}, {v(MX)}, {v(LS)}
    v_add_f32 {v(MX+1)}, {v(MX+1)}, {v(LS+4)}
    v_subrev_u32 {v(MX)}, {lo}, {v(MX)}
    v_subrev_u32 {v(MX+1)}, {lo}, {v(MX+1)}
    v_max_u32 {v(MX)}, {v(MX)}, {v(MX+1)}
    v_cmp_lt_u32 vcc, {hi - lo if not P("fb", 0) else 0}, {v(MX)}
    s_cbranch_vccnz att_x
    att_xb:
    v_rcp_f32 {v(MX)}, {v(LS)}
    v_rcp_f32 {v(MX+1)}, {v(LS+4)}""")
    C0, C1_ = 88, 104
    with Rec() as q:
        k("att_x:")
        def rk():
            rdK(0); rdK(1); dec(vK); k.wait(lg="all")
        def loop(name, body, last):
            k(f"v_mov_b32 {v(vK)}, {v(vKW)}\ns_mov_b32 {s(sIT)}, 0\n{name}:")
            rk(); qk(0, C0); qk(1, C1_)
            body()
            k(f"s_cmp_lg_u32 {s(sIT)}, {7*32768}\ns_cbranch_scc1 {name}_n")
            last()
            k(f"{name}_n:\ns_add_u32 {s(sIT)}, {s(sIT)}, {s(s32K)}\ns_cmp_le_u32 {s(sIT)}, {s(sNTL)}\ns_cbranch_scc1 {name}")
        def setc(mask):
            for i in range(16):
                if mask == "o": k(f"v_xor_b32 {v(C0+i)}, {NEG}, {v(MD+i)}")
                m = {"o": v(C0+i), "d": v(MD+i), "": 0}[mask]
                k(f"v_add_f32 {v(C1_+i)}, {m}, {v(MX+3)}\nv_add_f32 {v(C0+i)}, {m}, {v(MX+2)}")
        k(f"v_mov_b32 {v(MX)}, {NEG}\nv_mov_b32 {v(MX+1)}, {NEG}\nv_mov_b32 {v(MX+2)}, 0\nv_mov_b32 {v(MX+3)}, 0")
        setc("d")
        def p1():
            for h, S in enumerate((S0, S1)):
                for i in range(0, 16, 2): k(f"v_max3_f32 {v(MX+h)}, {v(MX+h)}, {v(S+i)}, {v(S+i+1)}")
            setc("")
        loop("att_x1", p1, lambda: setc("o"))
        k(f"""v_permlane32_swap_b32 {v(MX)}, {v(MX+1)}
        v_max_f32 {v(MX)}, {v(MX)}, {v(MX+1)}
        v_sub_f32 {v(MX+2)}, 0, {v(MX)}
        v_mov_b32 {v(MX+3)}, {v(MX+2)}
        v_permlane32_swap_b32 {v(MX+2)}, {v(MX+3)}
        s_lshr_b32 {s(sIT)}, {s(sNTL)}, 3
        s_add_u32 {s(sIT)}, {s(sIT)}, {s(s4K)}
        v_add_u32 {v(vVa)}, {s(sIT)}, {v(vVa)}
        v_add_u32 {v(vVb)}, {s(sIT)}, {v(vVb)}""")
        setc("d")
        for i in range(32): k(f"v_mov_b32 {v(O0+i)}, 0")
        for i in range(8): k(f"v_mov_b32 {v(LS+i)}, 0")
        def p2():
            rdV(0); rdV(1); dec(vVa, vVb); k.wait(lg="all")
            for h in range(2):
                for u in range(2): blk(h, u, {}); pv(h, u); rs(h, u)
            setc("")
        loop("att_x2", p2, lambda: setc("o"))
        k("s_branch att_xb")
    cold.extend(q)
    for i in range(0, 8, 2):
        pk("mul", v(O0+i,2), v(O0+i,2), v(MX,2), bsel=0); pk("mul", v(O1+8+i,2), v(O1+8+i,2), v(MX,2), bsel=1)
    for q in range(2):
        cvt(PP + 4*q, O0 + 4*q, 2); cvt(PP + 4*q + 2, O1 + 8 + 4*q, 2)
    dual([f"buffer_store_dwordx4 {v(PP+4*q,4)}, {v(vT0)}, {s(ACT,4)}, {s(sT0)} offen offset:{q*256}" for q in range(2)], sPURE)

BX = 56
def gemmB(acc, va, cinit, nxt=None, bases=None, fq=None, nbg=1, pre=None, mid=None, b0=8):
    N0 = P("bn", 12)
    def ld(st):
        k.vmem(f"buffer_load_dwordx4 {v(BX+4*st,4)}, {v(va[st//4])}, {s(ACT,4)}, {SK[st//4]} offen offset:{(st%4)*1024} sc1", ("x", st))
    for st in range(N0):
        ld(st)
        if pre: emit(pre, -(-len(pre) // (N0 - st)))
    if pre is not None: k.wait(lg="all")
    for st in range(16):
        if st == 8 and mid: mid()
        k.wait(vm=("x", st))
        for fb in range(4):
            c = v(acc + 4*fb, 4); n = 4*st + fb
            k(f"{M16} {c}, {a(4*n,4)}, {v(BX+4*st,4)}, {c if (st or cinit) else 0}")
            if fb == 0:
                if st + N0 < 16: ld(st + N0)
                elif st >= b0: bg(nbg)
            if nxt and n: rd_fragB(A0 + 4*(n-1), nxt[(n-1)//4], (n-1) % 4, bases, "fill")
            if fq and fb: emit(fq, 1)
    if fq: emit(fq)
    if nxt: rd_fragB(A0 + 4*63, nxt[15], 3, bases, "fill")

def wo_w1_w2():
    VB, TMP, vAD = 120, 128, 144
    ACC, CS1, ONES, STA, RM, KK, G0 = 160, 176, 192, 196, 200, 204, 208
    k(f"v_add_u32 {v(vAD)}, {FO}, {v(vA16)}")
    bases = rb_bases(VB, [0, 1])
    k.wait(vm="dma")
    k("s_barrier")
    qB(W1, [(g, 64*KB + g*4096) for g in range(11, 16)]); q3([3])
    with Rec() as fq: fill([g*4096 for g in range(16)], A0, bases)
    n = P("of0", 48); mix(fq[:n], 12, P("oa", 3)); del fq[:n]
    flag(sFAo, sPURE)
    mark("a.pub")
    stop(3)
    if P("t2", 0): touch(vT0, True)
    if P("tf", 2) & 4: k.vmem(f"buffer_load_dword {v(vJ)}, {v(vPH)}, {s(FLG,4)}, 0 offen sc1")
    n = P("of1", 32); mix(fq[:n], 6, P("ow", 5)); del fq[:n]
    assert len(bgq) <= 4
    poll(vPA)
    mark("wo.poll")
    def mid():
        assert not bgq
        k("s_barrier"); qB(W2, [(g, g*4096) for g in range(16)])
    gemmB(RES, [vAD]*4, True, [64*KB + g*4096 for g in range(16)], bases, pre=fq, mid=mid, b0=4)
    mark("wo.gemm")
    pub_tile(RES, FX2, STX2, TMP)
    bg(P("wp", 4))
    k(f"v_add_u32 {v(vAD)}, {FX2}, {v(vA16)}\ns_mov_b32 {s(sT3)}, {STX2}\nv_and_b32 {v(vT0)}, 0x30, v0\nv_add_u32 {v(vT0)}, {CS1L}, {v(vT0)}")
    k.wait(lg="all")
    def cs(lo, hi):
        if not lo:
            for i in range(4): k(f"v_mov_b32 {v(ONES+i)}, 0x3f803f80")
        for m in range(lo, hi):
            c = v(CS1 + 4*(m % 4), 4)
            k(f"{M16} {c}, {a(4*m,4)}, {v(ONES,4)}, {c if m >= 4 else 0}")
        if lo:
            for i in range(4): k(f"ds_write_b128 {v(vT0)}, {v(CS1+4*i,4)} offset:{64*i}")
    l0_only(lambda: cs(0, 24))
    flag(sFBo, sPURE)
    mark("wo.pub")
    stop(4)
    k("s_barrier")
    assert len(bgq) <= P("x2w", 4)
    q3([1, 2]); bg(P("x2w", 4))
    l0_only(lambda: cs(24, 64))
    for i in range(4): k.ds(f"ds_read_b128 {v(CS1+4*i,4)}, {v(vT0)} offset:{64*i}", "fill")
    poll(vPB16)
    mark("w1.poll")
    k.vmem(f"buffer_load_dwordx4 {v(STA,4)}, {v(vA16)}, {s(ACT,4)}, {s(sT3)} offen sc1", "st")
    with Rec() as fq:
        for i in (0, 1): k(f"v_add_f32 {v(STA+i)}, {v(STA+i)}, {v(STA+2+i)}")
        finish_stats(STA, RM, True)
        k(f"v_mul_f32 {v(STA)}, {v(RM)}, {v(RM)}\nv_fmaak_f32 {v(STA)}, {v(STA)}, {v(RM+2)}, {f2u(1e-5)}\nv_rsq_f32 {v(STA)}, {v(STA)}\n"
          f"v_mul_f32 {v(RM+2)}, {v(RM)}, {v(RM+1)}\nv_mul_f32 {v(STA)}, {v(RM)}, {v(STA)}")
        gelu_scale(STA, KK)
    gemmB(ACC, [vAD]*4, False, [g*4096 for g in range(16)], bases, fq, mid=lambda: k("s_barrier"), b0=P("b1", 4))
    mark("w1.gemm")
    k.wait(lg="all")
    with Rec() as fq:
        gelu(ACC, 16, G0, CS1, RM, KK)
        cvt(TMP, ACC, 8)
    mix(fq, 24, 2)
    dual([f"buffer_store_dwordx4 {v(TMP+4*i,4)}, {v(vP16)}, {s(ACT,4)}, {s(sFH)} offen offset:{1024*i}" for i in range(2)], sPUREH)
    mark("w1.epi")
    k("s_barrier")
    qB(W4, [(g, W4S[g]) for g in range(11)]); q3([0])
    bg(P("ha", 4))
    for i in range(0, 16, 2): pk("fma", v(XB+i,2), v(RES+i,2), v(RM,2), v(RM+2,2), bsel=0, csel=0)
    T = G0
    k(f"s_lshl_b32 {s(sT0)}, {s(sTB16)}, 4\nv_and_b32 {v(T+3)}, 15, v0\nv_add_u32 {v(T+3)}, {s(sT0)}, {v(T+3)}\n"
      f"v_and_b32 {v(T+4)}, 0x300, {v(vL16)}\nv_add_u32 {v(T+4)}, {s(sFH)}, {v(T+4)}\nv_mov_b32 {v(T+2)}, 0x80000000")
    for i, d in enumerate((-1, 1, -2, 2)):
        k(f"""v_add_u32 {v(vT0)}, {d}, {v(T+3)}
        v_cmp_gt_u32 vcc, 0x800, {v(vT0)}
        v_lshrrev_b32 {v(T)}, 4, {v(vT0)}
        v_and_b32 {v(vT0)}, 15, {v(vT0)}
        v_mad_u32_u24 {v(T)}, {v(T)}, {s(s2R)}, {v(T+4)}
        v_lshl_add_u32 {v(T)}, {v(vT0)}, 4, {v(T)}
        v_cndmask_b32 {v(vAD+i)}, {v(T+2)}, {v(T)}, vcc""")
    flag(sFHo, sPUREH, sEDG)
    mark("w1.pub")
    stop(5)
    bg(P("hw", 6))
    poll(vPH)
    mark("w2.poll")
    gemmB(XB, [vAD+i for i in range(4)], True, b0=P("b2", 8))
    mark("w2.gemm")
    assert len(bgq) <= 7
    pub_tile(XB, FX1, STX1, TMP)
    bg(99)
    for i in range(0, 16, 2): pk("add", v(RES+i,2), v(RES+i,2), v(XB+i,2))

def w3_w4():
    ACC, FR, BX0, BX1 = 56, 112, 168, A0 + 176
    STA, RM, vW, vAD, KK, VB = 156, 240, 140, 146, 148, 232
    CS = 112
    k(f"""v_lshrrev_b32 {v(vT0)}, 2, v0
    v_mul_u32_u24 {v(vT0)}, 224, {v(vT0)}
    v_and_b32 {v(vT1)}, 3, v0
    v_lshl_add_u32 {v(vT0)}, {v(vT1)}, 3, {v(vT0)}
    s_and_b32 {s(sT0)}, {s(sHP)}, 1
    s_lshl_b32 {s(sT1)}, {s(sT0)}, 5
    s_mul_i32 {s(sT0)}, {s(sT0)}, 192
    s_sub_u32 {s(sT0)}, {W3A + 192}, {s(sT0)}
    s_add_u32 {s(sT1)}, {s(sT1)}, {W3A}
    v_add_u32 {v(vW)}, {s(sT1)}, {v(vT0)}
    v_add_u32 {v(vW+1)}, {s(sT0)}, {v(vT0)}
    v_add_u32 {v(vW+2)}, {W3H - W3A}, {v(vW)}
    v_add_u32 {v(vW+3)}, {W3H - W3A}, {v(vW+1)}
    v_add_u32 {v(vAD)}, {FX1}, {v(vA3)}
    v_add_u32 {v(vAD+1)}, {FX1 + R2}, {v(vA3)}
    s_mov_b32 {s(sT3)}, {STX1 - FX1}""")
    bases = rb_bases(VB, [0, 1, 2])
    flag(sFBo, sPURE)
    mark("w2.pub")
    stop(6)
    k("s_barrier")
    fill(W4S, A0, bases)
    def rd3(dst, base, st, b, tag):
        for j in range(2):
            off = (st % 8)*7168 + j*3584 + (b*32 if b < 6 else 0)
            k.ds(f"ds_read_b64_tr_b16 {v(dst+2*j,2)}, {v(base + 2*(st//8) + (b == 6))} offset:{off}", tag)
    mark("w3.fill")
    poll(vPB32)
    mark("w3.poll")
    for t in range(2): k.vmem(f"buffer_load_dwordx4 {v(STA+4*t,4)}, {v(vAD+t)}, {s(ACT,4)}, {s(sT3)} offen sc1", "st")
    for st in range(16):
        for t, B in enumerate((BX0, BX1)):
            bgq.append(lambda st=st, t=t, B=B: k.vmem(f"buffer_load_dwordx4 {r(B+4*st,4)}, {v(vAD+t)}, {s(ACT,4)}, {SK[st//4]} offen offset:{(st%4)*1024} sc1", ("x", st)))
    bg(P("n3", 10))
    k.wait(lg="all")
    def colsum():
        for i in range(4): k(f"v_add_u32 {v(XB+i)}, {s(s3L)}, {v(vW+i)}\nv_mov_b32 {v(XB+4+i)}, 0x3f803f80")
        for i in range(28 + 5):
            if i < 28: rd3(FR + 4*(i % 6), XB, 4*(i//7), i % 7, ("c", i))
            m = i - 5
            if m >= 0:
                k.wait(lg=("c", m)); c = v(ACC + 4*(m % 7), 4)
                k(f"{M16} {c}, {v(XB+4,4)}, {v(FR+4*(m%6),4)}, {c if m >= 7 else 0}")
        k(f"s_mul_i32 {s(sT0)}, {s(sW)}, 448\ns_add_u32 {s(sT0)}, {s(sT0)}, {PART}\nv_and_b32 {v(vT1)}, 15, v0\n"
          f"v_lshl_add_u32 {v(vT1)}, {v(vT1)}, 2, {s(sT0)}")
        for b in range(7): k.ds(f"ds_write_b32 {v(vT1)}, {v(ACC+4*b)} offset:{b*64}")
        k.wait(lg="all")
    l0_only(colsum)
    k("s_barrier")
    l0_only(lambda: sum_partials(28, 448, CS3, FR))
    qB(W4, [(11 + g, W4S[g]) for g in range(11)])
    if P("t3", 1): bgq.append(lambda: touch(vT1, False))
    D = 5
    for n in range(D): rd3(FR + 4*n, vW, 0, n, ("w", n))
    with Rec() as fq:
        for t in range(2):
            for i in (0, 1): k(f"v_add_f32 {v(STA+4*t+i)}, {v(STA+4*t+i)}, {v(STA+4*t+2+i)}")
            finish_stats(STA + 4*t, RM + 4*t, True)
            gelu_scale(RM + 4*t, KK + 4*t)
        k(f"v_and_b32 {v(vT0)}, 0x30, v0\nv_add_u32 {v(vT0)}, {CS3}, {v(vT0)}")
    for n in range(112):
        st, b = divmod(n, 7)
        k.wait(vm=("x", st), lg=("w", min(n + 1, 111)) if n % 2 == 0 else None)
        for t, B in enumerate((BX0, BX1)):
            c = v(ACC + 28*t + 4*b, 4)
            k(f"{M16} {c}, {v(FR+4*(n%7),4)}, {r(B+4*st,4)}, {c if st else 0}")
            if t == 0 and n + D < 112: rd3(FR + 4*((n+D) % 7), vW, (n+D)//7, (n+D) % 7, ("w", n + D))
            if t == 1:
                if n % 2 and bgq: bg()
                elif n % 2: emit(fq, 2)
                else: emit(fq, 1)
    assert not fq and not bgq
    mark("w3.gemm")
    k(f"v_add_u32 {v(vAD)}, {R2}, {v(vA3)}")
    for b in range(7): k.ds(f"ds_read_b128 {v(CS+4*b,4)}, {v(vT0)} offset:{b*64}")
    k.wait(vm="dma")
    barrier()
    mark("w3.bar")
    qB(W4, [(22 + g, W4C[g]) for g in range(28)])
    G0, PKD = 168, 196
    for t in range(2):
        A = ACC + 28*t
        with Rec() as fq:
            gelu(A, 28, G0, CS, RM + 4*t, KK + 4*t)
            cvt(PKD + 16*t, A, 14)
        mix(fq, 12, P("e0", 12) if t == 0 else P("e1", 8))
        va = vA3 if t == 0 else vAD
        dual([f"buffer_store_dwordx4 {v(PKD+16*t+4*p,4)}, {v(va)}, {s(ACT,4)}, {s(sH3p)} offen offset:{p*1024}" for p in range(3)] +
             [f"buffer_store_dwordx2 {v(PKD+16*t+12,2)}, {v(va)}, {s(ACT,4)}, {s(sH3s)} offen"], sPURE)
    mark("w3.epi")
    NR = 16
    RING, AR, BV, vH = 136, 200, 40, 240
    with Rec() as fq:
        fill(W4S[:5], A0 + 176, bases); fill(W4S[5:], BV, bases)
    nf = P("h3f", 56)
    f0 = fq[:nf]; mix(f0, 12, P("h3a", 4))
    for i in range(4): k(f"v_add_u32 {v(vH+i)}, {FH3 + i*16384}, {v(vA16)}")
    flag(sFAo, sPURE)
    mark("w3.pub")
    stop(7)
    mix(fq[nf:], 8, len(bgq))
    barrier()
    qB(W4, [(50 + g, W4S[g]) for g in range(6)]); bg(99)
    src = {}
    for g in range(16): src[g] = ("r", A0 + 16*g)
    for g in range(6): src[16+g] = ("r", BV + 16*g)
    for g in range(28): src[22+g] = ("l", W4C[g])
    for g in range(6): src[50+g] = ("l", W4S[g])
    regs = [g for g in range(56) if src[g][0] == "r"]
    lds = sorted((g for g in range(56) if src[g][0] == "l"), key=lambda g: src[g][1] >= 64*KB)
    order = []
    for i in range(56):
        order.append(regs.pop(0) if regs and (i < 2 or i % 5 in (1, 3) or not lds) else lds.pop(0))
    nlow = max(i for i, g in enumerate(order) if src[g][0] == "l" and src[g][1] < 64*KB) + 1
    assert sorted(order) == list(range(56)) and nlow <= 38
    TQ = P("tq", 6)
    if TQ:
        k(f"s_lshr_b32 {s(sT2)}, s2, 3\ns_lshl2_add_u32 {s(sT2)}, {s(sT2)}, {s(sW)}\ns_mul_i32 {s(sT2)}, {s(sT2)}, 12288\n"
          f"v_lshl_add_u32 {v(vH+4)}, v0, {int(math.log2(192//TQ))}, {s(sT2)}")
    tq = {P("tq0", 4) + n*P("tqs", 6): n*12288//TQ for n in range(TQ)}
    mark("w4.fill")
    poll(vPA)
    mark("w4.poll")
    def ldx(i):
        g = order[i]
        k.vmem(f"buffer_load_dwordx4 {v(RING+4*(i%NR),4)}, {v(vH+g//16)}, {s(ACT,4)}, {SK[(g//4)%4]} offen offset:{(g%4)*1024} sc1", ("x", i))
    N0 = P("n4", 12)
    for i in range(N0): ldx(i)
    k("s_barrier")
    lf = [(i, fb) for i in range(56) if src[order[i]][0] == "l" for fb in range(4)]
    pos = {x: n for n, x in enumerate(lf)}
    nxt = 0; used = 0
    for i in range(56):
        kind, loc = src[order[i]]
        if i == 40: k("s_barrier"); qKV(0, 3)
        for fb in range(4):
            if kind == "l":
                n = pos[(i, fb)]; A = v(AR + 4*(n % 8), 4)
                assert n + 1 - fb % 2 < nxt
                k.wait(vm=("x", i), lg=("w", n + 1) if fb % 2 == 0 else None)
            else:
                k.wait(vm=("x", i)); A = r(loc + 4*fb, 4)
            c = v(RES + 4*fb, 4)
            k(f"{M16} {c}, {A}, {v(RING+4*(i%NR),4)}, {c}")
            if fb == 0:
                if i + N0 < 56: ldx(i + N0)
                elif (55 - i) % 2 or N0 < 12: bg()
            if fb == 2 and i in tq: k.vmem(f"buffer_load_dword {v(vJ)}, {v(vH+4)}, {s(WQ,4)}, {SK[tq[i]//4096]} offen offset:{tq[i]%4096}")
            if nxt < len(lf) and nxt - used < 7:
                rd_fragB(AR + 4*(nxt % 8), src[order[lf[nxt][0]]][1], lf[nxt][1], bases, ("w", nxt)); nxt += 1
            if kind == "l": used += 1
    assert not bgq
    k.vm.clear(); k.vm.append("dma")
    mark("w4.gemm")

def final():
    k(f"""v_and_b32 v57, 15, v0
    v_lshrrev_b32 v58, 4, v0
    s_lshl_b32 {s(sT0)}, {s(sTB16)}, 14
    s_lshl_b32 {s(sT1)}, {s(sNT)}, 7
    s_add_u32 {s(sT0)}, {s(sT0)}, {s(sT1)}
    v_lshlrev_b32 v56, 10, v57
    v_lshl_add_u32 v56, v58, 3, v56""")
    cvt(64, RES, 8)
    for f in range(4): k(f"buffer_store_dwordx2 {v(64+2*f,2)}, v56, {s(XO,4)}, {s(sT0)} offen offset:{32*f}")

def main():
    prologue()
    k("layer:")
    k.vm.append("dma")
    n0 = nmark[0]
    x_pub()
    mark("x.dma")
    stop(1)
    qkv_att()
    wo_w1_w2()
    w3_w4()
    k(f"s_cmp_lg_u32 {s(sLAY)}, 0\ns_cbranch_scc1 done")
    k(f"s_mov_b32 {s(sLAY)}, 1\ns_bitset1_b32 {s(sFHo)}, 18\ns_bitset1_b32 {s(sFKVo)}, 18\nv_or_b32 {v(vPH)}, 0x40000, {v(vPH)}\nv_or_b32 {v(vPKV)}, 0x40000, {v(vPKV)}\n"
      f"s_add_u32 {s(sFH)}, {s(sFH)}, 0x4000\ns_add_u32 {s(sKVo)}, {s(sKVo)}, {s(s32K)}\ns_add_u32 {s(sKVf)}, {s(sKVf)}, {s(s32K)}\ns_add_u32 {s(sMT)}, {s(sMT)}, {s(s32K)}")
    if PROF: k(f"v_mov_b32 {v(vPR2)}, {v(vPR)}")
    k("s_branch layer\ndone:")
    final()
    k("s_waitcnt vmcnt(0)")
    if OPT.get("cyc"):
        k("s_memtime s[94:95]\ns_memrealtime s[92:93]\ns_waitcnt lgkmcnt(0)\ns_sub_u32 s94, s94, s96\ns_lshr_b32 s96, s94, 3")
        k("cy_l:\ns_sleep 4\ns_memrealtime s[94:95]\ns_waitcnt lgkmcnt(0)\ns_sub_u32 s94, s94, s92\ns_cmp_lt_u32 s94, s96\ns_cbranch_scc1 cy_l")
    if TM:
        mark("end")
        if OPT.get("wb"): k("buffer_wbl2 sc1\ns_waitcnt vmcnt(0)")
        k("tm_l:\ns_sleep 4\ns_memrealtime s[94:95]\ns_waitcnt lgkmcnt(0)\ns_sub_u32 s94, s94, s92\ns_cmp_lt_u32 s94, 15000\ns_cbranch_scc1 tm_l")
    if PROF:
        mark("end")
        k(f"s_memrealtime {s(sPT,2)}\ns_waitcnt lgkmcnt(0)\nv_writelane_b32 {v(vPR)}, {s(sPT)}, 63")
        k(f"""s_add_u32 {s(DBG)}, {s(FLG)}, {PROF_OFF}
        s_addc_u32 {s(DBG+1)}, {s(FLG+1)}, 0
        s_mov_b32 {s(DBG+2)}, 0x100000
        s_lshl_b32 {s(sT0)}, s2, 2
        s_add_u32 {s(sT0)}, {s(sT0)}, {s(sW)}
        s_lshl_b32 {s(sT0)}, {s(sT0)}, 9
        v_lshlrev_b32 v56, 2, v0
        buffer_store_dword {v(vPR2)}, v56, {s(DBG,4)}, {s(sT0)} offen
        buffer_store_dword {v(vPR)}, v56, {s(DBG,4)}, {s(sT0)} offen offset:256""")
    k("bail:\ns_endpgm")
    for t in cold: k(t)
    k("text_end:")
    body, nn = fix_hazards(k.L)
    ref = open(f"cdna_kernels/{NAME}.s.ref").read().split("\n")
    hd = [l for l in ref[:ref.index(f"{NAME}_kernel:") + 1]]
    hd = ["; @launch grid=(256,1,1) block=(256,1,1) lds=163840" if l.startswith("; @launch") else l for l in hd]
    tl = ref[ref.index('.section .rodata,"a"'):]
    tl = [l.replace("next_free_vgpr 256", "next_free_vgpr 512") for l in tl]
    out = hd + [("" if t.endswith(":") else "    ") + t for t in body] + tl
    open(sys.argv[1], "w").write("\n".join(out))
    if PROF: open(sys.argv[1] + ".marks", "w").write(" ".join(marks))
    print("instructions", len(body), "nops", nn)

main()
```

```python
import sys, math, struct
from asmlib import *

NAME = "interleave_layers__sliding_block__mixer_s_mlp__prompt"
OPT = dict(x.split("=") if "=" in x else (x, "1") for x in sys.argv[2:])
PROF = int(OPT.get("prof", 0)); STOP = int(OPT.get("stop", 99))
KB = 1024
FX, FO, FX2, FH_, FX1, FKV_, FH3 = 0, 17*KB, 0, 73*KB, 0, 105*KB, 17*KB
STX, STX2, STX1 = 16*KB, 16*KB, 16*KB
R2 = 169*KB
ACT_OFF = 0x90000; PROF_OFF = 0x8000000; E_OFF = 0x80000
GB, GH, GA = 0, 2048, 4096
GH2, GKV = 0x10000, 0x20000
KVB = 110*KB; PQ = 108*KB; PART = 156*KB; CSQ = 158*KB; CS3 = 158*KB + 512; CS1L = 159*KB
W3A, W3H = 44*KB, 100*KB
W3Q = [W3A, W3A + 28*KB, W3H, W3H + 28*KB]
W4S = [g*4096 for g in range(11)]
W4C = [W3A + g*4096 for g in range(28)]
NEG = 0xf1800000
def P(name, d): return int(OPT.get(name, d))
def NT(b): return " nt" if P("nt", 0) & b else ""
M32 = "v_mfma_f32_32x32x16_bf16"; M16 = "v_mfma_f32_16x16x32_bf16"
def f2u(x): return "0x%08x" % struct.unpack("<I", struct.pack("<f", x))[0]
LOG2E = 1.4426950408889634
C1 = -2*math.sqrt(2/math.pi)*LOG2E; C2 = C1*0.044715

ACT, FLG, WQ, WO, W1, W2, W3, W4, XO, DBG = 4, 8, 12, 16, 20, 24, 28, 32, 36, 40
(sW, sC, sHP, sNT, sTB32, sTB16, sLAY, sPURE, sPUREH, s4K, s8K, s12K, s32K, s2R, sOFF, sCNT,
 sT0, sT1, sOUT, _o1, sV, _v1, sXP, _x1, sW1K, sFBo, sFHo, sFAo, sFKVo, sKVo, sKVf, sNTL,
 sT2, sT3, sH3p, sH3s, sIT, sMT, sG0, sQA, sQB, sM1, sM2, s3L, s3G, sEDG) = range(44, 90)
sPT = 90; sFH = 98; sPR = 99
SK = [0, s(s4K), s(s8K), s(s12K)]
(vL, vA16, vP16, vA32, vA3, vST, vDB, vDQ) = range(0, 8)
vRB = [8, 9, 10, 11]; vWq = 12; vL16 = 13
vPB32, vPB16, vPA, vPH, vPKV = 14, 15, 16, 17, 18
vT0, vT1, vT2 = 19, 20, 21
vPR2, vPR = 22, 23
RES = 24; XB = 40; vD3 = 248; vJ = 255
A0 = 256

k = Asm()
nmark = [0]; marks = []
TM = OPT.get("tm")
def mark(name):
    if OPT.get("cyc") and OPT["cyc"].split(":")[0] == name:
        L = k.lab("cy")
        if name not in ("first", "start", "xload", "init", "end"): k(f"s_cmp_lg_u32 {s(sLAY)}, {OPT['cyc'].split(':')[1]}\ns_cbranch_scc1 {L}")
        k(f"s_memtime s[96:97]\n{L}:\ns_waitcnt lgkmcnt(0)"); k.lg.clear()
    if TM and TM.split(":")[0] == name:
        L = k.lab("tm")
        if name not in ("first", "start", "xload", "init", "end"): k(f"s_cmp_lg_u32 {s(sLAY)}, {TM.split(':')[1]}\ns_cbranch_scc1 {L}")
        k(f"s_memrealtime s[92:93]\n{L}:\ns_waitcnt lgkmcnt(0)"); k.lg.clear()
    if not PROF or name == "first": return
    k(f"s_memtime {s(sPT,2)}\ns_waitcnt lgkmcnt(0)\nv_writelane_b32 {v(vPR)}, {s(sPT)}, {nmark[0]}")
    k.lg.clear(); marks.append(name); nmark[0] += 1

def srd(d, nbytes):
    k(f"s_mov_b32 {s(d+2)}, {nbytes}\ns_mov_b32 {s(d+3)}, 0x20000")

def barrier():
    k.wait(lg="all"); k("s_barrier")

def poll(va):
    L = k.lab("poll")
    k(f"s_mov_b32 {s(sCNT)}, 0x8000\n{L}:")
    k.vmem(f"buffer_load_dwordx2 {v(vT1,2)}, {v(va)}, {s(FLG,4)}, 0 offen sc1")
    k(f"s_sub_u32 {s(sCNT)}, {s(sCNT)}, 1\ns_cbranch_scc1 bail")
    k.wait(vm="all")
    k(f"v_cmp_ne_u64 vcc, {s(sV,2)}, {v(vT1,2)}\ns_cbranch_vccnz {L}")

cold = []
def dual(stores, spure):
    La, Lb = k.lab("sc"), k.lab("scb")
    k(f"s_cmp_eq_u32 {s(spure)}, 0\ns_cbranch_scc1 {La}")
    for t in stores: k.vmem(t, "pub")
    k(f"{Lb}:")
    cold.extend([f"{La}:"] + [t + " sc1" for t in stores] + [f"s_branch {Lb}"])

def flag(saddr, spure, line=None):
    k(f"s_add_u32 {s(sV)}, {s(sV)}, 1\nv_mov_b32 {v(vT2)}, {s(sV+1)}\nv_mov_b32 {v(vT1)}, {s(sV)}")
    t = f"buffer_store_dwordx2 {v(vT1,2)}, off, {s(FLG,4)}, {s(saddr)}"
    if line and P("fl", 1):
        k(f"v_lshlrev_b32 {v(vT0)}, 3, v0\n" + ("s_mov_b64 exec, 0xffff" if line == "all" else f"s_cmp_eq_u32 {s(line)}, 0\ns_cselect_b64 exec, 0xffff, 1"))
        t = t.replace("off", v(vT0)) + " offen"
    else: k("s_mov_b64 exec, 1")
    k.wait(vm="pub")
    if spure is None: k.vmem(t + " sc1")
    else: dual([t], spure)
    k("s_mov_b64 exec, -1")

def touch(tmp, h):
    k(f"v_mad_u32_u24 {v(tmp)}, v0, {s(sPR+1)}, {v(vA16)}")
    if not h:
        k.vmem(f"buffer_load_dword {v(vJ)}, {v(tmp)}, {s(ACT,4)}, {s(sPR)} offen sc1", "pre")
        return
    k(f"""v_lshl_add_u32 {v(tmp)}, {s(sNT)}, 11, {v(tmp)}
    s_sub_u32 {s(sT0)}, {s(sFH)}, {FO + 2048}
    s_mov_b32 {s(sT1)}, {FO}
    s_mov_b32 exec_hi, 0
    s_mov_b32 exec_lo, 0xffff0000
    v_add_u32 {v(tmp)}, {s(sT0)}, {v(tmp)}
    s_mov_b32 exec_lo, -1""")
    k.vmem(f"buffer_load_dword {v(vJ)}, {v(tmp)}, {s(ACT,4)}, {s(sT1)} offen sc1", "pre")
    k("s_mov_b64 exec, -1")

def code_touch(tmp, first):
    L = k.lab("pc")
    k(f"s_getpc_b64 {s(sT0,2)}\n{L}:")
    if first:
        n = P("cn", 9)
        k(f"""s_lshr_b32 {s(sT2)}, s2, 3
        s_mul_i32 {s(sT2)}, {s(sT2)}, {9*128}
        v_lshl_add_u32 {v(tmp)}, v0, 7, {s(sT2)}
        v_min_u32 {v(tmp)}, text_end-{L}-4, {v(tmp)}
        v_mov_b32 {v(tmp+2)}, {s(sT1)}
        v_add_co_u32 {v(tmp+1)}, vcc, {s(sT0)}, {v(tmp)}
        v_addc_co_u32 {v(tmp+2)}, vcc, 0, {v(tmp+2)}, vcc
        v_cmp_gt_u32 vcc, {n}, v0
        s_or_b32 vcc_lo, vcc_lo, 1
        s_mov_b64 exec, vcc
        global_load_dword {v(vJ)}, {v(tmp+1,2)}, off
        s_mov_b64 exec, -1""")
        return
    k(f"""s_lshr_b32 {s(sT2)}, s2, 3
    s_lshl2_add_u32 {s(sT2)}, {s(sT2)}, {s(sW)}
    s_lshl_b32 {s(sT2)}, {s(sT2)}, 8
    v_lshl_add_u32 {v(tmp)}, v0, 7, {s(sT2)}
    v_min_u32 {v(tmp)}, text_end-{L}-4, {v(tmp)}
    v_mov_b32 {v(tmp+2)}, {s(sT1)}
    v_add_co_u32 {v(tmp+1)}, vcc, {s(sT0)}, {v(tmp)}
    v_addc_co_u32 {v(tmp+2)}, vcc, 0, {v(tmp+2)}, vcc
    s_mov_b64 exec, 3
    global_load_dword {v(vJ)}, {v(tmp+1,2)}, off
    s_mov_b64 exec, -1""")

def pref(loc, tmp):
    sm = [w for w, o in ((WO, "pfo"), (W1, "pf1"), (W2, "pf1")) if P(o, P("pf", 2)) == loc]
    lg = [w for w, o in ((W3, "pf3"), (W4, "pf4")) if P(o, P("pf", 2)) == loc]
    if not sm and not lg: return
    k(f"s_lshl2_add_u32 {s(sM1)}, s2, {s(sW)}\nv_lshlrev_b32 {v(tmp)}, 6, v0\ns_mul_i32 {s(sM2)}, {s(sM1)}, 1792\ns_lshl_b32 {s(sM1)}, {s(sM1)}, 9\ns_mov_b32 exec_hi, 0")
    if loc > 1: k(f"s_cmp_eq_u32 {s(sLAY)}, 0")
    for ws_, m, so in ((sm, 0xff, sM1), (lg, 0xfffffff, sM2)):
        if ws_: k(f"s_cselect_b32 exec_lo, {m}, 1" if loc > 1 else f"s_mov_b32 exec_lo, {m}")
        for w in ws_: k.vmem(f"buffer_load_dword {v(vJ)}, {v(tmp)}, {s(w,4)}, {s(so)} offen")
    k("s_mov_b64 exec, -1")

def prefq(loc, tmp):
    if P("pq", 0) != loc: return
    st = P("pqs", 7)
    k(f"s_lshl2_add_u32 {s(sM1)}, s2, {s(sW)}\nv_lshlrev_b32 {v(tmp)}, {st}, v0\ns_mul_i32 {s(sM1)}, {s(sM1)}, 1536\ns_mov_b32 exec_hi, 0\n"
      f"s_cmp_eq_u32 {s(sLAY)}, 0\ns_cselect_b32 exec_lo, {(1 << (1536 >> st)) - 1}, 1")
    k.vmem(f"buffer_load_dword {v(vJ)}, {v(tmp)}, {s(WQ,4)}, {s(sM1)} offen")
    k("s_mov_b64 exec, -1")

bgq = []
def bg(n=1):
    for _ in range(min(n, len(bgq))): bgq.pop(0)()

def qB(w, groups):
    for n, (g, lds) in enumerate(groups):
        def f(n=n, g=g, lds=lds):
            p = groups[n-1] if n else None
            if p and lds - p[1] == 4096: k(f"s_add_u32 m0, m0, {s(s4K)}")
            else: k(f"s_add_u32 m0, {s(sW1K)}, {lds}")
            if p and g - p[0] == 1: k(f"s_add_u32 {s(sOFF)}, {s(sOFF)}, {s(s32K)}")
            else: k(f"s_mov_b32 {s(sOFF)}, {g*32768}")
            k.vmem(f"buffer_load_dwordx4 {v(vDB)}, {s(w,4)}, {s(sOFF)} offen{NT(1)} lds", "dma")
        bgq.append(f)

def qQ(lo, hi):
    for n in range(lo, hi):
        def f0(n=n):
            k(f"s_xor_b32 m0, {s(sQB)}, {n*4096}\ns_xor_b32 {s(sOFF)}, {s(sG0)}, {n}\ns_mul_i32 {s(sOFF)}, {s(sOFF)}, {64*3072}")
            k.vmem(f"buffer_load_dwordx4 {v(vDQ)}, {s(WQ,4)}, {s(sOFF)} offen{NT(4)} lds", "dma")
        bgq.append(f0)

def qKV(lo, hi):
    for n in range(lo, hi):
        def f1(n=n):
            k(f"s_xor_b32 m0, {s(sQA)}, {n*8192}\ns_xor_b32 {s(sOFF)}, {s(sG0)}, {n}\ns_mul_i32 {s(sOFF)}, {s(sOFF)}, {64*3072}\ns_bitset1_b32 {s(sOFF)}, 10")
            k.vmem(f"buffer_load_dwordx4 {v(vDQ)}, {s(WQ,4)}, {s(sOFF)} offen{NT(4)} lds", "dma")
        def f2():
            k.vmem(f"buffer_load_dwordx4 {v(vDQ)}, {s(WQ,4)}, {s(sOFF)} offen offset:1024{NT(4)} lds", "dma")
        bgq.extend([f1, f2])

def q3(quads):
    for q in quads:
        for p in range(7):
            def f(q=q, p=p):
                if p == 0: k(f"s_add_u32 m0, {s(s3L)}, {W3Q[q]}\ns_add_u32 {s(sOFF)}, {s(s3G)}, {q*4*32*3584}")
                if p == 4: k(f"s_add_u32 m0, m0, {s(s4K)}\ns_add_u32 {s(sOFF)}, {s(sOFF)}, {s(s4K)}")
                k.vmem(f"buffer_load_dwordx4 {v(vD3+p)}, {s(W3,4)}, {s(sOFF)} offen offset:{(p%4)*1024}{NT(2)} lds", "dma")
            bgq.append(f)

class Rec:
    def __enter__(self):
        self.n = len(k.L); self.q = []; self.g = len(k.lg); return self.q
    def __exit__(self, *a):
        self.q.extend(k.L[self.n:]); del k.L[self.n:]; del k.lg[self.g:]
def emit(q, n=999):
    for _ in range(min(n, len(q))):
        t = q.pop(0)
        if callable(t): t()
        elif t.startswith("ds_"): k.ds(t, "fill")
        else: k(t)

def rb_bases(vb, his):
    m = {0: vRB}
    for n, hi in enumerate(h for h in his if h):
        m[hi] = [vb + 4*n + f for f in range(4)]
        for f in range(4): k(f"v_add_u32 {v(m[hi][f])}, {hi*65536}, {v(vRB[f])}")
    return m

def rd_fragB(dst, lds, fb, bases, tag):
    hi = lds // 65536
    for j in range(2):
        k.ds(f"ds_read_b64_tr_b16 {r(dst+2*j,2)}, {v(bases[hi][fb])} offset:{lds%65536 + j*2048}", tag)

def fill(slots, dst, bases):
    for i in range(len(slots)*4): rd_fragB(dst + 4*i, slots[i//4], i % 4, bases, "fill")

def mix(q, per, nbg):
    while q or nbg > 0:
        if nbg > 0: bg(); nbg -= 1
        emit(q, per)

def pk(op, d, a_, b_, c_=None, bsel=None, csel=None):
    n = 3 if c_ is not None else 2
    t = f"v_pk_{op}_f32 {d}, {a_}, {b_}" + (f", {c_}" if c_ is not None else "")
    if bsel is not None:
        lo = [0]*n; hi = [1]*n; lo[1] = bsel; hi[1] = bsel
        if csel is not None: lo[2] = csel; hi[2] = csel
        t += f" op_sel:[{','.join(map(str,lo))}] op_sel_hi:[{','.join(map(str,hi))}]"
    k(t)

def cvt(d, src, n):
    for i in range(n): k(f"v_cvt_pk_bf16_f32 {v(d+i)}, {v(src+2*i)}, {v(src+2*i+1)}")

def finish_stats(sq, out, two_level):
    a_, b_ = v(sq), v(sq+1)
    k(f"v_permlane32_swap_b32 {a_}, {b_}\nv_add_f32 {a_}, {a_}, {b_}\nv_mov_b32 {b_}, {a_}")
    if two_level: k(f"v_permlane16_swap_b32 {a_}, {b_}\nv_add_f32 {a_}, {a_}, {b_}\nv_mov_b32 {b_}, {a_}")
    k(f"v_permlane32_swap_b32 {a_}, {b_}\nv_mul_f32 {v(out+1)}, {f2u(-1/512)}, {a_}\nv_mul_f32 {b_}, {f2u(1/512)}, {b_}\n"
      f"v_fma_f32 {b_}, -{v(out+1)}, {v(out+1)}, {b_}\nv_max_f32 {v(out+2)}, 0, {b_}\nv_add_f32 {b_}, {f2u(1e-5)}, {v(out+2)}\n"
      f"v_rsq_f32 {v(out)}, {b_}")

def gelu_scale(rr, kk):
    k(f"v_rcp_f32 {v(kk+2)}, {v(rr)}\nv_mul_f32 {v(kk+1)}, {f2u(C1)}, {v(rr)}\nv_mul_f32 {v(kk)}, {v(rr)}, {v(rr)}\n"
      f"v_mul_f32 {v(kk)}, {f2u(0.044715)}, {v(kk)}\nv_mul_f32 {v(kk)}, {v(kk)}, {v(kk+1)}")

def pub_tile(src, field, stf, tmp):
    k(f"s_mov_b32 {s(sT0)}, {field}\ns_mov_b32 {s(sT1)}, {stf}")
    cvt(tmp, src, 8)
    dual([f"buffer_store_dwordx4 {v(tmp+4*i,4)}, {v(vP16)}, {s(ACT,4)}, {s(sT0)} offen offset:{1024*i}" for i in range(2)], sPURE)
    S, Q = tmp + 8, tmp + 10
    pk("add", v(S,2), v(src,2), v(src+2,2)); pk("mul", v(Q,2), v(src,2), v(src,2))
    for i in range(1, 8):
        if i > 1: pk("add", v(S,2), v(S,2), v(src+2*i,2))
        pk("fma", v(Q,2), v(src+2*i,2), v(src+2*i,2), v(Q,2))
    k(f"v_add_f32 {v(S)}, {v(S)}, {v(S+1)}\nv_add_f32 {v(S+1)}, {v(Q)}, {v(Q+1)}\n"
      f"v_permlane32_swap_b32 {v(S)}, {v(S+1)}\nv_add_f32 {v(S)}, {v(S)}, {v(S+1)}\nv_mov_b32 {v(S+1)}, {v(S)}\n"
      f"v_permlane16_swap_b32 {v(S)}, {v(S+1)}\nv_add_f32 {v(S)}, {v(S)}, {v(S+1)}")
    dual([f"buffer_store_dword {v(S)}, {v(vST)}, {s(ACT,4)}, {s(sT1)} offen"], sPURE)

def gelu(y, n, tmp, cs, rm, kk):
    Pr = range(0, n, 2)
    for i in Pr: pk("fma", v(y+i,2), v(cs+i,2), v(rm,2), v(y+i,2), bsel=1)
    for i in Pr: pk("mul", v(tmp+i,2), v(y+i,2), v(y+i,2))
    for i in Pr: pk("fma", v(tmp+i,2), v(tmp+i,2), v(kk,2), v(kk,2), bsel=0, csel=1)
    for i in Pr: pk("mul", v(tmp+i,2), v(tmp+i,2), v(y+i,2))
    for i in range(n): k(f"v_exp_f32 {v(tmp+i)}, {v(tmp+i)}")
    for i in Pr: pk("fma", v(tmp+i,2), v(tmp+i,2), v(kk+2,2), v(kk+2,2), bsel=0, csel=0)
    for i in range(n): k(f"v_rcp_f32 {v(tmp+i)}, {v(tmp+i)}")
    for i in Pr: pk("mul", v(y+i,2), v(y+i,2), v(tmp+i,2))

def sum_partials(n16, stride, dst, tmp, lo=0, PART=PART):
    k(f"v_min_u32 {v(vT0)}, {n16-1}, {v(vL)}\nv_lshlrev_b32 {v(vT0)}, 4, {v(vT0)}\nv_add_u32 {v(vT0)}, {PART + 16*lo}, {v(vT0)}")
    for i in range(4): k.ds(f"ds_read_b128 {v(tmp+4*i,4)}, {v(vT0)} offset:{i*stride}")
    k.wait(lg="all")
    for i in range(1, 4):
        for h in (0, 2): pk("add", v(tmp+h,2), v(tmp+h,2), v(tmp+4*i+h,2))
    k.ds(f"ds_write_b128 {v(vT0)}, {v(tmp,4)} offset:{dst-PART}")
    k.wait(lg="all")

def stop(n):
    if STOP == n: k("s_branch bail")

late = []
def prologue():
    k("s_cmp_ge_u32 s2, 0x100\ns_cbranch_scc1 bail")
    mark("first")
    for d, off in ((XO, 0), (WQ, 8), (FLG, 80)): k(f"s_load_dwordx2 {s(d,2)}, s[0:1], {off}")
    if P("cp", 3) & 1: code_touch(vT0, True); k.vm += [None]
    vXO = 56
    k(f"""v_lshrrev_b32 v1, 6, v0
    v_and_b32 v0, 63, v0
    v_readfirstlane_b32 {s(sW)}, v1
    s_and_b32 {s(sC)}, s2, 7
    s_lshr_b32 s3, s2, 3
    s_lshr_b32 {s(sNT)}, s2, 5
    s_and_b32 {s(sT1)}, s3, 3
    s_lshl2_add_u32 {s(sT1)}, {s(sT1)}, {s(sW)}
    s_lshl4_add_u32 {s(sTB16)}, {s(sC)}, {s(sT1)}
    v_and_b32 v57, 15, v0
    v_lshrrev_b32 v58, 4, v0
    s_lshl_b32 {s(sT0)}, {s(sTB16)}, 14
    s_lshl_b32 {s(sT1)}, {s(sNT)}, 7
    s_add_u32 {s(sT0)}, {s(sT0)}, {s(sT1)}
    v_lshlrev_b32 {v(vXO)}, 10, v57
    v_lshl_add_u32 {v(vXO)}, v58, 3, {v(vXO)}""")
    srd(XO, 2097152)
    k("s_waitcnt lgkmcnt(0)")
    mark("start")
    if PROF: k(f"s_memrealtime {s(sPT,2)}\ns_waitcnt lgkmcnt(0)\nv_writelane_b32 {v(vPR)}, {s(sPT)}, 62")
    for f in range(4):
        k.vmem(f"buffer_load_dwordx2 {v(64+2*f,2)}, {v(vXO)}, {s(XO,4)}, {s(sT0)} offen offset:{32*f}", "x")
    k(f"s_load_dwordx2 {s(sV,2)}, {s(FLG,2)}, {E_OFF}")
    for d, off in ((DBG, 72), (WO, 16), (W1, 32), (W2, 40), (W3, 48), (W4, 56), (sOUT, 64)):
        k(f"s_load_dwordx2 {s(d,2)}, s[0:1], {off}")
    srd(WQ, 1572864); srd(ACT, 128*R2)
    k(f"""s_add_u32 {s(ACT)}, {s(FLG)}, {ACT_OFF}
    s_addc_u32 {s(ACT+1)}, {s(FLG+1)}, 0
    s_mov_b32 {s(s2R)}, {R2}
    s_mul_i32 {s(sT3)}, {s(sTB16)}, {s(s2R)}""")
    if P("tw", 1): k.vmem(f"buffer_load_dword {v(vJ)}, off, {s(ACT,4)}, {s(sT3)} sc1")
    if P("tk", 0):
        k(f"""s_lshl2_add_u32 {s(sT1)}, s3, {s(sW)}
        s_mul_i32 {s(sT1)}, {s(sT1)}, 12288
        v_mul_u32_u24 v59, 3072, v58
        v_lshl_add_u32 v59, v57, 7, v59""")
        k.vmem(f"buffer_load_dword {v(vJ)}, v59, {s(WQ,4)}, {s(sT1)} offen offset:1024")
        if P("tk", 0) == 2:
            k("s_mov_b32 exec_lo, 0xff00ff\ns_mov_b32 exec_hi, 0xff00ff")
            k.vmem(f"buffer_load_dword {v(vJ)}, v59, {s(WQ,4)}, {s(sT1)} offen")
            k("s_mov_b64 exec, -1")
    k(f"""s_lshr_b32 {s(sHP)}, s2, 4
    s_and_b32 {s(sG0)}, s3, 3
    s_lshl_b32 {s(sG0)}, {s(sG0)}, 1
    s_and_b32 {s(sT1)}, s2, 1
    s_or_b32 {s(sG0)}, {s(sG0)}, {s(sT1)}
    s_lshl_b32 {s(sW1K)}, {s(sW)}, 10
    s_lshl_b32 {s(sQB)}, {s(sG0)}, 12
    s_add_u32 {s(sQB)}, {s(sQB)}, {s(sW1K)}
    s_lshl_b32 {s(sQA)}, {s(sQB)}, 1
    s_bitset1_b32 {s(sQB)}, 16
    v_lshrrev_b32 v59, 2, v0
    v_mul_u32_u24 v59, 3072, v59
    v_and_b32 v60, 3, v0
    v_lshl_add_u32 v59, v60, 4, v59
    s_mul_i32 {s(sT0)}, {s(sW)}, {16*3072}
    s_lshl_b32 {s(sT1)}, {s(sHP)}, 6
    s_add_u32 {s(sT0)}, {s(sT0)}, {s(sT1)}
    v_add_u32 {v(vDQ)}, {s(sT0)}, v59""")
    qKV(0, 3); bg(P("p0", 0))
    k(f"""s_and_b32 {s(sMT)}, s3, 1
    s_lshl_b32 {s(sT0)}, {s(sC)}, 3
    s_lshl_b32 {s(sT1)}, {s(sMT)}, 2
    s_add_u32 {s(sT0)}, {s(sT0)}, {s(sT1)}
    s_add_u32 {s(sTB32)}, {s(sT0)}, {s(sW)}
    s_sub_u32 {s(sIT)}, {s(sTB32)}, 4
    s_cselect_b32 {s(sIT)}, {s(sTB32)}, {s(sIT)}
    s_sub_u32 {s(sCNT)}, {s(sTB32)}, 8
    s_cselect_b32 {s(sCNT)}, {s(sTB32)}, {s(sCNT)}
    s_min_u32 {s(sNTL)}, {s(sTB32)}, 8
    s_lshl_b32 {s(sNTL)}, {s(sNTL)}, 15
    s_mov_b32 {s(s4K)}, 4096
    s_mov_b32 {s(s8K)}, 8192
    s_mov_b32 {s(s12K)}, 12288
    s_mov_b32 {s(s32K)}, 32768
    v_lshlrev_b32 {v(vL16)}, 4, v0
    s_waitcnt lgkmcnt(0)""")
    for d, n in ((FLG, E_OFF + 0x100), (DBG, 256), (WO, 524288), (W1, 524288), (W2, 524288), (W3, 1835008), (W4, 1835008)): srd(d, n)
    pref(1, 61)
    k(f"""s_mul_i32 {s(sT0)}, {s(sTB16)}, {s(s2R)}
    v_add_u32 {v(vA16)}, {s(sT0)}, {v(vL16)}
    s_lshl_b32 {s(sT1)}, {s(sNT)}, 11
    v_add_u32 {v(vP16)}, {s(sT1)}, {v(vA16)}
    s_lshr_b32 {s(sT1)}, {s(sNT)}, 1
    s_lshl_b32 {s(sT1)}, {s(sT1)}, 8
    s_add_u32 {s(sT0)}, {s(sT0)}, {s(sT1)}
    s_and_b32 {s(sT1)}, {s(sNT)}, 1
    s_lshl_b32 {s(sT1)}, {s(sT1)}, 3
    s_add_u32 {s(sT0)}, {s(sT0)}, {s(sT1)}
    v_lshrrev_b32 v59, 5, v0
    v_lshlrev_b32 v60, 4, v57
    v_lshl_add_u32 v61, v59, 2, v60
    v_add_u32 {v(vST)}, {s(sT0)}, v61
    s_mul_i32 {s(sT0)}, {s(sTB32)}, {2*R2}
    v_add_u32 {v(vA3)}, {s(sT0)}, {v(vL16)}
    v_and_b32 v61, 1, v58
    v_mul_u32_u24 v62, {R2}, v61
    v_lshl_add_u32 v62, v59, 8, v62
    v_add3_u32 {v(vA32)}, v62, v60, {s(sT0)}
    s_lshr_b32 {s(sT1)}, {s(sHP)}, 3
    s_mul_i32 {s(sT1)}, {s(sT1)}, {s(s2R)}
    s_and_b32 {s(sT2)}, {s(sHP)}, 7
    s_lshl_b32 {s(sT2)}, {s(sT2)}, 12
    s_add_u32 {s(sT1)}, {s(sT1)}, {s(sT2)}
    s_add_u32 {s(sT1)}, {s(sT1)}, {FKV_}
    s_add_u32 {s(sKVo)}, {s(sT0)}, {s(sT1)}
    s_mul_i32 {s(sT0)}, {s(sIT)}, {2*R2}
    s_add_u32 {s(sKVf)}, {s(sT0)}, {s(sT1)}
    s_mul_i32 {s(sT0)}, {s(sCNT)}, {2*R2}
    s_add_u32 {s(sMT)}, {s(sT0)}, {s(sT1)}""")
    k(f"""v_lshrrev_b32 v62, 2, v57
    v_and_b32 v63, 3, v0
    v_lshl_add_u32 v72, v59, 2, v62
    v_lshl_add_u32 v73, v61, 2, v63
    v_lshlrev_b32 v73, 3, v73
    v_lshl_add_u32 {v(vWq)}, v72, 6, v73
    v_lshl_add_u32 v72, v61, 2, v62
    v_lshlrev_b32 v73, 10, v59
    v_lshl_add_u32 v73, v72, 7, v73
    v_lshl_add_u32 v73, v63, 3, v73
    v_lshrrev_b32 v72, 1, v72
    v_lshl_add_u32 {v(vRB[0])}, v72, 5, v73
    v_xor_b32 {v(vRB[1])}, 32, {v(vRB[0])}
    v_xor_b32 {v(vRB[2])}, 64, {v(vRB[0])}
    v_xor_b32 {v(vRB[3])}, 0x60, {v(vRB[0])}
    v_lshrrev_b32 v72, 3, v0
    v_and_b32 v73, 7, v0
    v_lshlrev_b32 v74, 1, v58
    v_xor_b32 v74, v74, v73
    v_lshlrev_b32 v74, 4, v74
    v_lshl_add_u32 v74, v72, 10, v74
    s_lshl_b32 {s(sT0)}, {s(sW)}, 13
    s_lshl_b32 {s(sT1)}, {s(sNT)}, 7
    s_add_u32 {s(sT0)}, {s(sT0)}, {s(sT1)}
    v_add_u32 {v(vDB)}, {s(sT0)}, v74""")
    k(f"""s_lshl_b32 {s(sT3)}, {s(sC)}, 13
    s_and_b32 {s(sT0)}, {s(sTB16)}, 15
    s_lshl_b32 {s(sT1)}, {s(sT0)}, 7
    s_add_u32 {s(sT1)}, {s(sT1)}, {s(sT3)}
    v_lshl_add_u32 {v(vPB16)}, v73, 3, {s(sT1)}
    s_lshl_b32 {s(sT2)}, {s(sNT)}, 3
    s_add_u32 {s(sFBo)}, {s(sT1)}, {s(sT2)}
    s_add_u32 {s(sFHo)}, {s(sFBo)}, {GH}
    s_lshr_b32 {s(sT0)}, {s(sT0)}, 1
    s_lshl_b32 {s(sT0)}, {s(sT0)}, 7
    s_add_u32 {s(sT0)}, {s(sT0)}, {s(sT3)}
    s_add_u32 {s(sT0)}, {s(sT0)}, {GA}
    v_lshl_add_u32 {v(vPA)}, v57, 3, {s(sT0)}
    s_and_b32 {s(sT0)}, {s(sTB32)}, 7
    s_lshl_b32 {s(sT1)}, {s(sT0)}, 8
    s_add_u32 {s(sT1)}, {s(sT1)}, {s(sT3)}
    v_and_b32 v74, 1, v72
    v_lshlrev_b32 v74, 7, v74
    v_lshl_add_u32 v74, v73, 3, v74
    v_add_u32 {v(vPB32)}, {s(sT1)}, v74
    s_lshl_b32 {s(sT1)}, {s(sT0)}, 7
    s_lshl_b32 {s(sT2)}, {s(sHP)}, 3
    s_add_u32 {s(sT1)}, {s(sT1)}, {s(sT2)}
    s_add_u32 {s(sT1)}, {s(sT1)}, {s(sT3)}
    s_add_u32 {s(sFAo)}, {s(sT1)}, {GA}
    s_lshl_b32 {s(sT2)}, {s(sHP)}, 7
    s_add_u32 {s(sT2)}, {s(sT2)}, {GKV}
    s_lshl_b32 {s(sT0)}, {s(sTB32)}, 11
    s_add_u32 {s(sFKVo)}, {s(sT0)}, {s(sT2)}
    v_mov_b32 v74, {s(sIT)}
    v_writelane_b32 v74, {s(sCNT)}, 1
    v_lshl_add_u32 {v(vPKV)}, v74, 11, {s(sT2)}
    v_min_u32 v74, 2, v72
    s_sub_u32 {s(sT0)}, {s(sTB16)}, 1
    v_add_u32 v74, {s(sT0)}, v74
    v_max_i32 v74, 0, v74
    v_min_i32 v74, 0x7f, v74
    v_add_u32 v76, 1, v74
    v_and_b32 v76, 14, v76
    v_cmp_eq_u32 vcc, 0, v76
    v_lshrrev_b32 v76, 3, v74
    v_lshl_add_u32 v76, v76, 3, v73
    v_lshlrev_b32 v76, 7, v76
    v_add_u32 v76, {GH2}, v76
    v_lshrrev_b32 v75, 4, v74
    v_and_b32 v74, 15, v74
    v_lshlrev_b32 v75, 13, v75
    v_lshl_add_u32 v75, v74, 7, v75
    v_lshl_add_u32 v75, v73, 3, v75
    v_add_u32 v75, {GH}, v75
    v_cndmask_b32 {v(vPH)}, v75, v76, vcc
    s_and_b32 {s(sT0)}, {s(sHP)}, 1
    s_mul_i32 {s(sT1)}, {s(sHP)}, 7
    s_add_u32 {s(sT2)}, {s(sT1)}, {s(sT0)}
    s_lshl_b32 {s(sT2)}, {s(sT2)}, 9
    s_add_u32 {s(sH3p)}, {s(sT2)}, {FH3}
    s_mul_i32 {s(sT0)}, {s(sT0)}, {4096-8}
    s_add_u32 {s(sH3s)}, {s(sH3p)}, 3072
    s_sub_u32 {s(sH3s)}, {s(sH3s)}, {s(sT0)}
    s_mov_b32 {s(sLAY)}, 0
    s_mov_b32 {s(sFH)}, {FH_}
    s_mul_i32 {s(sPR)}, {s(sNT)}, 7168
    s_add_u32 {s(sPR)}, {s(sPR)}, {FH3}
    s_mov_b32 {s(sPR+1)}, 112
    s_mov_b32 {s(sPURE)}, 0
    s_mov_b32 {s(sPUREH)}, 0
    s_getreg_b32 {s(sT2)}, hwreg(HW_REG_XCC_ID, 0, 4)
    s_and_b32 {s(sT2)}, {s(sT2)}, 7
    s_lshl_b32 {s(sT2)}, {s(sT2)}, 3
    s_lshl_b64 {s(sXP,2)}, 32, {s(sT2)}
    s_and_b32 {s(sT1)}, {s(sTB16)}, -8
    s_add_u32 {s(sT1)}, {s(sT1)}, {s(sNT)}
    s_lshl_b32 {s(sT1)}, {s(sT1)}, 7
    s_add_u32 {s(sT1)}, {s(sT1)}, {GH2}
    s_add_u32 {s(sT0)}, {s(sTB16)}, 1
    s_and_b32 {s(sT0)}, {s(sT0)}, 14
    s_cselect_b32 {s(sEDG)}, 1, 0
    s_cselect_b32 {s(sFHo)}, {s(sFHo)}, {s(sT1)}
    s_mul_i32 {s(s3L)}, {s(sW)}, 7168
    s_mul_i32 {s(s3G)}, {s(sW)}, {32*3584}
    s_mul_i32 {s(sT2)}, {s(sHP)}, 224
    s_add_u32 {s(s3G)}, {s(s3G)}, {s(sT2)}""")
    for q in range(7):
        k(f"v_add_u32 v72, {64*q}, v0\nv_mul_u32_u24 v72, 4682, v72\nv_lshrrev_b32 v72, 16, v72\n"
          f"v_mul_u32_u24 v72, 3360, v72\nv_add_u32 {v(vD3+q)}, v72, {v(vL16)}")
    if P("expb", 0):
        k(f"s_lshl_b32 {s(sT0)}, {s(sNT)}, 7\nv_subrev_u32 {v(vDB)}, {s(sT0)}, {v(vDB)}\ns_lshl_b32 {s(sT0)}, {s(sHP)}, 6\nv_subrev_u32 {v(vDQ)}, {s(sT0)}, {v(vDQ)}\n"
          f"s_and_b32 {s(sT0)}, {s(sHP)}, 12\ns_mul_i32 {s(sT0)}, {s(sT0)}, 224\ns_sub_u32 {s(s3G)}, {s(s3G)}, {s(sT0)}")
    if P("expa", 0):
        for w in (WQ, WO, W1, W2, W3, W4): k(f"s_mov_b32 {s(w+2)}, 0")
    k(f"s_xor_b32 {s(sV+1)}, {s(sV+1)}, 0x5bd1e995")
    bg(P("p1", 0) - P("p0", 0))
    late.extend(bgq); bgq.clear()
    k.wait(vm="x")
    for i in range(8):
        k(f"v_lshlrev_b32 {v(RES+2*i)}, 16, {v(64+i)}\nv_and_b32 {v(RES+2*i+1)}, 0xffff0000, {v(64+i)}")
    mark("xload")
    k(f"s_mov_b32 {s(XO)}, {s(sOUT)}\ns_mov_b32 {s(XO+1)}, {s(sOUT+1)}")

def selector(d):
    k(f"v_lshrrev_b32 {v(vT0)}, 2, v0\nv_xor_b32 {v(vT0)}, {v(vT0)}, v0\nv_and_b32 {v(vT0)}, 4, {v(vT0)}\n"
      f"v_cmp_eq_u32 vcc, 0, {v(vT0)}\nv_mov_b32 {v(vT0)}, 0x3f803f80\nv_cndmask_b32 {v(d)}, 0, {v(vT0)}, vcc")
    for i in range(1, 4): k(f"v_mov_b32 {v(d+i)}, {v(d)}")

def l0_only(fn):
    L = k.lab("l0")
    k(f"s_cmp_lg_u32 {s(sLAY)}, 0\ns_cbranch_scc1 {L}")
    fn()
    k(f"{L}:")

def x_pub():
    pub_tile(RES, FX, STX, 56)
    qKV(3, 8); bg(P("xa", 2))
    flag(sFBo, sPURE)
    mark("x.pub")
    def count():
        L = k.lab("cnt")
        k(f"""s_barrier
        s_cmp_lg_u32 {s(sW)}, 0
        s_cbranch_scc1 {L}
        s_lshr_b64 {s(sT0,2)}, {s(sXP,2)}, 5
        v_mov_b32 v56, {s(sT0)}
        v_mov_b32 v57, {s(sT1)}
        s_lshl_b32 {s(sT2)}, {s(sC)}, 5
        s_mov_b64 exec, 1
        buffer_atomic_add_x2 v[56:57], off, {s(DBG,4)}, {s(sT2)} sc1
        s_mov_b64 exec, -1
        {L}:""")
        n = len(k.vm)
        for f in late: f()
        del k.vm[n:]
    assert P("xa", 2) % 2 == 0 or not late
    l0_only(count)
    pref(2, vT0)
    if P("tf", 2) & 1:
        for va in (vPKV, vPA): k.vmem(f"buffer_load_dword {v(vJ)}, {v(va)}, {s(FLG,4)}, 0 offen sc1")
    bg(99)
    pref(3, vT0)

def qkv_att():
    AK, AV, AQ = 56, 72, 88
    FR = 104; CS = 128; STA = 160; RM = 168; PKD = 208
    vWq2, vCS, vV0, vV1, vKW = 240, 241, 242, 243, 244
    SEL = 196; QF = 200
    N0 = P("qn", 12)
    k(f"v_add_u32 {v(vWq2)}, 0x10000, {v(vWq)}")
    selector(SEL)
    k(f"""v_lshrrev_b32 {v(vT1)}, 5, v0
    v_lshlrev_b32 {v(vCS)}, 4, {v(vT1)}
    v_add_u32 {v(vCS)}, {CSQ}, {v(vCS)}
    v_lshlrev_b32 {v(vT1)}, 6, {v(vT1)}
    v_xor_b32 {v(vV0)}, {v(vT1)}, {v(vL16)}
    v_xor_b32 {v(vV1)}, 0x80, {v(vV0)}
    s_lshl_b32 {s(sT0)}, {s(sW)}, 12
    s_add_u32 {s(sT0)}, {s(sT0)}, {KVB + 8*4096}
    v_add_u32 {v(vKW)}, {s(sT0)}, {v(vL16)}
    v_add_u32 {v(vKW+1)}, {s(sT0)}, {v(vV0)}
    v_add_u32 {v(vKW+2)}, {s(sT0)}, {v(vV1)}
    s_mov_b32 {s(sT1)}, {STX}""")
    S0, S1, CM, MD, O0, O1 = 56, 72, 104, 40, 160, 176
    KF, VF, PP, LS, MX = 208, 216, 224, 232, 120
    vK, vVa, vVb, vDB2 = 192, 193, 194, 195
    k(f"""v_bfe_u32 {v(vT0)}, v0, 4, 1
    v_bfe_u32 {v(vK)}, v0, 1, 1
    v_lshl_add_u32 {v(vT0)}, {v(vT0)}, 1, {v(vK)}
    v_lshrrev_b32 {v(vK)}, 5, v0
    v_xor_b32 {v(vK)}, {v(vK)}, {v(vT0)}
    v_lshlrev_b32 {v(vT0)}, 9, {v(vT0)}
    v_lshl_add_u32 {v(vT0)}, {v(vK)}, 6, {v(vT0)}
    v_bfe_u32 {v(vK)}, v0, 2, 2
    v_lshl_add_u32 {v(vT0)}, {v(vK)}, 4, {v(vT0)}
    v_and_b32 {v(vK)}, 1, v0
    v_lshl_add_u32 {v(vT0)}, {v(vK)}, 3, {v(vT0)}
    v_lshl_add_u32 {v(vT0)}, {s(sW)}, 12, {v(vT0)}
    v_add_u32 {v(vVa)}, {KVB + 8*4096 + 2048}, {v(vT0)}
    v_xor_b32 {v(vVb)}, 0x80, {v(vVa)}
    v_lshlrev_b32 {v(vT0)}, v0, -2
    v_lshrrev_b32 {v(vK)}, 3, v0
    v_and_b32 {v(vK)}, 4, {v(vK)}
    v_lshrrev_b32 {v(vT0)}, {v(vK)}, {v(vT0)}
    v_subrev_u32 {v(vK)}, {s(s4K)}, {v(vKW)}
    v_add_u32 {v(vDB2)}, {8*32768}, {v(vDB)}""")
    for i in range(16): k(f"v_bfe_i32 {v(MD+i)}, {v(vT0)}, {8*(i//4)+i%4}, 1\nv_and_b32 {v(MD+i)}, {NEG}, {v(MD+i)}")
    def rdq(dst, sp, b, tag):
        G = sp // 4
        for j in range(2):
            w_ = 2*((sp//2) % 2) + j
            off = G*8192 + w_*2048 + (b-1)*1024 if b else G*4096 + w_*1024
            k.ds(f"ds_read_b64_tr_b16 {v(dst+2*j,2)}, {v(vWq if b else vWq2)} offset:{off + (sp % 2)*512}", tag)
    def ldx(sp):
        k.vmem(f"buffer_load_dwordx4 {a(4*sp,4)}, {v(vA32)}, {s(ACT,4)}, {SK[sp//8]} offen offset:{(sp%8)*512} sc1", ("x", sp))
    mark("q.pre")
    poll(vPB32)
    mark("q.poll")
    for i in range(2): k.vmem(f"buffer_load_dwordx4 {v(STA+4*i,4)}, {v(vA32)}, {s(ACT,4)}, {s(sT1)} offen offset:{512*i} sc1", "st")
    for sp in range(N0): ldx(sp)
    def colsum(bs):
        nb = len(bs)
        if bs[0]: k(f"v_lshl_add_u32 {v(vT1)}, {s(sW)}, 11, {v(vWq)}")
        else: k(f"v_add_u32 {v(vT1)}, {s(sW1K)}, {v(vWq2)}")
        for i in range(8*nb + 5):
            if i < 8*nb:
                G, b = i // nb, bs[i % nb]
                for j in range(2):
                    off = G*8192 + (b-1)*1024 if b else G*4096
                    k.ds(f"ds_read_b64_tr_b16 {v(FR+4*(i%6)+2*j,2)}, {v(vT1)} offset:{off + j*512}", ("c", i))
            m = i - 5
            if m >= 0:
                k.wait(lg=("c", m)); c = v(AK + 4*(m % 2), 4)
                k(f"{M16} {c}, {v(SEL,4)}, {v(FR+4*(m%6),4)}, {c if m >= 2 else 0}")
        k(f"s_mul_i32 {s(sT0)}, {s(sW)}, 384\ns_add_u32 {s(sT0)}, {s(sT0)}, {PQ}\nv_and_b32 {v(vT1)}, 31, v0\n"
          f"v_lshl_add_u32 {v(vT1)}, {v(vT1)}, 2, {s(sT0)}")
        if nb == 1: k(f"v_add_f32 {v(AK)}, {v(AK)}, {v(AK+4)}")
        for n, b in enumerate(bs): k.ds(f"ds_write_b32 {v(vT1)}, {v(AK+4*n)} offset:{b*128}")
        k.wait(lg="all")
    l0_only(lambda: colsum((1, 2)))
    k("s_barrier")
    l0_only(lambda: sum_partials(16, 384, CSQ, CS, 8, PQ))
    for sp in range(2):
        for b in (1, 2): rdq(FR + 8*sp + 4*(b-1), sp, b, ("w", sp))
    for b in (1, 2):
        for q in range(4): k.ds(f"ds_read_b128 {v(CS+16*(b-1)+4*q,4)}, {v(vCS)} offset:{b*128+q*32}", "cs")
    with Rec() as fq:
        for i in (0, 1): k(f"v_add_f32 {v(STA+i)}, {v(STA+i)}, {v(STA+2+i)}\nv_add_f32 {v(STA+4+i)}, {v(STA+4+i)}, {v(STA+6+i)}")
        for i in (0, 1): k(f"v_add_f32 {v(STA+i)}, {v(STA+i)}, {v(STA+4+i)}")
        finish_stats(STA, RM, False)
        k(f"v_mul_f32 {v(RM+1)}, {v(RM)}, {v(RM+1)}")
        for i in range(32): k(f"v_mul_f32 {v(CS+i)}, {v(RM+1)}, {v(CS+i)}")
    qQ(0, 8)
    for sp in range(32):
        k.wait(vm=("x", sp), lg=("w", sp))
        for b, acc in ((1, AK), (2, AV)):
            k(f"{M32} {v(acc,16)}, {v(FR+8*(sp%3)+4*(b-1),4)}, {a(4*sp,4)}, {v(acc,16) if sp else 0}")
            if b == 1:
                if sp + N0 < 32: ldx(sp + N0)
                else: bg()
            if sp + 2 < 32: rdq(FR + 8*((sp+2) % 3) + 4*(b-1), sp + 2, b, ("w", sp + 2))
            if sp >= 2: emit(fq, 1)
        if sp == 31 - N0: pref(4, vT0)
    assert not fq and not bgq
    pref(5, vT0)
    k(f"s_cmp_eq_u32 {s(sLAY)}, 0\ns_cselect_b32 {s(WQ+2)}, {s(WQ+2)}, 0")
    mark("q.kv")
    for t in range(4):
        for i in range(8*t, 8*t + 8, 2): pk("fma", v(AK+i,2), v(AK+i,2), v(RM,2), v(CS+i,2), bsel=0)
        cvt(PKD + 4*t, AK + 8*t, 4)
        k.vmem(f"buffer_store_dwordx4 {v(PKD+4*t,4)}, {v((vL16, vL16, vV0, vV1)[t])}, {s(ACT,4)}, {s(sKVo)} offen offset:{t*1024} sc1", "pub")
        k.ds(f"ds_write_b128 {v((vKW, vKW, vKW+1, vKW+2)[t])}, {v(PKD+4*t,4)} offset:{t*1024}", "kw")
    k.wait(vm="dma")
    l0_only(lambda: colsum((0,)))
    k("s_barrier")
    l0_only(lambda: sum_partials(8, 384, CSQ, CS, 0, PQ))
    def slot(n): return FR + 4*(n % 6)
    for sp in range(4): rdq(slot(sp), sp, 0, ("q", sp))
    with Rec() as f2:
        for q in range(4): k.ds(f"ds_read_b128 {v(CS+4*q,4)}, {v(vCS)} offset:{q*32}")
        k(f"""v_mul_f32 {v(RM)}, {f2u(0.25*LOG2E)}, {v(RM)}
        v_mul_f32 {v(RM+1)}, {f2u(0.25*LOG2E)}, {v(RM+1)}""")
        for i in range(16): k(f"v_mul_f32 {v(CS+i)}, {v(RM+1)}, {v(CS+i)}")
    f2.insert(6, lambda: k.wait(lg="fill"))
    for sp in range(32):
        k.wait(lg=("q", sp))
        k(f"{M32} {v(AQ,16)}, {v(slot(sp),4)}, {a(4*sp,4)}, {v(AQ,16) if sp else 0}")
        if sp + 4 < 32: rdq(slot(sp + 4), sp + 4, 0, ("q", sp + 4))
        emit(f2, 1 + (sp < 4))
        if sp == P("kvs", 16): flag(sFKVo, None, "all")
    assert not f2
    for i in range(0, 16, 2): pk("fma", v(AQ+i,2), v(AQ+i,2), v(RM,2), v(CS+i,2), bsel=0)
    cvt(QF, AQ, 8)
    mark("q.q")
    stop(2)
    def qk(h, c): k(f"{M32} {v((S0,S1)[h],16)}, {v(KF+4*h,4)}, {v(QF+4*h,4)}, {v(c,16)}")
    def pv(h, u, first=False):
        O = v((O0, O1)[h], 16)
        k(f"{M32} {O}, {v(VF+4*u,4)}, {v(PP+4*u,4)}, {0 if first else O}")
    def rs(h, u, first=False): k(f"{M16} {v(LS+4*h,4)}, {v(SEL,4)}, {v(PP+4*u,4)}, {0 if first else v(LS+4*h,4)}")
    def rdV(u):
        for j, va in enumerate((vVa, vVb)): k.ds(f"ds_read_b64_tr_b16 {v(VF+4*u+2*j,2)}, {v(va)} offset:{u*256}", ("v", u))
    def rdK(h): k.ds(f"ds_read_b128 {v(KF+4*h,4)}, {v(vK)} offset:{h*1024}", ("k", h))
    def dec(*rs_):
        for x in rs_: k(f"v_subrev_u32 {v(x)}, {s(s4K)}, {v(x)}")
    def blk(h, u, at):
        S = (S0, S1)[h] + 8*u
        for i in range(12):
            if i in at: at[i]()
            if i < 8: k(f"v_exp_f32 {v(S+i)}, {v(S+i)}")
            else: cvt(PP + 4*u + i - 8, S + 2*(i-8), 1)
    W1E = [(g, 64*KB + g*4096) for g in range(8, 11)]
    if P("w1e", 0) == 0: qB(W1, W1E)
    qk(0, MD); rdV(0); rdV(1); bg(); qk(1, MD); dec(vVa, vVb)
    for i in range(16): k(f"v_mov_b32 {v(CM+i)}, 0")
    if P("kvf", 0) == 0 and P("kvs", 16) > 31: flag(sFKVo, None, "all")
    pref(6, vT0)
    blk(0, 0, {2: bg, 6: bg})
    if P("kvf", 0) == 1: flag(sFKVo, None, "all")
    blk(0, 1, {2: lambda: (k.wait(lg="all"), pv(0, 0, True)), 5: lambda: rs(0, 0, True), 7: bg})
    blk(1, 0, {2: lambda: pv(0, 1), 5: lambda: rs(0, 1), 7: bg})
    bg(99)
    k(f"v_lshlrev_b32 {v(vT0)}, 5, v0")
    k.vmem(f"buffer_load_dwordx2 {v(MX,2)}, {v(vT0)}, {s(DBG,4)}, 0 offen sc1")
    mark("a.diag")
    poll(vPKV)
    mark("a.poll")
    k(f"s_lshl_b32 {s(sT0)}, {s(sW)}, 12\ns_add_u32 m0, {s(sT0)}, {KVB + 16384}")
    for t in range(2):
        for i in range(4):
            def f(t=t, i=i):
                if t and not i: k(f"s_sub_u32 m0, m0, 16384")
                k.vmem(f"buffer_load_dwordx4 {v(vL16)}, {s(ACT,4)}, {s(sMT if t else sKVf)} offen offset:{i*1024} sc1 lds", ("kv", t))
            bgq.append(f)
    if P("w1e", 0) == 1: qB(W1, W1E)
    bg(99)
    k(f"v_readlane_b32 {s(sT0)}, {v(MX)}, {s(sC)}\nv_readlane_b32 {s(sT1)}, {v(MX+1)}, {s(sC)}")
    k(f"""s_cmp_eq_u64 {s(sT0,2)}, {s(sXP,2)}
    s_cselect_b32 {s(sPURE)}, 1, 0
    s_and_b32 {s(sPUREH)}, {s(sPURE)}, {s(sEDG)}
    s_add_u32 {s(sT0)}, s2, {s(sW)}
    s_cmp_lt_u32 {s(sT0)}, {s(sLAY)}
    s_cbranch_scc1 epoch
    epoch_b:
    s_mov_b32 m0, {s(sW1K)}
    s_mov_b32 {s(sOFF)}, 0""")
    cold.extend(f"""epoch:
    s_mov_b32 {s(sCNT)}, 0x8000
    epoch_l:
    buffer_load_dwordx2 {v(MX,2)}, {v(vT0)}, {s(DBG,4)}, 0 offen sc1
    s_sub_u32 {s(sCNT)}, {s(sCNT)}, 1
    s_cbranch_scc1 bail
    s_waitcnt vmcnt(0)
    v_sad_u8 {v(MX)}, {v(MX)}, 0, 0
    v_sad_u8 {v(MX)}, {v(MX+1)}, 0, {v(MX)}
    v_cmp_ne_u32 vcc, 32, {v(MX)}
    s_and_b32 {s(sT0)}, vcc_lo, 0xff
    s_cbranch_scc1 epoch_l
    s_add_u32 {s(sT0)}, {s(sV)}, 7
    v_mov_b32 {v(MX)}, {s(sT0)}
    s_mov_b32 {s(sT0)}, {E_OFF}
    s_mov_b64 exec, 1
    buffer_store_dword {v(MX)}, off, {s(FLG,4)}, {s(sT0)} sc1
    s_mov_b64 exec, -1
    s_branch epoch_b""".split("\n"))
    if P("t1", 1): touch(vT0, True)
    if P("tf", 2) & 2: k.vmem(f"buffer_load_dword {v(vJ)}, {v(vPH)}, {s(FLG,4)}, 0 offen sc1")
    pref(7, vT0)
    KS = P("ks", 1)
    A3 = P("a3", 0)
    if A3: k(f"s_lshr_b32 {s(sM1)}, s2, 3\ns_lshl2_add_u32 {s(sM1)}, {s(sM1)}, {s(sW)}\ns_mul_i32 {s(sM1)}, {s(sM1)}, {A3*3584}")
    def kv_ready():
        k.wait(vm=("kv", 1 - KS))
        barrier()
        mark("a.kv")
        rdK(0); rdK(1); dec(vK)
        if P("cp", 3) & 2: l0_only(lambda: code_touch(vT0, False))
        if A3: k(f"v_mul_u32_u24 {v(vT1)}, {8*A3}, v0")
        k.wait(lg="all"); qk(0, CM)
    blk(1, 1, {0: lambda: pv(1, 0, True), 3: lambda: rs(1, 0, True), 8: kv_ready})
    k("s_nop 1")
    def dma(n):
        k.vmem(f"buffer_load_dwordx4 {v(vDB2 if n == 1 else vDB)}, {s(W1 if n == 2 else WO,4)}, {s(sOFF)} offen{NT(1)} lds", "dma")
        if n == 1 and A3:
            k.vmem(f"buffer_load_dword {v(vJ)}, {v(vT1)}, {s(W3,4)}, {s(sM1)} offen")
            k(f"s_add_u32 {s(sM1)}, {s(sM1)}, {A3*448}")
        if n < 2: k(f"s_add_u32 m0, m0, {s(s32K)}")
        else: k(f"s_sub_u32 m0, m0, {65536 - 4096}\ns_add_u32 {s(sOFF)}, {s(sOFF)}, {s(s32K)}")
    def setcm():
        k(f"s_cmp_eq_u32 {s(sOFF)}, {6*32768}\ns_cbranch_scc1 att_cm\natt_cmb:")
    def far(lab, n):
        if not KS: return
        k(f"s_cmp_eq_u32 {s(sOFF)}, {2*32768}\ns_cbranch_scc1 {lab}\n{lab}b:")
        cold.extend([f"{lab}:", f"s_waitcnt vmcnt({n})", "s_barrier", f"s_branch {lab}b"])
    cold.extend(["att_cm:"] + [f"v_xor_b32 {v(CM+i)}, {NEG}, {v(MD+i)}" for i in range(16)] + ["s_branch att_cmb"])
    k(f"s_cmp_eq_u32 {s(sNTL)}, 0\ns_cbranch_scc1 att_e\natt_l:")
    blk(0, 0, {0: lambda: (qk(1, CM), rdV(0), rdK(0)), 3: lambda: pv(1, 1), 6: lambda: rs(1, 1), 8: lambda: dma(0)})
    blk(0, 1, {0: lambda: (rdV(1), rdK(1)), 1: lambda: (k.wait(lg=("k", 0)), pv(0, 0)), 4: lambda: rs(0, 0), 6: setcm, 8: lambda: dma(1)})
    blk(1, 0, {0: lambda: qk(0, CM), 3: lambda: (k.wait(lg="all"), pv(0, 1)), 6: lambda: rs(0, 1), 8: lambda: far("att_f", 8)})
    blk(1, 1, {0: lambda: dec(vK, vVa), 1: lambda: pv(1, 0), 4: lambda: rs(1, 0), 6: lambda: dec(vVb), 8: lambda: dma(2)})
    k(f"s_cmp_lt_u32 {s(sOFF)}, {s(sNTL)}\ns_cbranch_scc1 att_l\natt_e:")
    pv(1, 1); rs(1, 1)
    k(f"s_cmp_lt_u32 {s(sOFF)}, {8*32768}\ns_cbranch_scc1 att_r\natt_rb:")
    with Rec() as q:
        k("att_r:")
        far("att_g", 6)
        for n in range(3): dma(n)
        k(f"s_cmp_lt_u32 {s(sOFF)}, {8*32768}\ns_cbranch_scc1 att_r\ns_branch att_rb")
    cold.extend(q)
    mark("a.loop")
    k(f"""v_lshrrev_b32 {v(vT0)}, 5, v0
    v_lshl_add_u32 {v(vT0)}, {v(vT0)}, 8, {v(vA32)}
    s_lshl_b32 {s(sT0)}, {s(sHP)}, 10
    s_add_u32 {s(sT0)}, {s(sT0)}, {FO}""")
    pk("mul", v(MX,2), v(O0,2), 0)
    for i in range(2, 8, 2): pk("fma", v(MX,2), v(O0+i,2), 0, v(MX,2))
    for i in range(0, 8, 2): pk("fma", v(MX,2), v(O1+8+i,2), 0, v(MX,2))
    lo, hi = (127 - 48) << 23, (127 + 80) << 23
    k(f"""v_add_f32 {v(MX)}, {v(MX)}, {v(LS)}
    v_add_f32 {v(MX+1)}, {v(MX+1)}, {v(LS+4)}
    v_subrev_u32 {v(MX)}, {lo}, {v(MX)}
    v_subrev_u32 {v(MX+1)}, {lo}, {v(MX+1)}
    v_max_u32 {v(MX)}, {v(MX)}, {v(MX+1)}
    v_cmp_lt_u32 vcc, {hi - lo if not P("fb", 0) else 0}, {v(MX)}
    s_cbranch_vccnz att_x
    att_xb:
    v_rcp_f32 {v(MX)}, {v(LS)}
    v_rcp_f32 {v(MX+1)}, {v(LS+4)}""")
    C0, C1_ = 88, 104
    with Rec() as q:
        k("att_x:")
        def rk():
            rdK(0); rdK(1); dec(vK); k.wait(lg="all")
        def loop(name, body, last):
            k(f"v_mov_b32 {v(vK)}, {v(vKW)}\ns_mov_b32 {s(sIT)}, 0\n{name}:")
            rk(); qk(0, C0); qk(1, C1_)
            body()
            k(f"s_cmp_lg_u32 {s(sIT)}, {7*32768}\ns_cbranch_scc1 {name}_n")
            last()
            k(f"{name}_n:\ns_add_u32 {s(sIT)}, {s(sIT)}, {s(s32K)}\ns_cmp_le_u32 {s(sIT)}, {s(sNTL)}\ns_cbranch_scc1 {name}")
        def setc(mask):
            for i in range(16):
                if mask == "o": k(f"v_xor_b32 {v(C0+i)}, {NEG}, {v(MD+i)}")
                m = {"o": v(C0+i), "d": v(MD+i), "": 0}[mask]
                k(f"v_add_f32 {v(C1_+i)}, {m}, {v(MX+3)}\nv_add_f32 {v(C0+i)}, {m}, {v(MX+2)}")
        k(f"v_mov_b32 {v(MX)}, {NEG}\nv_mov_b32 {v(MX+1)}, {NEG}\nv_mov_b32 {v(MX+2)}, 0\nv_mov_b32 {v(MX+3)}, 0")
        setc("d")
        def p1():
            for h, S in enumerate((S0, S1)):
                for i in range(0, 16, 2): k(f"v_max3_f32 {v(MX+h)}, {v(MX+h)}, {v(S+i)}, {v(S+i+1)}")
            setc("")
        loop("att_x1", p1, lambda: setc("o"))
        k(f"""v_permlane32_swap_b32 {v(MX)}, {v(MX+1)}
        v_max_f32 {v(MX)}, {v(MX)}, {v(MX+1)}
        v_sub_f32 {v(MX+2)}, 0, {v(MX)}
        v_mov_b32 {v(MX+3)}, {v(MX+2)}
        v_permlane32_swap_b32 {v(MX+2)}, {v(MX+3)}
        s_lshr_b32 {s(sIT)}, {s(sNTL)}, 3
        s_add_u32 {s(sIT)}, {s(sIT)}, {s(s4K)}
        v_add_u32 {v(vVa)}, {s(sIT)}, {v(vVa)}
        v_add_u32 {v(vVb)}, {s(sIT)}, {v(vVb)}""")
        setc("d")
        for i in range(32): k(f"v_mov_b32 {v(O0+i)}, 0")
        for i in range(8): k(f"v_mov_b32 {v(LS+i)}, 0")
        def p2():
            rdV(0); rdV(1); dec(vVa, vVb); k.wait(lg="all")
            for h in range(2):
                for u in range(2): blk(h, u, {}); pv(h, u); rs(h, u)
            setc("")
        loop("att_x2", p2, lambda: setc("o"))
        k("s_branch att_xb")
    cold.extend(q)
    for i in range(0, 8, 2):
        pk("mul", v(O0+i,2), v(O0+i,2), v(MX,2), bsel=0); pk("mul", v(O1+8+i,2), v(O1+8+i,2), v(MX,2), bsel=1)
    for q in range(2):
        cvt(PP + 4*q, O0 + 4*q, 2); cvt(PP + 4*q + 2, O1 + 8 + 4*q, 2)
    dual([f"buffer_store_dwordx4 {v(PP+4*q,4)}, {v(vT0)}, {s(ACT,4)}, {s(sT0)} offen offset:{q*256}" for q in range(2)], sPURE)

BX = 56
def gemmB(acc, va, cinit, nxt=None, bases=None, fq=None, nbg=1, pre=None, mid=None, b0=8):
    N0 = P("bn", 12)
    def ld(st):
        k.vmem(f"buffer_load_dwordx4 {v(BX+4*st,4)}, {v(va[st//4])}, {s(ACT,4)}, {SK[st//4]} offen offset:{(st%4)*1024} sc1", ("x", st))
    for st in range(N0):
        ld(st)
        if pre: emit(pre, -(-len(pre) // (N0 - st)))
    if pre is not None: k.wait(lg="all")
    for st in range(16):
        if st == 8 and mid: mid()
        k.wait(vm=("x", st))
        for fb in range(4):
            c = v(acc + 4*fb, 4); n = 4*st + fb
            k(f"{M16} {c}, {a(4*n,4)}, {v(BX+4*st,4)}, {c if (st or cinit) else 0}")
            if fb == 0:
                if st + N0 < 16: ld(st + N0)
                elif st >= b0: bg(nbg)
            if nxt and n: rd_fragB(A0 + 4*(n-1), nxt[(n-1)//4], (n-1) % 4, bases, "fill")
            if fq and fb: emit(fq, 1)
    if fq: emit(fq)
    if nxt: rd_fragB(A0 + 4*63, nxt[15], 3, bases, "fill")

def wo_w1_w2():
    VB, TMP, vAD = 120, 128, 144
    ACC, CS1, ONES, STA, RM, KK, G0 = 160, 176, 192, 196, 200, 204, 208
    k(f"v_add_u32 {v(vAD)}, {FO}, {v(vA16)}")
    bases = rb_bases(VB, [0, 1])
    k.wait(vm="dma")
    k("s_barrier")
    qB(W1, [(g, 64*KB + g*4096) for g in range(11, 16)]); q3([3])
    with Rec() as fq: fill([g*4096 for g in range(16)], A0, bases)
    n = P("of0", 48); mix(fq[:n], 12, P("oa", 3)); del fq[:n]
    flag(sFAo, sPURE)
    mark("a.pub")
    stop(3)
    if P("t2", 0): touch(vT0, True)
    if P("tf", 2) & 4: k.vmem(f"buffer_load_dword {v(vJ)}, {v(vPH)}, {s(FLG,4)}, 0 offen sc1")
    n = P("of1", 32); mix(fq[:n], 6, P("ow", 5)); del fq[:n]
    assert len(bgq) <= 4
    poll(vPA)
    mark("wo.poll")
    def mid():
        assert not bgq
        k("s_barrier"); qB(W2, [(g, g*4096) for g in range(16)])
    gemmB(RES, [vAD]*4, True, [64*KB + g*4096 for g in range(16)], bases, pre=fq, mid=mid, b0=4)
    mark("wo.gemm")
    pub_tile(RES, FX2, STX2, TMP)
    bg(P("wp", 4))
    k(f"v_add_u32 {v(vAD)}, {FX2}, {v(vA16)}\ns_mov_b32 {s(sT3)}, {STX2}\nv_and_b32 {v(vT0)}, 0x30, v0\nv_add_u32 {v(vT0)}, {CS1L}, {v(vT0)}")
    k.wait(lg="all")
    def cs(lo, hi):
        if not lo:
            for i in range(4): k(f"v_mov_b32 {v(ONES+i)}, 0x3f803f80")
        for m in range(lo, hi):
            c = v(CS1 + 4*(m % 4), 4)
            k(f"{M16} {c}, {a(4*m,4)}, {v(ONES,4)}, {c if m >= 4 else 0}")
        if lo:
            for i in range(4): k(f"ds_write_b128 {v(vT0)}, {v(CS1+4*i,4)} offset:{64*i}")
    l0_only(lambda: cs(0, 24))
    flag(sFBo, sPURE)
    mark("wo.pub")
    stop(4)
    k("s_barrier")
    assert len(bgq) <= P("x2w", 4)
    q3([1, 2]); bg(P("x2w", 4))
    l0_only(lambda: cs(24, 64))
    for i in range(4): k.ds(f"ds_read_b128 {v(CS1+4*i,4)}, {v(vT0)} offset:{64*i}", "fill")
    poll(vPB16)
    mark("w1.poll")
    k.vmem(f"buffer_load_dwordx4 {v(STA,4)}, {v(vA16)}, {s(ACT,4)}, {s(sT3)} offen sc1", "st")
    with Rec() as fq:
        for i in (0, 1): k(f"v_add_f32 {v(STA+i)}, {v(STA+i)}, {v(STA+2+i)}")
        finish_stats(STA, RM, True)
        k(f"v_mul_f32 {v(STA)}, {v(RM)}, {v(RM)}\nv_fmaak_f32 {v(STA)}, {v(STA)}, {v(RM+2)}, {f2u(1e-5)}\nv_rsq_f32 {v(STA)}, {v(STA)}\n"
          f"v_mul_f32 {v(RM+2)}, {v(RM)}, {v(RM+1)}\nv_mul_f32 {v(STA)}, {v(RM)}, {v(STA)}")
        gelu_scale(STA, KK)
    gemmB(ACC, [vAD]*4, False, [g*4096 for g in range(16)], bases, fq, mid=lambda: k("s_barrier"), b0=P("b1", 4))
    mark("w1.gemm")
    k.wait(lg="all")
    with Rec() as fq:
        gelu(ACC, 16, G0, CS1, RM, KK)
        cvt(TMP, ACC, 8)
    mix(fq, 24, 2)
    dual([f"buffer_store_dwordx4 {v(TMP+4*i,4)}, {v(vP16)}, {s(ACT,4)}, {s(sFH)} offen offset:{1024*i}" for i in range(2)], sPUREH)
    mark("w1.epi")
    k("s_barrier")
    qB(W4, [(g, W4S[g]) for g in range(11)]); q3([0])
    bg(P("ha", 4))
    for i in range(0, 16, 2): pk("fma", v(XB+i,2), v(RES+i,2), v(RM,2), v(RM+2,2), bsel=0, csel=0)
    T = G0
    k(f"s_lshl_b32 {s(sT0)}, {s(sTB16)}, 4\nv_and_b32 {v(T+3)}, 15, v0\nv_add_u32 {v(T+3)}, {s(sT0)}, {v(T+3)}\n"
      f"v_and_b32 {v(T+4)}, 0x300, {v(vL16)}\nv_add_u32 {v(T+4)}, {s(sFH)}, {v(T+4)}\nv_mov_b32 {v(T+2)}, 0x80000000")
    for i, d in enumerate((-1, 1, -2, 2)):
        k(f"""v_add_u32 {v(vT0)}, {d}, {v(T+3)}
        v_cmp_gt_u32 vcc, 0x800, {v(vT0)}
        v_lshrrev_b32 {v(T)}, 4, {v(vT0)}
        v_and_b32 {v(vT0)}, 15, {v(vT0)}
        v_mad_u32_u24 {v(T)}, {v(T)}, {s(s2R)}, {v(T+4)}
        v_lshl_add_u32 {v(T)}, {v(vT0)}, 4, {v(T)}
        v_cndmask_b32 {v(vAD+i)}, {v(T+2)}, {v(T)}, vcc""")
    flag(sFHo, sPUREH, sEDG)
    mark("w1.pub")
    stop(5)
    bg(P("hw", 6))
    poll(vPH)
    mark("w2.poll")
    gemmB(XB, [vAD+i for i in range(4)], True, b0=P("b2", 8))
    mark("w2.gemm")
    assert len(bgq) <= 7
    pub_tile(XB, FX1, STX1, TMP)
    bg(99)
    for i in range(0, 16, 2): pk("add", v(RES+i,2), v(RES+i,2), v(XB+i,2))

def w3_w4():
    ACC, FR, BX0, BX1 = 56, 112, 168, A0 + 176
    STA, RM, vW, vAD, KK, VB = 156, 240, 140, 146, 148, 232
    CS = 112
    k(f"""v_lshrrev_b32 {v(vT0)}, 2, v0
    v_mul_u32_u24 {v(vT0)}, 224, {v(vT0)}
    v_and_b32 {v(vT1)}, 3, v0
    v_lshl_add_u32 {v(vT0)}, {v(vT1)}, 3, {v(vT0)}
    s_and_b32 {s(sT0)}, {s(sHP)}, 1
    s_lshl_b32 {s(sT1)}, {s(sT0)}, 5
    s_mul_i32 {s(sT0)}, {s(sT0)}, 192
    s_sub_u32 {s(sT0)}, {W3A + 192}, {s(sT0)}
    s_add_u32 {s(sT1)}, {s(sT1)}, {W3A}
    v_add_u32 {v(vW)}, {s(sT1)}, {v(vT0)}
    v_add_u32 {v(vW+1)}, {s(sT0)}, {v(vT0)}
    v_add_u32 {v(vW+2)}, {W3H - W3A}, {v(vW)}
    v_add_u32 {v(vW+3)}, {W3H - W3A}, {v(vW+1)}
    v_add_u32 {v(vAD)}, {FX1}, {v(vA3)}
    v_add_u32 {v(vAD+1)}, {FX1 + R2}, {v(vA3)}
    s_mov_b32 {s(sT3)}, {STX1 - FX1}""")
    bases = rb_bases(VB, [0, 1, 2])
    flag(sFBo, sPURE)
    mark("w2.pub")
    stop(6)
    k("s_barrier")
    fill(W4S, A0, bases)
    def rd3(dst, base, st, b, tag):
        for j in range(2):
            off = (st % 8)*7168 + j*3584 + (b*32 if b < 6 else 0)
            k.ds(f"ds_read_b64_tr_b16 {v(dst+2*j,2)}, {v(base + 2*(st//8) + (b == 6))} offset:{off}", tag)
    mark("w3.fill")
    poll(vPB32)
    mark("w3.poll")
    for t in range(2): k.vmem(f"buffer_load_dwordx4 {v(STA+4*t,4)}, {v(vAD+t)}, {s(ACT,4)}, {s(sT3)} offen sc1", "st")
    for st in range(16):
        for t, B in enumerate((BX0, BX1)):
            bgq.append(lambda st=st, t=t, B=B: k.vmem(f"buffer_load_dwordx4 {r(B+4*st,4)}, {v(vAD+t)}, {s(ACT,4)}, {SK[st//4]} offen offset:{(st%4)*1024} sc1", ("x", st)))
    bg(P("n3", 10))
    k.wait(lg="all")
    def colsum():
        for i in range(4): k(f"v_add_u32 {v(XB+i)}, {s(s3L)}, {v(vW+i)}\nv_mov_b32 {v(XB+4+i)}, 0x3f803f80")
        for i in range(28 + 5):
            if i < 28: rd3(FR + 4*(i % 6), XB, 4*(i//7), i % 7, ("c", i))
            m = i - 5
            if m >= 0:
                k.wait(lg=("c", m)); c = v(ACC + 4*(m % 7), 4)
                k(f"{M16} {c}, {v(XB+4,4)}, {v(FR+4*(m%6),4)}, {c if m >= 7 else 0}")
        k(f"s_mul_i32 {s(sT0)}, {s(sW)}, 448\ns_add_u32 {s(sT0)}, {s(sT0)}, {PART}\nv_and_b32 {v(vT1)}, 15, v0\n"
          f"v_lshl_add_u32 {v(vT1)}, {v(vT1)}, 2, {s(sT0)}")
        for b in range(7): k.ds(f"ds_write_b32 {v(vT1)}, {v(ACC+4*b)} offset:{b*64}")
        k.wait(lg="all")
    l0_only(colsum)
    k("s_barrier")
    l0_only(lambda: sum_partials(28, 448, CS3, FR))
    qB(W4, [(11 + g, W4S[g]) for g in range(11)])
    if P("t3", 1): bgq.append(lambda: touch(vT1, False))
    if P("pq", 0) == 2: bgq.append(lambda: prefq(2, vT1))
    D = 5
    for n in range(D): rd3(FR + 4*n, vW, 0, n, ("w", n))
    with Rec() as fq:
        for t in range(2):
            for i in (0, 1): k(f"v_add_f32 {v(STA+4*t+i)}, {v(STA+4*t+i)}, {v(STA+4*t+2+i)}")
            finish_stats(STA + 4*t, RM + 4*t, True)
            gelu_scale(RM + 4*t, KK + 4*t)
        k(f"v_and_b32 {v(vT0)}, 0x30, v0\nv_add_u32 {v(vT0)}, {CS3}, {v(vT0)}")
    for n in range(112):
        st, b = divmod(n, 7)
        k.wait(vm=("x", st), lg=("w", min(n + 1, 111)) if n % 2 == 0 else None)
        for t, B in enumerate((BX0, BX1)):
            c = v(ACC + 28*t + 4*b, 4)
            k(f"{M16} {c}, {v(FR+4*(n%7),4)}, {r(B+4*st,4)}, {c if st else 0}")
            if t == 0 and n + D < 112: rd3(FR + 4*((n+D) % 7), vW, (n+D)//7, (n+D) % 7, ("w", n + D))
            if t == 1:
                if n % 2 and bgq: bg()
                elif n % 2: emit(fq, 2)
                else: emit(fq, 1)
    assert not fq and not bgq
    mark("w3.gemm")
    k(f"v_add_u32 {v(vAD)}, {R2}, {v(vA3)}")
    for b in range(7): k.ds(f"ds_read_b128 {v(CS+4*b,4)}, {v(vT0)} offset:{b*64}")
    k.wait(vm="dma")
    barrier()
    mark("w3.bar")
    prefq(1, vT1)
    qB(W4, [(22 + g, W4C[g]) for g in range(28)])
    G0, PKD = 168, 196
    for t in range(2):
        A = ACC + 28*t
        with Rec() as fq:
            gelu(A, 28, G0, CS, RM + 4*t, KK + 4*t)
            cvt(PKD + 16*t, A, 14)
        mix(fq, 12, P("e0", 12) if t == 0 else P("e1", 8))
        va = vA3 if t == 0 else vAD
        dual([f"buffer_store_dwordx4 {v(PKD+16*t+4*p,4)}, {v(va)}, {s(ACT,4)}, {s(sH3p)} offen offset:{p*1024}" for p in range(3)] +
             [f"buffer_store_dwordx2 {v(PKD+16*t+12,2)}, {v(va)}, {s(ACT,4)}, {s(sH3s)} offen"], sPURE)
    mark("w3.epi")
    NR = 16
    RING, AR, BV, vH = 136, 200, 40, 240
    with Rec() as fq:
        fill(W4S[:5], A0 + 176, bases); fill(W4S[5:], BV, bases)
    nf = P("h3f", 56)
    f0 = fq[:nf]; mix(f0, 12, P("h3a", 4))
    for i in range(4): k(f"v_add_u32 {v(vH+i)}, {FH3 + i*16384}, {v(vA16)}")
    flag(sFAo, sPURE)
    mark("w3.pub")
    stop(7)
    mix(fq[nf:], 8, len(bgq))
    barrier()
    qB(W4, [(50 + g, W4S[g]) for g in range(6)]); bg(99)
    src = {}
    for g in range(16): src[g] = ("r", A0 + 16*g)
    for g in range(6): src[16+g] = ("r", BV + 16*g)
    for g in range(28): src[22+g] = ("l", W4C[g])
    for g in range(6): src[50+g] = ("l", W4S[g])
    regs = [g for g in range(56) if src[g][0] == "r"]
    lds = sorted((g for g in range(56) if src[g][0] == "l"), key=lambda g: src[g][1] >= 64*KB)
    order = []
    for i in range(56):
        order.append(regs.pop(0) if regs and (i < 2 or i % 5 in (1, 3) or not lds) else lds.pop(0))
    nlow = max(i for i, g in enumerate(order) if src[g][0] == "l" and src[g][1] < 64*KB) + 1
    assert sorted(order) == list(range(56)) and nlow <= 38
    TQ = P("tq", 6)
    if TQ:
        k(f"s_lshr_b32 {s(sT2)}, s2, 3\ns_lshl2_add_u32 {s(sT2)}, {s(sT2)}, {s(sW)}\ns_mul_i32 {s(sT2)}, {s(sT2)}, 12288\n"
          f"v_lshl_add_u32 {v(vH+4)}, v0, {int(math.log2(192//TQ))}, {s(sT2)}")
    tq = {P("tq0", 4) + n*P("tqs", 6): n*12288//TQ for n in range(TQ)}
    mark("w4.fill")
    poll(vPA)
    mark("w4.poll")
    def ldx(i):
        g = order[i]
        k.vmem(f"buffer_load_dwordx4 {v(RING+4*(i%NR),4)}, {v(vH+g//16)}, {s(ACT,4)}, {SK[(g//4)%4]} offen offset:{(g%4)*1024} sc1", ("x", i))
    N0 = P("n4", 12)
    for i in range(N0): ldx(i)
    k("s_barrier")
    lf = [(i, fb) for i in range(56) if src[order[i]][0] == "l" for fb in range(4)]
    pos = {x: n for n, x in enumerate(lf)}
    nxt = 0; used = 0
    for i in range(56):
        kind, loc = src[order[i]]
        if i == 40: k("s_barrier"); qKV(0, 3)
        for fb in range(4):
            if kind == "l":
                n = pos[(i, fb)]; A = v(AR + 4*(n % 8), 4)
                assert n + 1 - fb % 2 < nxt
                k.wait(vm=("x", i), lg=("w", n + 1) if fb % 2 == 0 else None)
            else:
                k.wait(vm=("x", i)); A = r(loc + 4*fb, 4)
            c = v(RES + 4*fb, 4)
            k(f"{M16} {c}, {A}, {v(RING+4*(i%NR),4)}, {c}")
            if fb == 0:
                if i + N0 < 56: ldx(i + N0)
                elif (55 - i) % 2 or N0 < 12: bg()
            if fb == 2 and i in tq: k.vmem(f"buffer_load_dword {v(vJ)}, {v(vH+4)}, {s(WQ,4)}, {SK[tq[i]//4096]} offen offset:{tq[i]%4096}")
            if nxt < len(lf) and nxt - used < 7:
                rd_fragB(AR + 4*(nxt % 8), src[order[lf[nxt][0]]][1], lf[nxt][1], bases, ("w", nxt)); nxt += 1
            if kind == "l": used += 1
    assert not bgq
    k.vm.clear(); k.vm.append("dma")
    mark("w4.gemm")

def final():
    k(f"""v_and_b32 v57, 15, v0
    v_lshrrev_b32 v58, 4, v0
    s_lshl_b32 {s(sT0)}, {s(sTB16)}, 14
    s_lshl_b32 {s(sT1)}, {s(sNT)}, 7
    s_add_u32 {s(sT0)}, {s(sT0)}, {s(sT1)}
    v_lshlrev_b32 v56, 10, v57
    v_lshl_add_u32 v56, v58, 3, v56""")
    cvt(64, RES, 8)
    for f in range(4): k(f"buffer_store_dwordx2 {v(64+2*f,2)}, v56, {s(XO,4)}, {s(sT0)} offen offset:{32*f}")

def main():
    prologue()
    k("layer:")
    k.vm.append("dma")
    n0 = nmark[0]
    x_pub()
    mark("x.dma")
    stop(1)
    qkv_att()
    wo_w1_w2()
    w3_w4()
    k(f"s_cmp_lg_u32 {s(sLAY)}, 0\ns_cbranch_scc1 done")
    k(f"s_mov_b32 {s(sLAY)}, 1\ns_bitset1_b32 {s(sFHo)}, 18\ns_bitset1_b32 {s(sFKVo)}, 18\nv_or_b32 {v(vPH)}, 0x40000, {v(vPH)}\nv_or_b32 {v(vPKV)}, 0x40000, {v(vPKV)}\n"
      f"s_add_u32 {s(sFH)}, {s(sFH)}, 0x4000\ns_add_u32 {s(sKVo)}, {s(sKVo)}, {s(s32K)}\ns_add_u32 {s(sKVf)}, {s(sKVf)}, {s(s32K)}\ns_add_u32 {s(sMT)}, {s(sMT)}, {s(s32K)}")
    if PROF: k(f"v_mov_b32 {v(vPR2)}, {v(vPR)}")
    k("s_branch layer\ndone:")
    final()
    k("s_waitcnt vmcnt(0)")
    if OPT.get("cyc"):
        k("s_memtime s[94:95]\ns_memrealtime s[92:93]\ns_waitcnt lgkmcnt(0)\ns_sub_u32 s94, s94, s96\ns_lshr_b32 s96, s94, 3")
        k("cy_l:\ns_sleep 4\ns_memrealtime s[94:95]\ns_waitcnt lgkmcnt(0)\ns_sub_u32 s94, s94, s92\ns_cmp_lt_u32 s94, s96\ns_cbranch_scc1 cy_l")
    if TM:
        mark("end")
        if OPT.get("wb"): k("buffer_wbl2 sc1\ns_waitcnt vmcnt(0)")
        k("tm_l:\ns_sleep 4\ns_memrealtime s[94:95]\ns_waitcnt lgkmcnt(0)\ns_sub_u32 s94, s94, s92\ns_cmp_lt_u32 s94, 15000\ns_cbranch_scc1 tm_l")
    if PROF:
        mark("end")
        k(f"s_memrealtime {s(sPT,2)}\ns_waitcnt lgkmcnt(0)\nv_writelane_b32 {v(vPR)}, {s(sPT)}, 63")
        k(f"""s_add_u32 {s(DBG)}, {s(FLG)}, {PROF_OFF}
        s_addc_u32 {s(DBG+1)}, {s(FLG+1)}, 0
        s_mov_b32 {s(DBG+2)}, 0x100000
        s_lshl_b32 {s(sT0)}, s2, 2
        s_add_u32 {s(sT0)}, {s(sT0)}, {s(sW)}
        s_lshl_b32 {s(sT0)}, {s(sT0)}, 9
        v_lshlrev_b32 v56, 2, v0
        buffer_store_dword {v(vPR2)}, v56, {s(DBG,4)}, {s(sT0)} offen
        buffer_store_dword {v(vPR)}, v56, {s(DBG,4)}, {s(sT0)} offen offset:256""")
    k("bail:\ns_endpgm")
    for t in cold: k(t)
    k("text_end:")
    body, nn = fix_hazards(k.L)
    ref = open(f"cdna_kernels/{NAME}.s.ref").read().split("\n")
    hd = [l for l in ref[:ref.index(f"{NAME}_kernel:") + 1]]
    hd = ["; @launch grid=(256,1,1) block=(256,1,1) lds=163840" if l.startswith("; @launch") else l for l in hd]
    tl = ref[ref.index('.section .rodata,"a"'):]
    tl = [l.replace("next_free_vgpr 256", "next_free_vgpr 512") for l in tl]
    out = hd + [("" if t.endswith(":") else "    ") + t for t in body] + tl
    open(sys.argv[1], "w").write("\n".join(out))
    if PROF: open(sys.argv[1] + ".marks", "w").write(" ".join(marks))
    print("instructions", len(body), "nops", nn)

main()
```

```python
import re

TRANS = ("v_exp_f32", "v_log_f32", "v_rcp_f32", "v_rsq_f32", "v_sqrt_f32", "v_sin_f32", "v_cos_f32")
_reg = re.compile(r"^-?\|?([vas])(?:(\d+)|\[(\d+):(\d+)\])\|?$")

def regs_of(op):
    op = op.strip()
    if op in ("vcc", "vcc_lo", "vcc_hi"): return {"vcc"}
    if op in ("exec", "exec_lo", "exec_hi"): return {"exec"}
    if op == "m0": return {"m0"}
    m = _reg.match(op)
    if not m: return set()
    k = m.group(1)
    if m.group(2) is not None: return {k + m.group(2)}
    return {k + str(i) for i in range(int(m.group(3)), int(m.group(4)) + 1)}

class Ins:
    def __init__(self, text):
        self.text = text
        t = text.split(";")[0].strip()
        self.label = t[:-1] if t.endswith(":") else None
        self.op = None; self.dst = set(); self.src = set(); self.kind = "other"
        self.ws = 0; self.target = None; self.A = self.B = self.C = set(); self.passes = 0
        self.data = set(); self.wide = False; self.lds = False
        if self.label or not t or t.startswith("."): return
        p = t.split(None, 1); op = p[0]; self.op = op; self.ws = 1
        rest = p[1] if len(p) > 1 else ""
        ops = [o.strip() for o in rest.split(",")] if rest else []
        mods = ""
        cut = re.search(r"\s(op_sel|neg_lo|neg_hi|offset|offen|sc0|sc1|nt\b|lds\b|row_|quad_perm|clamp|mul:|div:|bound|cbsz|abid|blgp)", rest)
        if cut:
            mods = rest[cut.start():]; ops = [o.strip() for o in rest[:cut.start()].split(",")]
        R = [regs_of(o) for o in ops]
        allr = set().union(*R) if R else set()
        if op == "s_nop": self.ws = int(ops[0]) + 1; self.kind = "salu"
        elif op.startswith("v_mfma"):
            self.kind = "mfma"; self.dst = R[0]; self.A, self.B, self.C = R[1], R[2], R[3]
            self.src = R[1] | R[2] | R[3]; self.passes = 8 if "32x32" in op else 4
        elif op.startswith("v_"):
            self.kind = "valu"
            if "permlane" in op and "swap" in op: self.dst = allr; self.src = allr
            elif op.startswith("v_cmp"): self.dst = R[0]; self.src = set().union(*R[1:])
            elif "_co_" in op: self.dst = R[0] | R[1]; self.src = set().union(*R[2:])
            else:
                self.dst = R[0]; self.src = set().union(*R[1:]) if len(R) > 1 else set()
                if op.startswith(("v_fmac", "v_dot2c", "v_writelane", "v_mac")): self.src |= R[0]
                if op.startswith("v_cndmask") and len(R) == 3: self.src |= {"vcc"}
            self.dpp = "row_" in mods or "quad_perm" in mods
        elif op.startswith("ds_"):
            self.kind = "ds"
            if "read" in op or "bpermute" in op: self.dst = R[0]; self.src = set().union(*R[1:])
            else: self.src = allr
        elif op.startswith(("buffer_", "global_")):
            self.kind = "vmem"; self.lds = bool(re.search(r"\blds\b", mods)) or "_lds_" in op
            if "load" in op and not self.lds: self.dst = R[0]; self.src = set().union(*R[1:])
            else:
                self.src = allr
                if "store" in op:
                    self.data = R[0] if op.startswith("buffer") else R[1]
                    self.wide = op.endswith(("x3", "x4"))
        elif op.startswith("s_"):
            self.kind = "salu"
            if op.startswith(("s_branch", "s_cbranch")): self.target = ops[0]
            elif op.startswith(("s_cmp", "s_bitcmp", "s_waitcnt", "s_barrier", "s_endpgm", "s_sleep", "s_setprio")): self.src = allr
            else:
                self.dst = R[0] if R else set(); self.src = set().union(*R[1:]) if len(R) > 1 else set()
                if "saveexec" in op: self.dst |= {"exec"}

def need(p, c):
    n = 0
    vec = lambda s: {r for r in s if r[0] in "va" and r != "vcc"}
    sca = lambda s: {r for r in s if r[0] == "s" or r == "vcc"}
    if p.kind == "valu":
        d = vec(p.dst); sd = sca(p.dst)
        if c.kind == "mfma" and d & c.src: n = max(n, 2)
        if c.kind == "valu":
            if d & c.src:
                if "permlane" in c.op or c.dpp: n = max(n, 2)
                if c.op.startswith(("v_readlane", "v_readfirstlane")): n = max(n, 1)
                if p.op.startswith(TRANS): n = max(n, 1)
                if p.op.startswith("v_dot"): n = max(n, 3)
            if sd & c.src: n = max(n, 4 if c.op.startswith(("v_readlane", "v_writelane")) else 2)
        if c.kind == "vmem" and sd & c.src: n = max(n, 5)
        if "exec" in p.dst and c.kind in ("valu", "mfma"): n = max(n, 5)
    if p.kind == "mfma":
        big = p.passes == 8
        if c.kind == "mfma":
            if p.dst & (c.A | c.B): n = max(n, 12 if big else 8)
            if p.dst & c.C and not (p.dst == c.C and p.passes == c.passes): n = max(n, 10 if big else 6)
            if p.dst & c.dst and p.passes != c.passes: n = max(n, 12 if big else 8)
        if c.kind in ("valu", "ds", "vmem"):
            if p.dst & (c.src | c.dst): n = max(n, 12 if big else 8)
            if p.C & c.dst: n = max(n, 7 if big else 3)
    if p.kind == "vmem" and p.wide and p.data & c.dst: n = max(n, 2)
    if p.kind == "salu" and "m0" in p.dst and c.kind == "vmem" and c.lds: n = max(n, 1)
    return n

def fix_hazards(lines):
    I = [Ins(t) for t in lines]
    out = []
    def preds_build(L):
        lab = {x.label: i for i, x in enumerate(L) if x.label}
        br = {}
        for i, x in enumerate(L):
            if x.target in lab: br.setdefault(lab[x.target], []).append(i)
        return br
    nins = 0
    changed = True
    while changed:
        changed = False
        br = preds_build(I)
        add = {}
        for i, c in enumerate(I):
            if c.op is None or c.kind == "salu": continue
            worst = 0
            stack = [(i, 0)]; seen = {}
            while stack:
                k, dist = stack.pop()
                pp = []
                if k > 0 and not (I[k-1].op in ("s_branch", "s_endpgm")): pp.append(k - 1)
                if I[k].label: pp += br.get(k, [])
                for q in pp:
                    d = dist + (add.get(k, 0) if k != i else 0)
                    if seen.get(q, 99) <= d: continue
                    seen[q] = d
                    p = I[q]
                    if p.op is not None:
                        worst = max(worst, need(p, c) - d)
                    nd = d + p.ws
                    if nd < 12: stack.append((q, nd))
            if worst > 0: add[i] = worst
        if add:
            J = []
            for i, c in enumerate(I):
                if i in add:
                    J.append(Ins(f"s_nop {add[i]-1}")); nins += 1
                J.append(c)
            I = J; changed = True
    return [x.text for x in I], nins

class Asm:
    def __init__(self):
        self.L = []; self.vm = []; self.lg = []; self.nlab = 0
    def __call__(self, text):
        for t in text.split("\n"):
            t = t.strip()
            if t: self.L.append(t)
    def lab(self, base):
        self.nlab += 1; return f"{base}_{self.nlab}"
    def vmem(self, text, tag=None):
        self(text); self.vm.append(tag)
    def ds(self, text, tag=None):
        self(text); self.lg.append(tag)
    @staticmethod
    def _n(q, tags):
        idx = max((i for i, t in enumerate(q) if t in tags), default=-1)
        return None if idx < 0 else len(q) - 1 - idx
    def wait(self, vm=None, lg=None):
        parts = []
        for q, t, name, mx in ((self.vm, vm, "vmcnt", 63), (self.lg, lg, "lgkmcnt", 15)):
            if t is None: continue
            if t == "all": n = 0 if q else None
            else: n = self._n(q, t if isinstance(t, list) else [t])
            if n is None: continue
            n = min(n, mx)
            del q[:len(q) - n]
            parts.append(f"{name}({n})")
        if parts: self("s_waitcnt " + " ".join(parts))

def v(i, n=1): return f"v{i}" if n == 1 else f"v[{i}:{i+n-1}]"
def a(i, n=1): return f"a{i}" if n == 1 else f"a[{i}:{i+n-1}]"
def s(i, n=1): return f"s{i}" if n == 1 else f"s[{i}:{i+n-1}]"
def r(i, n=1): return v(i, n) if i < 256 else a(i - 256, n)

WIDE = ("v_exp_f32", "v_rcp_f32", "v_rsq_f32", "v_mov_b32", "v_add_f32", "v_mul_f32", "v_sub_f32", "v_add_u32", "v_subrev_u32", "v_sub_u32",
        "v_lshlrev_b32", "v_lshrrev_b32", "v_and_b32", "v_xor_b32", "v_or_b32", "v_max_f32", "v_max_u32", "v_min_u32", "v_mul_u32_u24")
def sizes(lines):
    import subprocess, tempfile, os
    d = tempfile.mkdtemp(); B = "bin/"
    open(d + "/a.s", "w").write(".text\n" + "\n".join(lines) + "\n")
    subprocess.run([B + "clang", "-c", "-x", "assembler", "-target", "amdgcn-amd-amdhsa", "-mcpu=gfx950", d + "/a.s", "-o", d + "/a.o"], check=True)
    o = subprocess.run([B + "llvm-objdump", "-d", d + "/a.o"], capture_output=True, text=True).stdout
    z = [4*len([w for w in l.split("//")[1].split(":")[1].split() if not w.startswith("<")]) for l in o.split("\n") if "//" in l]
    it = iter(z); r = [0 if t.endswith(":") else next(it) for t in lines]
    assert next(it, None) is None
    return r

def align(lines, weight, heads):
    z = sizes(lines); w = 1.0
    cur = {(0, 0): (0.0, None)}
    for t, n in zip(lines, z):
        nxt = {}
        def put(st, c, prev, ch):
            if st not in nxt or c < nxt[st][0]: nxt[st] = (c, (prev, ch))
        if n == 0:
            l = t[:-1]
            for (p, f), (c, h) in cur.items():
                for pad in range(8 if l in heads else 1):
                    q = (p + pad) % 8
                    put((q, 0 if pad else f), c + 4*w*pad + heads.get(l, 0)*2.3*q, h, pad)
            w = weight.get(l, w)
        else:
            op = t.split()[0]
            for (p, f), (c, h) in cur.items():
                for pad in (0, 1):
                    for wide in ((0, 1) if n == 4 and op in WIDE else (0,)):
                        q = (p + pad) % 8; g = 0 if pad else f; cc = c + (4*w + 0.01)*pad + 0.02*wide
                        if n == 4 and not wide: put(((q + 1) % 8, 0), cc, h, pad); continue
                        if q == 7: cc += 4*w*g; g = 1
                        if "mfma" in op: g = 0
                        put(((q + 2) % 8, g), cc, h, pad + 8*wide)
        cur = nxt
    c, h = min(cur.values(), key=lambda x: x[0]); ch = []
    while h: h, x = h; ch.append(x)
    out = []
    for t, x in zip(lines, reversed(ch)):
        out += ["s_nop 0"]*(x % 8)
        out.append(t.replace(" ", "_e64 ", 1) if x >= 8 else t)
    return out, c
```

```python
import sys, math, struct
from asmlib import *

NAME = "interleave_layers__sliding_block__mixer_s_mlp__prompt"
OPT = dict(x.split("=") if "=" in x else (x, "1") for x in sys.argv[2:])
PROF = int(OPT.get("prof", 0)); STOP = int(OPT.get("stop", 99))
KB = 1024
FX, FO, FX2, FH_, FX1, FKV_, FH3 = 0, 17*KB, 0, 73*KB, 0, 105*KB, 17*KB
STX, STX2, STX1 = 16*KB, 16*KB, 16*KB
R2 = 169*KB
ACT_OFF = 0x90000; PROF_OFF = 0x8000000; E_OFF = 0x80000
GB, GH, GA = 0, 2048, 4096
GH2, GKV = 0x10000, 0x20000
KVB = 110*KB; PQ = 108*KB; PART = 156*KB; CSQ = 158*KB; CS3 = 158*KB + 512; CS1L = 159*KB
W3A, W3H = 44*KB, 100*KB
W3Q = [W3A, W3A + 28*KB, W3H, W3H + 28*KB]
W4S = [g*4096 for g in range(11)]
W4C = [W3A + g*4096 for g in range(28)]
NEG = 0xf1800000
def P(name, d): return int(OPT.get(name, d))
def NT(b): return " nt" if P("nt", 0) & b else ""
M32 = "v_mfma_f32_32x32x16_bf16"; M16 = "v_mfma_f32_16x16x32_bf16"
def f2u(x): return "0x%08x" % struct.unpack("<I", struct.pack("<f", x))[0]
LOG2E = 1.4426950408889634
C1 = -2*math.sqrt(2/math.pi)*LOG2E; C2 = C1*0.044715

ACT, FLG, WQ, WO, W1, W2, W3, W4, XO, DBG = 4, 8, 12, 16, 20, 24, 28, 32, 36, 40
(sW, sC, sHP, sNT, sTB32, sTB16, sLAY, sPURE, sPUREH, s4K, s8K, s12K, s32K, s2R, sOFF, sCNT,
 sT0, sT1, sOUT, _o1, sV, _v1, sXP, _x1, sW1K, sFBo, sFHo, sFAo, sFKVo, sKVo, sKVf, sNTL,
 sT2, sT3, sH3p, sH3s, sIT, sMT, sG0, sQA, sQB, sM1, sM2, s3L, s3G, sEDG) = range(44, 90)
sPT = 90; sFH = 98; sPR = 99
SK = [0, s(s4K), s(s8K), s(s12K)]
(vL, vA16, vP16, vA32, vA3, vST, vDB, vDQ) = range(0, 8)
vRB = [8, 9, 10, 11]; vWq = 12; vL16 = 13
vPB32, vPB16, vPA, vPH, vPKV = 14, 15, 16, 17, 18
vT0, vT1, vT2 = 19, 20, 21
vPR2, vPR = 22, 23
RES = 24; XB = 40; vD3 = 248; vJ = 255
A0 = 256

k = Asm()
nmark = [0]; marks = []
TM = OPT.get("tm")
def mark(name):
    if OPT.get("cyc") and OPT["cyc"].split(":")[0] == name:
        L = k.lab("cy")
        if name not in ("first", "start", "xload", "init", "end"): k(f"s_cmp_lg_u32 {s(sLAY)}, {OPT['cyc'].split(':')[1]}\ns_cbranch_scc1 {L}")
        k(f"s_memtime s[96:97]\n{L}:\ns_waitcnt lgkmcnt(0)"); k.lg.clear()
    if TM and TM.split(":")[0] == name:
        L = k.lab("tm")
        if name not in ("first", "start", "xload", "init", "end"): k(f"s_cmp_lg_u32 {s(sLAY)}, {TM.split(':')[1]}\ns_cbranch_scc1 {L}")
        k(f"s_memrealtime s[92:93]\n{L}:\ns_waitcnt lgkmcnt(0)"); k.lg.clear()
    if not PROF or name == "first": return
    k(f"s_memtime {s(sPT,2)}\ns_waitcnt lgkmcnt(0)\nv_writelane_b32 {v(vPR)}, {s(sPT)}, {nmark[0]}")
    k.lg.clear(); marks.append(name); nmark[0] += 1

def srd(d, nbytes):
    k(f"s_mov_b32 {s(d+2)}, {nbytes}\ns_mov_b32 {s(d+3)}, 0x20000")

def barrier():
    k.wait(lg="all"); k("s_barrier")

def poll(va):
    L = k.lab("poll")
    k(f"s_mov_b32 {s(sCNT)}, 0x8000\n{L}:")
    k.vmem(f"buffer_load_dwordx2 {v(vT1,2)}, {v(va)}, {s(FLG,4)}, 0 offen sc1")
    k(f"s_sub_u32 {s(sCNT)}, {s(sCNT)}, 1\ns_cbranch_scc1 bail")
    k.wait(vm="all")
    k(f"v_cmp_ne_u64 vcc, {s(sV,2)}, {v(vT1,2)}\ns_cbranch_vccnz {L}")

cold = []
def dual(stores, spure):
    La, Lb = k.lab("sc"), k.lab("scb")
    k(f"s_cmp_eq_u32 {s(spure)}, 0\ns_cbranch_scc1 {La}")
    for t in stores: k.vmem(t, "pub")
    k(f"{Lb}:")
    cold.extend([f"{La}:"] + [t + " sc1" for t in stores] + [f"s_branch {Lb}"])

def flag(saddr, spure, line=None):
    k(f"s_add_u32 {s(sV)}, {s(sV)}, 1\nv_mov_b32 {v(vT2)}, {s(sV+1)}\nv_mov_b32 {v(vT1)}, {s(sV)}")
    t = f"buffer_store_dwordx2 {v(vT1,2)}, off, {s(FLG,4)}, {s(saddr)}"
    if line and P("fl", 1):
        k(f"v_lshlrev_b32 {v(vT0)}, 3, v0\n" + ("s_mov_b64 exec, 0xffff" if line == "all" else f"s_cmp_eq_u32 {s(line)}, 0\ns_cselect_b64 exec, 0xffff, 1"))
        t = t.replace("off", v(vT0)) + " offen"
    else: k("s_mov_b64 exec, 1")
    k.wait(vm="pub")
    if spure is None: k.vmem(t + " sc1")
    else: dual([t], spure)
    k("s_mov_b64 exec, -1")

def touch(tmp, h):
    k(f"v_mad_u32_u24 {v(tmp)}, v0, {s(sPR+1)}, {v(vA16)}")
    if not h:
        k.vmem(f"buffer_load_dword {v(vJ)}, {v(tmp)}, {s(ACT,4)}, {s(sPR)} offen sc1", "pre")
        return
    k(f"""v_lshl_add_u32 {v(tmp)}, {s(sNT)}, 11, {v(tmp)}
    s_sub_u32 {s(sT0)}, {s(sFH)}, {FO + 2048}
    s_mov_b32 {s(sT1)}, {FO}
    s_mov_b32 exec_hi, 0
    s_mov_b32 exec_lo, 0xffff0000
    v_add_u32 {v(tmp)}, {s(sT0)}, {v(tmp)}
    s_mov_b32 exec_lo, -1""")
    k.vmem(f"buffer_load_dword {v(vJ)}, {v(tmp)}, {s(ACT,4)}, {s(sT1)} offen sc1", "pre")
    k("s_mov_b64 exec, -1")

def code_touch(tmp, first):
    L = k.lab("pc")
    k(f"s_getpc_b64 {s(sT0,2)}\n{L}:")
    if first:
        n = P("cn", 9)
        k(f"""s_lshr_b32 {s(sT2)}, s2, 3
        s_mul_i32 {s(sT2)}, {s(sT2)}, {9*128}
        v_lshl_add_u32 {v(tmp)}, v0, 7, {s(sT2)}
        v_min_u32 {v(tmp)}, text_end-{L}-4, {v(tmp)}
        v_mov_b32 {v(tmp+2)}, {s(sT1)}
        v_add_co_u32 {v(tmp+1)}, vcc, {s(sT0)}, {v(tmp)}
        v_addc_co_u32 {v(tmp+2)}, vcc, 0, {v(tmp+2)}, vcc
        v_cmp_gt_u32 vcc, {n}, v0
        s_or_b32 vcc_lo, vcc_lo, 1
        s_mov_b64 exec, vcc
        global_load_dword {v(vJ)}, {v(tmp+1,2)}, off
        s_mov_b64 exec, -1""")
        return
    k(f"""s_lshr_b32 {s(sT2)}, s2, 3
    s_lshl2_add_u32 {s(sT2)}, {s(sT2)}, {s(sW)}
    s_lshl_b32 {s(sT2)}, {s(sT2)}, 8
    v_lshl_add_u32 {v(tmp)}, v0, 7, {s(sT2)}
    v_min_u32 {v(tmp)}, text_end-{L}-4, {v(tmp)}
    v_mov_b32 {v(tmp+2)}, {s(sT1)}
    v_add_co_u32 {v(tmp+1)}, vcc, {s(sT0)}, {v(tmp)}
    v_addc_co_u32 {v(tmp+2)}, vcc, 0, {v(tmp+2)}, vcc
    s_mov_b64 exec, 3
    global_load_dword {v(vJ)}, {v(tmp+1,2)}, off
    s_mov_b64 exec, -1""")

def pref(loc, tmp):
    sm = [w for w, o in ((WO, "pfo"), (W1, "pf1"), (W2, "pf1")) if P(o, P("pf", 2)) == loc]
    lg = [w for w, o in ((W3, "pf3"), (W4, "pf4")) if P(o, P("pf", 2)) == loc]
    if not sm and not lg: return
    k(f"s_lshl2_add_u32 {s(sM1)}, s2, {s(sW)}\nv_lshlrev_b32 {v(tmp)}, 6, v0\ns_mul_i32 {s(sM2)}, {s(sM1)}, 1792\ns_lshl_b32 {s(sM1)}, {s(sM1)}, 9\ns_mov_b32 exec_hi, 0")
    if loc > 1: k(f"s_cmp_eq_u32 {s(sLAY)}, 0")
    for ws_, m, so in ((sm, 0xff, sM1), (lg, 0xfffffff, sM2)):
        if ws_: k(f"s_cselect_b32 exec_lo, {m}, 1" if loc > 1 else f"s_mov_b32 exec_lo, {m}")
        for w in ws_: k.vmem(f"buffer_load_dword {v(vJ)}, {v(tmp)}, {s(w,4)}, {s(so)} offen")
    k("s_mov_b64 exec, -1")

def prefq(loc, tmp):
    if P("pq", 0) != loc: return
    st = P("pqs", 7)
    k(f"s_lshl2_add_u32 {s(sM1)}, s2, {s(sW)}\nv_lshlrev_b32 {v(tmp)}, {st}, v0\ns_mul_i32 {s(sM1)}, {s(sM1)}, 1536\ns_mov_b32 exec_hi, 0\n"
      f"s_cmp_eq_u32 {s(sLAY)}, 0\ns_cselect_b32 exec_lo, {(1 << (1536 >> st)) - 1}, 1")
    k.vmem(f"buffer_load_dword {v(vJ)}, {v(tmp)}, {s(WQ,4)}, {s(sM1)} offen")
    k("s_mov_b64 exec, -1")

def l2pre(w, base, per, sh, lanes, tmp):
    k(f"s_lshr_b32 {s(sM1)}, s2, 3\ns_lshl2_add_u32 {s(sM1)}, {s(sM1)}, {s(sW)}\ns_mul_i32 {s(sM1)}, {s(sM1)}, {per}\ns_add_u32 {s(sM1)}, {s(sM1)}, {base}")
    k(f"v_lshlrev_b32 {v(tmp)}, {sh}, v0\nv_add_u32 {v(tmp)}, {s(sM1)}, {v(tmp)}")
    if lanes < 64: k(f"s_mov_b64 exec, {(1 << lanes) - 1}")
    k.vmem(f"buffer_load_dword {v(vJ)}, {v(tmp)}, {s(w,4)}, 0 offen")
    if lanes < 64: k("s_mov_b64 exec, -1")

bgq = []
def bg(n=1):
    for _ in range(min(n, len(bgq))): bgq.pop(0)()

def qB(w, groups):
    for n, (g, lds) in enumerate(groups):
        def f(n=n, g=g, lds=lds):
            p = groups[n-1] if n else None
            if p and lds - p[1] == 4096: k(f"s_add_u32 m0, m0, {s(s4K)}")
            else: k(f"s_add_u32 m0, {s(sW1K)}, {lds}")
            if p and g - p[0] == 1: k(f"s_add_u32 {s(sOFF)}, {s(sOFF)}, {s(s32K)}")
            else: k(f"s_mov_b32 {s(sOFF)}, {g*32768}")
            k.vmem(f"buffer_load_dwordx4 {v(vDB)}, {s(w,4)}, {s(sOFF)} offen{NT(1)} lds", "dma")
        bgq.append(f)

def qQ(lo, hi):
    for n in range(lo, hi):
        def f0(n=n):
            k(f"s_xor_b32 m0, {s(sQB)}, {n*4096}\ns_xor_b32 {s(sOFF)}, {s(sG0)}, {n}\ns_mul_i32 {s(sOFF)}, {s(sOFF)}, {64*3072}")
            k.vmem(f"buffer_load_dwordx4 {v(vDQ)}, {s(WQ,4)}, {s(sOFF)} offen{NT(4)} lds", "dma")
        bgq.append(f0)

def qKV(lo, hi):
    for n in range(lo, hi):
        def f1(n=n):
            k(f"s_xor_b32 m0, {s(sQA)}, {n*8192}\ns_xor_b32 {s(sOFF)}, {s(sG0)}, {n}\ns_mul_i32 {s(sOFF)}, {s(sOFF)}, {64*3072}\ns_bitset1_b32 {s(sOFF)}, 10")
            k.vmem(f"buffer_load_dwordx4 {v(vDQ)}, {s(WQ,4)}, {s(sOFF)} offen{NT(4)} lds", "dma")
        def f2():
            k.vmem(f"buffer_load_dwordx4 {v(vDQ)}, {s(WQ,4)}, {s(sOFF)} offen offset:1024{NT(4)} lds", "dma")
        bgq.extend([f1, f2])

def q3(quads):
    for q in quads:
        for p in range(7):
            def f(q=q, p=p):
                if p == 0: k(f"s_add_u32 m0, {s(s3L)}, {W3Q[q]}\ns_add_u32 {s(sOFF)}, {s(s3G)}, {q*4*32*3584}")
                if p == 4: k(f"s_add_u32 m0, m0, {s(s4K)}\ns_add_u32 {s(sOFF)}, {s(sOFF)}, {s(s4K)}")
                k.vmem(f"buffer_load_dwordx4 {v(vD3+p)}, {s(W3,4)}, {s(sOFF)} offen offset:{(p%4)*1024}{NT(2)} lds", "dma")
            bgq.append(f)

class Rec:
    def __enter__(self):
        self.n = len(k.L); self.q = []; self.g = len(k.lg); return self.q
    def __exit__(self, *a):
        self.q.extend(k.L[self.n:]); del k.L[self.n:]; del k.lg[self.g:]
def emit(q, n=999):
    for _ in range(min(n, len(q))):
        t = q.pop(0)
        if callable(t): t()
        elif t.startswith("ds_"): k.ds(t, "fill")
        else: k(t)

def rb_bases(vb, his):
    m = {0: vRB}
    for n, hi in enumerate(h for h in his if h):
        m[hi] = [vb + 4*n + f for f in range(4)]
        for f in range(4): k(f"v_add_u32 {v(m[hi][f])}, {hi*65536}, {v(vRB[f])}")
    return m

def rd_fragB(dst, lds, fb, bases, tag):
    hi = lds // 65536
    for j in range(2):
        k.ds(f"ds_read_b64_tr_b16 {r(dst+2*j,2)}, {v(bases[hi][fb])} offset:{lds%65536 + j*2048}", tag)

def fill(slots, dst, bases):
    for i in range(len(slots)*4): rd_fragB(dst + 4*i, slots[i//4], i % 4, bases, "fill")

def mix(q, per, nbg):
    while q or nbg > 0:
        if nbg > 0: bg(); nbg -= 1
        emit(q, per)

def pk(op, d, a_, b_, c_=None, bsel=None, csel=None):
    n = 3 if c_ is not None else 2
    t = f"v_pk_{op}_f32 {d}, {a_}, {b_}" + (f", {c_}" if c_ is not None else "")
    if bsel is not None:
        lo = [0]*n; hi = [1]*n; lo[1] = bsel; hi[1] = bsel
        if csel is not None: lo[2] = csel; hi[2] = csel
        t += f" op_sel:[{','.join(map(str,lo))}] op_sel_hi:[{','.join(map(str,hi))}]"
    k(t)

def cvt(d, src, n):
    for i in range(n): k(f"v_cvt_pk_bf16_f32 {v(d+i)}, {v(src+2*i)}, {v(src+2*i+1)}")

def finish_stats(sq, out, two_level):
    a_, b_ = v(sq), v(sq+1)
    k(f"v_permlane32_swap_b32 {a_}, {b_}\nv_add_f32 {a_}, {a_}, {b_}\nv_mov_b32 {b_}, {a_}")
    if two_level: k(f"v_permlane16_swap_b32 {a_}, {b_}\nv_add_f32 {a_}, {a_}, {b_}\nv_mov_b32 {b_}, {a_}")
    k(f"v_permlane32_swap_b32 {a_}, {b_}\nv_mul_f32 {v(out+1)}, {f2u(-1/512)}, {a_}\nv_mul_f32 {b_}, {f2u(1/512)}, {b_}\n"
      f"v_fma_f32 {b_}, -{v(out+1)}, {v(out+1)}, {b_}\nv_max_f32 {v(out+2)}, 0, {b_}\nv_add_f32 {b_}, {f2u(1e-5)}, {v(out+2)}\n"
      f"v_rsq_f32 {v(out)}, {b_}")

def gelu_scale(rr, kk):
    k(f"v_rcp_f32 {v(kk+2)}, {v(rr)}\nv_mul_f32 {v(kk+1)}, {f2u(C1)}, {v(rr)}\nv_mul_f32 {v(kk)}, {v(rr)}, {v(rr)}\n"
      f"v_mul_f32 {v(kk)}, {f2u(0.044715)}, {v(kk)}\nv_mul_f32 {v(kk)}, {v(kk)}, {v(kk+1)}")

def pub_tile(src, field, stf, tmp):
    k(f"s_mov_b32 {s(sT0)}, {field}\ns_mov_b32 {s(sT1)}, {stf}")
    cvt(tmp, src, 8)
    dual([f"buffer_store_dwordx4 {v(tmp+4*i,4)}, {v(vP16)}, {s(ACT,4)}, {s(sT0)} offen offset:{1024*i}" for i in range(2)], sPURE)
    S, Q = tmp + 8, tmp + 10
    pk("add", v(S,2), v(src,2), v(src+2,2)); pk("mul", v(Q,2), v(src,2), v(src,2))
    for i in range(1, 8):
        if i > 1: pk("add", v(S,2), v(S,2), v(src+2*i,2))
        pk("fma", v(Q,2), v(src+2*i,2), v(src+2*i,2), v(Q,2))
    k(f"v_add_f32 {v(S)}, {v(S)}, {v(S+1)}\nv_add_f32 {v(S+1)}, {v(Q)}, {v(Q+1)}\n"
      f"v_permlane32_swap_b32 {v(S)}, {v(S+1)}\nv_add_f32 {v(S)}, {v(S)}, {v(S+1)}\nv_mov_b32 {v(S+1)}, {v(S)}\n"
      f"v_permlane16_swap_b32 {v(S)}, {v(S+1)}\nv_add_f32 {v(S)}, {v(S)}, {v(S+1)}")
    dual([f"buffer_store_dword {v(S)}, {v(vST)}, {s(ACT,4)}, {s(sT1)} offen"], sPURE)

def gelu(y, n, tmp, cs, rm, kk):
    Pr = range(0, n, 2)
    for i in Pr: pk("fma", v(y+i,2), v(cs+i,2), v(rm,2), v(y+i,2), bsel=1)
    for i in Pr: pk("mul", v(tmp+i,2), v(y+i,2), v(y+i,2))
    for i in Pr: pk("fma", v(tmp+i,2), v(tmp+i,2), v(kk,2), v(kk,2), bsel=0, csel=1)
    for i in Pr: pk("mul", v(tmp+i,2), v(tmp+i,2), v(y+i,2))
    for i in range(n): k(f"v_exp_f32 {v(tmp+i)}, {v(tmp+i)}")
    for i in Pr: pk("fma", v(tmp+i,2), v(tmp+i,2), v(kk+2,2), v(kk+2,2), bsel=0, csel=0)
    for i in range(n): k(f"v_rcp_f32 {v(tmp+i)}, {v(tmp+i)}")
    for i in Pr: pk("mul", v(y+i,2), v(y+i,2), v(tmp+i,2))

def sum_partials(n16, stride, dst, tmp, lo=0, PART=PART):
    k(f"v_min_u32 {v(vT0)}, {n16-1}, {v(vL)}\nv_lshlrev_b32 {v(vT0)}, 4, {v(vT0)}\nv_add_u32 {v(vT0)}, {PART + 16*lo}, {v(vT0)}")
    for i in range(4): k.ds(f"ds_read_b128 {v(tmp+4*i,4)}, {v(vT0)} offset:{i*stride}")
    k.wait(lg="all")
    for i in range(1, 4):
        for h in (0, 2): pk("add", v(tmp+h,2), v(tmp+h,2), v(tmp+4*i+h,2))
    k.ds(f"ds_write_b128 {v(vT0)}, {v(tmp,4)} offset:{dst-PART}")
    k.wait(lg="all")

def stop(n):
    if STOP == n: k("s_branch bail")

late = []
def prologue():
    k("s_cmp_ge_u32 s2, 0x100\ns_cbranch_scc1 bail")
    mark("first")
    for d, off in ((XO, 0), (WQ, 8), (FLG, 80)): k(f"s_load_dwordx2 {s(d,2)}, s[0:1], {off}")
    if P("cp", 3) & 1: code_touch(vT0, True); k.vm += [None]
    vXO = 56
    k(f"""v_lshrrev_b32 v1, 6, v0
    v_and_b32 v0, 63, v0
    v_readfirstlane_b32 {s(sW)}, v1
    s_and_b32 {s(sC)}, s2, 7
    s_lshr_b32 s3, s2, 3
    s_lshr_b32 {s(sNT)}, s2, 5
    s_xor_b32 {s(sNT)}, {s(sNT)}, {P("ntx", 0)}
    s_and_b32 {s(sT1)}, s3, 3
    s_lshl2_add_u32 {s(sT1)}, {s(sT1)}, {s(sW)}
    s_lshl4_add_u32 {s(sTB16)}, {s(sC)}, {s(sT1)}
    v_and_b32 v57, 15, v0
    v_lshrrev_b32 v58, 4, v0
    s_lshl_b32 {s(sT0)}, {s(sTB16)}, 14
    s_lshl_b32 {s(sT1)}, {s(sNT)}, 7
    s_add_u32 {s(sT0)}, {s(sT0)}, {s(sT1)}
    v_lshlrev_b32 {v(vXO)}, 10, v57
    v_lshl_add_u32 {v(vXO)}, v58, 3, {v(vXO)}""")
    srd(XO, 2097152)
    k("s_waitcnt lgkmcnt(0)")
    mark("start")
    if PROF: k(f"s_memrealtime {s(sPT,2)}\ns_waitcnt lgkmcnt(0)\nv_writelane_b32 {v(vPR)}, {s(sPT)}, 62")
    for f in range(4):
        k.vmem(f"buffer_load_dwordx2 {v(64+2*f,2)}, {v(vXO)}, {s(XO,4)}, {s(sT0)} offen offset:{32*f}", "x")
    k(f"s_load_dwordx2 {s(sV,2)}, {s(FLG,2)}, {E_OFF}")
    for d, off in ((DBG, 72), (WO, 16), (W1, 32), (W2, 40), (W3, 48), (W4, 56), (sOUT, 64)):
        k(f"s_load_dwordx2 {s(d,2)}, s[0:1], {off}")
    srd(WQ, 1572864); srd(ACT, 128*R2)
    k(f"""s_add_u32 {s(ACT)}, {s(FLG)}, {ACT_OFF}
    s_addc_u32 {s(ACT+1)}, {s(FLG+1)}, 0
    s_mov_b32 {s(s2R)}, {R2}
    s_mul_i32 {s(sT3)}, {s(sTB16)}, {s(s2R)}""")
    if P("tw", 1): k.vmem(f"buffer_load_dword {v(vJ)}, off, {s(ACT,4)}, {s(sT3)} sc1")
    if P("tk", 3) == 3: l2pre(WQ, 384, 12*KB, 10, 12, 59)
    elif P("tk", 3):
        k(f"""s_lshl2_add_u32 {s(sT1)}, s3, {s(sW)}
        s_mul_i32 {s(sT1)}, {s(sT1)}, 12288
        v_mul_u32_u24 v59, 3072, v58
        v_lshl_add_u32 v59, v57, 7, v59""")
        k.vmem(f"buffer_load_dword {v(vJ)}, v59, {s(WQ,4)}, {s(sT1)} offen offset:1024")
        if P("tk", 3) == 2:
            k("s_mov_b32 exec_lo, 0xff00ff\ns_mov_b32 exec_hi, 0xff00ff")
            k.vmem(f"buffer_load_dword {v(vJ)}, v59, {s(WQ,4)}, {s(sT1)} offen")
            k("s_mov_b64 exec, -1")
    k(f"""s_lshr_b32 {s(sHP)}, s2, 4
    s_and_b32 {s(sG0)}, s3, 3
    s_lshl_b32 {s(sG0)}, {s(sG0)}, 1
    s_and_b32 {s(sT1)}, s2, 1
    s_or_b32 {s(sG0)}, {s(sG0)}, {s(sT1)}
    s_lshl_b32 {s(sW1K)}, {s(sW)}, 10
    s_lshl_b32 {s(sQB)}, {s(sG0)}, 12
    s_add_u32 {s(sQB)}, {s(sQB)}, {s(sW1K)}
    s_lshl_b32 {s(sQA)}, {s(sQB)}, 1
    s_bitset1_b32 {s(sQB)}, 16
    v_lshrrev_b32 v59, 2, v0
    v_mul_u32_u24 v59, 3072, v59
    v_and_b32 v60, 3, v0
    v_lshl_add_u32 v59, v60, 4, v59
    s_mul_i32 {s(sT0)}, {s(sW)}, {16*3072}
    s_lshl_b32 {s(sT1)}, {s(sHP)}, 6
    s_add_u32 {s(sT0)}, {s(sT0)}, {s(sT1)}
    v_add_u32 {v(vDQ)}, {s(sT0)}, v59""")
    qKV(0, 3); bg(P("p0", 0))
    k(f"""s_and_b32 {s(sMT)}, s3, 1
    s_lshl_b32 {s(sT0)}, {s(sC)}, 3
    s_lshl_b32 {s(sT1)}, {s(sMT)}, 2
    s_add_u32 {s(sT0)}, {s(sT0)}, {s(sT1)}
    s_add_u32 {s(sTB32)}, {s(sT0)}, {s(sW)}
    s_sub_u32 {s(sIT)}, {s(sTB32)}, 4
    s_cselect_b32 {s(sIT)}, {s(sTB32)}, {s(sIT)}
    s_sub_u32 {s(sCNT)}, {s(sTB32)}, 8
    s_cselect_b32 {s(sCNT)}, {s(sTB32)}, {s(sCNT)}
    s_min_u32 {s(sNTL)}, {s(sTB32)}, 8
    s_lshl_b32 {s(sNTL)}, {s(sNTL)}, 15
    s_mov_b32 {s(s4K)}, 4096
    s_mov_b32 {s(s8K)}, 8192
    s_mov_b32 {s(s12K)}, 12288
    s_mov_b32 {s(s32K)}, 32768
    v_lshlrev_b32 {v(vL16)}, 4, v0
    s_waitcnt lgkmcnt(0)""")
    for d, n in ((FLG, E_OFF + 0x100), (DBG, 256), (WO, 524288), (W1, 524288), (W2, 524288), (W3, 1835008), (W4, 1835008)): srd(d, n)
    pref(1, 61)
    k(f"""s_mul_i32 {s(sT0)}, {s(sTB16)}, {s(s2R)}
    v_add_u32 {v(vA16)}, {s(sT0)}, {v(vL16)}
    s_lshl_b32 {s(sT1)}, {s(sNT)}, 11
    v_add_u32 {v(vP16)}, {s(sT1)}, {v(vA16)}
    s_lshr_b32 {s(sT1)}, {s(sNT)}, 1
    s_lshl_b32 {s(sT1)}, {s(sT1)}, 8
    s_add_u32 {s(sT0)}, {s(sT0)}, {s(sT1)}
    s_and_b32 {s(sT1)}, {s(sNT)}, 1
    s_lshl_b32 {s(sT1)}, {s(sT1)}, 3
    s_add_u32 {s(sT0)}, {s(sT0)}, {s(sT1)}
    v_lshrrev_b32 v59, 5, v0
    v_lshlrev_b32 v60, 4, v57
    v_lshl_add_u32 v61, v59, 2, v60
    v_add_u32 {v(vST)}, {s(sT0)}, v61
    s_mul_i32 {s(sT0)}, {s(sTB32)}, {2*R2}
    v_add_u32 {v(vA3)}, {s(sT0)}, {v(vL16)}
    v_and_b32 v61, 1, v58
    v_mul_u32_u24 v62, {R2}, v61
    v_lshl_add_u32 v62, v59, 8, v62
    v_add3_u32 {v(vA32)}, v62, v60, {s(sT0)}
    s_lshr_b32 {s(sT1)}, {s(sHP)}, 3
    s_mul_i32 {s(sT1)}, {s(sT1)}, {s(s2R)}
    s_and_b32 {s(sT2)}, {s(sHP)}, 7
    s_lshl_b32 {s(sT2)}, {s(sT2)}, 12
    s_add_u32 {s(sT1)}, {s(sT1)}, {s(sT2)}
    s_add_u32 {s(sT1)}, {s(sT1)}, {FKV_}
    s_add_u32 {s(sKVo)}, {s(sT0)}, {s(sT1)}
    s_mul_i32 {s(sT0)}, {s(sIT)}, {2*R2}
    s_add_u32 {s(sKVf)}, {s(sT0)}, {s(sT1)}
    s_mul_i32 {s(sT0)}, {s(sCNT)}, {2*R2}
    s_add_u32 {s(sMT)}, {s(sT0)}, {s(sT1)}""")
    k(f"""v_lshrrev_b32 v62, 2, v57
    v_and_b32 v63, 3, v0
    v_lshl_add_u32 v72, v59, 2, v62
    v_lshl_add_u32 v73, v61, 2, v63
    v_lshlrev_b32 v73, 3, v73
    v_lshl_add_u32 {v(vWq)}, v72, 6, v73
    v_lshl_add_u32 v72, v61, 2, v62
    v_lshlrev_b32 v73, 10, v59
    v_lshl_add_u32 v73, v72, 7, v73
    v_lshl_add_u32 v73, v63, 3, v73
    v_lshrrev_b32 v72, 1, v72
    v_lshl_add_u32 {v(vRB[0])}, v72, 5, v73
    v_xor_b32 {v(vRB[1])}, 32, {v(vRB[0])}
    v_xor_b32 {v(vRB[2])}, 64, {v(vRB[0])}
    v_xor_b32 {v(vRB[3])}, 0x60, {v(vRB[0])}
    v_lshrrev_b32 v72, 3, v0
    v_and_b32 v73, 7, v0
    v_lshlrev_b32 v74, 1, v58
    v_xor_b32 v74, v74, v73
    v_lshlrev_b32 v74, 4, v74
    v_lshl_add_u32 v74, v72, 10, v74
    s_lshl_b32 {s(sT0)}, {s(sW)}, 13
    s_lshl_b32 {s(sT1)}, {s(sNT)}, 7
    s_add_u32 {s(sT0)}, {s(sT0)}, {s(sT1)}
    v_add_u32 {v(vDB)}, {s(sT0)}, v74""")
    k(f"""s_lshl_b32 {s(sT3)}, {s(sC)}, 13
    s_and_b32 {s(sT0)}, {s(sTB16)}, 15
    s_lshl_b32 {s(sT1)}, {s(sT0)}, 7
    s_add_u32 {s(sT1)}, {s(sT1)}, {s(sT3)}
    v_lshl_add_u32 {v(vPB16)}, v73, 3, {s(sT1)}
    s_lshl_b32 {s(sT2)}, {s(sNT)}, 3
    s_add_u32 {s(sFBo)}, {s(sT1)}, {s(sT2)}
    s_add_u32 {s(sFHo)}, {s(sFBo)}, {GH}
    s_lshr_b32 {s(sT0)}, {s(sT0)}, 1
    s_lshl_b32 {s(sT0)}, {s(sT0)}, 7
    s_add_u32 {s(sT0)}, {s(sT0)}, {s(sT3)}
    s_add_u32 {s(sT0)}, {s(sT0)}, {GA}
    v_lshl_add_u32 {v(vPA)}, v57, 3, {s(sT0)}
    s_and_b32 {s(sT0)}, {s(sTB32)}, 7
    s_lshl_b32 {s(sT1)}, {s(sT0)}, 8
    s_add_u32 {s(sT1)}, {s(sT1)}, {s(sT3)}
    v_and_b32 v74, 1, v72
    v_lshlrev_b32 v74, 7, v74
    v_lshl_add_u32 v74, v73, 3, v74
    v_add_u32 {v(vPB32)}, {s(sT1)}, v74
    s_lshl_b32 {s(sT1)}, {s(sT0)}, 7
    s_lshl_b32 {s(sT2)}, {s(sHP)}, 3
    s_add_u32 {s(sT1)}, {s(sT1)}, {s(sT2)}
    s_add_u32 {s(sT1)}, {s(sT1)}, {s(sT3)}
    s_add_u32 {s(sFAo)}, {s(sT1)}, {GA}
    s_lshl_b32 {s(sT2)}, {s(sHP)}, 7
    s_add_u32 {s(sT2)}, {s(sT2)}, {GKV}
    s_lshl_b32 {s(sT0)}, {s(sTB32)}, 11
    s_add_u32 {s(sFKVo)}, {s(sT0)}, {s(sT2)}
    v_mov_b32 v74, {s(sIT)}
    v_writelane_b32 v74, {s(sCNT)}, 1
    v_lshl_add_u32 {v(vPKV)}, v74, 11, {s(sT2)}
    v_min_u32 v74, 2, v72
    s_sub_u32 {s(sT0)}, {s(sTB16)}, 1
    v_add_u32 v74, {s(sT0)}, v74
    v_max_i32 v74, 0, v74
    v_min_i32 v74, 0x7f, v74
    v_add_u32 v76, 1, v74
    v_and_b32 v76, 14, v76
    v_cmp_eq_u32 vcc, 0, v76
    v_lshrrev_b32 v76, 3, v74
    v_lshl_add_u32 v76, v76, 3, v73
    v_lshlrev_b32 v76, 7, v76
    v_add_u32 v76, {GH2}, v76
    v_lshrrev_b32 v75, 4, v74
    v_and_b32 v74, 15, v74
    v_lshlrev_b32 v75, 13, v75
    v_lshl_add_u32 v75, v74, 7, v75
    v_lshl_add_u32 v75, v73, 3, v75
    v_add_u32 v75, {GH}, v75
    v_cndmask_b32 {v(vPH)}, v75, v76, vcc
    s_and_b32 {s(sT0)}, {s(sHP)}, 1
    s_mul_i32 {s(sT1)}, {s(sHP)}, 7
    s_add_u32 {s(sT2)}, {s(sT1)}, {s(sT0)}
    s_lshl_b32 {s(sT2)}, {s(sT2)}, 9
    s_add_u32 {s(sH3p)}, {s(sT2)}, {FH3}
    s_mul_i32 {s(sT0)}, {s(sT0)}, {4096-8}
    s_add_u32 {s(sH3s)}, {s(sH3p)}, 3072
    s_sub_u32 {s(sH3s)}, {s(sH3s)}, {s(sT0)}
    s_mov_b32 {s(sLAY)}, 0
    s_mov_b32 {s(sFH)}, {FH_}
    s_mul_i32 {s(sPR)}, {s(sNT)}, 7168
    s_add_u32 {s(sPR)}, {s(sPR)}, {FH3}
    s_mov_b32 {s(sPR+1)}, 112
    s_mov_b32 {s(sPURE)}, 0
    s_mov_b32 {s(sPUREH)}, 0
    s_getreg_b32 {s(sT2)}, hwreg(HW_REG_XCC_ID, 0, 4)
    s_and_b32 {s(sT2)}, {s(sT2)}, 7
    s_lshl_b32 {s(sT2)}, {s(sT2)}, 3
    s_lshl_b64 {s(sXP,2)}, 32, {s(sT2)}
    s_and_b32 {s(sT1)}, {s(sTB16)}, -8
    s_add_u32 {s(sT1)}, {s(sT1)}, {s(sNT)}
    s_lshl_b32 {s(sT1)}, {s(sT1)}, 7
    s_add_u32 {s(sT1)}, {s(sT1)}, {GH2}
    s_add_u32 {s(sT0)}, {s(sTB16)}, 1
    s_and_b32 {s(sT0)}, {s(sT0)}, 14
    s_cselect_b32 {s(sEDG)}, 1, 0
    s_cselect_b32 {s(sFHo)}, {s(sFHo)}, {s(sT1)}
    s_mul_i32 {s(s3L)}, {s(sW)}, 7168
    s_mul_i32 {s(s3G)}, {s(sW)}, {32*3584}
    s_mul_i32 {s(sT2)}, {s(sHP)}, 224
    s_add_u32 {s(s3G)}, {s(s3G)}, {s(sT2)}""")
    for q in range(7):
        k(f"v_add_u32 v72, {64*q}, v0\nv_mul_u32_u24 v72, 4682, v72\nv_lshrrev_b32 v72, 16, v72\n"
          f"v_mul_u32_u24 v72, 3360, v72\nv_add_u32 {v(vD3+q)}, v72, {v(vL16)}")
    if P("expb", 0):
        k(f"s_lshl_b32 {s(sT0)}, {s(sNT)}, 7\nv_subrev_u32 {v(vDB)}, {s(sT0)}, {v(vDB)}\ns_lshl_b32 {s(sT0)}, {s(sHP)}, 6\nv_subrev_u32 {v(vDQ)}, {s(sT0)}, {v(vDQ)}\n"
          f"s_and_b32 {s(sT0)}, {s(sHP)}, 12\ns_mul_i32 {s(sT0)}, {s(sT0)}, 224\ns_sub_u32 {s(s3G)}, {s(s3G)}, {s(sT0)}")
    if P("expa", 0):
        for w in (WQ, WO, W1, W2, W3, W4): k(f"s_mov_b32 {s(w+2)}, 0")
    k(f"s_xor_b32 {s(sV+1)}, {s(sV+1)}, 0x5bd1e995")
    bg(P("p1", 0) - P("p0", 0))
    late.extend(bgq); bgq.clear()
    k.wait(vm="x")
    for i in range(8):
        k(f"v_lshlrev_b32 {v(RES+2*i)}, 16, {v(64+i)}\nv_and_b32 {v(RES+2*i+1)}, 0xffff0000, {v(64+i)}")
    mark("xload")
    k(f"s_mov_b32 {s(XO)}, {s(sOUT)}\ns_mov_b32 {s(XO+1)}, {s(sOUT+1)}")

def selector(d):
    k(f"v_lshrrev_b32 {v(vT0)}, 2, v0\nv_xor_b32 {v(vT0)}, {v(vT0)}, v0\nv_and_b32 {v(vT0)}, 4, {v(vT0)}\n"
      f"v_cmp_eq_u32 vcc, 0, {v(vT0)}\nv_mov_b32 {v(vT0)}, 0x3f803f80\nv_cndmask_b32 {v(d)}, 0, {v(vT0)}, vcc")
    for i in range(1, 4): k(f"v_mov_b32 {v(d+i)}, {v(d)}")

def l0_only(fn):
    L = k.lab("l0")
    k(f"s_cmp_lg_u32 {s(sLAY)}, 0\ns_cbranch_scc1 {L}")
    fn()
    k(f"{L}:")

def x_pub():
    pub_tile(RES, FX, STX, 56)
    qKV(3, 8); bg(P("xa", 2))
    flag(sFBo, sPURE)
    mark("x.pub")
    def count():
        L = k.lab("cnt")
        k(f"""s_barrier
        s_cmp_lg_u32 {s(sW)}, 0
        s_cbranch_scc1 {L}
        s_lshr_b64 {s(sT0,2)}, {s(sXP,2)}, 5
        v_mov_b32 v56, {s(sT0)}
        v_mov_b32 v57, {s(sT1)}
        s_lshl_b32 {s(sT2)}, {s(sC)}, 5
        s_mov_b64 exec, 1
        buffer_atomic_add_x2 v[56:57], off, {s(DBG,4)}, {s(sT2)} sc1
        s_mov_b64 exec, -1
        {L}:""")
        n = len(k.vm)
        for f in late: f()
        del k.vm[n:]
    assert P("xa", 2) % 2 == 0 or not late
    l0_only(count)
    pref(2, vT0)
    if P("tf", 2) & 1:
        for va in (vPKV, vPA): k.vmem(f"buffer_load_dword {v(vJ)}, {v(va)}, {s(FLG,4)}, 0 offen sc1")
    bg(99)
    pref(3, vT0)

def qkv_att():
    AK, AV, AQ = 56, 72, 88
    FR = 104; CS = 128; STA = 160; RM = 168; PKD = 208
    vWq2, vCS, vV0, vV1, vKW = 240, 241, 242, 243, 244
    SEL = 196; QF = 200
    N0 = P("qn", 12)
    k(f"v_add_u32 {v(vWq2)}, 0x10000, {v(vWq)}")
    selector(SEL)
    k(f"""v_lshrrev_b32 {v(vT1)}, 5, v0
    v_lshlrev_b32 {v(vCS)}, 4, {v(vT1)}
    v_add_u32 {v(vCS)}, {CSQ}, {v(vCS)}
    v_lshlrev_b32 {v(vT1)}, 6, {v(vT1)}
    v_xor_b32 {v(vV0)}, {v(vT1)}, {v(vL16)}
    v_xor_b32 {v(vV1)}, 0x80, {v(vV0)}
    s_lshl_b32 {s(sT0)}, {s(sW)}, 12
    s_add_u32 {s(sT0)}, {s(sT0)}, {KVB + 8*4096}
    v_add_u32 {v(vKW)}, {s(sT0)}, {v(vL16)}
    v_add_u32 {v(vKW+1)}, {s(sT0)}, {v(vV0)}
    v_add_u32 {v(vKW+2)}, {s(sT0)}, {v(vV1)}
    s_mov_b32 {s(sT1)}, {STX}""")
    S0, S1, CM, MD, O0, O1 = 56, 72, 104, 40, 160, 176
    KF, VF, PP, LS, MX = 208, 216, 224, 232, 120
    vK, vVa, vVb, vDB2 = 192, 193, 194, 195
    k(f"""v_bfe_u32 {v(vT0)}, v0, 4, 1
    v_bfe_u32 {v(vK)}, v0, 1, 1
    v_lshl_add_u32 {v(vT0)}, {v(vT0)}, 1, {v(vK)}
    v_lshrrev_b32 {v(vK)}, 5, v0
    v_xor_b32 {v(vK)}, {v(vK)}, {v(vT0)}
    v_lshlrev_b32 {v(vT0)}, 9, {v(vT0)}
    v_lshl_add_u32 {v(vT0)}, {v(vK)}, 6, {v(vT0)}
    v_bfe_u32 {v(vK)}, v0, 2, 2
    v_lshl_add_u32 {v(vT0)}, {v(vK)}, 4, {v(vT0)}
    v_and_b32 {v(vK)}, 1, v0
    v_lshl_add_u32 {v(vT0)}, {v(vK)}, 3, {v(vT0)}
    v_lshl_add_u32 {v(vT0)}, {s(sW)}, 12, {v(vT0)}
    v_add_u32 {v(vVa)}, {KVB + 8*4096 + 2048}, {v(vT0)}
    v_xor_b32 {v(vVb)}, 0x80, {v(vVa)}
    v_lshlrev_b32 {v(vT0)}, v0, -2
    v_lshrrev_b32 {v(vK)}, 3, v0
    v_and_b32 {v(vK)}, 4, {v(vK)}
    v_lshrrev_b32 {v(vT0)}, {v(vK)}, {v(vT0)}
    v_subrev_u32 {v(vK)}, {s(s4K)}, {v(vKW)}
    v_add_u32 {v(vDB2)}, {8*32768}, {v(vDB)}""")
    for i in range(16): k(f"v_bfe_i32 {v(MD+i)}, {v(vT0)}, {8*(i//4)+i%4}, 1\nv_and_b32 {v(MD+i)}, {NEG}, {v(MD+i)}")
    def rdq(dst, sp, b, tag):
        G = sp // 4
        for j in range(2):
            w_ = 2*((sp//2) % 2) + j
            off = G*8192 + w_*2048 + (b-1)*1024 if b else G*4096 + w_*1024
            k.ds(f"ds_read_b64_tr_b16 {v(dst+2*j,2)}, {v(vWq if b else vWq2)} offset:{off + (sp % 2)*512}", tag)
    def ldx(sp):
        k.vmem(f"buffer_load_dwordx4 {a(4*sp,4)}, {v(vA32)}, {s(ACT,4)}, {SK[sp//8]} offen offset:{(sp%8)*512} sc1", ("x", sp))
    mark("q.pre")
    poll(vPB32)
    mark("q.poll")
    for i in range(2): k.vmem(f"buffer_load_dwordx4 {v(STA+4*i,4)}, {v(vA32)}, {s(ACT,4)}, {s(sT1)} offen offset:{512*i} sc1", "st")
    for sp in range(N0): ldx(sp)
    def colsum(bs):
        nb = len(bs)
        if bs[0]: k(f"v_lshl_add_u32 {v(vT1)}, {s(sW)}, 11, {v(vWq)}")
        else: k(f"v_add_u32 {v(vT1)}, {s(sW1K)}, {v(vWq2)}")
        for i in range(8*nb + 5):
            if i < 8*nb:
                G, b = i // nb, bs[i % nb]
                for j in range(2):
                    off = G*8192 + (b-1)*1024 if b else G*4096
                    k.ds(f"ds_read_b64_tr_b16 {v(FR+4*(i%6)+2*j,2)}, {v(vT1)} offset:{off + j*512}", ("c", i))
            m = i - 5
            if m >= 0:
                k.wait(lg=("c", m)); c = v(AK + 4*(m % 2), 4)
                k(f"{M16} {c}, {v(SEL,4)}, {v(FR+4*(m%6),4)}, {c if m >= 2 else 0}")
        k(f"s_mul_i32 {s(sT0)}, {s(sW)}, 384\ns_add_u32 {s(sT0)}, {s(sT0)}, {PQ}\nv_and_b32 {v(vT1)}, 31, v0\n"
          f"v_lshl_add_u32 {v(vT1)}, {v(vT1)}, 2, {s(sT0)}")
        if nb == 1: k(f"v_add_f32 {v(AK)}, {v(AK)}, {v(AK+4)}")
        for n, b in enumerate(bs): k.ds(f"ds_write_b32 {v(vT1)}, {v(AK+4*n)} offset:{b*128}")
        k.wait(lg="all")
    l0_only(lambda: colsum((1, 2)))
    k("s_barrier")
    l0_only(lambda: sum_partials(16, 384, CSQ, CS, 8, PQ))
    for sp in range(2):
        for b in (1, 2): rdq(FR + 8*sp + 4*(b-1), sp, b, ("w", sp))
    for b in (1, 2):
        for q in range(4): k.ds(f"ds_read_b128 {v(CS+16*(b-1)+4*q,4)}, {v(vCS)} offset:{b*128+q*32}", "cs")
    with Rec() as fq:
        for i in (0, 1): k(f"v_add_f32 {v(STA+i)}, {v(STA+i)}, {v(STA+2+i)}\nv_add_f32 {v(STA+4+i)}, {v(STA+4+i)}, {v(STA+6+i)}")
        for i in (0, 1): k(f"v_add_f32 {v(STA+i)}, {v(STA+i)}, {v(STA+4+i)}")
        finish_stats(STA, RM, False)
        k(f"v_mul_f32 {v(RM+1)}, {v(RM)}, {v(RM+1)}")
        for i in range(32): k(f"v_mul_f32 {v(CS+i)}, {v(RM+1)}, {v(CS+i)}")
    qQ(0, 8)
    for sp in range(32):
        k.wait(vm=("x", sp), lg=("w", sp))
        for b, acc in ((1, AK), (2, AV)):
            k(f"{M32} {v(acc,16)}, {v(FR+8*(sp%3)+4*(b-1),4)}, {a(4*sp,4)}, {v(acc,16) if sp else 0}")
            if b == 1:
                if sp + N0 < 32: ldx(sp + N0)
                else: bg()
            if sp + 2 < 32: rdq(FR + 8*((sp+2) % 3) + 4*(b-1), sp + 2, b, ("w", sp + 2))
            if sp >= 2: emit(fq, 1)
        if sp == 31 - N0: pref(4, vT0)
    assert not fq and not bgq
    pref(5, vT0)
    k(f"s_cmp_eq_u32 {s(sLAY)}, 0\ns_cselect_b32 {s(WQ+2)}, {s(WQ+2)}, 0")
    mark("q.kv")
    for t in range(4):
        for i in range(8*t, 8*t + 8, 2): pk("fma", v(AK+i,2), v(AK+i,2), v(RM,2), v(CS+i,2), bsel=0)
        cvt(PKD + 4*t, AK + 8*t, 4)
        k.vmem(f"buffer_store_dwordx4 {v(PKD+4*t,4)}, {v((vL16, vL16, vV0, vV1)[t])}, {s(ACT,4)}, {s(sKVo)} offen offset:{t*1024} sc1", "pub")
        k.ds(f"ds_write_b128 {v((vKW, vKW, vKW+1, vKW+2)[t])}, {v(PKD+4*t,4)} offset:{t*1024}", "kw")
    k.wait(vm="dma")
    l0_only(lambda: colsum((0,)))
    k("s_barrier")
    l0_only(lambda: sum_partials(8, 384, CSQ, CS, 0, PQ))
    def slot(n): return FR + 4*(n % 6)
    for sp in range(4): rdq(slot(sp), sp, 0, ("q", sp))
    with Rec() as f2:
        for q in range(4): k.ds(f"ds_read_b128 {v(CS+4*q,4)}, {v(vCS)} offset:{q*32}")
        k(f"""v_mul_f32 {v(RM)}, {f2u(0.25*LOG2E)}, {v(RM)}
        v_mul_f32 {v(RM+1)}, {f2u(0.25*LOG2E)}, {v(RM+1)}""")
        for i in range(16): k(f"v_mul_f32 {v(CS+i)}, {v(RM+1)}, {v(CS+i)}")
    f2.insert(6, lambda: k.wait(lg="fill"))
    for sp in range(32):
        k.wait(lg=("q", sp))
        k(f"{M32} {v(AQ,16)}, {v(slot(sp),4)}, {a(4*sp,4)}, {v(AQ,16) if sp else 0}")
        if sp + 4 < 32: rdq(slot(sp + 4), sp + 4, 0, ("q", sp + 4))
        emit(f2, 1 + (sp < 4))
        if sp == P("kvs", 16): flag(sFKVo, None, "all")
    assert not f2
    for i in range(0, 16, 2): pk("fma", v(AQ+i,2), v(AQ+i,2), v(RM,2), v(CS+i,2), bsel=0)
    cvt(QF, AQ, 8)
    mark("q.q")
    stop(2)
    def qk(h, c): k(f"{M32} {v((S0,S1)[h],16)}, {v(KF+4*h,4)}, {v(QF+4*h,4)}, {v(c,16)}")
    def pv(h, u, first=False):
        O = v((O0, O1)[h], 16)
        k(f"{M32} {O}, {v(VF+4*u,4)}, {v(PP+4*u,4)}, {0 if first else O}")
    def rs(h, u, first=False): k(f"{M16} {v(LS+4*h,4)}, {v(SEL,4)}, {v(PP+4*u,4)}, {0 if first else v(LS+4*h,4)}")
    def rdV(u):
        for j, va in enumerate((vVa, vVb)): k.ds(f"ds_read_b64_tr_b16 {v(VF+4*u+2*j,2)}, {v(va)} offset:{u*256}", ("v", u))
    def rdK(h): k.ds(f"ds_read_b128 {v(KF+4*h,4)}, {v(vK)} offset:{h*1024}", ("k", h))
    def dec(*rs_):
        for x in rs_: k(f"v_subrev_u32 {v(x)}, {s(s4K)}, {v(x)}")
    def blk(h, u, at):
        S = (S0, S1)[h] + 8*u
        for i in range(12):
            if i in at: at[i]()
            if i < 8: k(f"v_exp_f32 {v(S+i)}, {v(S+i)}")
            else: cvt(PP + 4*u + i - 8, S + 2*(i-8), 1)
    W1E = [(g, 64*KB + g*4096) for g in range(8, 11)]
    if P("w1e", 0) == 0: qB(W1, W1E)
    qk(0, MD); rdV(0); rdV(1); bg(); qk(1, MD); dec(vVa, vVb)
    for i in range(16): k(f"v_mov_b32 {v(CM+i)}, 0")
    if P("kvf", 0) == 0 and P("kvs", 16) > 31: flag(sFKVo, None, "all")
    pref(6, vT0)
    blk(0, 0, {2: bg, 6: bg})
    if P("kvf", 0) == 1: flag(sFKVo, None, "all")
    blk(0, 1, {2: lambda: (k.wait(lg="all"), pv(0, 0, True)), 5: lambda: rs(0, 0, True), 7: bg})
    blk(1, 0, {2: lambda: pv(0, 1), 5: lambda: rs(0, 1), 7: bg})
    bg(99)
    k(f"v_lshlrev_b32 {v(vT0)}, 5, v0")
    k.vmem(f"buffer_load_dwordx2 {v(MX,2)}, {v(vT0)}, {s(DBG,4)}, 0 offen sc1")
    mark("a.diag")
    poll(vPKV)
    mark("a.poll")
    k(f"s_lshl_b32 {s(sT0)}, {s(sW)}, 12\ns_add_u32 m0, {s(sT0)}, {KVB + 16384}")
    for t in range(2):
        for i in range(4):
            def f(t=t, i=i):
                if t and not i: k(f"s_sub_u32 m0, m0, 16384")
                k.vmem(f"buffer_load_dwordx4 {v(vL16)}, {s(ACT,4)}, {s(sMT if t else sKVf)} offen offset:{i*1024} sc1 lds", ("kv", t))
            bgq.append(f)
    if P("w1e", 0) == 1: qB(W1, W1E)
    bg(99)
    k(f"v_readlane_b32 {s(sT0)}, {v(MX)}, {s(sC)}\nv_readlane_b32 {s(sT1)}, {v(MX+1)}, {s(sC)}")
    k(f"""s_cmp_eq_u64 {s(sT0,2)}, {s(sXP,2)}
    s_cselect_b32 {s(sPURE)}, 1, 0
    s_and_b32 {s(sPUREH)}, {s(sPURE)}, {s(sEDG)}
    s_add_u32 {s(sT0)}, s2, {s(sW)}
    s_cmp_lt_u32 {s(sT0)}, {s(sLAY)}
    s_cbranch_scc1 epoch
    epoch_b:
    s_mov_b32 m0, {s(sW1K)}
    s_mov_b32 {s(sOFF)}, 0""")
    cold.extend(f"""epoch:
    s_mov_b32 {s(sCNT)}, 0x8000
    epoch_l:
    buffer_load_dwordx2 {v(MX,2)}, {v(vT0)}, {s(DBG,4)}, 0 offen sc1
    s_sub_u32 {s(sCNT)}, {s(sCNT)}, 1
    s_cbranch_scc1 bail
    s_waitcnt vmcnt(0)
    v_sad_u8 {v(MX)}, {v(MX)}, 0, 0
    v_sad_u8 {v(MX)}, {v(MX+1)}, 0, {v(MX)}
    v_cmp_ne_u32 vcc, 32, {v(MX)}
    s_and_b32 {s(sT0)}, vcc_lo, 0xff
    s_cbranch_scc1 epoch_l
    s_add_u32 {s(sT0)}, {s(sV)}, 7
    v_mov_b32 {v(MX)}, {s(sT0)}
    s_mov_b32 {s(sT0)}, {E_OFF}
    s_mov_b64 exec, 1
    buffer_store_dword {v(MX)}, off, {s(FLG,4)}, {s(sT0)} sc1
    s_mov_b64 exec, -1
    s_branch epoch_b""".split("\n"))
    if P("t1", 1): touch(vT0, True)
    if P("tf", 2) & 2: k.vmem(f"buffer_load_dword {v(vJ)}, {v(vPH)}, {s(FLG,4)}, 0 offen sc1")
    pref(7, vT0)
    KS = P("ks", 1)
    A3 = P("a3", 0)
    if A3: k(f"s_lshr_b32 {s(sM1)}, s2, 3\ns_lshl2_add_u32 {s(sM1)}, {s(sM1)}, {s(sW)}\ns_mul_i32 {s(sM1)}, {s(sM1)}, {A3*3584}")
    def kv_ready():
        k.wait(vm=("kv", 1 - KS))
        barrier()
        mark("a.kv")
        rdK(0); rdK(1); dec(vK)
        if P("cp", 3) & 2: l0_only(lambda: code_touch(vT0, False))
        if A3: k(f"v_mul_u32_u24 {v(vT1)}, {8*A3}, v0")
        k.wait(lg="all"); qk(0, CM)
    blk(1, 1, {0: lambda: pv(1, 0, True), 3: lambda: rs(1, 0, True), 8: kv_ready})
    k("s_nop 1")
    def dma(n):
        k.vmem(f"buffer_load_dwordx4 {v(vDB2 if n == 1 else vDB)}, {s(W1 if n == 2 else WO,4)}, {s(sOFF)} offen{NT(1)} lds", "dma")
        if n == 1 and A3:
            k.vmem(f"buffer_load_dword {v(vJ)}, {v(vT1)}, {s(W3,4)}, {s(sM1)} offen")
            k(f"s_add_u32 {s(sM1)}, {s(sM1)}, {A3*448}")
        if n < 2: k(f"s_add_u32 m0, m0, {s(s32K)}")
        else: k(f"s_sub_u32 m0, m0, {65536 - 4096}\ns_add_u32 {s(sOFF)}, {s(sOFF)}, {s(s32K)}")
    def setcm():
        k(f"s_cmp_eq_u32 {s(sOFF)}, {6*32768}\ns_cbranch_scc1 att_cm\natt_cmb:")
    def far(lab, n):
        if not KS: return
        k(f"s_cmp_eq_u32 {s(sOFF)}, {2*32768}\ns_cbranch_scc1 {lab}\n{lab}b:")
        cold.extend([f"{lab}:", f"s_waitcnt vmcnt({n})", "s_barrier", f"s_branch {lab}b"])
    cold.extend(["att_cm:"] + [f"v_xor_b32 {v(CM+i)}, {NEG}, {v(MD+i)}" for i in range(16)] + ["s_branch att_cmb"])
    k(f"s_cmp_eq_u32 {s(sNTL)}, 0\ns_cbranch_scc1 att_e\natt_l:")
    blk(0, 0, {0: lambda: (qk(1, CM), rdV(0), rdK(0)), 3: lambda: pv(1, 1), 6: lambda: rs(1, 1), 8: lambda: dma(0)})
    blk(0, 1, {0: lambda: (rdV(1), rdK(1)), 1: lambda: (k.wait(lg=("k", 0)), pv(0, 0)), 4: lambda: rs(0, 0), 6: setcm, 8: lambda: dma(1)})
    blk(1, 0, {0: lambda: qk(0, CM), 3: lambda: (k.wait(lg="all"), pv(0, 1)), 6: lambda: rs(0, 1), 8: lambda: far("att_f", 8)})
    blk(1, 1, {0: lambda: dec(vK, vVa), 1: lambda: pv(1, 0), 4: lambda: rs(1, 0), 6: lambda: dec(vVb), 8: lambda: dma(2)})
    k(f"s_cmp_lt_u32 {s(sOFF)}, {s(sNTL)}\ns_cbranch_scc1 att_l\natt_e:")
    pv(1, 1); rs(1, 1)
    k(f"s_cmp_lt_u32 {s(sOFF)}, {8*32768}\ns_cbranch_scc1 att_r\natt_rb:")
    with Rec() as q:
        k("att_r:")
        far("att_g", 6)
        for n in range(3): dma(n)
        k(f"s_cmp_lt_u32 {s(sOFF)}, {8*32768}\ns_cbranch_scc1 att_r\ns_branch att_rb")
    cold.extend(q)
    mark("a.loop")
    k(f"""v_lshrrev_b32 {v(vT0)}, 5, v0
    v_lshl_add_u32 {v(vT0)}, {v(vT0)}, 8, {v(vA32)}
    s_lshl_b32 {s(sT0)}, {s(sHP)}, 10
    s_add_u32 {s(sT0)}, {s(sT0)}, {FO}""")
    pk("mul", v(MX,2), v(O0,2), 0)
    for i in range(2, 8, 2): pk("fma", v(MX,2), v(O0+i,2), 0, v(MX,2))
    for i in range(0, 8, 2): pk("fma", v(MX,2), v(O1+8+i,2), 0, v(MX,2))
    lo, hi = (127 - 48) << 23, (127 + 80) << 23
    k(f"""v_add_f32 {v(MX)}, {v(MX)}, {v(LS)}
    v_add_f32 {v(MX+1)}, {v(MX+1)}, {v(LS+4)}
    v_subrev_u32 {v(MX)}, {lo}, {v(MX)}
    v_subrev_u32 {v(MX+1)}, {lo}, {v(MX+1)}
    v_max_u32 {v(MX)}, {v(MX)}, {v(MX+1)}
    v_cmp_lt_u32 vcc, {hi - lo if not P("fb", 0) else 0}, {v(MX)}
    s_cbranch_vccnz att_x
    att_xb:
    v_rcp_f32 {v(MX)}, {v(LS)}
    v_rcp_f32 {v(MX+1)}, {v(LS+4)}""")
    C0, C1_ = 88, 104
    with Rec() as q:
        k("att_x:")
        def rk():
            rdK(0); rdK(1); dec(vK); k.wait(lg="all")
        def loop(name, body, last):
            k(f"v_mov_b32 {v(vK)}, {v(vKW)}\ns_mov_b32 {s(sIT)}, 0\n{name}:")
            rk(); qk(0, C0); qk(1, C1_)
            body()
            k(f"s_cmp_lg_u32 {s(sIT)}, {7*32768}\ns_cbranch_scc1 {name}_n")
            last()
            k(f"{name}_n:\ns_add_u32 {s(sIT)}, {s(sIT)}, {s(s32K)}\ns_cmp_le_u32 {s(sIT)}, {s(sNTL)}\ns_cbranch_scc1 {name}")
        def setc(mask):
            for i in range(16):
                if mask == "o": k(f"v_xor_b32 {v(C0+i)}, {NEG}, {v(MD+i)}")
                m = {"o": v(C0+i), "d": v(MD+i), "": 0}[mask]
                k(f"v_add_f32 {v(C1_+i)}, {m}, {v(MX+3)}\nv_add_f32 {v(C0+i)}, {m}, {v(MX+2)}")
        k(f"v_mov_b32 {v(MX)}, {NEG}\nv_mov_b32 {v(MX+1)}, {NEG}\nv_mov_b32 {v(MX+2)}, 0\nv_mov_b32 {v(MX+3)}, 0")
        setc("d")
        def p1():
            for h, S in enumerate((S0, S1)):
                for i in range(0, 16, 2): k(f"v_max3_f32 {v(MX+h)}, {v(MX+h)}, {v(S+i)}, {v(S+i+1)}")
            setc("")
        loop("att_x1", p1, lambda: setc("o"))
        k(f"""v_permlane32_swap_b32 {v(MX)}, {v(MX+1)}
        v_max_f32 {v(MX)}, {v(MX)}, {v(MX+1)}
        v_sub_f32 {v(MX+2)}, 0, {v(MX)}
        v_mov_b32 {v(MX+3)}, {v(MX+2)}
        v_permlane32_swap_b32 {v(MX+2)}, {v(MX+3)}
        s_lshr_b32 {s(sIT)}, {s(sNTL)}, 3
        s_add_u32 {s(sIT)}, {s(sIT)}, {s(s4K)}
        v_add_u32 {v(vVa)}, {s(sIT)}, {v(vVa)}
        v_add_u32 {v(vVb)}, {s(sIT)}, {v(vVb)}""")
        setc("d")
        for i in range(32): k(f"v_mov_b32 {v(O0+i)}, 0")
        for i in range(8): k(f"v_mov_b32 {v(LS+i)}, 0")
        def p2():
            rdV(0); rdV(1); dec(vVa, vVb); k.wait(lg="all")
            for h in range(2):
                for u in range(2): blk(h, u, {}); pv(h, u); rs(h, u)
            setc("")
        loop("att_x2", p2, lambda: setc("o"))
        k("s_branch att_xb")
    cold.extend(q)
    for i in range(0, 8, 2):
        pk("mul", v(O0+i,2), v(O0+i,2), v(MX,2), bsel=0); pk("mul", v(O1+8+i,2), v(O1+8+i,2), v(MX,2), bsel=1)
    for q in range(2):
        cvt(PP + 4*q, O0 + 4*q, 2); cvt(PP + 4*q + 2, O1 + 8 + 4*q, 2)
    dual([f"buffer_store_dwordx4 {v(PP+4*q,4)}, {v(vT0)}, {s(ACT,4)}, {s(sT0)} offen offset:{q*256}" for q in range(2)], sPURE)

BX = 56
def gemmB(acc, va, cinit, nxt=None, bases=None, fq=None, nbg=1, pre=None, mid=None, b0=8):
    N0 = P("bn", 12)
    def ld(st):
        k.vmem(f"buffer_load_dwordx4 {v(BX+4*st,4)}, {v(va[st//4])}, {s(ACT,4)}, {SK[st//4]} offen offset:{(st%4)*1024} sc1", ("x", st))
    for st in range(N0):
        ld(st)
        if pre: emit(pre, -(-len(pre) // (N0 - st)))
    if pre is not None: k.wait(lg="all")
    for st in range(16):
        if st == 8 and mid: mid()
        k.wait(vm=("x", st))
        for fb in range(4):
            c = v(acc + 4*fb, 4); n = 4*st + fb
            k(f"{M16} {c}, {a(4*n,4)}, {v(BX+4*st,4)}, {c if (st or cinit) else 0}")
            if fb == 0:
                if st + N0 < 16: ld(st + N0)
                elif st >= b0: bg(nbg)
            if nxt and n: rd_fragB(A0 + 4*(n-1), nxt[(n-1)//4], (n-1) % 4, bases, "fill")
            if fq and fb: emit(fq, 1)
    if fq: emit(fq)
    if nxt: rd_fragB(A0 + 4*63, nxt[15], 3, bases, "fill")

def wo_w1_w2():
    VB, TMP, vAD = 120, 128, 144
    ACC, CS1, ONES, STA, RM, KK, G0 = 160, 176, 192, 196, 200, 204, 208
    k(f"v_add_u32 {v(vAD)}, {FO}, {v(vA16)}")
    bases = rb_bases(VB, [0, 1])
    k.wait(vm="dma")
    k("s_barrier")
    qB(W1, [(g, 64*KB + g*4096) for g in range(11, 16)]); q3([3])
    with Rec() as fq: fill([g*4096 for g in range(16)], A0, bases)
    n = P("of0", 48); mix(fq[:n], 12, P("oa", 3)); del fq[:n]
    flag(sFAo, sPURE)
    mark("a.pub")
    stop(3)
    if P("t2", 0): touch(vT0, True)
    if P("tf", 2) & 4: k.vmem(f"buffer_load_dword {v(vJ)}, {v(vPH)}, {s(FLG,4)}, 0 offen sc1")
    n = P("of1", 32); mix(fq[:n], 6, P("ow", 5)); del fq[:n]
    assert len(bgq) <= 4
    poll(vPA)
    mark("wo.poll")
    def mid():
        assert not bgq
        k("s_barrier"); qB(W2, [(g, g*4096) for g in range(16)])
    gemmB(RES, [vAD]*4, True, [64*KB + g*4096 for g in range(16)], bases, pre=fq, mid=mid, b0=4)
    mark("wo.gemm")
    pub_tile(RES, FX2, STX2, TMP)
    bg(P("wp", 4))
    k(f"v_add_u32 {v(vAD)}, {FX2}, {v(vA16)}\ns_mov_b32 {s(sT3)}, {STX2}\nv_and_b32 {v(vT0)}, 0x30, v0\nv_add_u32 {v(vT0)}, {CS1L}, {v(vT0)}")
    k.wait(lg="all")
    def cs(lo, hi):
        if not lo:
            for i in range(4): k(f"v_mov_b32 {v(ONES+i)}, 0x3f803f80")
        for m in range(lo, hi):
            c = v(CS1 + 4*(m % 4), 4)
            k(f"{M16} {c}, {a(4*m,4)}, {v(ONES,4)}, {c if m >= 4 else 0}")
        if lo:
            for i in range(4): k(f"ds_write_b128 {v(vT0)}, {v(CS1+4*i,4)} offset:{64*i}")
    l0_only(lambda: cs(0, 24))
    flag(sFBo, sPURE)
    mark("wo.pub")
    stop(4)
    k("s_barrier")
    assert len(bgq) <= P("x2w", 4)
    q3([1, 2]); bg(P("x2w", 4))
    l0_only(lambda: cs(24, 64))
    for i in range(4): k.ds(f"ds_read_b128 {v(CS1+4*i,4)}, {v(vT0)} offset:{64*i}", "fill")
    poll(vPB16)
    mark("w1.poll")
    k.vmem(f"buffer_load_dwordx4 {v(STA,4)}, {v(vA16)}, {s(ACT,4)}, {s(sT3)} offen sc1", "st")
    with Rec() as fq:
        for i in (0, 1): k(f"v_add_f32 {v(STA+i)}, {v(STA+i)}, {v(STA+2+i)}")
        finish_stats(STA, RM, True)
        k(f"v_mul_f32 {v(STA)}, {v(RM)}, {v(RM)}\nv_fmaak_f32 {v(STA)}, {v(STA)}, {v(RM+2)}, {f2u(1e-5)}\nv_rsq_f32 {v(STA)}, {v(STA)}\n"
          f"v_mul_f32 {v(RM+2)}, {v(RM)}, {v(RM+1)}\nv_mul_f32 {v(STA)}, {v(RM)}, {v(STA)}")
        gelu_scale(STA, KK)
    gemmB(ACC, [vAD]*4, False, [g*4096 for g in range(16)], bases, fq, mid=lambda: k("s_barrier"), b0=P("b1", 4))
    mark("w1.gemm")
    k.wait(lg="all")
    with Rec() as fq:
        gelu(ACC, 16, G0, CS1, RM, KK)
        cvt(TMP, ACC, 8)
    mix(fq, 24, 2)
    dual([f"buffer_store_dwordx4 {v(TMP+4*i,4)}, {v(vP16)}, {s(ACT,4)}, {s(sFH)} offen offset:{1024*i}" for i in range(2)], sPUREH)
    mark("w1.epi")
    k("s_barrier")
    qB(W4, [(g, W4S[g]) for g in range(11)]); q3([0])
    bg(P("ha", 4))
    for i in range(0, 16, 2): pk("fma", v(XB+i,2), v(RES+i,2), v(RM,2), v(RM+2,2), bsel=0, csel=0)
    T = G0
    k(f"s_lshl_b32 {s(sT0)}, {s(sTB16)}, 4\nv_and_b32 {v(T+3)}, 15, v0\nv_add_u32 {v(T+3)}, {s(sT0)}, {v(T+3)}\n"
      f"v_and_b32 {v(T+4)}, 0x300, {v(vL16)}\nv_add_u32 {v(T+4)}, {s(sFH)}, {v(T+4)}\nv_mov_b32 {v(T+2)}, 0x80000000")
    for i, d in enumerate((-1, 1, -2, 2)):
        k(f"""v_add_u32 {v(vT0)}, {d}, {v(T+3)}
        v_cmp_gt_u32 vcc, 0x800, {v(vT0)}
        v_lshrrev_b32 {v(T)}, 4, {v(vT0)}
        v_and_b32 {v(vT0)}, 15, {v(vT0)}
        v_mad_u32_u24 {v(T)}, {v(T)}, {s(s2R)}, {v(T+4)}
        v_lshl_add_u32 {v(T)}, {v(vT0)}, 4, {v(T)}
        v_cndmask_b32 {v(vAD+i)}, {v(T+2)}, {v(T)}, vcc""")
    flag(sFHo, sPUREH, sEDG)
    mark("w1.pub")
    stop(5)
    bg(P("hw", 6))
    poll(vPH)
    mark("w2.poll")
    gemmB(XB, [vAD+i for i in range(4)], True, b0=P("b2", 8))
    mark("w2.gemm")
    assert len(bgq) <= 7
    pub_tile(XB, FX1, STX1, TMP)
    bg(99)
    for i in range(0, 16, 2): pk("add", v(RES+i,2), v(RES+i,2), v(XB+i,2))

def wback():
    L = k.lab("wb")
    k(f"s_lshr_b32 {s(sM1)}, s2, 3\ns_add_u32 {s(sM1)}, {s(sM1)}, {s(sW)}\ns_cmp_ge_u32 {s(sM1)}, {s(sLAY)}\ns_cbranch_scc1 {L}\nbuffer_wbl2 sc1\n{L}:")

def w3_w4():
    ACC, FR, BX0, BX1 = 56, 112, 168, A0 + 176
    STA, RM, vW, vAD, KK, VB = 156, 240, 140, 146, 148, 232
    CS = 112
    k(f"""v_lshrrev_b32 {v(vT0)}, 2, v0
    v_mul_u32_u24 {v(vT0)}, 224, {v(vT0)}
    v_and_b32 {v(vT1)}, 3, v0
    v_lshl_add_u32 {v(vT0)}, {v(vT1)}, 3, {v(vT0)}
    s_and_b32 {s(sT0)}, {s(sHP)}, 1
    s_lshl_b32 {s(sT1)}, {s(sT0)}, 5
    s_mul_i32 {s(sT0)}, {s(sT0)}, 192
    s_sub_u32 {s(sT0)}, {W3A + 192}, {s(sT0)}
    s_add_u32 {s(sT1)}, {s(sT1)}, {W3A}
    v_add_u32 {v(vW)}, {s(sT1)}, {v(vT0)}
    v_add_u32 {v(vW+1)}, {s(sT0)}, {v(vT0)}
    v_add_u32 {v(vW+2)}, {W3H - W3A}, {v(vW)}
    v_add_u32 {v(vW+3)}, {W3H - W3A}, {v(vW+1)}
    v_add_u32 {v(vAD)}, {FX1}, {v(vA3)}
    v_add_u32 {v(vAD+1)}, {FX1 + R2}, {v(vA3)}
    s_mov_b32 {s(sT3)}, {STX1 - FX1}""")
    bases = rb_bases(VB, [0, 1, 2])
    flag(sFBo, sPURE)
    mark("w2.pub")
    stop(6)
    k("s_barrier")
    fill(W4S, A0, bases)
    def rd3(dst, base, st, b, tag):
        for j in range(2):
            off = (st % 8)*7168 + j*3584 + (b*32 if b < 6 else 0)
            k.ds(f"ds_read_b64_tr_b16 {v(dst+2*j,2)}, {v(base + 2*(st//8) + (b == 6))} offset:{off}", tag)
    mark("w3.fill")
    poll(vPB32)
    mark("w3.poll")
    for t in range(2): k.vmem(f"buffer_load_dwordx4 {v(STA+4*t,4)}, {v(vAD+t)}, {s(ACT,4)}, {s(sT3)} offen sc1", "st")
    for st in range(16):
        for t, B in enumerate((BX0, BX1)):
            bgq.append(lambda st=st, t=t, B=B: k.vmem(f"buffer_load_dwordx4 {r(B+4*st,4)}, {v(vAD+t)}, {s(ACT,4)}, {SK[st//4]} offen offset:{(st%4)*1024} sc1", ("x", st)))
    bg(P("n3", 10))
    k.wait(lg="all")
    def colsum():
        for i in range(4): k(f"v_add_u32 {v(XB+i)}, {s(s3L)}, {v(vW+i)}\nv_mov_b32 {v(XB+4+i)}, 0x3f803f80")
        for i in range(28 + 5):
            if i < 28: rd3(FR + 4*(i % 6), XB, 4*(i//7), i % 7, ("c", i))
            m = i - 5
            if m >= 0:
                k.wait(lg=("c", m)); c = v(ACC + 4*(m % 7), 4)
                k(f"{M16} {c}, {v(XB+4,4)}, {v(FR+4*(m%6),4)}, {c if m >= 7 else 0}")
        k(f"s_mul_i32 {s(sT0)}, {s(sW)}, 448\ns_add_u32 {s(sT0)}, {s(sT0)}, {PART}\nv_and_b32 {v(vT1)}, 15, v0\n"
          f"v_lshl_add_u32 {v(vT1)}, {v(vT1)}, 2, {s(sT0)}")
        for b in range(7): k.ds(f"ds_write_b32 {v(vT1)}, {v(ACC+4*b)} offset:{b*64}")
        k.wait(lg="all")
    l0_only(colsum)
    k("s_barrier")
    l0_only(lambda: sum_partials(28, 448, CS3, FR))
    qB(W4, [(11 + g, W4S[g]) for g in range(11)])
    if P("t3", 1): bgq.append(lambda: touch(vT1, False))
    if P("pq", 0) == 2: bgq.append(lambda: prefq(2, vT1))
    if P("cp", 3) & 4: bgq.append(lambda: code_touch(41, False))
    if P("wb", 0) & 1: bgq.append(wback)
    at = len(bgq) - P("t4p", 0)
    if P("t4", 1) & 2: bgq.insert(at, lambda: l2pre(W4, 704*KB, 8*KB, 7, 64, vT1))
    if P("t4", 1) & 1: bgq.insert(at, lambda: l2pre(W4, 704*KB + 384, 9*KB, 10, 9, vT1))
    D = 5
    for n in range(D): rd3(FR + 4*n, vW, 0, n, ("w", n))
    with Rec() as fq:
        for t in range(2):
            for i in (0, 1): k(f"v_add_f32 {v(STA+4*t+i)}, {v(STA+4*t+i)}, {v(STA+4*t+2+i)}")
            finish_stats(STA + 4*t, RM + 4*t, True)
            gelu_scale(RM + 4*t, KK + 4*t)
        k(f"v_and_b32 {v(vT0)}, 0x30, v0\nv_add_u32 {v(vT0)}, {CS3}, {v(vT0)}")
    for n in range(112):
        st, b = divmod(n, 7)
        k.wait(vm=("x", st), lg=("w", min(n + 1, 111)) if n % 2 == 0 else None)
        for t, B in enumerate((BX0, BX1)):
            c = v(ACC + 28*t + 4*b, 4)
            k(f"{M16} {c}, {v(FR+4*(n%7),4)}, {r(B+4*st,4)}, {c if st else 0}")
            if t == 0 and n + D < 112: rd3(FR + 4*((n+D) % 7), vW, (n+D)//7, (n+D) % 7, ("w", n + D))
            if t == 1:
                if n % 2 and bgq: bg()
                elif n % 2: emit(fq, 2)
                else: emit(fq, 1)
    assert not fq and not bgq
    mark("w3.gemm")
    k(f"v_add_u32 {v(vAD)}, {R2}, {v(vA3)}")
    for b in range(7): k.ds(f"ds_read_b128 {v(CS+4*b,4)}, {v(vT0)} offset:{b*64}")
    k.wait(vm="dma")
    barrier()
    mark("w3.bar")
    prefq(1, vT1)
    qB(W4, [(22 + g, W4C[g]) for g in range(28)])
    G0, PKD = 168, 196
    for t in range(2):
        A = ACC + 28*t
        with Rec() as fq:
            gelu(A, 28, G0, CS, RM + 4*t, KK + 4*t)
            cvt(PKD + 16*t, A, 14)
        mix(fq, 12, P("e0", 12) if t == 0 else P("e1", 8))
        va = vA3 if t == 0 else vAD
        dual([f"buffer_store_dwordx4 {v(PKD+16*t+4*p,4)}, {v(va)}, {s(ACT,4)}, {s(sH3p)} offen offset:{p*1024}" for p in range(3)] +
             [f"buffer_store_dwordx2 {v(PKD+16*t+12,2)}, {v(va)}, {s(ACT,4)}, {s(sH3s)} offen"], sPURE)
    mark("w3.epi")
    NR = 16
    RING, AR, BV, vH = 136, 200, 40, 240
    with Rec() as fq:
        fill(W4S[:5], A0 + 176, bases); fill(W4S[5:], BV, bases)
    nf = P("h3f", 56)
    f0 = fq[:nf]; mix(f0, 12, P("h3a", 4))
    for i in range(4): k(f"v_add_u32 {v(vH+i)}, {FH3 + i*16384}, {v(vA16)}")
    flag(sFAo, sPURE)
    mark("w3.pub")
    stop(7)
    mix(fq[nf:], 8, len(bgq))
    barrier()
    qB(W4, [(50 + g, W4S[g]) for g in range(6)]); bg(99)
    src = {}
    for g in range(16): src[g] = ("r", A0 + 16*g)
    for g in range(6): src[16+g] = ("r", BV + 16*g)
    for g in range(28): src[22+g] = ("l", W4C[g])
    for g in range(6): src[50+g] = ("l", W4S[g])
    regs = [g for g in range(56) if src[g][0] == "r"]
    lds = sorted((g for g in range(56) if src[g][0] == "l"), key=lambda g: src[g][1] >= 64*KB)
    order = []
    for i in range(56):
        order.append(regs.pop(0) if regs and (i < 2 or i % 5 in (1, 3) or not lds) else lds.pop(0))
    nlow = max(i for i, g in enumerate(order) if src[g][0] == "l" and src[g][1] < 64*KB) + 1
    assert sorted(order) == list(range(56)) and nlow <= 38
    TQ = P("tq", 12)
    if TQ:
        k(f"s_lshr_b32 {s(sT2)}, s2, 3\ns_lshl2_add_u32 {s(sT2)}, {s(sT2)}, {s(sW)}\ns_mul_i32 {s(sT2)}, {s(sT2)}, 12288\n"
          f"v_lshl_add_u32 {v(vH+4)}, v0, {int(math.log2(192//TQ))}, {s(sT2)}")
    tqo = sorted((n*12288//TQ for n in range(TQ)), key=lambda o: o % 3072 < 1024)[:P("tqn", 99)]
    tq = {P("tq0", 1) + n*P("tqs", 4): o for n, o in enumerate(tqo)}
    mark("w4.fill")
    poll(vPA)
    mark("w4.poll")
    def ldx(i):
        g = order[i]
        k.vmem(f"buffer_load_dwordx4 {v(RING+4*(i%NR),4)}, {v(vH+g//16)}, {s(ACT,4)}, {SK[(g//4)%4]} offen offset:{(g%4)*1024} sc1", ("x", i))
    N0 = P("n4", 12)
    for i in range(N0): ldx(i)
    k("s_barrier")
    lf = [(i, fb) for i in range(56) if src[order[i]][0] == "l" for fb in range(4)]
    pos = {x: n for n, x in enumerate(lf)}
    nxt = 0; used = 0
    for i in range(56):
        kind, loc = src[order[i]]
        if i == 40: k("s_barrier"); qKV(0, 3)
        for fb in range(4):
            if kind == "l":
                n = pos[(i, fb)]; A = v(AR + 4*(n % 8), 4)
                assert n + 1 - fb % 2 < nxt
                k.wait(vm=("x", i), lg=("w", n + 1) if fb % 2 == 0 else None)
            else:
                k.wait(vm=("x", i)); A = r(loc + 4*fb, 4)
            c = v(RES + 4*fb, 4)
            k(f"{M16} {c}, {A}, {v(RING+4*(i%NR),4)}, {c}")
            if fb == 0:
                if i + N0 < 56: ldx(i + N0)
                elif (55 - i) % 2 or N0 < 12: bg()
            if fb == 2 and i == P("wbi", 44) and P("wb", 0) & 2: wback()
            if fb == 2 and i == P("sq", -1): l2pre(WQ, 384, 12*KB, 10, 12, vT1)
            if fb == 2 and i in tq: k.vmem(f"buffer_load_dword {v(vJ)}, {v(vH+4)}, {s(WQ,4)}, {SK[tq[i]//4096]} offen offset:{tq[i]%4096}")
            if nxt < len(lf) and nxt - used < 7:
                rd_fragB(AR + 4*(nxt % 8), src[order[lf[nxt][0]]][1], lf[nxt][1], bases, ("w", nxt)); nxt += 1
            if kind == "l": used += 1
    assert not bgq
    k.vm.clear(); k.vm.append("dma")
    mark("w4.gemm")

def final():
    k(f"""v_and_b32 v57, 15, v0
    v_lshrrev_b32 v58, 4, v0
    s_lshl_b32 {s(sT0)}, {s(sTB16)}, 14
    s_lshl_b32 {s(sT1)}, {s(sNT)}, 7
    s_add_u32 {s(sT0)}, {s(sT0)}, {s(sT1)}
    v_lshlrev_b32 v56, 10, v57
    v_lshl_add_u32 v56, v58, 3, v56""")
    cvt(64, RES, 8)
    for f in range(4): k(f"buffer_store_dwordx2 {v(64+2*f,2)}, v56, {s(XO,4)}, {s(sT0)} offen offset:{32*f}" + ["", " sc1", " nt", " sc0 sc1"][P("os", 0)])

def main():
    prologue()
    k("layer:")
    k.vm.append("dma")
    n0 = nmark[0]
    x_pub()
    mark("x.dma")
    stop(1)
    qkv_att()
    wo_w1_w2()
    w3_w4()
    k(f"s_cmp_lg_u32 {s(sLAY)}, 0\ns_cbranch_scc1 done")
    k(f"s_mov_b32 {s(sLAY)}, 1\ns_bitset1_b32 {s(sFHo)}, 18\ns_bitset1_b32 {s(sFKVo)}, 18\nv_or_b32 {v(vPH)}, 0x40000, {v(vPH)}\nv_or_b32 {v(vPKV)}, 0x40000, {v(vPKV)}\n"
      f"s_add_u32 {s(sFH)}, {s(sFH)}, 0x4000\ns_add_u32 {s(sKVo)}, {s(sKVo)}, {s(s32K)}\ns_add_u32 {s(sKVf)}, {s(sKVf)}, {s(s32K)}\ns_add_u32 {s(sMT)}, {s(sMT)}, {s(s32K)}")
    if PROF: k(f"v_mov_b32 {v(vPR2)}, {v(vPR)}")
    k("s_branch layer\ndone:")
    final()
    if P("fw", 1): k("s_waitcnt vmcnt(0)")
    if OPT.get("cyc"):
        k("s_memtime s[94:95]\ns_memrealtime s[92:93]\ns_waitcnt lgkmcnt(0)\ns_sub_u32 s94, s94, s96\ns_lshr_b32 s96, s94, 3")
        k("cy_l:\ns_sleep 4\ns_memrealtime s[94:95]\ns_waitcnt lgkmcnt(0)\ns_sub_u32 s94, s94, s92\ns_cmp_lt_u32 s94, s96\ns_cbranch_scc1 cy_l")
    if TM:
        mark("end")
        k("tm_l:\ns_sleep 4\ns_memrealtime s[94:95]\ns_waitcnt lgkmcnt(0)\ns_sub_u32 s94, s94, s92\ns_cmp_lt_u32 s94, 15000\ns_cbranch_scc1 tm_l")
    if PROF:
        mark("end")
        k(f"s_memrealtime {s(sPT,2)}\ns_waitcnt lgkmcnt(0)\nv_writelane_b32 {v(vPR)}, {s(sPT)}, 63")
        k(f"""s_add_u32 {s(DBG)}, {s(FLG)}, {PROF_OFF}
        s_addc_u32 {s(DBG+1)}, {s(FLG+1)}, 0
        s_mov_b32 {s(DBG+2)}, 0x100000
        s_lshl_b32 {s(sT0)}, s2, 2
        s_add_u32 {s(sT0)}, {s(sT0)}, {s(sW)}
        s_lshl_b32 {s(sT0)}, {s(sT0)}, 9
        v_lshlrev_b32 v56, 2, v0
        buffer_store_dword {v(vPR2)}, v56, {s(DBG,4)}, {s(sT0)} offen
        buffer_store_dword {v(vPR)}, v56, {s(DBG,4)}, {s(sT0)} offen offset:256""")
    k("bail:\ns_endpgm")
    for t in cold: k(t)
    k("text_end:")
    body, nn = fix_hazards(k.L)
    if P("al", 1):
        body, c = align(body, {"layer": 2, "att_l": 16, "att_e": 2, "done": 1, "bail": 0}, {"att_l": 14})
        print("align cost", c, "wide", sum("_e64" in t for t in body))
    ref = open(f"cdna_kernels/{NAME}.s.ref").read().split("\n")
    hd = [l for l in ref[:ref.index(f"{NAME}_kernel:") + 1]]
    hd = ["; @launch grid=(256,1,1) block=(256,1,1) lds=163840" if l.startswith("; @launch") else l for l in hd]
    tl = ref[ref.index('.section .rodata,"a"'):]
    tl = [l.replace("next_free_vgpr 256", "next_free_vgpr 512") for l in tl]
    out = hd + [("" if t.endswith(":") else "    ") + t for t in body] + tl
    open(sys.argv[1], "w").write("\n".join(out))
    if PROF: open(sys.argv[1] + ".marks", "w").write(" ".join(marks))
    print("instructions", len(body), "nops", nn)

main()
```

```python
import sys, math, struct
from asmlib import *

NAME = "interleave_layers__sliding_block__mixer_s_mlp__prompt"
OPT = dict(x.split("=") if "=" in x else (x, "1") for x in sys.argv[2:])
PROF = int(OPT.get("prof", 0)); STOP = int(OPT.get("stop", 99))
KB = 1024
FX, FO, FX2, FH_, FX1, FKV_, FH3 = 0, 17*KB, 0, 73*KB, 0, 105*KB, 17*KB
STX, STX2, STX1 = 16*KB, 16*KB, 16*KB
R2 = 169*KB
ACT_OFF = 0x90000; PROF_OFF = 0x8000000; E_OFF = 0x80000
GB, GH, GA = 0, 2048, 4096
GH2, GKV = 0x10000, 0x20000
KVB = 110*KB; PQ = 108*KB; PART = 156*KB; CSQ = 158*KB; CS3 = 158*KB + 512; CS1L = 159*KB
W3A, W3H = 44*KB, 100*KB
W3Q = [W3A, W3A + 28*KB, W3H, W3H + 28*KB]
W4S = [g*4096 for g in range(11)]
W4C = [W3A + g*4096 for g in range(28)]
NEG = 0xf1800000
def P(name, d): return int(OPT.get(name, d))
def NT(b): return " nt" if P("nt", 0) & b else ""
M32 = "v_mfma_f32_32x32x16_bf16"; M16 = "v_mfma_f32_16x16x32_bf16"
def f2u(x): return "0x%08x" % struct.unpack("<I", struct.pack("<f", x))[0]
LOG2E = 1.4426950408889634
C1 = -2*math.sqrt(2/math.pi)*LOG2E; C2 = C1*0.044715

ACT, FLG, WQ, WO, W1, W2, W3, W4, XO, DBG = 4, 8, 12, 16, 20, 24, 28, 32, 36, 40
(sW, sC, sHP, sNT, sTB32, sTB16, sLAY, sPURE, sPUREH, s4K, s8K, s12K, s32K, s2R, sOFF, sCNT,
 sT0, sT1, sOUT, _o1, sV, _v1, sXP, _x1, sW1K, sFBo, sFHo, sFAo, sFKVo, sKVo, sKVf, sNTL,
 sT2, sT3, sH3p, sH3s, sIT, sMT, sG0, sQA, sQB, sM1, sM2, s3L, s3G, sEDG) = range(44, 90)
sPT = 90; sFH = 98; sPR = 99
SK = [0, s(s4K), s(s8K), s(s12K)]
(vL, vA16, vP16, vA32, vA3, vST, vDB, vDQ) = range(0, 8)
vRB = [8, 9, 10, 11]; vWq = 12; vL16 = 13
vPB32, vPB16, vPA, vPH, vPKV = 14, 15, 16, 17, 18
vT0, vT1, vT2 = 19, 20, 21
vPR2, vPR = 22, 23
RES = 24; XB = 40; vD3 = 248; vJ = 255
A0 = 256

k = Asm()
nmark = [0]; marks = []
TM = OPT.get("tm")
def mark(name):
    if OPT.get("cyc") and OPT["cyc"].split(":")[0] == name:
        L = k.lab("cy")
        if name not in ("first", "start", "xload", "init", "end"): k(f"s_cmp_lg_u32 {s(sLAY)}, {OPT['cyc'].split(':')[1]}\ns_cbranch_scc1 {L}")
        k(f"s_memtime s[96:97]\n{L}:\ns_waitcnt lgkmcnt(0)"); k.lg.clear()
    if TM and TM.split(":")[0] == name:
        L = k.lab("tm")
        if name not in ("first", "start", "xload", "init", "end"): k(f"s_cmp_lg_u32 {s(sLAY)}, {TM.split(':')[1]}\ns_cbranch_scc1 {L}")
        k(f"s_memrealtime s[92:93]\n{L}:\ns_waitcnt lgkmcnt(0)"); k.lg.clear()
    if not PROF or name == "first": return
    k(f"s_memtime {s(sPT,2)}\ns_waitcnt lgkmcnt(0)\nv_writelane_b32 {v(vPR)}, {s(sPT)}, {nmark[0]}")
    k.lg.clear(); marks.append(name); nmark[0] += 1

def srd(d, nbytes):
    k(f"s_mov_b32 {s(d+2)}, {nbytes}\ns_mov_b32 {s(d+3)}, 0x20000")

def barrier():
    k.wait(lg="all"); k("s_barrier")

def poll(va):
    L = k.lab("poll")
    k(f"s_mov_b32 {s(sCNT)}, 0x8000\n{L}:")
    k.vmem(f"buffer_load_dwordx2 {v(vT1,2)}, {v(va)}, {s(FLG,4)}, 0 offen sc1")
    k(f"s_sub_u32 {s(sCNT)}, {s(sCNT)}, 1\ns_cbranch_scc1 bail")
    k.wait(vm="all")
    k(f"v_cmp_ne_u64 vcc, {s(sV,2)}, {v(vT1,2)}\ns_cbranch_vccnz {L}")

cold = []
def dual(stores, spure):
    La, Lb = k.lab("sc"), k.lab("scb")
    k(f"s_cmp_eq_u32 {s(spure)}, 0\ns_cbranch_scc1 {La}")
    for t in stores: k.vmem(t, "pub")
    k(f"{Lb}:")
    cold.extend([f"{La}:"] + [t + " sc1" for t in stores] + [f"s_branch {Lb}"])

def flag(saddr, spure, line=None):
    k(f"s_add_u32 {s(sV)}, {s(sV)}, 1\nv_mov_b32 {v(vT2)}, {s(sV+1)}\nv_mov_b32 {v(vT1)}, {s(sV)}")
    t = f"buffer_store_dwordx2 {v(vT1,2)}, off, {s(FLG,4)}, {s(saddr)}"
    if line and P("fl", 1):
        k(f"v_lshlrev_b32 {v(vT0)}, 3, v0\n" + ("s_mov_b64 exec, 0xffff" if line == "all" else f"s_cmp_eq_u32 {s(line)}, 0\ns_cselect_b64 exec, 0xffff, 1"))
        t = t.replace("off", v(vT0)) + " offen"
    else: k("s_mov_b64 exec, 1")
    k.wait(vm="pub")
    if spure is None: k.vmem(t + " sc1")
    else: dual([t], spure)
    k("s_mov_b64 exec, -1")

def touch(tmp, h):
    k(f"v_mad_u32_u24 {v(tmp)}, v0, {s(sPR+1)}, {v(vA16)}")
    if not h:
        k.vmem(f"buffer_load_dword {v(vJ)}, {v(tmp)}, {s(ACT,4)}, {s(sPR)} offen sc1", "pre")
        return
    k(f"""v_lshl_add_u32 {v(tmp)}, {s(sNT)}, 11, {v(tmp)}
    s_sub_u32 {s(sT0)}, {s(sFH)}, {FO + 2048}
    s_mov_b32 {s(sT1)}, {FO}
    s_mov_b32 exec_hi, 0
    s_mov_b32 exec_lo, 0xffff0000
    v_add_u32 {v(tmp)}, {s(sT0)}, {v(tmp)}
    s_mov_b32 exec_lo, -1""")
    k.vmem(f"buffer_load_dword {v(vJ)}, {v(tmp)}, {s(ACT,4)}, {s(sT1)} offen sc1", "pre")
    k("s_mov_b64 exec, -1")

def code_touch(tmp, first):
    L = k.lab("pc")
    k(f"s_getpc_b64 {s(sT0,2)}\n{L}:")
    if first:
        n = P("cn", 10)
        k(f"""s_lshr_b32 {s(sT2)}, s2, 3
        s_mul_i32 {s(sT2)}, {s(sT2)}, {n*128}
        v_lshl_add_u32 {v(tmp)}, v0, 7, {s(sT2)}
        v_min_u32 {v(tmp)}, text_end-{L}-4, {v(tmp)}
        v_mov_b32 {v(tmp+2)}, {s(sT1)}
        v_add_co_u32 {v(tmp+1)}, vcc, {s(sT0)}, {v(tmp)}
        v_addc_co_u32 {v(tmp+2)}, vcc, 0, {v(tmp+2)}, vcc
        v_cmp_gt_u32 vcc, {n}, v0
        s_or_b32 vcc_lo, vcc_lo, 1
        s_mov_b64 exec, vcc
        global_load_dword {v(vJ)}, {v(tmp+1,2)}, off
        s_mov_b64 exec, -1""")
        return
    k(f"""s_lshr_b32 {s(sT2)}, s2, 3
    s_lshl2_add_u32 {s(sT2)}, {s(sT2)}, {s(sW)}
    s_lshl_b32 {s(sT2)}, {s(sT2)}, 8
    v_lshl_add_u32 {v(tmp)}, v0, 7, {s(sT2)}
    v_min_u32 {v(tmp)}, text_end-{L}-4, {v(tmp)}
    v_mov_b32 {v(tmp+2)}, {s(sT1)}
    v_add_co_u32 {v(tmp+1)}, vcc, {s(sT0)}, {v(tmp)}
    v_addc_co_u32 {v(tmp+2)}, vcc, 0, {v(tmp+2)}, vcc
    s_mov_b64 exec, 3
    global_load_dword {v(vJ)}, {v(tmp+1,2)}, off
    s_mov_b64 exec, -1""")

def pref(loc, tmp):
    sm = [w for w, o in ((WO, "pfo"), (W1, "pf1"), (W2, "pf1")) if P(o, P("pf", 2)) == loc]
    lg = [w for w, o in ((W3, "pf3"), (W4, "pf4")) if P(o, P("pf", 2)) == loc]
    if not sm and not lg: return
    k(f"s_lshl2_add_u32 {s(sM1)}, s2, {s(sW)}\nv_lshlrev_b32 {v(tmp)}, 6, v0\ns_mul_i32 {s(sM2)}, {s(sM1)}, 1792\ns_lshl_b32 {s(sM1)}, {s(sM1)}, 9\ns_mov_b32 exec_hi, 0")
    if loc > 1: k(f"s_cmp_eq_u32 {s(sLAY)}, 0")
    for ws_, m, so in ((sm, 0xff, sM1), (lg, 0xfffffff, sM2)):
        if ws_: k(f"s_cselect_b32 exec_lo, {m}, 1" if loc > 1 else f"s_mov_b32 exec_lo, {m}")
        for w in ws_: k.vmem(f"buffer_load_dword {v(vJ)}, {v(tmp)}, {s(w,4)}, {s(so)} offen")
    k("s_mov_b64 exec, -1")

def prefq(loc, tmp):
    if P("pq", 0) != loc: return
    st = P("pqs", 7)
    k(f"s_lshl2_add_u32 {s(sM1)}, s2, {s(sW)}\nv_lshlrev_b32 {v(tmp)}, {st}, v0\ns_mul_i32 {s(sM1)}, {s(sM1)}, 1536\ns_mov_b32 exec_hi, 0\n"
      f"s_cmp_eq_u32 {s(sLAY)}, 0\ns_cselect_b32 exec_lo, {(1 << (1536 >> st)) - 1}, 1")
    k.vmem(f"buffer_load_dword {v(vJ)}, {v(tmp)}, {s(WQ,4)}, {s(sM1)} offen")
    k("s_mov_b64 exec, -1")

def l2pre(w, base, per, sh, lanes, tmp):
    k(f"s_lshr_b32 {s(sM1)}, s2, 3\ns_lshl2_add_u32 {s(sM1)}, {s(sM1)}, {s(sW)}\ns_mul_i32 {s(sM1)}, {s(sM1)}, {per}\ns_add_u32 {s(sM1)}, {s(sM1)}, {base}")
    k(f"v_lshlrev_b32 {v(tmp)}, {sh}, v0\nv_add_u32 {v(tmp)}, {s(sM1)}, {v(tmp)}")
    if lanes < 64: k(f"s_mov_b64 exec, {(1 << lanes) - 1}")
    k.vmem(f"buffer_load_dword {v(vJ)}, {v(tmp)}, {s(w,4)}, 0 offen")
    if lanes < 64: k("s_mov_b64 exec, -1")

bgq = []
def bg(n=1):
    for _ in range(min(n, len(bgq))): bgq.pop(0)()

def qB(w, groups):
    for n, (g, lds) in enumerate(groups):
        def f(n=n, g=g, lds=lds):
            p = groups[n-1] if n else None
            if p and lds - p[1] == 4096: k(f"s_add_u32 m0, m0, {s(s4K)}")
            else: k(f"s_add_u32 m0, {s(sW1K)}, {lds}")
            if p and g - p[0] == 1: k(f"s_add_u32 {s(sOFF)}, {s(sOFF)}, {s(s32K)}")
            else: k(f"s_mov_b32 {s(sOFF)}, {g*32768}")
            k.vmem(f"buffer_load_dwordx4 {v(vDB)}, {s(w,4)}, {s(sOFF)} offen{NT(1)} lds", "dma")
        bgq.append(f)

def qQ(lo, hi):
    for n in range(lo, hi):
        def f0(n=n):
            k(f"s_xor_b32 m0, {s(sQB)}, {n*4096}\ns_xor_b32 {s(sOFF)}, {s(sG0)}, {n}\ns_mul_i32 {s(sOFF)}, {s(sOFF)}, {64*3072}")
            k.vmem(f"buffer_load_dwordx4 {v(vDQ)}, {s(WQ,4)}, {s(sOFF)} offen{NT(4)} lds", "dma")
        bgq.append(f0)

def qKV(lo, hi):
    for n in range(lo, hi):
        def f1(n=n):
            k(f"s_xor_b32 m0, {s(sQA)}, {n*8192}\ns_xor_b32 {s(sOFF)}, {s(sG0)}, {n}\ns_mul_i32 {s(sOFF)}, {s(sOFF)}, {64*3072}\ns_bitset1_b32 {s(sOFF)}, 10")
            k.vmem(f"buffer_load_dwordx4 {v(vDQ)}, {s(WQ,4)}, {s(sOFF)} offen{NT(4)} lds", "dma")
        def f2():
            k.vmem(f"buffer_load_dwordx4 {v(vDQ)}, {s(WQ,4)}, {s(sOFF)} offen offset:1024{NT(4)} lds", "dma")
        bgq.extend([f1, f2])

def q3(quads):
    for q in quads:
        for p in range(7):
            def f(q=q, p=p):
                if p == 0: k(f"s_add_u32 m0, {s(s3L)}, {W3Q[q]}\ns_add_u32 {s(sOFF)}, {s(s3G)}, {q*4*32*3584}")
                if p == 4: k(f"s_add_u32 m0, m0, {s(s4K)}\ns_add_u32 {s(sOFF)}, {s(sOFF)}, {s(s4K)}")
                k.vmem(f"buffer_load_dwordx4 {v(vD3+p)}, {s(W3,4)}, {s(sOFF)} offen offset:{(p%4)*1024}{NT(2)} lds", "dma")
            bgq.append(f)

class Rec:
    def __enter__(self):
        self.n = len(k.L); self.q = []; self.g = len(k.lg); return self.q
    def __exit__(self, *a):
        self.q.extend(k.L[self.n:]); del k.L[self.n:]; del k.lg[self.g:]
def emit(q, n=999):
    for _ in range(min(n, len(q))):
        t = q.pop(0)
        if callable(t): t()
        elif t.startswith("ds_"): k.ds(t, "fill")
        else: k(t)

def rb_bases(vb, his):
    m = {0: vRB}
    for n, hi in enumerate(h for h in his if h):
        m[hi] = [vb + 4*n + f for f in range(4)]
        for f in range(4): k(f"v_add_u32 {v(m[hi][f])}, {hi*65536}, {v(vRB[f])}")
    return m

def rd_fragB(dst, lds, fb, bases, tag):
    hi = lds // 65536
    for j in range(2):
        k.ds(f"ds_read_b64_tr_b16 {r(dst+2*j,2)}, {v(bases[hi][fb])} offset:{lds%65536 + j*2048}", tag)

def fill(slots, dst, bases):
    for i in range(len(slots)*4): rd_fragB(dst + 4*i, slots[i//4], i % 4, bases, "fill")

def mix(q, per, nbg):
    while q or nbg > 0:
        if nbg > 0: bg(); nbg -= 1
        emit(q, per)

def pk(op, d, a_, b_, c_=None, bsel=None, csel=None):
    n = 3 if c_ is not None else 2
    t = f"v_pk_{op}_f32 {d}, {a_}, {b_}" + (f", {c_}" if c_ is not None else "")
    if bsel is not None:
        lo = [0]*n; hi = [1]*n; lo[1] = bsel; hi[1] = bsel
        if csel is not None: lo[2] = csel; hi[2] = csel
        t += f" op_sel:[{','.join(map(str,lo))}] op_sel_hi:[{','.join(map(str,hi))}]"
    k(t)

def cvt(d, src, n):
    for i in range(n): k(f"v_cvt_pk_bf16_f32 {v(d+i)}, {v(src+2*i)}, {v(src+2*i+1)}")

def finish_stats(sq, out, two_level):
    a_, b_ = v(sq), v(sq+1)
    k(f"v_permlane32_swap_b32 {a_}, {b_}\nv_add_f32 {a_}, {a_}, {b_}\nv_mov_b32 {b_}, {a_}")
    if two_level: k(f"v_permlane16_swap_b32 {a_}, {b_}\nv_add_f32 {a_}, {a_}, {b_}\nv_mov_b32 {b_}, {a_}")
    k(f"v_permlane32_swap_b32 {a_}, {b_}\nv_mul_f32 {v(out+1)}, {f2u(-1/512)}, {a_}\nv_mul_f32 {b_}, {f2u(1/512)}, {b_}\n"
      f"v_fma_f32 {b_}, -{v(out+1)}, {v(out+1)}, {b_}\nv_max_f32 {v(out+2)}, 0, {b_}\nv_add_f32 {b_}, {f2u(1e-5)}, {v(out+2)}\n"
      f"v_rsq_f32 {v(out)}, {b_}")

def gelu_scale(rr, kk):
    k(f"v_rcp_f32 {v(kk+2)}, {v(rr)}\nv_mul_f32 {v(kk+1)}, {f2u(C1)}, {v(rr)}\nv_mul_f32 {v(kk)}, {v(rr)}, {v(rr)}\n"
      f"v_mul_f32 {v(kk)}, {f2u(0.044715)}, {v(kk)}\nv_mul_f32 {v(kk)}, {v(kk)}, {v(kk+1)}")

def pub_tile(src, field, stf, tmp):
    k(f"s_mov_b32 {s(sT0)}, {field}\ns_mov_b32 {s(sT1)}, {stf}")
    cvt(tmp, src, 8)
    dual([f"buffer_store_dwordx4 {v(tmp+4*i,4)}, {v(vP16)}, {s(ACT,4)}, {s(sT0)} offen offset:{1024*i}" for i in range(2)], sPURE)
    S, Q = tmp + 8, tmp + 10
    pk("add", v(S,2), v(src,2), v(src+2,2)); pk("mul", v(Q,2), v(src,2), v(src,2))
    for i in range(1, 8):
        if i > 1: pk("add", v(S,2), v(S,2), v(src+2*i,2))
        pk("fma", v(Q,2), v(src+2*i,2), v(src+2*i,2), v(Q,2))
    k(f"v_add_f32 {v(S)}, {v(S)}, {v(S+1)}\nv_add_f32 {v(S+1)}, {v(Q)}, {v(Q+1)}\n"
      f"v_permlane32_swap_b32 {v(S)}, {v(S+1)}\nv_add_f32 {v(S)}, {v(S)}, {v(S+1)}\nv_mov_b32 {v(S+1)}, {v(S)}\n"
      f"v_permlane16_swap_b32 {v(S)}, {v(S+1)}\nv_add_f32 {v(S)}, {v(S)}, {v(S+1)}")
    dual([f"buffer_store_dword {v(S)}, {v(vST)}, {s(ACT,4)}, {s(sT1)} offen"], sPURE)

def gelu(y, n, tmp, cs, rm, kk):
    Pr = range(0, n, 2)
    for i in Pr: pk("fma", v(y+i,2), v(cs+i,2), v(rm,2), v(y+i,2), bsel=1)
    for i in Pr: pk("mul", v(tmp+i,2), v(y+i,2), v(y+i,2))
    for i in Pr: pk("fma", v(tmp+i,2), v(tmp+i,2), v(kk,2), v(kk,2), bsel=0, csel=1)
    for i in Pr: pk("mul", v(tmp+i,2), v(tmp+i,2), v(y+i,2))
    for i in range(n): k(f"v_exp_f32 {v(tmp+i)}, {v(tmp+i)}")
    for i in Pr: pk("fma", v(tmp+i,2), v(tmp+i,2), v(kk+2,2), v(kk+2,2), bsel=0, csel=0)
    for i in range(n): k(f"v_rcp_f32 {v(tmp+i)}, {v(tmp+i)}")
    for i in Pr: pk("mul", v(y+i,2), v(y+i,2), v(tmp+i,2))

def sum_partials(n16, stride, dst, tmp, lo=0, PART=PART):
    k(f"v_min_u32 {v(vT0)}, {n16-1}, {v(vL)}\nv_lshlrev_b32 {v(vT0)}, 4, {v(vT0)}\nv_add_u32 {v(vT0)}, {PART + 16*lo}, {v(vT0)}")
    for i in range(4): k.ds(f"ds_read_b128 {v(tmp+4*i,4)}, {v(vT0)} offset:{i*stride}")
    k.wait(lg="all")
    for i in range(1, 4):
        for h in (0, 2): pk("add", v(tmp+h,2), v(tmp+h,2), v(tmp+4*i+h,2))
    k.ds(f"ds_write_b128 {v(vT0)}, {v(tmp,4)} offset:{dst-PART}")
    k.wait(lg="all")

def stop(n):
    if STOP == n: k("s_branch bail")

late = []
def prologue():
    k("s_cmp_ge_u32 s2, 0x100\ns_cbranch_scc1 bail")
    mark("first")
    for d, off in ((XO, 0), (WQ, 8), (FLG, 80)): k(f"s_load_dwordx2 {s(d,2)}, s[0:1], {off}")
    if P("cp", 3) & 1: code_touch(vT0, True); k.vm += [None]
    vXO = 56
    k(f"""v_lshrrev_b32 v1, 6, v0
    v_and_b32 v0, 63, v0
    v_readfirstlane_b32 {s(sW)}, v1
    s_and_b32 {s(sC)}, s2, 7
    s_lshr_b32 s3, s2, 3
    s_lshr_b32 {s(sNT)}, s2, 5
    s_xor_b32 {s(sNT)}, {s(sNT)}, {P("ntx", 0)}
    s_and_b32 {s(sT1)}, s3, 3
    s_lshl2_add_u32 {s(sT1)}, {s(sT1)}, {s(sW)}
    s_lshl4_add_u32 {s(sTB16)}, {s(sC)}, {s(sT1)}
    v_and_b32 v57, 15, v0
    v_lshrrev_b32 v58, 4, v0
    s_lshl_b32 {s(sT0)}, {s(sTB16)}, 14
    s_lshl_b32 {s(sT1)}, {s(sNT)}, 7
    s_add_u32 {s(sT0)}, {s(sT0)}, {s(sT1)}
    v_lshlrev_b32 {v(vXO)}, 10, v57
    v_lshl_add_u32 {v(vXO)}, v58, 3, {v(vXO)}""")
    srd(XO, 2097152)
    k("s_waitcnt lgkmcnt(0)")
    mark("start")
    if PROF: k(f"s_memrealtime {s(sPT,2)}\ns_waitcnt lgkmcnt(0)\nv_writelane_b32 {v(vPR)}, {s(sPT)}, 62")
    for f in range(4):
        k.vmem(f"buffer_load_dwordx2 {v(64+2*f,2)}, {v(vXO)}, {s(XO,4)}, {s(sT0)} offen offset:{32*f}", "x")
    k(f"s_load_dwordx2 {s(sV,2)}, {s(FLG,2)}, {E_OFF}")
    for d, off in ((DBG, 72), (WO, 16), (W1, 32), (W2, 40), (W3, 48), (W4, 56), (sOUT, 64)):
        k(f"s_load_dwordx2 {s(d,2)}, s[0:1], {off}")
    srd(WQ, 1572864); srd(ACT, 128*R2)
    k(f"""s_add_u32 {s(ACT)}, {s(FLG)}, {ACT_OFF}
    s_addc_u32 {s(ACT+1)}, {s(FLG+1)}, 0
    s_mov_b32 {s(s2R)}, {R2}
    s_mul_i32 {s(sT3)}, {s(sTB16)}, {s(s2R)}""")
    if P("tw", 1): k.vmem(f"buffer_load_dword {v(vJ)}, off, {s(ACT,4)}, {s(sT3)} sc1")
    if P("tk", 3) == 3: l2pre(WQ, 384, 12*KB, 10, 12, 59)
    elif P("tk", 3):
        k(f"""s_lshl2_add_u32 {s(sT1)}, s3, {s(sW)}
        s_mul_i32 {s(sT1)}, {s(sT1)}, 12288
        v_mul_u32_u24 v59, 3072, v58
        v_lshl_add_u32 v59, v57, 7, v59""")
        k.vmem(f"buffer_load_dword {v(vJ)}, v59, {s(WQ,4)}, {s(sT1)} offen offset:1024")
        if P("tk", 3) == 2:
            k("s_mov_b32 exec_lo, 0xff00ff\ns_mov_b32 exec_hi, 0xff00ff")
            k.vmem(f"buffer_load_dword {v(vJ)}, v59, {s(WQ,4)}, {s(sT1)} offen")
            k("s_mov_b64 exec, -1")
    k(f"""s_lshr_b32 {s(sHP)}, s2, 4
    s_and_b32 {s(sG0)}, s3, 3
    s_lshl_b32 {s(sG0)}, {s(sG0)}, 1
    s_and_b32 {s(sT1)}, s2, 1
    s_or_b32 {s(sG0)}, {s(sG0)}, {s(sT1)}
    s_lshl_b32 {s(sW1K)}, {s(sW)}, 10
    s_lshl_b32 {s(sQB)}, {s(sG0)}, 12
    s_add_u32 {s(sQB)}, {s(sQB)}, {s(sW1K)}
    s_lshl_b32 {s(sQA)}, {s(sQB)}, 1
    s_bitset1_b32 {s(sQB)}, 16
    v_lshrrev_b32 v59, 2, v0
    v_mul_u32_u24 v59, 3072, v59
    v_and_b32 v60, 3, v0
    v_lshl_add_u32 v59, v60, 4, v59
    s_mul_i32 {s(sT0)}, {s(sW)}, {16*3072}
    s_lshl_b32 {s(sT1)}, {s(sHP)}, 6
    s_add_u32 {s(sT0)}, {s(sT0)}, {s(sT1)}
    v_add_u32 {v(vDQ)}, {s(sT0)}, v59""")
    qKV(0, 3); bg(P("p0", 0))
    k(f"""s_and_b32 {s(sMT)}, s3, 1
    s_lshl_b32 {s(sT0)}, {s(sC)}, 3
    s_lshl_b32 {s(sT1)}, {s(sMT)}, 2
    s_add_u32 {s(sT0)}, {s(sT0)}, {s(sT1)}
    s_add_u32 {s(sTB32)}, {s(sT0)}, {s(sW)}
    s_sub_u32 {s(sIT)}, {s(sT0)}, 1
    s_andn2_b32 {s(sNTL)}, {s(sTB32)}, 2
    s_min_u32 {s(sNTL)}, {s(sNTL)}, 8
    s_mov_b32 {s(s4K)}, 4096
    s_mov_b32 {s(s8K)}, 8192
    s_mov_b32 {s(s12K)}, 12288
    s_mov_b32 {s(s32K)}, 32768
    v_lshlrev_b32 {v(vL16)}, 4, v0
    s_waitcnt lgkmcnt(0)""")
    for d, n in ((FLG, E_OFF + 0x100), (DBG, 256), (WO, 524288), (W1, 524288), (W2, 524288), (W3, 1835008), (W4, 1835008)): srd(d, n)
    pref(1, 61)
    k(f"""s_mul_i32 {s(sT0)}, {s(sTB16)}, {s(s2R)}
    v_add_u32 {v(vA16)}, {s(sT0)}, {v(vL16)}
    s_lshl_b32 {s(sT1)}, {s(sNT)}, 11
    v_add_u32 {v(vP16)}, {s(sT1)}, {v(vA16)}
    s_lshr_b32 {s(sT1)}, {s(sNT)}, 1
    s_lshl_b32 {s(sT1)}, {s(sT1)}, 8
    s_add_u32 {s(sT0)}, {s(sT0)}, {s(sT1)}
    s_and_b32 {s(sT1)}, {s(sNT)}, 1
    s_lshl_b32 {s(sT1)}, {s(sT1)}, 3
    s_add_u32 {s(sT0)}, {s(sT0)}, {s(sT1)}
    v_lshrrev_b32 v59, 5, v0
    v_lshlrev_b32 v60, 4, v57
    v_lshl_add_u32 v61, v59, 2, v60
    v_add_u32 {v(vST)}, {s(sT0)}, v61
    s_mul_i32 {s(sT0)}, {s(sTB32)}, {2*R2}
    v_add_u32 {v(vA3)}, {s(sT0)}, {v(vL16)}
    v_and_b32 v61, 1, v58
    v_mul_u32_u24 v62, {R2}, v61
    v_lshl_add_u32 v62, v59, 8, v62
    v_add3_u32 {v(vA32)}, v62, v60, {s(sT0)}
    s_lshr_b32 {s(sT1)}, {s(sHP)}, 3
    s_mul_i32 {s(sT1)}, {s(sT1)}, {s(s2R)}
    s_and_b32 {s(sT2)}, {s(sHP)}, 7
    s_lshl_b32 {s(sT2)}, {s(sT2)}, 12
    s_add_u32 {s(sT1)}, {s(sT1)}, {s(sT2)}
    s_add_u32 {s(sT1)}, {s(sT1)}, {FKV_}
    s_add_u32 {s(sKVo)}, {s(sT0)}, {s(sT1)}
    s_mul_i32 {s(sT0)}, {s(sIT)}, {2*R2}
    s_add_u32 {s(sMT)}, {s(sT1)}, {s(sW1K)}
    s_add_u32 {s(sKVf)}, {s(sT0)}, {s(sMT)}""")
    k(f"""v_lshrrev_b32 v62, 2, v57
    v_and_b32 v63, 3, v0
    v_lshl_add_u32 v72, v59, 2, v62
    v_lshl_add_u32 v73, v61, 2, v63
    v_lshlrev_b32 v73, 3, v73
    v_lshl_add_u32 {v(vWq)}, v72, 6, v73
    v_lshl_add_u32 v72, v61, 2, v62
    v_lshlrev_b32 v73, 10, v59
    v_lshl_add_u32 v73, v72, 7, v73
    v_lshl_add_u32 v73, v63, 3, v73
    v_lshrrev_b32 v72, 1, v72
    v_lshl_add_u32 {v(vRB[0])}, v72, 5, v73
    v_xor_b32 {v(vRB[1])}, 32, {v(vRB[0])}
    v_xor_b32 {v(vRB[2])}, 64, {v(vRB[0])}
    v_xor_b32 {v(vRB[3])}, 0x60, {v(vRB[0])}
    v_lshrrev_b32 v72, 3, v0
    v_and_b32 v73, 7, v0
    v_lshlrev_b32 v74, 1, v58
    v_xor_b32 v74, v74, v73
    v_lshlrev_b32 v74, 4, v74
    v_lshl_add_u32 v74, v72, 10, v74
    s_lshl_b32 {s(sT0)}, {s(sW)}, 13
    s_lshl_b32 {s(sT1)}, {s(sNT)}, 7
    s_add_u32 {s(sT0)}, {s(sT0)}, {s(sT1)}
    v_add_u32 {v(vDB)}, {s(sT0)}, v74""")
    k(f"""s_lshl_b32 {s(sT3)}, {s(sC)}, 13
    s_and_b32 {s(sT0)}, {s(sTB16)}, 15
    s_lshl_b32 {s(sT1)}, {s(sT0)}, 7
    s_add_u32 {s(sT1)}, {s(sT1)}, {s(sT3)}
    v_lshl_add_u32 {v(vPB16)}, v73, 3, {s(sT1)}
    s_lshl_b32 {s(sT2)}, {s(sNT)}, 3
    s_add_u32 {s(sFBo)}, {s(sT1)}, {s(sT2)}
    s_add_u32 {s(sFHo)}, {s(sFBo)}, {GH}
    s_and_b32 {s(sT0)}, {s(sT0)}, 10
    s_lshl_b32 {s(sT0)}, {s(sT0)}, 6
    s_add_u32 {s(sT0)}, {s(sT0)}, {s(sT3)}
    s_add_u32 {s(sT0)}, {s(sT0)}, {GA}
    v_lshl_add_u32 {v(vPA)}, v57, 3, {s(sT0)}
    v_lshl_add_u32 {v(vPA)}, v59, 8, {v(vPA)}
    s_and_b32 {s(sT0)}, {s(sTB32)}, 7
    s_lshl_b32 {s(sT1)}, {s(sT0)}, 8
    s_add_u32 {s(sT1)}, {s(sT1)}, {s(sT3)}
    v_and_b32 v74, 1, v72
    v_lshlrev_b32 v74, 7, v74
    v_lshl_add_u32 v74, v73, 3, v74
    v_add_u32 {v(vPB32)}, {s(sT1)}, v74
    s_lshl_b32 {s(sT1)}, {s(sT0)}, 7
    s_lshl_b32 {s(sT2)}, {s(sHP)}, 3
    s_add_u32 {s(sT1)}, {s(sT1)}, {s(sT2)}
    s_add_u32 {s(sT1)}, {s(sT1)}, {s(sT3)}
    s_add_u32 {s(sFAo)}, {s(sT1)}, {GA}
    s_lshl_b32 {s(sT2)}, {s(sHP)}, 7
    s_add_u32 {s(sT2)}, {s(sT2)}, {GKV}
    s_lshl_b32 {s(sT0)}, {s(sTB32)}, 11
    s_add_u32 {s(sFKVo)}, {s(sT0)}, {s(sT2)}
    v_sub_u32 v74, {s(sIT)}, v73
    v_mov_b32 v75, {s(sTB32)}
    v_cmp_gt_i32 vcc, 0, v74
    v_cndmask_b32 v74, v74, v75, vcc
    v_lshl_add_u32 {v(vPKV)}, v74, 11, {s(sT2)}
    v_min_u32 v74, 2, v72
    s_sub_u32 {s(sT0)}, {s(sTB16)}, 1
    v_add_u32 v74, {s(sT0)}, v74
    v_max_i32 v74, 0, v74
    v_min_i32 v74, 0x7f, v74
    v_add_u32 v76, 1, v74
    v_and_b32 v76, 14, v76
    v_cmp_eq_u32 vcc, 0, v76
    v_lshrrev_b32 v76, 3, v74
    v_lshl_add_u32 v76, v76, 3, v73
    v_lshlrev_b32 v76, 7, v76
    v_add_u32 v76, {GH2}, v76
    v_lshrrev_b32 v75, 4, v74
    v_and_b32 v74, 15, v74
    v_lshlrev_b32 v75, 13, v75
    v_lshl_add_u32 v75, v74, 7, v75
    v_lshl_add_u32 v75, v73, 3, v75
    v_add_u32 v75, {GH}, v75
    v_cndmask_b32 {v(vPH)}, v75, v76, vcc
    s_and_b32 {s(sT0)}, {s(sHP)}, 1
    s_mul_i32 {s(sT1)}, {s(sHP)}, 7
    s_add_u32 {s(sT2)}, {s(sT1)}, {s(sT0)}
    s_lshl_b32 {s(sT2)}, {s(sT2)}, 9
    s_add_u32 {s(sH3p)}, {s(sT2)}, {FH3}
    s_mul_i32 {s(sT0)}, {s(sT0)}, {4096-8}
    s_add_u32 {s(sH3s)}, {s(sH3p)}, 3072
    s_sub_u32 {s(sH3s)}, {s(sH3s)}, {s(sT0)}
    s_mov_b32 {s(sLAY)}, 0
    s_mov_b32 {s(sFH)}, {FH_}
    s_mul_i32 {s(sPR)}, {s(sNT)}, 7168
    s_add_u32 {s(sPR)}, {s(sPR)}, {FH3}
    s_mov_b32 {s(sPR+1)}, 112
    s_mov_b32 {s(sPURE)}, 0
    s_mov_b32 {s(sPUREH)}, 0
    s_getreg_b32 {s(sT2)}, hwreg(HW_REG_XCC_ID, 0, 4)
    s_and_b32 {s(sT2)}, {s(sT2)}, 7
    s_lshl_b32 {s(sT2)}, {s(sT2)}, 3
    s_lshl_b64 {s(sXP,2)}, 32, {s(sT2)}
    s_and_b32 {s(sT1)}, {s(sTB16)}, -8
    s_add_u32 {s(sT1)}, {s(sT1)}, {s(sNT)}
    s_lshl_b32 {s(sT1)}, {s(sT1)}, 7
    s_add_u32 {s(sT1)}, {s(sT1)}, {GH2}
    s_add_u32 {s(sT0)}, {s(sTB16)}, 1
    s_and_b32 {s(sT0)}, {s(sT0)}, 14
    s_cselect_b32 {s(sEDG)}, 1, 0
    s_cselect_b32 {s(sFHo)}, {s(sFHo)}, {s(sT1)}
    s_mul_i32 {s(s3L)}, {s(sW)}, 7168
    s_mul_i32 {s(s3G)}, {s(sW)}, {32*3584}
    s_mul_i32 {s(sT2)}, {s(sHP)}, 224
    s_add_u32 {s(s3G)}, {s(s3G)}, {s(sT2)}""")
    for q in range(7):
        k(f"v_add_u32 v72, {64*q}, v0\nv_mul_u32_u24 v72, 4682, v72\nv_lshrrev_b32 v72, 16, v72\n"
          f"v_mul_u32_u24 v72, 3360, v72\nv_add_u32 {v(vD3+q)}, v72, {v(vL16)}")
    if P("expb", 0):
        k(f"s_lshl_b32 {s(sT0)}, {s(sNT)}, 7\nv_subrev_u32 {v(vDB)}, {s(sT0)}, {v(vDB)}\ns_lshl_b32 {s(sT0)}, {s(sHP)}, 6\nv_subrev_u32 {v(vDQ)}, {s(sT0)}, {v(vDQ)}\n"
          f"s_and_b32 {s(sT0)}, {s(sHP)}, 12\ns_mul_i32 {s(sT0)}, {s(sT0)}, 224\ns_sub_u32 {s(s3G)}, {s(s3G)}, {s(sT0)}")
    if P("expa", 0):
        for w in (WQ, WO, W1, W2, W3, W4): k(f"s_mov_b32 {s(w+2)}, 0")
    k(f"s_xor_b32 {s(sV+1)}, {s(sV+1)}, 0x5bd1e995")
    bg(P("p1", 0) - P("p0", 0))
    late.extend(bgq); bgq.clear()
    k.wait(vm="x")
    for i in range(8):
        k(f"v_lshlrev_b32 {v(RES+2*i)}, 16, {v(64+i)}\nv_and_b32 {v(RES+2*i+1)}, 0xffff0000, {v(64+i)}")
    mark("xload")
    k(f"s_mov_b32 {s(XO)}, {s(sOUT)}\ns_mov_b32 {s(XO+1)}, {s(sOUT+1)}")

def selector(d):
    k(f"v_lshrrev_b32 {v(vT0)}, 2, v0\nv_xor_b32 {v(vT0)}, {v(vT0)}, v0\nv_and_b32 {v(vT0)}, 4, {v(vT0)}\n"
      f"v_cmp_eq_u32 vcc, 0, {v(vT0)}\nv_mov_b32 {v(vT0)}, 0x3f803f80\nv_cndmask_b32 {v(d)}, 0, {v(vT0)}, vcc")
    for i in range(1, 4): k(f"v_mov_b32 {v(d+i)}, {v(d)}")

def l0_only(fn):
    L = k.lab("l0")
    k(f"s_cmp_lg_u32 {s(sLAY)}, 0\ns_cbranch_scc1 {L}")
    fn()
    k(f"{L}:")

def x_pub():
    pub_tile(RES, FX, STX, 56)
    qKV(3, 8); bg(P("xa", 2))
    flag(sFBo, sPURE)
    mark("x.pub")
    def count():
        L = k.lab("cnt")
        k(f"""s_barrier
        s_cmp_lg_u32 {s(sW)}, 0
        s_cbranch_scc1 {L}
        s_lshr_b64 {s(sT0,2)}, {s(sXP,2)}, 5
        v_mov_b32 v56, {s(sT0)}
        v_mov_b32 v57, {s(sT1)}
        s_lshl_b32 {s(sT2)}, {s(sC)}, 5
        s_mov_b64 exec, 1
        buffer_atomic_add_x2 v[56:57], off, {s(DBG,4)}, {s(sT2)} sc1
        s_mov_b64 exec, -1
        {L}:""")
        n = len(k.vm)
        for f in late: f()
        del k.vm[n:]
    assert P("xa", 2) % 2 == 0 or not late
    l0_only(count)
    pref(2, vT0)
    if P("tf", 2) & 1:
        for va in (vPKV, vPA): k.vmem(f"buffer_load_dword {v(vJ)}, {v(va)}, {s(FLG,4)}, 0 offen sc1")
    bg(99)
    pref(3, vT0)

def qkv_att():
    AK, AV, AQ = 56, 72, 88
    FR = 104; CS = 128; STA = 160; RM = 168; PKD = 208
    vWq2, vCS, vV0, vV1, vKW = 240, 241, 242, 243, 244
    SEL = 196; QF = 200
    N0 = P("qn", 12)
    k(f"v_add_u32 {v(vWq2)}, 0x10000, {v(vWq)}")
    selector(SEL)
    k(f"""v_lshrrev_b32 {v(vT1)}, 5, v0
    v_lshlrev_b32 {v(vCS)}, 4, {v(vT1)}
    v_add_u32 {v(vCS)}, {CSQ}, {v(vCS)}
    v_lshlrev_b32 {v(vT1)}, 6, {v(vT1)}
    v_xor_b32 {v(vV0)}, {v(vT1)}, {v(vL16)}
    v_xor_b32 {v(vV1)}, 0x80, {v(vV0)}
    s_lshl_b32 {s(sT0)}, {s(sW)}, 12
    s_add_u32 {s(sT0)}, {s(sT0)}, {KVB + 8*4096}
    v_add_u32 {v(vKW)}, {s(sT0)}, {v(vL16)}
    v_add_u32 {v(vKW+1)}, {s(sT0)}, {v(vV0)}
    v_add_u32 {v(vKW+2)}, {s(sT0)}, {v(vV1)}
    s_mov_b32 {s(sT1)}, {STX}""")
    S0, S1, CM, MD, O0, O1 = 56, 72, 104, 40, 160, 176
    KF, VF, PP, MX = 208, (216, 220, 232), 224, 120
    vK, vVa, vVb, vDB2, vQW = 192, 193, 194, 195, 247
    vDec = 236; ONE = PQ + 1536
    k(f"""s_and_b32 {s(sT2)}, {s(sW)}, 2
    s_and_b32 {s(sT3)}, {s(sW)}, 1
    s_lshl_b32 {s(sT3)}, {s(sT3)}, 12
    s_add_u32 {s(sT3)}, {s(sT3)}, {KVB}
    v_bfe_u32 {v(vDec)}, v0, 4, 1
    v_bfe_u32 {v(vK)}, v0, 1, 1
    v_lshl_add_u32 {v(vT0)}, {v(vDec)}, 1, {v(vK)}
    v_xor_b32 {v(vT0)}, {s(sT2)}, {v(vT0)}
    v_cmp_eq_u32 vcc, 0, {v(vDec)}
    v_lshrrev_b32 {v(vK)}, 5, v0
    v_xor_b32 {v(vK)}, {v(vK)}, {v(vT0)}
    v_lshlrev_b32 {v(vT0)}, 9, {v(vT0)}
    v_lshl_add_u32 {v(vT0)}, {v(vK)}, 6, {v(vT0)}
    v_bfe_u32 {v(vK)}, v0, 2, 2
    v_lshl_add_u32 {v(vT0)}, {v(vK)}, 4, {v(vT0)}
    v_and_b32 {v(vK)}, 1, v0
    v_lshl_add_u32 {v(vT0)}, {v(vK)}, 3, {v(vT0)}
    v_and_b32 {v(vK)}, 0xff, {v(vT0)}
    v_add_u32 {v(vK)}, {ONE}, {v(vK)}
    v_add_u32 {v(vT0)}, {s(sT3)}, {v(vT0)}
    v_add_u32 {v(vT0)}, {10*4096 + 2048}, {v(vT0)}
    v_cndmask_b32 {v(vVa)}, {v(vK)}, {v(vT0)}, vcc
    v_xor_b32 {v(vDec)}, 1, {v(vDec)}
    v_lshlrev_b32 {v(vDec)}, 12, {v(vDec)}
    v_mov_b32 {v(vDec+2)}, 0x3f803f80
    v_mov_b32 {v(vDec+3)}, 0x3f803f80
    v_lshlrev_b32 {v(vDec+1)}, 3, v0
    v_add_u32 {v(vDec+1)}, {ONE}, {v(vDec+1)}
    v_xor_b32 {v(vVb)}, 0x80, {v(vVa)}
    v_lshlrev_b32 {v(vT0)}, v0, -2
    v_lshrrev_b32 {v(vK)}, 3, v0
    v_and_b32 {v(vK)}, 4, {v(vK)}
    v_lshrrev_b32 {v(vT0)}, {v(vK)}, {v(vT0)}
    s_lshl_b32 {s(sT2)}, {s(sT2)}, 9
    s_add_u32 {s(sT3)}, {s(sT3)}, {s(sT2)}
    v_add_u32 {v(vK)}, {s(sT3)}, {v(vL16)}
    s_add_u32 {s(sT3)}, {s(sW1K)}, {KVB}
    v_add_u32 {v(vQW)}, {s(sT3)}, {v(vL16)}
    v_lshl_add_u32 {v(vDB2)}, {s(sT2)}, 1, {v(vQW)}""")
    for i in range(16): k(f"v_bfe_i32 {v(MD+i)}, {v(vT0)}, {8*(i//4)+i%4}, 1\nv_and_b32 {v(MD+i)}, {NEG}, {v(MD+i)}")
    def rdq(dst, sp, b, tag):
        G = sp // 4
        for j in range(2):
            w_ = 2*((sp//2) % 2) + j
            off = G*8192 + w_*2048 + (b-1)*1024 if b else G*4096 + w_*1024
            k.ds(f"ds_read_b64_tr_b16 {v(dst+2*j,2)}, {v(vWq if b else vWq2)} offset:{off + (sp % 2)*512}", tag)
    def ldx(sp):
        k.vmem(f"buffer_load_dwordx4 {a(4*sp,4)}, {v(vA32)}, {s(ACT,4)}, {SK[sp//8]} offen offset:{(sp%8)*512} sc1", ("x", sp))
    mark("q.pre")
    poll(vPB32)
    mark("q.poll")
    for i in range(2): k.vmem(f"buffer_load_dwordx4 {v(STA+4*i,4)}, {v(vA32)}, {s(ACT,4)}, {s(sT1)} offen offset:{512*i} sc1", "st")
    for sp in range(N0): ldx(sp)
    def colsum(bs):
        nb = len(bs)
        if bs[0]: k(f"v_lshl_add_u32 {v(vT1)}, {s(sW)}, 11, {v(vWq)}")
        else: k(f"v_add_u32 {v(vT1)}, {s(sW1K)}, {v(vWq2)}")
        for i in range(8*nb + 5):
            if i < 8*nb:
                G, b = i // nb, bs[i % nb]
                for j in range(2):
                    off = G*8192 + (b-1)*1024 if b else G*4096
                    k.ds(f"ds_read_b64_tr_b16 {v(FR+4*(i%6)+2*j,2)}, {v(vT1)} offset:{off + j*512}", ("c", i))
            m = i - 5
            if m >= 0:
                k.wait(lg=("c", m)); c = v(AK + 4*(m % 2), 4)
                k(f"{M16} {c}, {v(SEL,4)}, {v(FR+4*(m%6),4)}, {c if m >= 2 else 0}")
        k(f"s_mul_i32 {s(sT0)}, {s(sW)}, 384\ns_add_u32 {s(sT0)}, {s(sT0)}, {PQ}\nv_and_b32 {v(vT1)}, 31, v0\n"
          f"v_lshl_add_u32 {v(vT1)}, {v(vT1)}, 2, {s(sT0)}")
        if nb == 1: k(f"v_add_f32 {v(AK)}, {v(AK)}, {v(AK+4)}")
        for n, b in enumerate(bs): k.ds(f"ds_write_b32 {v(vT1)}, {v(AK+4*n)} offset:{b*128}")
        k.wait(lg="all")
    l0_only(lambda: colsum((1, 2)))
    k("s_barrier")
    l0_only(lambda: sum_partials(16, 384, CSQ, CS, 8, PQ))
    for sp in range(2):
        for b in (1, 2): rdq(FR + 8*sp + 4*(b-1), sp, b, ("w", sp))
    for b in (1, 2):
        for q in range(4): k.ds(f"ds_read_b128 {v(CS+16*(b-1)+4*q,4)}, {v(vCS)} offset:{b*128+q*32}", "cs")
    with Rec() as fq:
        for i in (0, 1): k(f"v_add_f32 {v(STA+i)}, {v(STA+i)}, {v(STA+2+i)}\nv_add_f32 {v(STA+4+i)}, {v(STA+4+i)}, {v(STA+6+i)}")
        for i in (0, 1): k(f"v_add_f32 {v(STA+i)}, {v(STA+i)}, {v(STA+4+i)}")
        finish_stats(STA, RM, False)
        k(f"v_mul_f32 {v(RM+1)}, {v(RM)}, {v(RM+1)}")
        for i in range(32): k(f"v_mul_f32 {v(CS+i)}, {v(RM+1)}, {v(CS+i)}")
    qQ(0, 8)
    for sp in range(32):
        k.wait(vm=("x", sp), lg=("w", sp))
        for b, acc in ((1, AK), (2, AV)):
            k(f"{M32} {v(acc,16)}, {v(FR+8*(sp%3)+4*(b-1),4)}, {a(4*sp,4)}, {v(acc,16) if sp else 0}")
            if b == 1:
                if sp + N0 < 32: ldx(sp + N0)
                else: bg()
            if sp + 2 < 32: rdq(FR + 8*((sp+2) % 3) + 4*(b-1), sp + 2, b, ("w", sp + 2))
            if sp >= 2: emit(fq, 1)
        if sp == 31 - N0: pref(4, vT0)
    assert not fq and not bgq
    pref(5, vT0)
    k(f"s_cmp_eq_u32 {s(sLAY)}, 0\ns_cselect_b32 {s(WQ+2)}, {s(WQ+2)}, 0")
    mark("q.kv")
    for t in range(4):
        for i in range(8*t, 8*t + 8, 2): pk("fma", v(AK+i,2), v(AK+i,2), v(RM,2), v(CS+i,2), bsel=0)
        cvt(PKD + 4*t, AK + 8*t, 4)
        k.vmem(f"buffer_store_dwordx4 {v(PKD+4*t,4)}, {v((vL16, vL16, vV0, vV1)[t])}, {s(ACT,4)}, {s(sKVo)} offen offset:{t*1024} sc1", "pub")
        k.ds(f"ds_write_b128 {v((vKW, vKW, vKW+1, vKW+2)[t])}, {v(PKD+4*t,4)} offset:{t*1024}", "kw")
    k.ds(f"ds_write_b64 {v(vDec+1)}, {v(vDec+2,2)}", "kw")
    k.wait(vm="dma")
    l0_only(lambda: colsum((0,)))
    k("s_barrier")
    l0_only(lambda: sum_partials(8, 384, CSQ, CS, 0, PQ))
    def slot(n): return FR + 4*(n % 6)
    for sp in range(4): rdq(slot(sp), sp, 0, ("q", sp))
    with Rec() as f2:
        for q in range(4): k.ds(f"ds_read_b128 {v(CS+4*q,4)}, {v(vCS)} offset:{q*32}")
        k(f"""v_mul_f32 {v(RM)}, {f2u(0.25*LOG2E)}, {v(RM)}
        v_mul_f32 {v(RM+1)}, {f2u(0.25*LOG2E)}, {v(RM+1)}""")
        for i in range(16): k(f"v_mul_f32 {v(CS+i)}, {v(RM+1)}, {v(CS+i)}")
    f2.insert(6, lambda: k.wait(lg="fill"))
    pcs = [(WO, g, g*4096) for g in range(16)] + [(W1, g, 64*KB + g*4096) for g in (8, 9, 10, 0, 1, 2, 3, 4, 5, 6, 7)]
    def qP(n):
        for w in (WO, W1): qB(w, [x[1:] for x in pcs[:n] if x[0] == w])
        del pcs[:n]
    qP(P("aq", 8))
    for sp in range(32):
        k.wait(lg=("q", sp))
        k(f"{M32} {v(AQ,16)}, {v(slot(sp),4)}, {a(4*sp,4)}, {v(AQ,16) if sp else 0}")
        if sp + 4 < 32: rdq(slot(sp + 4), sp + 4, 0, ("q", sp + 4))
        emit(f2, 1 + (sp < 4))
        if sp == P("kvs", 16): flag(sFKVo, None, "all")
        for b, w in enumerate((WO, W1, W2)):
            if P("at", 0) >> b & 1 and sp == P("kvs", 16) + 1 + b*P("ats", 4): l2pre(w, 0, 4096, 6, 64, MX + 8 + 16)
        if sp > P("kvs", 16) and (31 - sp) * P("aq", 8) < len(bgq) * (31 - P("kvs", 16)): bg()
    assert not f2 and not bgq
    for i in range(0, 16, 2): pk("fma", v(AQ+i,2), v(AQ+i,2), v(RM,2), v(CS+i,2), bsel=0)
    cvt(QF, AQ, 8)
    mark("q.q")
    stop(2)
    U = [(0, -2, MD), (0, -1, 0), (0, 0, 0), (1, 0, MD)]
    for i in range(1, 7): U += [(0, i, CM if i == 6 else 0), (1, i, 0)]
    U += [(1, 7, 0), (1, 8, CM)]
    def qk(n):
        t, i, c = U[n]
        k(f"{M32} {v((S0,S1)[n%2],16)}, {v(KF+4*(i%2),4)}, {v(QF+4-4*t,4)}, {v(c,16) if c else 0}")
    def pv(n, u):
        t, i, c = U[n]; O = v((O0, O1)[t], 16)
        k(f"{M32} {O}, {v(VF[u*(1+i%2)],4)}, {v(PP+4*u,4)}, {0 if c == MD and not u else O}")
    def rdV(i):
        for u in range(2):
            for j in range(2): k.ds(f"ds_read_b64_tr_b16 {v(VF[u*(1+i%2)]+2*j,2)}, {v((vVa if i == -2 else vKW+1)+j)} offset:{u*256}")
    def decV(i):
        for j in range(2): k(f"v_sub_u32 {v(vKW+1+j)}, {v((vVa if i == -2 else vKW+1)+j)}, {v(vDec)}")
    def rdK(i, va=vK): k.ds(f"ds_read_b128 {v(KF+4*(i%2),4)}, {v(va)} offset:{(8-i)*4096}")
    def blk(n, u, at):
        S = (S0, S1)[n%2] + 8*u
        for i in range(12):
            for f in at.get(i, []): f()
            if i < 8: k(f"v_exp_f32 {v(S+i)}, {v(S+i)}")
            else: cvt(PP + 4*u + i - 8, S + 2*(i-8), 1)
    ext = {}
    KG = [int(c) for c in OPT.get("kg", "12346")]
    def kv_wait(d):
        if d in KG: k.wait(vm=("kv", min([x for x in KG if x > d] + [9]) - 1)); k("s_barrier")
    def half(m):
        n, u = divmod(m, 2); i = U[n][1]
        at = {p: list(f) for p, f in ext.get(m, {}).items()}
        def add(p, f): at.setdefault(p, []).insert(0, f)
        if n + 2 < 18 and n != 2 and U[n+2][1] != U[n+1][1]:
            d = U[n+2][1]
            if u == (d in KG): add(P("ak", 6) if u else 0, lambda: (kv_wait(d), rdK(d)))
        if u: add(1, lambda: (k.wait(lg="all"), pv(n, 0)))
        else:
            if n == 0 or U[n-1][1] != i:
                add(0, lambda: rdV(i))
                if i < 8: add(8, lambda: decV(i))
            if n + 1 < 18 and n != 3: add(0, lambda: (k.wait(lg="all"), qk(n + 1)))
            if n: add(P("av", 3) if n not in (3, 17) else 1, lambda: pv(n - 1, 1))
        blk(n, u, at)
    def put(m, p, f): ext.setdefault(m, {}).setdefault(p, []).append(f)
    def pl():
        k(f"v_lshlrev_b32 {v(vT0)}, 5, v0")
        k.vmem(f"buffer_load_dwordx2 {v(MX,2)}, {v(vT0)}, {s(DBG,4)}, 0 offen sc1")
        k.vmem(f"buffer_load_dwordx2 {v(vT1,2)}, {v(vPKV)}, {s(FLG,4)}, 0 offen sc1", "pl")
    AI = P("ai", 0)
    if AI == -1: pl()
    for g in range(2): k.ds(f"ds_write_b128 {v(vDB2)}, {v(QF+4*g,4)} offset:{g*2048}")
    barrier()
    rdK(-2)
    for g in (1, 0): k.ds(f"ds_read_b128 {v(QF+4*g,4)}, {v(vQW)} offset:{g*4096}")
    rdK(-1)
    if AI == 0: pl()
    for i in range(16): k(f"v_xor_b32 {v(CM+i)}, {NEG}, {v(MD+i)}")
    k.wait(lg="all"); qk(0)
    pref(6, vT0)
    AP = P("ap", 5)
    if AI > 0: put(AI - 1, 0, pl)
    qP(P("ab", 3))
    for n in range(len(bgq)): put(max(AI - 1, 0) + n//2, 4 + n%2*4, bg)
    for m in range(AP): half(m)
    assert not bgq
    k(f"s_add_u32 m0, {s(sW1K)}, {KVB + 7*4096}\ns_max_i32 {s(sT0)}, {s(sKVf)}, {s(sMT)}")
    mark("a.diag")
    k.wait(vm="pl")
    k(f"v_cmp_ne_u64 vcc, {s(sV,2)}, {v(vT1,2)}\ns_cbranch_vccnz att_p\natt_pb:")
    keep = list(k.vm)
    with Rec() as q:
        k("att_p:"); poll(vPKV); k("s_branch att_pb")
    cold.extend(q); k.vm[:] = keep
    mark("a.poll")
    for d in range(1, 9):
        if d > 1: k(f"s_sub_u32 m0, m0, {s(s4K)}\ns_sub_u32 {s(sT0)}, {s(sT0)}, {2*R2}\ns_max_i32 {s(sT0)}, {s(sT0)}, {s(sMT)}")
        k.vmem(f"buffer_load_dwordx4 {v(vL16)}, {s(ACT,4)}, {s(sT0)} offen sc1 lds", ("kv", d))
    k(f"v_readlane_b32 {s(sT0)}, {v(MX)}, {s(sC)}\nv_readlane_b32 {s(sT1)}, {v(MX+1)}, {s(sC)}")
    k(f"""s_cmp_eq_u64 {s(sT0,2)}, {s(sXP,2)}
    s_cselect_b32 {s(sPURE)}, 1, 0
    s_and_b32 {s(sPUREH)}, {s(sPURE)}, {s(sEDG)}
    s_add_u32 {s(sT0)}, s2, {s(sW)}
    s_cmp_lt_u32 {s(sT0)}, {s(sLAY)}
    s_cbranch_scc1 epoch
    epoch_b:""")
    cold.extend(f"""epoch:
    s_mov_b32 {s(sCNT)}, 0x8000
    epoch_l:
    buffer_load_dwordx2 {v(MX,2)}, {v(vT0)}, {s(DBG,4)}, 0 offen sc1
    s_sub_u32 {s(sCNT)}, {s(sCNT)}, 1
    s_cbranch_scc1 bail
    s_waitcnt vmcnt(0)
    v_sad_u8 {v(MX)}, {v(MX)}, 0, 0
    v_sad_u8 {v(MX)}, {v(MX+1)}, 0, {v(MX)}
    v_cmp_ne_u32 vcc, 32, {v(MX)}
    s_and_b32 {s(sT0)}, vcc_lo, 0xff
    s_cbranch_scc1 epoch_l
    s_add_u32 {s(sT0)}, {s(sV)}, 7
    v_mov_b32 {v(MX)}, {s(sT0)}
    s_mov_b32 {s(sT0)}, {E_OFF}
    s_mov_b64 exec, 1
    buffer_store_dword {v(MX)}, off, {s(FLG,4)}, {s(sT0)} sc1
    s_mov_b64 exec, -1
    s_branch epoch_b""".split("\n"))
    if P("t1", 1): touch(vT0, True)
    if P("tf", 2) & 2: k.vmem(f"buffer_load_dword {v(vJ)}, {v(vPH)}, {s(FLG,4)}, 0 offen sc1")
    pref(7, vT0)
    def kv_ready():
        kv_wait(1)
        mark("a.kv")
        rdK(1)
    qP(P("aw", 0))
    for n in range(len(bgq)): put(6 + n*2 // len(bgq), 2 + n % 6, bg)
    put(7, 8, kv_ready)
    if P("cp", 3) & 2: put(P("ct", 7), 8, lambda: l0_only(lambda: code_touch(vT0, False)))
    nw = len(bgq)
    qP(99)
    chain = []
    def dma():
        n = len(k.L); bg(); chain.extend(k.L[n:])
    A0_, A1_ = P("a0", 16), P("a1", 34); nd = len(bgq) - nw
    for n in range(nd):
        x = 2*A0_ + 2*(A1_ - A0_)*n // nd
        put(x // 2, 8 if nd <= A1_ - A0_ else 5 + x%2*3, dma)
    for m in range(AP, 36):
        if m in (8, 12, 24, 28):
            k(f"s_cmp_eq_u32 {s(sNTL)}, {m//4 - 2}\ns_cbranch_scc1 att_e{m}")
            with Rec() as q:
                k(f"att_e{m}:"); pv(m//2 - 1, 1)
                if m % 16 == 8 and m//4 in KG: k("s_barrier")
                k(f"s_branch att_r{m}")
            cold.extend(q)
            if m == 8: chain.clear()
            chain.append(f"att_r{m}:")
        if m == 8: k.wait(lg="all"); qk(4)
        half(m)
    assert not bgq
    pv(17, 1)
    k("att_rb:")
    cold.extend(chain + ["s_waitcnt lgkmcnt(0)", "s_branch att_rb"])
    mark("a.loop")
    k(f"""v_lshrrev_b32 {v(vT0)}, 5, v0
    v_lshl_add_u32 {v(vT0)}, {v(vT0)}, 8, {v(vA32)}
    s_lshr_b32 {s(sT1)}, {s(sW)}, 1
    s_mul_i32 {s(sT1)}, {s(sT1)}, {4*R2 - 8}
    v_subrev_u32 {v(vT0)}, {s(sT1)}, {v(vT0)}
    s_lshl_b32 {s(sT1)}, {s(sHP)}, 10
    s_add_u32 {s(sT1)}, {s(sT1)}, {FO}
    s_add_u32 {s(sT0)}, {s(sT1)}, {4*R2}""")
    pk("mul", v(MX,2), v(O0,2), 0)
    for i in range(2, 8, 2): pk("fma", v(MX,2), v(O0+i,2), 0, v(MX,2))
    for i in range(0, 8, 2): pk("fma", v(MX,2), v(O1+i,2), 0, v(MX,2))
    lo, hi = (127 - 48) << 23, (127 + 80) << 23
    k(f"""v_add_f32 {v(MX)}, {v(MX)}, {v(O0+8)}
    v_add_f32 {v(MX+1)}, {v(MX+1)}, {v(O1+8)}
    v_subrev_u32 {v(MX)}, {lo}, {v(MX)}
    v_subrev_u32 {v(MX+1)}, {lo}, {v(MX+1)}
    v_max_u32 {v(MX)}, {v(MX)}, {v(MX+1)}
    v_cmp_lt_u32 vcc, {hi - lo if not P("fb", 0) else 0}, {v(MX)}
    s_cbranch_vccnz att_x
    att_xb:
    v_rcp_f32 {v(MX)}, {v(O0+8)}
    v_rcp_f32 {v(MX+1)}, {v(O1+8)}""")
    C0, C1_ = 88, 104
    U[:] = [(0, 8, C0), (1, 8, C1_)]
    with Rec() as q:
        k(f"att_x:\ns_mov_b32 {s(sCNT)}, 0\nv_mov_b32 {v(MX)}, {NEG}\nv_mov_b32 {v(MX+1)}, {NEG}\nv_mov_b32 {v(MX+2)}, 0\nv_mov_b32 {v(MX+3)}, 0")
        for i in range(32): k(f"v_mov_b32 {v(O0+i)}, 0")
        k(f"att_xp:\ns_mov_b32 {s(sIT)}, 0")
        for i in range(3): k(f"v_add_u32 {v(vKW+i)}, {0 if i else 10*4096}, {v(vK+i)}")
        k("att_xl:")
        rdK(8, vKW); rdV(8)
        for t, C, m1, m2 in ((0, C0, 0x101, 0x700), (1, C1_, 0x404, 0x403)):
            k(f"s_bitcmp1_b32 {m1}, {s(sIT)}\ns_cselect_b32 {s(sT2)}, -1, 0\ns_bitcmp1_b32 {m2}, {s(sIT)}\ns_cselect_b32 {s(sT3)}, {NEG}, 0")
            for i in range(16): k(f"v_and_b32 {v(C+i)}, {s(sT2)}, {v(MD+i)}\nv_xor_b32 {v(C+i)}, {s(sT3)}, {v(C+i)}\nv_add_f32 {v(C+i)}, {v(C+i)}, {v(MX+2+t)}")
        k(f"v_subrev_u32 {v(vKW)}, {s(s4K)}, {v(vKW)}"); decV(8)
        k("s_waitcnt lgkmcnt(0)"); qk(0); qk(1)
        k(f"s_cmp_lg_u32 {s(sCNT)}, 0\ns_cbranch_scc1 att_x2")
        for h, S in enumerate((S0, S1)):
            for i in range(0, 16, 2): k(f"v_max3_f32 {v(MX+h)}, {v(MX+h)}, {v(S+i)}, {v(S+i+1)}")
        k("s_branch att_xn\natt_x2:")
        for h in range(2):
            for u in range(2): blk(h, u, {}); pv(h, u)
        k(f"""att_xn:
        s_add_u32 {s(sIT)}, {s(sIT)}, 1
        s_add_u32 {s(sT2)}, {s(sNTL)}, 2
        s_cmp_le_u32 {s(sIT)}, {s(sT2)}
        s_cbranch_scc1 att_xl
        s_cmp_lg_u32 {s(sCNT)}, 0
        s_cbranch_scc1 att_xb
        s_mov_b32 {s(sCNT)}, 1
        v_permlane32_swap_b32 {v(MX)}, {v(MX+1)}
        v_max_f32 {v(MX)}, {v(MX)}, {v(MX+1)}
        v_sub_f32 {v(MX+2)}, 0, {v(MX)}
        v_mov_b32 {v(MX+3)}, {v(MX+2)}
        v_permlane32_swap_b32 {v(MX+2)}, {v(MX+3)}
        s_branch att_xp""")
    cold.extend(q)
    for t, O in enumerate((O0, O1)):
        for i in range(0, 8, 2): pk("mul", v(O+i,2), v(O+i,2), v(MX,2), bsel=t)
        cvt(PP + 4*t, O, 4)
    dual([f"buffer_store_dwordx2 {v(PP+4*t+2*q,2)}, {v(vT0)}, {s(ACT,4)}, {s(sT0+t)} offen offset:{q*256}" for t in range(2) for q in range(2)], sPURE)
BX = 56
def gemmB(acc, va, cinit, nxt=None, bases=None, fq=None, nbg=1, pre=None, mid=None, b0=8):
    N0 = P("bn", 12)
    def ld(st):
        k.vmem(f"buffer_load_dwordx4 {v(BX+4*st,4)}, {v(va[st//4])}, {s(ACT,4)}, {SK[st//4]} offen offset:{(st%4)*1024} sc1", ("x", st))
    for st in range(N0):
        ld(st)
        if pre: emit(pre, -(-len(pre) // (N0 - st)))
    if pre is not None: k.wait(lg="all")
    for st in range(16):
        if st == 8 and mid: mid()
        k.wait(vm=("x", st))
        for fb in range(4):
            c = v(acc + 4*fb, 4); n = 4*st + fb
            k(f"{M16} {c}, {a(4*n,4)}, {v(BX+4*st,4)}, {c if (st or cinit) else 0}")
            if fb == 0:
                if st + N0 < 16: ld(st + N0)
                elif st >= b0: bg(nbg)
            if nxt and n: rd_fragB(A0 + 4*(n-1), nxt[(n-1)//4], (n-1) % 4, bases, "fill")
            if fq and fb: emit(fq, 1)
    if fq: emit(fq)
    if nxt: rd_fragB(A0 + 4*63, nxt[15], 3, bases, "fill")

def wo_w1_w2():
    VB, TMP, vAD = 120, 128, 144
    ACC, CS1, ONES, STA, RM, KK, G0 = 160, 176, 192, 196, 200, 204, 208
    k(f"v_add_u32 {v(vAD)}, {FO}, {v(vA16)}")
    bases = rb_bases(VB, [0, 1])
    k.wait(vm="dma")
    k("s_barrier")
    qB(W1, [(g, 64*KB + g*4096) for g in range(11, 16)]); q3([3])
    with Rec() as fq: fill([g*4096 for g in range(16)], A0, bases)
    n = P("of0", 48); mix(fq[:n], 12, P("oa", 3)); del fq[:n]
    flag(sFAo, sPURE)
    mark("a.pub")
    stop(3)
    if P("t2", 0): touch(vT0, True)
    if P("tf", 2) & 4: k.vmem(f"buffer_load_dword {v(vJ)}, {v(vPH)}, {s(FLG,4)}, 0 offen sc1")
    n = P("of1", 32); mix(fq[:n], 6, P("ow", 5)); del fq[:n]
    assert len(bgq) <= 4
    poll(vPA)
    mark("wo.poll")
    def mid():
        assert not bgq
        k("s_barrier"); qB(W2, [(g, g*4096) for g in range(16)])
    gemmB(RES, [vAD]*4, True, [64*KB + g*4096 for g in range(16)], bases, pre=fq, mid=mid, b0=4)
    mark("wo.gemm")
    pub_tile(RES, FX2, STX2, TMP)
    bg(P("wp", 4))
    k(f"v_add_u32 {v(vAD)}, {FX2}, {v(vA16)}\ns_mov_b32 {s(sT3)}, {STX2}\nv_and_b32 {v(vT0)}, 0x30, v0\nv_add_u32 {v(vT0)}, {CS1L}, {v(vT0)}")
    k.wait(lg="all")
    def cs(lo, hi):
        if not lo:
            for i in range(4): k(f"v_mov_b32 {v(ONES+i)}, 0x3f803f80")
        for m in range(lo, hi):
            c = v(CS1 + 4*(m % 4), 4)
            k(f"{M16} {c}, {a(4*m,4)}, {v(ONES,4)}, {c if m >= 4 else 0}")
        if lo:
            for i in range(4): k(f"ds_write_b128 {v(vT0)}, {v(CS1+4*i,4)} offset:{64*i}")
    l0_only(lambda: cs(0, 24))
    flag(sFBo, sPURE)
    mark("wo.pub")
    stop(4)
    k("s_barrier")
    assert len(bgq) <= P("x2w", 4)
    q3([1, 2]); bg(P("x2w", 4))
    l0_only(lambda: cs(24, 64))
    for i in range(4): k.ds(f"ds_read_b128 {v(CS1+4*i,4)}, {v(vT0)} offset:{64*i}", "fill")
    poll(vPB16)
    mark("w1.poll")
    k.vmem(f"buffer_load_dwordx4 {v(STA,4)}, {v(vA16)}, {s(ACT,4)}, {s(sT3)} offen sc1", "st")
    with Rec() as fq:
        for i in (0, 1): k(f"v_add_f32 {v(STA+i)}, {v(STA+i)}, {v(STA+2+i)}")
        finish_stats(STA, RM, True)
        k(f"v_mul_f32 {v(STA)}, {v(RM)}, {v(RM)}\nv_fmaak_f32 {v(STA)}, {v(STA)}, {v(RM+2)}, {f2u(1e-5)}\nv_rsq_f32 {v(STA)}, {v(STA)}\n"
          f"v_mul_f32 {v(RM+2)}, {v(RM)}, {v(RM+1)}\nv_mul_f32 {v(STA)}, {v(RM)}, {v(STA)}")
        gelu_scale(STA, KK)
    gemmB(ACC, [vAD]*4, False, [g*4096 for g in range(16)], bases, fq, mid=lambda: k("s_barrier"), b0=P("b1", 4))
    mark("w1.gemm")
    k.wait(lg="all")
    with Rec() as fq:
        gelu(ACC, 16, G0, CS1, RM, KK)
        cvt(TMP, ACC, 8)
    mix(fq, 24, 2)
    dual([f"buffer_store_dwordx4 {v(TMP+4*i,4)}, {v(vP16)}, {s(ACT,4)}, {s(sFH)} offen offset:{1024*i}" for i in range(2)], sPUREH)
    mark("w1.epi")
    k("s_barrier")
    qB(W4, [(g, W4S[g]) for g in range(11)]); q3([0])
    bg(P("ha", 4))
    for i in range(0, 16, 2): pk("fma", v(XB+i,2), v(RES+i,2), v(RM,2), v(RM+2,2), bsel=0, csel=0)
    T = G0
    k(f"s_lshl_b32 {s(sT0)}, {s(sTB16)}, 4\nv_and_b32 {v(T+3)}, 15, v0\nv_add_u32 {v(T+3)}, {s(sT0)}, {v(T+3)}\n"
      f"v_and_b32 {v(T+4)}, 0x300, {v(vL16)}\nv_add_u32 {v(T+4)}, {s(sFH)}, {v(T+4)}\nv_mov_b32 {v(T+2)}, 0x80000000")
    for i, d in enumerate((-1, 1, -2, 2)):
        k(f"""v_add_u32 {v(vT0)}, {d}, {v(T+3)}
        v_cmp_gt_u32 vcc, 0x800, {v(vT0)}
        v_lshrrev_b32 {v(T)}, 4, {v(vT0)}
        v_and_b32 {v(vT0)}, 15, {v(vT0)}
        v_mad_u32_u24 {v(T)}, {v(T)}, {s(s2R)}, {v(T+4)}
        v_lshl_add_u32 {v(T)}, {v(vT0)}, 4, {v(T)}
        v_cndmask_b32 {v(vAD+i)}, {v(T+2)}, {v(T)}, vcc""")
    flag(sFHo, sPUREH, sEDG)
    mark("w1.pub")
    stop(5)
    bg(P("hw", 6))
    poll(vPH)
    mark("w2.poll")
    gemmB(XB, [vAD+i for i in range(4)], True, b0=P("b2", 8))
    mark("w2.gemm")
    assert len(bgq) <= 7
    pub_tile(XB, FX1, STX1, TMP)
    bg(99)
    for i in range(0, 16, 2): pk("add", v(RES+i,2), v(RES+i,2), v(XB+i,2))

def wback():
    L = k.lab("wb")
    k(f"s_lshr_b32 {s(sM1)}, s2, 3\ns_add_u32 {s(sM1)}, {s(sM1)}, {s(sW)}\ns_cmp_ge_u32 {s(sM1)}, {s(sLAY)}\ns_cbranch_scc1 {L}\nbuffer_wbl2 sc1\n{L}:")

def w3_w4():
    ACC, FR, BX0, BX1 = 56, 112, 168, A0 + 176
    STA, RM, vW, vAD, KK, VB = 156, 240, 140, 146, 148, 232
    CS = 112
    k(f"""v_lshrrev_b32 {v(vT0)}, 2, v0
    v_mul_u32_u24 {v(vT0)}, 224, {v(vT0)}
    v_and_b32 {v(vT1)}, 3, v0
    v_lshl_add_u32 {v(vT0)}, {v(vT1)}, 3, {v(vT0)}
    s_and_b32 {s(sT0)}, {s(sHP)}, 1
    s_lshl_b32 {s(sT1)}, {s(sT0)}, 5
    s_mul_i32 {s(sT0)}, {s(sT0)}, 192
    s_sub_u32 {s(sT0)}, {W3A + 192}, {s(sT0)}
    s_add_u32 {s(sT1)}, {s(sT1)}, {W3A}
    v_add_u32 {v(vW)}, {s(sT1)}, {v(vT0)}
    v_add_u32 {v(vW+1)}, {s(sT0)}, {v(vT0)}
    v_add_u32 {v(vW+2)}, {W3H - W3A}, {v(vW)}
    v_add_u32 {v(vW+3)}, {W3H - W3A}, {v(vW+1)}
    v_add_u32 {v(vAD)}, {FX1}, {v(vA3)}
    v_add_u32 {v(vAD+1)}, {FX1 + R2}, {v(vA3)}
    s_mov_b32 {s(sT3)}, {STX1 - FX1}""")
    bases = rb_bases(VB, [0, 1, 2])
    flag(sFBo, sPURE)
    mark("w2.pub")
    stop(6)
    k("s_barrier")
    fill(W4S, A0, bases)
    def rd3(dst, base, st, b, tag):
        for j in range(2):
            off = (st % 8)*7168 + j*3584 + (b*32 if b < 6 else 0)
            k.ds(f"ds_read_b64_tr_b16 {v(dst+2*j,2)}, {v(base + 2*(st//8) + (b == 6))} offset:{off}", tag)
    mark("w3.fill")
    poll(vPB32)
    mark("w3.poll")
    for t in range(2): k.vmem(f"buffer_load_dwordx4 {v(STA+4*t,4)}, {v(vAD+t)}, {s(ACT,4)}, {s(sT3)} offen sc1", "st")
    for st in range(16):
        for t, B in enumerate((BX0, BX1)):
            bgq.append(lambda st=st, t=t, B=B: k.vmem(f"buffer_load_dwordx4 {r(B+4*st,4)}, {v(vAD+t)}, {s(ACT,4)}, {SK[st//4]} offen offset:{(st%4)*1024} sc1", ("x", st)))
    bg(P("n3", 10))
    k.wait(lg="all")
    def colsum():
        for i in range(4): k(f"v_add_u32 {v(XB+i)}, {s(s3L)}, {v(vW+i)}\nv_mov_b32 {v(XB+4+i)}, 0x3f803f80")
        for i in range(28 + 5):
            if i < 28: rd3(FR + 4*(i % 6), XB, 4*(i//7), i % 7, ("c", i))
            m = i - 5
            if m >= 0:
                k.wait(lg=("c", m)); c = v(ACC + 4*(m % 7), 4)
                k(f"{M16} {c}, {v(XB+4,4)}, {v(FR+4*(m%6),4)}, {c if m >= 7 else 0}")
        k(f"s_mul_i32 {s(sT0)}, {s(sW)}, 448\ns_add_u32 {s(sT0)}, {s(sT0)}, {PART}\nv_and_b32 {v(vT1)}, 15, v0\n"
          f"v_lshl_add_u32 {v(vT1)}, {v(vT1)}, 2, {s(sT0)}")
        for b in range(7): k.ds(f"ds_write_b32 {v(vT1)}, {v(ACC+4*b)} offset:{b*64}")
        k.wait(lg="all")
    l0_only(colsum)
    k("s_barrier")
    l0_only(lambda: sum_partials(28, 448, CS3, FR))
    qB(W4, [(11 + g, W4S[g]) for g in range(11)])
    if P("t3", 1): bgq.append(lambda: touch(vT1, False))
    if P("pq", 0) == 2: bgq.append(lambda: prefq(2, vT1))
    if P("cp", 3) & 4: bgq.append(lambda: code_touch(41, False))
    if P("wb", 2) & 1: bgq.append(wback)
    at = len(bgq) - P("t4p", 0)
    if P("t4", 1) & 2: bgq.insert(at, lambda: l2pre(W4, 704*KB, 8*KB, 7, 64, vT1))
    if P("t4", 1) & 1: bgq.insert(at, lambda: l2pre(W4, 704*KB + 384, 9*KB, 10, 9, vT1))
    D = 5
    for n in range(D): rd3(FR + 4*n, vW, 0, n, ("w", n))
    with Rec() as fq:
        for t in range(2):
            for i in (0, 1): k(f"v_add_f32 {v(STA+4*t+i)}, {v(STA+4*t+i)}, {v(STA+4*t+2+i)}")
            finish_stats(STA + 4*t, RM + 4*t, True)
            gelu_scale(RM + 4*t, KK + 4*t)
        k(f"v_and_b32 {v(vT0)}, 0x30, v0\nv_add_u32 {v(vT0)}, {CS3}, {v(vT0)}")
    for n in range(112):
        st, b = divmod(n, 7)
        k.wait(vm=("x", st), lg=("w", min(n + 1, 111)) if n % 2 == 0 else None)
        for t, B in enumerate((BX0, BX1)):
            c = v(ACC + 28*t + 4*b, 4)
            k(f"{M16} {c}, {v(FR+4*(n%7),4)}, {r(B+4*st,4)}, {c if st else 0}")
            if t == 0 and n + D < 112: rd3(FR + 4*((n+D) % 7), vW, (n+D)//7, (n+D) % 7, ("w", n + D))
            if t == 1:
                if n % 2 and bgq: bg()
                elif n % 2: emit(fq, 2)
                else: emit(fq, 1)
    assert not fq and not bgq
    mark("w3.gemm")
    k(f"v_add_u32 {v(vAD)}, {R2}, {v(vA3)}")
    for b in range(7): k.ds(f"ds_read_b128 {v(CS+4*b,4)}, {v(vT0)} offset:{b*64}")
    k.wait(vm="dma")
    barrier()
    mark("w3.bar")
    prefq(1, vT1)
    qB(W4, [(22 + g, W4C[g]) for g in range(28)])
    G0, PKD = 168, 196
    for t in range(2):
        A = ACC + 28*t
        with Rec() as fq:
            gelu(A, 28, G0, CS, RM + 4*t, KK + 4*t)
            cvt(PKD + 16*t, A, 14)
        mix(fq, 12, P("e0", 12) if t == 0 else P("e1", 8))
        va = vA3 if t == 0 else vAD
        dual([f"buffer_store_dwordx4 {v(PKD+16*t+4*p,4)}, {v(va)}, {s(ACT,4)}, {s(sH3p)} offen offset:{p*1024}" for p in range(3)] +
             [f"buffer_store_dwordx2 {v(PKD+16*t+12,2)}, {v(va)}, {s(ACT,4)}, {s(sH3s)} offen"], sPURE)
    mark("w3.epi")
    NR = 16
    RING, AR, BV, vH = 136, 200, 40, 240
    with Rec() as fq:
        fill(W4S[:5], A0 + 176, bases); fill(W4S[5:], BV, bases)
    nf = P("h3f", 56)
    f0 = fq[:nf]; mix(f0, 12, P("h3a", 4))
    for i in range(4): k(f"v_add_u32 {v(vH+i)}, {FH3 + i*16384}, {v(vA16)}")
    flag(sFAo, sPURE)
    mark("w3.pub")
    stop(7)
    mix(fq[nf:], 8, len(bgq))
    barrier()
    qB(W4, [(50 + g, W4S[g]) for g in range(6)]); bg(99)
    src = {}
    for g in range(16): src[g] = ("r", A0 + 16*g)
    for g in range(6): src[16+g] = ("r", BV + 16*g)
    for g in range(28): src[22+g] = ("l", W4C[g])
    for g in range(6): src[50+g] = ("l", W4S[g])
    regs = [g for g in range(56) if src[g][0] == "r"]
    lds = sorted((g for g in range(56) if src[g][0] == "l"), key=lambda g: src[g][1] >= 64*KB)
    order = []
    for i in range(56):
        order.append(regs.pop(0) if regs and (i < 2 or i % 5 in (1, 3) or not lds) else lds.pop(0))
    nlow = max(i for i, g in enumerate(order) if src[g][0] == "l" and src[g][1] < 64*KB) + 1
    assert sorted(order) == list(range(56)) and nlow <= 38
    TQ = P("tq", 12)
    if TQ:
        k(f"s_lshr_b32 {s(sT2)}, s2, 3\ns_lshl2_add_u32 {s(sT2)}, {s(sT2)}, {s(sW)}\ns_mul_i32 {s(sT2)}, {s(sT2)}, 12288\n"
          f"v_lshl_add_u32 {v(vH+4)}, v0, {int(math.log2(192//TQ))}, {s(sT2)}")
    tqo = sorted((n*12288//TQ for n in range(TQ)), key=lambda o: o % 3072 < 1024)[:P("tqn", 99)]
    tq = {P("tq0", 1) + n*P("tqs", 4): o for n, o in enumerate(tqo)}
    mark("w4.fill")
    poll(vPA)
    mark("w4.poll")
    def ldx(i):
        g = order[i]
        k.vmem(f"buffer_load_dwordx4 {v(RING+4*(i%NR),4)}, {v(vH+g//16)}, {s(ACT,4)}, {SK[(g//4)%4]} offen offset:{(g%4)*1024} sc1", ("x", i))
    N0 = P("n4", 12)
    for i in range(N0): ldx(i)
    k("s_barrier")
    lf = [(i, fb) for i in range(56) if src[order[i]][0] == "l" for fb in range(4)]
    pos = {x: n for n, x in enumerate(lf)}
    nxt = 0; used = 0
    for i in range(56):
        kind, loc = src[order[i]]
        if i == 40: k("s_barrier"); qKV(0, 3)
        for fb in range(4):
            if kind == "l":
                n = pos[(i, fb)]; A = v(AR + 4*(n % 8), 4)
                assert n + 1 - fb % 2 < nxt
                k.wait(vm=("x", i), lg=("w", n + 1) if fb % 2 == 0 else None)
            else:
                k.wait(vm=("x", i)); A = r(loc + 4*fb, 4)
            c = v(RES + 4*fb, 4)
            k(f"{M16} {c}, {A}, {v(RING+4*(i%NR),4)}, {c}")
            if fb == 0:
                if i + N0 < 56: ldx(i + N0)
                elif (55 - i) % 2 or N0 < 12: bg()
            if fb == 2 and i == P("wbi", 44) and P("wb", 2) & 2: wback()
            if fb == 2 and i == P("sq", -1): l2pre(WQ, 384, 12*KB, 10, 12, vT1)
            if fb == 2 and i in tq: k.vmem(f"buffer_load_dword {v(vJ)}, {v(vH+4)}, {s(WQ,4)}, {SK[tq[i]//4096]} offen offset:{tq[i]%4096}")
            if nxt < len(lf) and nxt - used < 7:
                rd_fragB(AR + 4*(nxt % 8), src[order[lf[nxt][0]]][1], lf[nxt][1], bases, ("w", nxt)); nxt += 1
            if kind == "l": used += 1
    assert not bgq
    k.vm.clear(); k.vm.append("dma")
    mark("w4.gemm")

def final():
    k(f"""v_and_b32 v57, 15, v0
    v_lshrrev_b32 v58, 4, v0
    s_lshl_b32 {s(sT0)}, {s(sTB16)}, 14
    s_lshl_b32 {s(sT1)}, {s(sNT)}, 7
    s_add_u32 {s(sT0)}, {s(sT0)}, {s(sT1)}
    v_lshlrev_b32 v56, 10, v57
    v_lshl_add_u32 v56, v58, 3, v56""")
    cvt(64, RES, 8)
    for f in range(4): k(f"buffer_store_dwordx2 {v(64+2*f,2)}, v56, {s(XO,4)}, {s(sT0)} offen offset:{32*f}" + ["", " sc1", " nt", " sc0 sc1"][P("os", 0)])

def main():
    prologue()
    k("layer:")
    k.vm.append("dma")
    n0 = nmark[0]
    x_pub()
    mark("x.dma")
    stop(1)
    qkv_att()
    wo_w1_w2()
    w3_w4()
    k(f"s_cmp_lg_u32 {s(sLAY)}, 0\ns_cbranch_scc1 done")
    k(f"s_mov_b32 {s(sLAY)}, 1\ns_bitset1_b32 {s(sFHo)}, 18\ns_bitset1_b32 {s(sFKVo)}, 18\nv_or_b32 {v(vPH)}, 0x40000, {v(vPH)}\nv_or_b32 {v(vPKV)}, 0x40000, {v(vPKV)}\n"
      f"s_add_u32 {s(sFH)}, {s(sFH)}, 0x4000\ns_add_u32 {s(sKVo)}, {s(sKVo)}, {s(s32K)}\ns_add_u32 {s(sKVf)}, {s(sKVf)}, {s(s32K)}\ns_add_u32 {s(sMT)}, {s(sMT)}, {s(s32K)}")
    if PROF: k(f"v_mov_b32 {v(vPR2)}, {v(vPR)}")
    k("s_branch layer\ndone:")
    final()
    if P("fw", 1): k("s_waitcnt vmcnt(0)")
    if OPT.get("cyc"):
        k("s_memtime s[94:95]\ns_memrealtime s[92:93]\ns_waitcnt lgkmcnt(0)\ns_sub_u32 s94, s94, s96\ns_lshr_b32 s96, s94, 3")
        k("cy_l:\ns_sleep 4\ns_memrealtime s[94:95]\ns_waitcnt lgkmcnt(0)\ns_sub_u32 s94, s94, s92\ns_cmp_lt_u32 s94, s96\ns_cbranch_scc1 cy_l")
    if TM:
        mark("end")
        k("tm_l:\ns_sleep 4\ns_memrealtime s[94:95]\ns_waitcnt lgkmcnt(0)\ns_sub_u32 s94, s94, s92\ns_cmp_lt_u32 s94, 15000\ns_cbranch_scc1 tm_l")
    if PROF:
        mark("end")
        k(f"s_memrealtime {s(sPT,2)}\ns_waitcnt lgkmcnt(0)\nv_writelane_b32 {v(vPR)}, {s(sPT)}, 63")
        k(f"""s_add_u32 {s(DBG)}, {s(FLG)}, {PROF_OFF}
        s_addc_u32 {s(DBG+1)}, {s(FLG+1)}, 0
        s_mov_b32 {s(DBG+2)}, 0x100000
        s_lshl_b32 {s(sT0)}, s2, 2
        s_add_u32 {s(sT0)}, {s(sT0)}, {s(sW)}
        s_lshl_b32 {s(sT0)}, {s(sT0)}, 9
        v_lshlrev_b32 v56, 2, v0
        buffer_store_dword {v(vPR2)}, v56, {s(DBG,4)}, {s(sT0)} offen
        buffer_store_dword {v(vPR)}, v56, {s(DBG,4)}, {s(sT0)} offen offset:256""")
    k("bail:\ns_endpgm")
    for t in cold: k(t)
    k("text_end:")
    body, nn = fix_hazards(k.L)
    if P("al", 1):
        body, c = align(body, {"layer": 2, "done": 1, "bail": 0}, {})
        print("align cost", c, "wide", sum("_e64" in t for t in body))
    ref = open(f"cdna_kernels/{NAME}.s.ref").read().split("\n")
    hd = [l for l in ref[:ref.index(f"{NAME}_kernel:") + 1]]
    hd = ["; @launch grid=(256,1,1) block=(256,1,1) lds=163840" if l.startswith("; @launch") else l for l in hd]
    tl = ref[ref.index('.section .rodata,"a"'):]
    tl = [l.replace("next_free_vgpr 256", "next_free_vgpr 512") for l in tl]
    out = hd + [("" if t.endswith(":") else "    ") + t for t in body] + tl
    open(sys.argv[1], "w").write("\n".join(out))
    if PROF: open(sys.argv[1] + ".marks", "w").write(" ".join(marks))
    print("instructions", len(body), "nops", nn)

main()
```
